```python
import torch

def _softmax(x, axis=-1):
    return torch.softmax(x, dim=axis)
def _gelu(x):
    return torch.nn.functional.gelu(x, approximate="tanh")
def _silu(x):
    return torch.nn.functional.silu(x)
def _sigmoid(x):
    return torch.sigmoid(x)
def _layernorm(x, axis=-1, eps=1e-5):
    m = x.mean(dim=axis, keepdim=True)
    v = x.var(dim=axis, keepdim=True, unbiased=False)
    return (x - m) / torch.sqrt(v + eps)
def _scatter_add(tgt, idx, src, axis=0):
    return tgt.clone().index_add_(axis, idx, src)
def _segment_sum(src, seg, n):
    out = torch.zeros((n,) + src.shape[1:], dtype=src.dtype)
    return out.index_add_(0, seg, src)
def _pad(x, pw):
    flat = tuple(v for pair in reversed(pw) for v in pair)
    return torch.nn.functional.pad(x, flat)

kernel_name = 'parallel_sum__sliding_block_cached__glu_gated_swiglu__decode'

def setup_inputs():

    _w = (lambda a: (lambda t: t.to(torch.bfloat16) if t.is_floating_point() else t)(torch.as_tensor(a)))
    def _A_setup():
        B, Sq, D = 2, 1, 512
        Hq, Hkv, Sk, Dh = 32, 32, 16384, 128
        assert Hq % Hkv == 0, (Hq, Hkv)
        return {
            "x": _w((lambda *s: torch.randn(*s, dtype=torch.bfloat16) * 0.05)(B, Sq, D)),
            "k_cache": _w((lambda *s: torch.randn(*s, dtype=torch.bfloat16) * 1.6)(B, Hkv, Sk, Dh)),
            "v_cache": _w((lambda *s: torch.randn(*s, dtype=torch.bfloat16) * 0.8)(B, Hkv, Sk, Dh)),
            "wq": _w((lambda *s: torch.randn(*s, dtype=torch.bfloat16) * 1.6)(D, Hq * Dh) * (D ** -0.5)),
            "wo": _w((lambda *s: torch.randn(*s, dtype=torch.bfloat16) * 0.8)(Hq * Dh, D) * ((Hq * Dh) ** -0.5)),
        }
    _A_in = _A_setup()

    def _B_setup():
        B, S, D, F = 2, 1, 512, 1376
        return {
            "x": _w((lambda *s: torch.randn(*s, dtype=torch.bfloat16) * 0.05)(B, S, D)),
            "w1": _w((lambda *s: torch.randn(*s, dtype=torch.bfloat16) * 0.4)(D, F) * (2.0 / D) ** 0.5),
            "w3": _w((lambda *s: torch.randn(*s, dtype=torch.bfloat16) * 0.4)(D, F) * (2.0 / D) ** 0.5),
            "w2": _w((lambda *s: torch.randn(*s, dtype=torch.bfloat16) * 0.4)(F, D) * (2.0 / F) ** 0.5),
        }
    _B_in = _B_setup()

    return {
        "A_x": _A_in["x"],
        "A_k_cache": _A_in["k_cache"],
        "A_v_cache": _A_in["v_cache"],
        "A_wq": _A_in["wq"],
        "A_wo": _A_in["wo"],
        "B_x": _B_in["x"],
        "B_w1": _B_in["w1"],
        "B_w3": _B_in["w3"],
        "B_w2": _B_in["w2"],
    }

def reference(A_x, A_k_cache, A_v_cache, A_wq, A_wo, B_x, B_w1, B_w3, B_w2):
    def _A_ref(x, k_cache, v_cache, wq, wo):
        B, Sq, D = x.shape
        Hq, Dh = 32, 128
        Hkv, Sk = k_cache.shape[1], k_cache.shape[2]
        W = min(4096, max(256, Sk // 4))
        rep = Hq // Hkv
        q = (lambda x, *d: x.permute(*d))((x @ wq).reshape(B, Sq, Hq, Dh), 0, 2, 1, 3)
        k = (lambda x, n, axis: torch.repeat_interleave(x, n, dim=axis))(k_cache[:, :, Sk - W:, :], rep, axis=1)
        v = (lambda x, n, axis: torch.repeat_interleave(x, n, dim=axis))(v_cache[:, :, Sk - W:, :], rep, axis=1)
        scores = torch.einsum("bhqd,bhkd->bhqk", q, k) * (Dh ** -0.5)
        p = _softmax(scores, axis=-1)
        o = torch.einsum("bhqk,bhkd->bhqd", p, v)
        return (lambda x, *d: x.permute(*d))(o, 0, 2, 1, 3).reshape(B, Sq, Hq * Dh) @ wo

    def _B_ref(x, w1, w3, w2):
        gate = torch.einsum("bsd,df->bsf", x, w1)
        up = torch.einsum("bsd,df->bsf", x, w3)
        h = _silu(gate) * up
        out = torch.einsum("bsf,fd->bsd", h, w2)
        return out

    x = A_x
    xn = _layernorm(x, axis=-1)
    return x + _A_ref(xn, A_k_cache, A_v_cache, A_wq, A_wo) + _B_ref(xn, B_w1, B_w3, B_w2)
```

```python
import re

REG = re.compile(r'\b([vas])(\d+)\b|\b([vas])\[(\d+):(\d+)\]|\b(vcc|exec|m0)\b')
TRANS = ('v_exp_f32', 'v_log_f32', 'v_rcp_f32', 'v_rsq_f32', 'v_sqrt_f32')

def regs(txt):
    out = []
    for m in REG.finditer(txt):
        if m.group(1):
            out.append((m.group(1), int(m.group(2))))
        elif m.group(3):
            out += [(m.group(3), k) for k in range(int(m.group(4)), int(m.group(5)) + 1)]
        else:
            out.append(('s', m.group(6)))
    return out

def split_ops(s):
    ops, depth, cur = [], 0, ''
    for ch in s:
        if ch == '[':
            depth += 1
        if ch == ']':
            depth -= 1
        if ch == ',' and depth == 0:
            ops.append(cur.strip()); cur = ''
        else:
            cur += ch
    if cur.strip():
        ops.append(cur.strip())
    return ops

class Ins:
    def __init__(self, text):
        self.text = text
        p = text.split(None, 1)
        self.op = p[0]
        ops = split_ops(p[1]) if len(p) > 1 else []
        self.mods = ''
        if ops and not self.op.startswith('s_waitcnt'):
            t = ops[-1].split(None, 1)
            ops[-1] = t[0]
            self.mods = t[1] if len(t) > 1 else ''
        self.ops = ops
        op = self.op
        self.mfma = op.startswith('v_mfma') or op.startswith('v_smfmac')
        self.valu = op.startswith('v_') and not self.mfma
        self.dot = op.startswith('v_dot')
        self.trans = any(op.startswith(t) for t in TRANS)
        self.dpp = '_dpp' in op
        self.vmem = op.startswith('buffer_') or op.startswith('global_')
        self.ds = op.startswith('ds_')
        self.perml = op.startswith('v_permlane')
        self.rdlane = op.startswith('v_readlane') or op.startswith('v_readfirstlane')
        self.slots = 1
        if op == 's_nop':
            self.slots = int(ops[0], 0) + 1
        R = [regs(o) for o in ops]
        self.w, self.r = set(), set()
        self.srcc = set(); self.srcab = set()
        self.wide_store = set()
        if self.mfma:
            self.w = set(R[0]); self.srcab = set(R[1]) | set(R[2]); self.srcc = set(R[3])
            if op.startswith('v_smfmac'):
                self.srcab |= self.srcc; self.srcc = set(R[0])
            self.r = self.srcab | self.srcc
        elif self.valu:
            if self.perml:
                self.w = set(R[0]) | set(R[1]); self.r = set(self.w)
            else:
                self.w = set(R[0])
                for x in R[1:]:
                    self.r |= set(x)
                if op.startswith(('v_dot2c', 'v_fmac')):
                    self.r |= self.w; self.srcc = set(R[0])
                if op.startswith('v_dot2_'):
                    self.srcc = set(R[3]); self.srcab = set(R[1]) | set(R[2])
                if op.startswith('v_dot2c'):
                    self.srcab = set(R[1]) | set(R[2])
                if self.dpp and not ('row_mask:0xf' in self.mods and 'bank_mask:0xf' in self.mods and 'row_sh' not in self.mods):
                    self.r |= self.w
                if op.startswith('v_cndmask') and len(ops) == 3:
                    self.r.add(('s', 'vcc'))
        elif self.vmem:
            if '_load' in op and 'lds' not in self.mods.split():
                self.w = set(R[0])
                for x in R[1:]:
                    self.r |= set(x)
            else:
                for x in R:
                    self.r |= set(x)
                if 'store' in op and ('x4' in op or 'x3' in op):
                    self.wide_store = set(R[0])
        elif self.ds:
            if 'read' in op or 'permute' in op or 'swizzle' in op:
                self.w = set(R[0])
                for x in R[1:]:
                    self.r |= set(x)
            else:
                for x in R:
                    self.r |= set(x)

def need(p, c):
    n = 0
    pv = {x for x in p.w if x[0] in 'va'}
    ps = {x for x in p.w if x[0] == 's'}
    if p.valu:
        if pv & c.r:
            if c.dpp: n = max(n, 2)
            if c.mfma: n = max(n, 2)
            if c.perml: n = max(n, 2)
            if c.rdlane: n = max(n, 1)
            if p.trans and not c.trans: n = max(n, 1)
        if p.dot and (pv & (c.r | c.w)):
            if c.dot and c.op == p.op and not (pv & c.srcab) and (pv & c.srcc):
                pass
            else:
                n = max(n, 3)
        if ps:
            if c.valu and (ps & c.r): n = max(n, 4 if c.rdlane else 2)
            if c.vmem and (ps & c.r): n = max(n, 5)
    if p.mfma:
        if c.mfma:
            if pv & c.srcab: n = max(n, 8)
            if pv & c.srcc:
                if not (c.op == p.op and c.srcc == pv): n = max(n, 6)
            elif pv & c.w:
                n = max(n, 6)
        elif (c.valu or c.vmem or c.ds) and (pv & (c.r | c.w)):
            n = max(n, 8)
        if c.valu and (p.srcc & c.w): n = max(n, 3)
    if p.wide_store and (p.wide_store & c.w): n = max(n, 2)
    return n

class Emit:
    def __init__(self):
        self.lines = []
        self.hist = []
        self.vm = []
        self.done = 0
        self.nops = 0
    def raw(self, s):
        self.lines.append(s)
    def __call__(self, text):
        for l in text.split('\n'):
            l = l.strip()
            if not l:
                continue
            if l.endswith(':') or l.startswith(('.', ';')):
                self.lines.append(l)
                continue
            c = Ins(l.split(';')[0].strip())
            dist, req = 0, 0
            for p in reversed(self.hist):
                req = max(req, need(p, c) - dist)
                dist += p.slots
                if dist >= 12:
                    break
            if req > 0:
                self.nops += req
                nop = Ins(f's_nop {req-1}')
                self.lines.append('    ' + nop.text); self.hist.append(nop)
            self.lines.append('    ' + l)
            self.hist.append(c)
            self.hist = self.hist[-16:]
    def fence(self, n=8):
        self(f's_nop {n-1}')
    def vmem(self, text, tag):
        assert tag not in self.vm, tag
        self(text)
        self.vm.append(tag)
    def wait(self, tag):
        k = self.vm.index(tag) + 1
        if k <= self.done:
            return
        n = len(self.vm) - k
        assert n <= 63, (tag, n)
        self(f's_waitcnt vmcnt({n})')
        self.done = k
    def waitall(self):
        self('s_waitcnt vmcnt(0)')
        self.done = len(self.vm)
    def text(self):
        return '\n'.join(self.lines) + '\n'
```

```python
import sys, os
from asmlib import NAME, kernel_desc, build
from emit import Emit

WS_Y, WS_Q, WS_ML, WS_FU = 0, 0x80000, 0xC0000, 0xC4000
WS_END = WS_FU + 242 * 2048
OOB = 0x40000000
LOG2E = 0x3fb8aa3b
SCALE = 0x3db504f3

def bitrev4(n):
    return ((n & 1) << 3) | ((n & 2) << 1) | ((n & 4) >> 1) | ((n & 8) >> 3)

HEADER = open('cdna_kernels/' + NAME + '.s.ref').read().split('; Override launch')[0] if os.path.exists('cdna_kernels/' + NAME + '.s.ref') else ''

def gen(D=9, k_first=4, n_flag=17, gap=None, catch=3, wo_start=8, wo_end=50, n_ml=30, stamps=False, rotmul=5,
        sleep=0, codepf=True, tailpf=None, pol='nt', wpol='nt', spin=400000, dbgcnt=False):
    gap = gap or D + 1
    e = Emit()
    K = NAME + '_kernel'
    LDS = 8192 + 2048
    sW = 's3'
    SK, SV, SWQ, SWO, SFU, SW2, SX, SWS, SDBG, SOUT, SCODE = [f's[{b}:{b+3}]' for b in range(28, 72, 4)]
    sXc, sJ, sHH, sH, sB, sS, sS8, sBH, sUnit, sDG, sCB, sT0, sT1, sT2, sKoff, sVoff, sMask, sF0, sPB, sIdleU, sIdleD = \
        [f's{n}' for n in range(72, 93)]
    sSelLo, sSelHi, sSpin = 's93', 's94', 's95'
    sMC, sMA = 's[96:97]', 's[98:99]'
    stamp_regs = [4, 6, 8, 10, 12, 14, 16, 18]
    nst = [0]
    def stamp():
        if stamps:
            r = stamp_regs[nst[0]]
            e(f's_memrealtime s[{r}:{r+1}]')
            nst[0] += 1
    vKO, M, Q, S, vY = 'v1', [2, 3, 4, 5], [6, 7, 8, 9], [10, 11, 12, 13], 'v14'
    vL = 'v15'
    A = [16, 20]
    ACC = 24
    T = list(range(28, 48))
    KBASE, KRING = 48, 52
    def kreg(n):
        return KBASE + 4 * (n % KRING)
    VRING = 16
    def vreg(n):
        return 4 * (n % VRING)
    rng = lambda p, b, n: f'{p}[{b}:{b+n-1}]'

    e.raw(HEADER.rstrip('\n'))
    e.raw(f'; @launch grid=(256,1,1) block=(256,1,1) lds={LDS}')
    e.raw('.amdgcn_target "amdgcn-amd-amdhsa--gfx950"\n.text')
    e.raw(f'.globl {K}\n.p2align 8\n.type {K},@function\n{K}:')
    e('s_cmp_ge_u32 s2, 256\ns_cbranch_scc1 L_end')
    e('s_load_dwordx16 s[4:19], s[0:1], 0\ns_load_dwordx8 s[20:27], s[0:1], 64')
    if stamps:
        e('s_memrealtime s[100:101]')
    e('s_getpc_b64 s[68:69]')
    e(f'v_lshrrev_b32 v2, 6, v0\nv_and_b32 {vL}, 63, v0\nv_readfirstlane_b32 {sW}, v2')
    e(f'''s_and_b32 {sXc}, s2, 7
          s_lshr_b32 {sJ}, s2, 3
          s_lshr_b32 {sHH}, {sJ}, 3
          s_lshl_b32 {sH}, {sXc}, 2
          s_add_u32 {sH}, {sH}, {sHH}
          s_bfe_u32 {sB}, {sJ}, 0x10002
          s_and_b32 {sS}, {sJ}, 3
          s_and_b32 {sS8}, {sJ}, 7
          s_lshl_b32 {sBH}, {sB}, 5
          s_add_u32 {sBH}, {sBH}, {sH}
          s_lshl_b32 {sPB}, {sH}, 2
          s_add_u32 {sPB}, {sPB}, {sS}''')
    e(f'''s_min_u32 {sT0}, {sXc}, 2
          s_mul_i32 {sUnit}, {sXc}, 30
          s_add_u32 {sUnit}, {sUnit}, {sT0}
          s_add_u32 {sUnit}, {sUnit}, {sJ}
          s_cmp_lt_u32 {sXc}, 2
          s_cselect_b32 {sT0}, 31, 30
          s_cmp_lt_u32 {sJ}, {sT0}
          s_cselect_b32 {sIdleU}, 0, {OOB}
          s_mul_i32 {sDG}, {sUnit}, 745
          s_lshr_b32 {sDG}, {sDG}, 13
          s_mul_i32 {sCB}, {sDG}, 11
          s_sub_u32 {sCB}, {sUnit}, {sCB}''')
    assert all((u * 745) >> 13 == u // 11 for u in range(260))
    g, i = f'v{T[0]}', f'v{T[1]}'
    t2, t3, t4, t5 = [f'v{T[k]}' for k in range(2, 6)]
    vXG, vWQ, vFU = [f'v{T[k]}' for k in range(6, 9)]
    e(f'''v_lshrrev_b32 {g}, 4, {vL}
          v_and_b32 {i}, 15, {vL}
          v_lshlrev_b32 {vKO}, 4, v0
          v_lshlrev_b32 {t2}, 5, {vL}''')
    e(f'''s_lshl_b32 {sT0}, {sS8}, 6
          s_lshl_b32 {sT1}, {sW}, 4
          s_add_u32 {sT0}, {sT0}, {sT1}
          s_mul_i32 {sT1}, {sDG}, 24
          s_and_b32 {sT2}, {sW}, 1
          s_mul_i32 {sT2}, {sT2}, 12
          s_add_u32 {sT1}, {sT1}, {sT2}''')
    e(f'''v_and_b32 {t3}, 3, {vL}
          v_lshl_add_u32 {t3}, {t3}, 2, {g}
          v_and_b32 {t4}, 4, {vL}
          v_cmp_eq_u32 vcc, 0, {t4}
          v_mov_b32 {t4}, {sT1}
          v_mov_b32 {t5}, {sT0}
          v_cndmask_b32 {t4}, {t4}, {t5}, vcc
          v_add_u32 {t3}, {t3}, {t4}
          v_bfe_u32 {t4}, {vL}, 3, 1
          v_lshl_add_u32 {t3}, {t4}, 9, {t3}
          v_lshlrev_b32 {vXG}, 1, {t3}''')
    e(f'''s_lshl_b32 {sT2}, {sW}, 4
          v_add_u32 {t3}, {sT2}, {g}
          v_lshlrev_b32 {t3}, 13, {t3}
          v_lshl_add_u32 {vWQ}, {i}, 4, {t3}
          v_add_u32 {t3}, {sT1}, {g}
          v_mul_u32_u24 {t3}, 2752, {t3}
          s_lshl_b32 {sT2}, {sCB}, 8
          s_add_u32 {sT2}, {sT2}, {sIdleU}
          v_lshl_add_u32 {t3}, {i}, 4, {t3}
          v_add_u32 {vFU}, {sT2}, {t3}''')
    e(f'''s_lshl_b32 {sT0}, {sBH}, 22
          s_lshl_b32 {sT1}, {sS}, 18
          s_add_u32 {sT0}, {sT0}, {sT1}
          s_add_u32 {sT0}, {sT0}, 0x300000
          s_lshl_b32 {sT1}, {sS8}, 19
          s_lshl_b32 {sT2}, {sH}, 8
          s_add_u32 {sT1}, {sT1}, {sT2}
          s_mul_i32 {sKoff}, s2, {rotmul}
          s_and_b32 {sKoff}, {sKoff}, 63
          s_lshl_b32 {sKoff}, {sKoff}, 12
          s_mov_b32 {sVoff}, {sKoff}
          s_mov_b32 {sMask}, 0x3ffff''')
    for b in (31, 35, 39, 43, 47, 51, 55, 59, 63, 67, 71):
        e(f's_mov_b32 s{b}, 0x20000')
    e(f'''s_mov_b32 s30, 0x40000
          s_mov_b32 s34, 0x40000
          s_mov_b32 s38, {63*8192+256}
          s_mov_b32 s42, 0x20000
          s_mov_b32 s46, {512*2752}
          s_mov_b32 s50, {1376*1024}
          s_mov_b32 s54, 2048
          s_mov_b32 s58, {WS_END}
          s_mov_b32 s62, 256
          s_mov_b32 s66, 2048
          s_mov_b32 s70, CODE_BYTES''')
    e('s_waitcnt lgkmcnt(0)')
    e(f'''s_mov_b32 s52, s4
          s_mov_b32 s53, s5''')
    XL = 208
    XU = 216
    XG = 232
    e.vmem(f'buffer_load_dwordx4 {rng("v", XL, 4)}, {t2}, {SX}, 0 offen', 'xl0')
    e.vmem(f'buffer_load_dwordx4 {rng("v", XL+4, 4)}, {t2}, {SX}, 0 offen offset:16', 'xl1')
    e.vmem(f'buffer_load_ushort v{XG}, {vXG}, {SX}, 0 offen', 'xg')
    e(f'''s_add_u32 s36, s10, {sT1}
          s_addc_u32 s37, s11, 0''')
    for t in range(4):
        if t:
            e(f's_mov_b32 {sT2}, {32768*t}')
        e.vmem(f'buffer_load_dwordx4 {rng("a", 64+4*t, 4)}, {vWQ}, {SWQ}, {sT2 if t else 0} offen {wpol}', f'wq{t}')
    e(f'''s_cmp_lt_u32 {sW}, 2
          s_cselect_b32 s44, s16, s18
          s_cselect_b32 s45, s17, s19''')
    for t in range(3):
        if t:
            e(f'v_add_u32 {vFU}, {4*2752}, {vFU}')
        e.vmem(f'buffer_load_dwordx4 {rng("a", 80+4*t, 4)}, {vFU}, {SFU}, 0 offen {wpol}', f'fu{t}')
    e(f'''s_add_u32 s28, s6, {sT0}
          s_addc_u32 s29, s7, 0
          s_add_u32 s32, s8, {sT0}
          s_addc_u32 s33, s9, 0''')
    kn = [0]
    def kissue():
        n = kn[0]
        e.vmem(f'buffer_load_dwordx4 {rng("v", kreg(n), 4)}, {vKO}, {SK}, {sKoff} offen {pol}', f'K{n}')
        e(f's_addk_i32 {sKoff}, 0x1000\ns_and_b32 {sKoff}, {sKoff}, {sMask}')
        kn[0] += 1
    for _ in range(k_first):
        kissue()
    e(f'''s_lshl_b32 {sT0}, {sH}, 17
          s_add_u32 s40, s12, {sT0}
          s_addc_u32 s41, s13, 0
          s_mov_b32 s48, s20
          s_mov_b32 s49, s21
          s_mov_b32 s56, s26
          s_mov_b32 s57, s27
          s_mov_b32 s60, s24
          s_mov_b32 s61, s25
          s_mov_b32 s64, s22
          s_mov_b32 s65, s23''')
    if stamps:
        e('s_mov_b32 s20, s26\ns_mov_b32 s21, s27\ns_mov_b32 s22, 0x40000000\ns_mov_b32 s23, 0x20000')
    if codepf:
        e(f'''s_lshl_b32 {sT0}, {sJ}, 2
              s_add_u32 {sT0}, {sT0}, {sW}
              s_lshl_b32 {sT0}, {sT0}, 8
              v_lshlrev_b32 {t2}, 2, {vL}
              v_add_u32 {t2}, {sT0}, {t2}''')
        e.vmem(f'buffer_load_dword v{XG+1}, {t2}, {SCODE}, 0 offen', 'cpf')
    e(f'''s_lshl_b32 {sT0}, {sB}, 4
          s_lshl_b32 {sT1}, {sW}, 2
          s_add_u32 {sT0}, {sT0}, {sT1}
          s_lshl_b32 {sT0}, {sT0}, 7
          s_add_u32 {sT0}, {sT0}, {sPB}
          s_lshl_b32 {sT0}, {sT0}, 7
          v_lshrrev_b32 {t2}, 2, {i}
          v_lshlrev_b32 {t2}, 14, {t2}
          v_and_b32 {t3}, 3, {vL}
          v_lshl_add_u32 {t2}, {t3}, 5, {t2}
          v_lshl_add_u32 {t2}, {g}, 4, {t2}
          v_add_u32 {t2}, {sT0}, {t2}
          s_lshl_b32 {sT1}, {sUnit}, 11
          s_lshl_b32 {sT2}, {sW}, 9
          s_add_u32 {sT1}, {sT1}, {sT2}
          s_add_u32 {sT1}, {sT1}, {WS_FU - 512}
          s_add_u32 {sT1}, {sT1}, {sIdleU}
          v_lshlrev_b32 {t3}, 4, {vL}
          v_add_u32 {t4}, {sT1}, {t3}
          v_cmp_gt_u32 vcc, 32, {vL}
          v_mov_b32 v{XU}, -1
          v_mov_b32 v{XU+1}, -1
          v_cndmask_b32 {vY}, {t4}, {t2}, vcc
          v_mov_b32 v{XU+2}, -1
          v_mov_b32 v{XU+3}, -1''')
    e.vmem(f'buffer_store_dwordx4 {rng("v", XU, 4)}, {vY}, {SWS}, 0 offen sc1', 'clr0')
    vML = f'v{T[9]}'
    e(f'''s_lshl_b32 {sT0}, {sH}, 3
          s_add_u32 {sT0}, {sT0}, {sS8}
          s_lshl_b32 {sT0}, {sT0}, 10
          s_add_u32 {sT0}, {sT0}, {WS_Q}
          s_lshl_b32 {sT1}, {sW}, 8
          s_add_u32 {sT1}, {sT1}, {sT0}
          v_add_u32 {t2}, {sT1}, {t3}
          s_lshl_b32 {sT1}, {sBH}, 4
          s_lshl_b32 {sT2}, {sS}, 2
          s_add_u32 {sT1}, {sT1}, {sT2}
          s_add_u32 {sT1}, {sT1}, {sW}
          s_lshl_b32 {sT1}, {sT1}, 4
          s_add_u32 {sT1}, {sT1}, {WS_ML}
          v_mov_b32 {t4}, {sT1}
          v_mov_b32 {t5}, {OOB}
          v_cmp_eq_u32 vcc, 16, {vL}
          v_cndmask_b32 {vML}, {t5}, {t4}, vcc
          v_cmp_gt_u32 vcc, 16, {vL}
          v_cndmask_b32 {t2}, {vML}, {t2}, vcc''')
    e.vmem(f'buffer_store_dwordx4 {rng("v", XU, 4)}, {t2}, {SWS}, 0 offen sc1', 'clr1')
    sQ = sT0
    e(f's_mov_b32 {sF0}, {sT0}')
    kissue(); kissue()
    e(f'''v_and_b32 {t2}, 1, {vL}
          v_lshlrev_b32 {t2}, 4, {t2}
          v_mov_b32 {t3}, 0xffff
          v_lshlrev_b32 {t2}, {t2}, {t3}
          v_bfe_u32 {t3}, {vL}, 1, 2''')
    for r in range(4):
        e(f'v_cmp_eq_u32 vcc, {r}, {t3}\nv_cndmask_b32 v{M[r]}, 0, {t2}, vcc')
    e(f'''s_mov_b32 s96, 0xcccccccc
          s_mov_b32 s97, 0xcccccccc
          s_mov_b32 s98, 0xaaaaaaaa
          s_mov_b32 s99, 0xaaaaaaaa
          s_mov_b32 {sSelLo}, 0x05040100
          s_mov_b32 {sSelHi}, 0x07060302''')

    def rowred(op, r, ctrls=('row_ror:8', 'row_ror:4', 'row_ror:2', 'row_ror:1')):
        for c in ctrls:
            e(f'{op}_dpp {r}, {r}, {r} {c} row_mask:0xf bank_mask:0xf')
    def swapred(op, r, tmp, n):
        e(f'v_mov_b32 {tmp}, {r}\nv_permlane{n}_swap_b32 {r}, {tmp}\n{op} {r}, {r}, {tmp}')
    def bf16r(dst, src):
        e(f'v_cvt_pk_bf16_f32 {dst}, {src}, {src}\nv_and_b32 {dst}, 0xffff0000, {dst}')

    e.wait('xl1')
    stamp()
    for k in range(8):
        e(f'v_lshlrev_b32 v{XU+2*k}, 16, v{XL+k}\nv_and_b32 v{XU+2*k+1}, 0xffff0000, v{XL+k}')
    for k in range(4):
        e(f'v_pk_add_f32 v[{XL+2*k}:{XL+2*k+1}], v[{XU+4*k}:{XU+4*k+1}], v[{XU+4*k+2}:{XU+4*k+3}]')
    e(f'''v_pk_add_f32 v[{XL}:{XL+1}], v[{XL}:{XL+1}], v[{XL+2}:{XL+3}]
          v_pk_add_f32 v[{XL+4}:{XL+5}], v[{XL+4}:{XL+5}], v[{XL+6}:{XL+7}]
          v_pk_add_f32 v[{XL}:{XL+1}], v[{XL}:{XL+1}], v[{XL+4}:{XL+5}]
          v_add_f32 {t2}, v{XL}, v{XL+1}''')
    kissue()
    rowred('v_add_f32', t2)
    swapred('v_add_f32', t2, t3, 16)
    e(f'v_mul_f32 {t2}, 0x3b000000, {t2}')
    for k in range(16):
        e(f'v_sub_f32 v{XU+k}, v{XU+k}, {t2}')
    kissue()
    e(f'v_mul_f32 {t4}, v{XU}, v{XU}\nv_mul_f32 {t5}, v{XU+1}, v{XU+1}')
    for k in range(2, 16, 2):
        e(f'v_fmac_f32 {t4}, v{XU+k}, v{XU+k}\nv_fmac_f32 {t5}, v{XU+k+1}, v{XU+k+1}')
    e(f'v_add_f32 {t4}, {t4}, {t5}')
    kissue()
    rowred('v_add_f32', t4)
    swapred('v_add_f32', t4, t3, 16)
    e(f'v_mul_f32 {t4}, 0x3b000000, {t4}')
    bf16r(t2, t2)
    bf16r(t4, t4)
    e(f'v_add_f32 {t4}, 0x3727c5ac, {t4}')
    bf16r(t4, t4)
    e(f'v_sqrt_f32 {t4}, {t4}')
    bf16r(t4, t4)
    e(f'''v_mov_b32 {t3}, {t2}
          v_mov_b32 {t5}, {t4}
          v_and_b32 v{XL}, 8, {vL}
          v_permlane32_swap_b32 {t2}, {t3}
          v_permlane32_swap_b32 {t4}, {t5}
          v_cmp_eq_u32 vcc, 0, v{XL}
          v_cndmask_b32 {t2}, {t3}, {t2}, vcc
          v_cndmask_b32 {t4}, {t5}, {t4}, vcc''')
    e.wait('xg')
    XN = f'v{XG}'
    e(f'v_lshlrev_b32 {XN}, 16, {XN}\nv_sub_f32 {XN}, {XN}, {t2}\nv_rcp_f32 {t5}, {t4}')
    bf16r(XN, XN)
    e(f'''v_mul_f32 {t2}, {XN}, {t5}
          v_fma_f32 {t3}, -{t2}, {t4}, {XN}
          v_fmac_f32 {t2}, {t3}, {t5}
          v_cvt_pk_bf16_f32 {XN}, {t2}, {t2}''')
    kissue()
    DQ, DF = 240, 244
    def abuild2(a, n0):
        for r in range(4):
            e(f'v_and_b32_dpp v{a+r}, {XN}, v{M[r]} row_newbcast:{n0} row_mask:0xf bank_mask:0x3')
        for r in range(4):
            e(f'v_and_b32_dpp v{a+r}, {XN}, v{M[r]} row_newbcast:{n0+8} row_mask:0xf bank_mask:0xc')
    for t in range(7):
        a = A[t & 1]
        abuild2(a, t)
        e.wait(f'wq{t}' if t < 4 else f'fu{t-4}')
        d = DQ if t < 4 else DF
        c = '0' if t in (0, 4) else rng('v', d, 4)
        e(f'v_mfma_f32_16x16x32_bf16 {rng("v", d, 4)}, {rng("v", a, 4)}, {rng("a", 64+4*t, 4)}, {c}')
        if t == 3:
            kissue()
    e(f'ds_write_b128 {vKO}, {rng("v", DQ, 4)}')
    e(f'ds_write_b128 {vKO}, {rng("v", DF, 4)} offset:4096')
    e.wait('clr1')
    e('s_waitcnt lgkmcnt(0)\ns_barrier')
    stamp()
    R0 = 216
    e(f'''v_lshlrev_b32 {t2}, 4, {vL}
          v_lshrrev_b32 {t3}, 1, {g}
          v_and_b32 {t4}, 1, {g}
          v_lshlrev_b32 {t4}, 2, {t4}
          v_lshl_add_u32 {t4}, {i}, 3, {t4}
          s_cmp_eq_u32 {sW}, 0
          s_cbranch_scc1 L_pubq
          s_cmp_eq_u32 {sW}, 3
          s_cbranch_scc1 L_pubflag''')
    e(f'''s_sub_u32 {sT1}, {sW}, 1
          s_lshl_b32 {sT2}, {sT1}, 3
          v_add_u32 {t2}, {sT2}, {t2}''')
    for k in range(4):
        e(f'ds_read_b64 v[{R0+2*k}:{R0+2*k+1}], {t2} offset:{4096+1024*k}')
    e(f'''s_lshl_b32 {sT1}, {sT1}, 4
          s_lshl_b32 {sT2}, {sUnit}, 11
          s_add_u32 {sT1}, {sT1}, {sT2}
          s_add_u32 {sT1}, {sT1}, {WS_FU}
          s_add_u32 {sT1}, {sT1}, {sIdleU}
          v_lshlrev_b32 {t3}, 10, {t3}
          v_lshl_add_u32 {t3}, {t4}, 3, {t3}
          v_add_u32 {t3}, {sT1}, {t3}
          s_waitcnt lgkmcnt(0)
          v_add_f32 v{R0+8}, v{R0}, v{R0+2}
          v_add_f32 v{R0+9}, v{R0+4}, v{R0+6}
          v_add_f32 v{R0+10}, v{R0+1}, v{R0+3}
          v_add_f32 v{R0+11}, v{R0+5}, v{R0+7}
          buffer_store_dwordx4 {rng("v", R0+8, 4)}, {t3}, {SWS}, 0 offen sc1
          s_branch L_pubdone''')
    e('L_pubq:')
    for k in range(4):
        e(f'ds_read_b128 {rng("v", R0+4*k, 4)}, {t2} offset:{1024*k}')
    e(f'''v_lshlrev_b32 {t3}, 9, {t3}
          v_lshl_add_u32 {t3}, {t4}, 2, {t3}
          v_add_u32 {t3}, {sF0}, {t3}
          s_waitcnt lgkmcnt(0)''')
    for k in (0, 2):
        e(f'v_pk_add_f32 v[{R0+k}:{R0+k+1}], v[{R0+k}:{R0+k+1}], v[{R0+4+k}:{R0+5+k}]')
        e(f'v_pk_add_f32 v[{R0+8+k}:{R0+9+k}], v[{R0+8+k}:{R0+9+k}], v[{R0+12+k}:{R0+13+k}]')
    for k in (0, 2):
        e(f'v_pk_add_f32 v[{R0+k}:{R0+k+1}], v[{R0+k}:{R0+k+1}], v[{R0+8+k}:{R0+9+k}]')
    e(f'buffer_store_dwordx4 {rng("v", R0, 4)}, {t3}, {SWS}, 0 offen sc1\ns_branch L_pubdone')
    e('L_pubflag:')
    e(f'''v_mov_b32 {t2}, s2
          v_mov_b32 {t3}, 1
          s_mov_b64 exec, 1
          buffer_store_byte {t3}, {t2}, {SDBG}, 0 offen sc1
          s_mov_b64 exec, -1''')
    e('L_pubdone:')
    e.vm.append('pub')
    e.fence(2)

    vFL, vQG, vWO, vW2, vFG, vOUT, vCON, vOW, vOR, vF = [f'v{T[k]}' for k in range(10, 20)]
    e(f'''s_lshl_b32 {sT0}, {sHH}, 2
          s_add_u32 {sT0}, {sT0}, {sS}
          s_sub_u32 {sT1}, 15, {sT0}
          s_cmp_lt_u32 {sXc}, 3
          s_cselect_b32 {sT2}, 15, 14
          s_cmp_lt_u32 {sT1}, {sT2}
          s_cselect_b32 {sIdleD}, 0, {OOB}
          s_min_u32 {sT2}, {sXc}, 3
          s_add_u32 {sT1}, {sT1}, {sT2}
          s_mul_i32 {sT2}, {sXc}, 14
          s_add_u32 {sT1}, {sT1}, {sT2}
          s_mul_i32 {sF0}, {sT1}, 12''')
    e(f'''s_lshr_b32 {sT1}, {sT0}, 3
          s_lshl_b32 {sT2}, {sXc}, 1
          s_add_u32 {sT1}, {sT1}, {sT2}
          s_and_b32 {sT0}, {sT0}, 7
          s_lshl_b32 {sT2}, {sB}, 4
          s_add_u32 {sT1}, {sT1}, {sT2}
          s_lshl_b32 {sT2}, {sT1}, 14
          s_lshl_b32 {sDG}, {sT0}, 4
          s_add_u32 {sT2}, {sT2}, {sDG}
          v_lshlrev_b32 {vCON}, 7, {vL}
          v_add_u32 {vCON}, {sT2}, {vCON}
          s_lshl_b32 {sT1}, {sT1}, 3
          s_add_u32 {sT1}, {sT1}, {sT0}
          s_lshl_b32 {sT1}, {sT1}, 3
          v_and_b32 {t2}, 1, {g}
          v_lshrrev_b32 {t3}, 1, {g}
          v_lshl_add_u32 {t2}, {t2}, 1, {t3}
          v_lshlrev_b32 {t2}, 1, {t2}
          v_add_u32 {t2}, {sT1}, {t2}
          v_mov_b32 {t3}, {OOB}
          v_cmp_eq_u32 vcc, 0, {i}
          v_cndmask_b32 {vOUT}, {t3}, {t2}, vcc''')
    kissue()
    e(f'''v_lshlrev_b32 {vFL}, 2, {vL}
          s_lshl_b32 {sT0}, {sH}, 13
          s_lshl_b32 {sT1}, {sB}, 9
          s_add_u32 {sT0}, {sT0}, {sT1}
          s_add_u32 {sT0}, {sT0}, {WS_Q}
          v_lshlrev_b32 {t2}, 10, {g}
          v_lshl_add_u32 {t2}, {i}, 5, {t2}
          v_add_u32 {vQG}, {sT0}, {t2}
          s_lshl_b32 {sT0}, {sW}, 8
          v_lshlrev_b32 {t2}, 4, {i}
          v_add_u32 {t2}, {sT0}, {t2}
          v_lshl_add_u32 {vWO}, {g}, 13, {t2}
          s_lshl_b32 {sT0}, {sF0}, 10
          s_add_u32 {sT0}, {sT0}, {sIdleD}
          v_lshl_add_u32 {t2}, {g}, 12, {t2}
          v_add_u32 {t2}, {sT0}, {t2}
          v_cmp_gt_u32 vcc, 3, {g}
          v_cndmask_b32 {vW2}, {t3}, {t2}, vcc''')
    e(f'''v_and_b32 {t2}, 7, {vL}
          v_cmp_gt_u32 vcc, 6, {t2}
          v_lshl_add_u32 {t2}, {t2}, 1, {sF0}
          v_lshrrev_b32 {t4}, 3, {vL}
          v_mul_u32_u24 {t4}, 11, {t4}
          v_lshrrev_b32 {t5}, 7, {t2}
          v_add_u32 {t4}, {t4}, {t5}
          v_and_b32 {t2}, 127, {t2}
          v_lshlrev_b32 {t2}, 3, {t2}
          v_lshl_add_u32 {t2}, {t4}, 11, {t2}
          s_lshl_b32 {sT0}, {sB}, 10
          s_add_u32 {sT0}, {sT0}, {WS_FU}
          s_add_u32 {sT0}, {sT0}, {sIdleD}
          v_add_u32 {t2}, {sT0}, {t2}
          v_cndmask_b32 {vFG}, {t3}, {t2}, vcc''')
    e(f'''s_mul_i32 {sT0}, {sW}, 320
          s_add_u32 {sT0}, {sT0}, 8192
          v_and_b32 {t2}, 1, {g}
          v_lshlrev_b32 {t2}, 3, {t2}
          v_lshl_add_u32 {t2}, {i}, 4, {t2}
          v_add_u32 {vOW}, {sT0}, {t2}
          v_and_b32 {t2}, 3, {vL}
          v_mul_u32_u24 {t2}, 320, {t2}
          v_lshl_add_u32 {vOR}, {g}, 4, {t2}''')

    slow = []
    def checked(name, regsl, reissue, bad_if_ne=None):
        def test():
            if bad_if_ne is not None:
                e(f'v_cmp_ne_u32 vcc, {bad_if_ne}, v{regsl[0]}')
            else:
                acc = t2
                rs = list(regsl)
                if len(rs) == 2:
                    e(f'v_max_u32 {acc}, v{rs[0]}, v{rs[1]}')
                else:
                    e(f'v_max3_u32 {acc}, v{rs[0]}, v{rs[1]}, v{rs[2]}')
                    rs = rs[3:]
                    while rs:
                        if len(rs) == 1:
                            e(f'v_max_u32 {acc}, {acc}, v{rs[0]}'); rs = []
                        else:
                            e(f'v_max3_u32 {acc}, {acc}, v{rs[0]}, v{rs[1]}'); rs = rs[2:]
                e(f'v_cmp_eq_u32 vcc, -1, {acc}')
        test()
        e(f's_cbranch_vccnz L_slow_{name}\nL_ok_{name}:')
        def emit_slow():
            e(f'L_slow_{name}:')
            e(f's_mov_b32 {sSpin}, {spin}')
            e(f'L_retry_{name}:')
            if dbgcnt:
                e(f's_add_u32 s24, s24, {1 << (8 * ["flag", "q", "fu", "ml"].index(name))}')
            e('s_sleep 1')
            reissue()
            e('s_waitcnt vmcnt(0)')
            test()
            e(f's_cbranch_vccz L_ok_{name}')
            e(f's_sub_u32 {sSpin}, {sSpin}, 1\ns_cbranch_scc0 L_retry_{name}\ns_branch L_ok_{name}')
        slow.append(emit_slow)
    if dbgcnt:
        e('s_mov_b32 s24, 0')

    state = dict(q=False, kproc=0, soft=False, vproc=0, wop=0, ffn=False, ml=False)
    PD = [T[2], T[3], T[4], T[5]]
    L1, L2, L3 = [T[6], T[7]], [T[8], Q[0]], None
    lv = {}
    KT = [26, 27, 24, 25, 20, 21, 22, 23]
    def kpair(n):
        a, b = f'v{KT[0]}', f'v{KT[1]}'
        for k in range(4):
            for r, m in ((a, n), (b, n + 1)):
                e(f'v_dot2_f32_bf16 {r}, v{kreg(m)+k}, v{Q[k]}, {r if k else 0}')
        d1 = f'v{KT[2 + ((n >> 1) & 1)]}'
        e(f'v_add_f32_dpp {d1}, {a}, {a} row_ror:8 row_mask:0xf bank_mask:0x3')
        e(f'v_add_f32_dpp {d1}, {b}, {b} row_ror:8 row_mask:0xf bank_mask:0xc')
        if not (n >> 1) & 1:
            return
        x, y = f'v{KT[2]}', f'v{KT[3]}'
        d2 = f'v{KT[4 + ((n >> 2) & 1)]}'
        e(f'v_add_f32_dpp {d2}, {x}, {x} row_shl:4 row_mask:0xf bank_mask:0x5')
        e(f'v_add_f32_dpp {d2}, {y}, {y} row_shr:4 row_mask:0xf bank_mask:0xa')
        if not (n >> 2) & 1:
            return
        x, y = f'v{KT[4]}', f'v{KT[5]}'
        d3 = f'v{KT[6 + ((n >> 3) & 1)]}'
        e(f'v_add_f32_dpp {x}, {x}, {x} quad_perm:[2,3,0,1] row_mask:0xf bank_mask:0xf')
        e(f'v_add_f32_dpp {y}, {y}, {y} quad_perm:[2,3,0,1] row_mask:0xf bank_mask:0xf')
        e(f'v_cndmask_b32 {d3}, {x}, {y}, {sMC}')
        if not (n >> 3) & 1:
            return
        x, y = f'v{KT[6]}', f'v{KT[7]}'
        s = f'v{S[n >> 4]}'
        e(f'v_add_f32_dpp {x}, {x}, {x} quad_perm:[1,0,3,2] row_mask:0xf bank_mask:0xf')
        e(f'v_add_f32_dpp {y}, {y}, {y} quad_perm:[1,0,3,2] row_mask:0xf bank_mask:0xf')
        e(f'v_cndmask_b32 {s}, {x}, {y}, {sMA}')
        bf16r(s, s)
        e(f'v_mul_f32 {s}, {SCALE}, {s}')
        bf16r(s, s)
    vM, vLs = f'v{T[6]}', f'v{T[7]}'
    assert T[6] % 2 == 0
    def softmax():
        stamp()
        e(f'v_max3_f32 {vM}, v{S[0]}, v{S[1]}, v{S[2]}\nv_max_f32 {vM}, {vM}, v{S[3]}')
        rowred('v_max_f32', vM)
        swapred('v_max_f32', vM, t2, 16)
        swapred('v_max_f32', vM, t2, 32)
        for k in range(4):
            e(f'v_sub_f32 v{S[k]}, v{S[k]}, {vM}')
        for k in range(4):
            e(f'v_mul_f32 v{S[k]}, {LOG2E}, v{S[k]}')
        for k in range(4):
            e(f'v_exp_f32 v{S[k]}, v{S[k]}')
        for k in range(4):
            e(f'v_cvt_pk_bf16_f32 v{Q[k]}, v{S[k]}, v{S[k]}')
        abuild(0)
        e(f'v_add_f32 {vLs}, v{S[0]}, v{S[1]}\nv_add_f32 {t2}, v{S[2]}, v{S[3]}\nv_add_f32 {vLs}, {vLs}, {t2}')
        rowred('v_add_f32', vLs)
        swapred('v_add_f32', vLs, t2, 16)
        swapred('v_add_f32', vLs, t2, 32)
        e.vmem(f'buffer_store_dwordx2 v[{T[6]}:{T[7]}], {vML}, {SWS}, 0 offen sc1', 'mlpub')
        state['soft'] = True
    def abuild(n):
        a = A[n & 1]
        for r in range(4):
            e(f'v_and_b32_dpp v{a+r}, v{Q[n >> 4]}, v{M[r]} row_newbcast:{bitrev4(n & 15)} row_mask:0xf bank_mask:0xf')
    def vstep(n):
        c = rng('v', ACC, 4) if n else '0'
        e(f'v_mfma_f32_16x16x32_bf16 {rng("v", ACC, 4)}, {rng("v", A[n & 1], 4)}, {rng("a", vreg(n), 4)}, {c}')
        if n < 63:
            abuild(n + 1)
    F, DY, STG, G2, W2S, FGR = 128, 96, 64, 48, 224, 240
    def stg(k):
        return STG + 4 * (k % 8)
    def woperm(k):
        t, ee = k >> 3, k & 7
        for m in range(4):
            for hi in range(2):
                e(f'v_perm_b32 v{F + 32*t + 4*(2*m+hi) + ee//2}, v{stg(k+1)+m}, v{stg(k)+m}, {sSelHi if hi else sSelLo}')
    def fgissue(tagger):
        e(f'v_mov_b32 {t3}, {vFG}')
        for m in range(3):
            tagger(f'buffer_load_dwordx4 {rng("v", FGR+4*m, 4)}, {t3}, {SWS}, 0 offen sc1', f'fg{m}')
            if m < 2:
                e(f'v_add_u32 {t3}, {8*11*2048}, {t3}')
    def ffn_down():
        checked('fu', list(range(FGR, FGR + 12)), lambda: fgissue(lambda s, t: e(s)))
        for k in (0, 2):
            e(f'v_pk_add_f32 v[{FGR+k}:{FGR+k+1}], v[{FGR+k}:{FGR+k+1}], v[{FGR+4+k}:{FGR+5+k}]')
        for k in (0, 2):
            e(f'v_pk_add_f32 v[{FGR+k}:{FGR+k+1}], v[{FGR+k}:{FGR+k+1}], v[{FGR+8+k}:{FGR+9+k}]')
        for p in range(2):
            for m in range(4):
                for hi in range(2):
                    e(f'v_perm_b32 v{G2 + 2*(2*m+hi) + p}, v{W2S+8*p+4+m}, v{W2S+8*p+m}, {sSelHi if hi else sSelLo}')
        for k in range(4):
            e(f'v_add_f32_dpp v{FGR+k}, v{FGR+k}, v{FGR+k} row_ror:8 row_mask:0xf bank_mask:0xf')
        ga, up = f'v{FGR}', f'v{FGR+1}'
        e(f'''v_permlane32_swap_b32 v{FGR}, v{FGR+2}
              v_permlane32_swap_b32 v{FGR+1}, v{FGR+3}
              v_add_f32 {ga}, v{FGR}, v{FGR+2}
              v_add_f32 {up}, v{FGR+1}, v{FGR+3}''')
        swapred('v_add_f32', ga, t2, 16)
        swapred('v_add_f32', up, t3, 16)
        bf16r(ga, ga)
        bf16r(up, up)
        e(f'''v_mul_f32 {t2}, {LOG2E ^ 0x80000000}, {ga}
              v_exp_f32 {t2}, {t2}
              v_and_b32 {t4}, 3, {vL}
              v_add_f32 {t2}, 1.0, {t2}
              v_rcp_f32 {t2}, {t2}
              v_cmp_eq_u32 vcc, 0, {t4}
              v_mul_f32 {ga}, {ga}, {t2}
              v_cndmask_b32 {t4}, 0, -1, vcc''')
        bf16r(ga, ga)
        ha = FGR + 4
        e(f'''v_mul_f32 {ga}, {ga}, {up}
              v_mov_b32 v{ha}, 0
              v_mov_b32 {t2}, {ga}
              v_mov_b32 v{ha+1}, 0
              v_permlane32_swap_b32 {ga}, {t2}
              v_cvt_pk_bf16_f32 {ga}, {ga}, {t2}''')
        for gg in range(3):
            for p in range(2):
                e(f'v_and_b32_dpp v{ha+p}, {ga}, {t4} row_newbcast:{2*gg+p} row_mask:{hex(1 << gg)} bank_mask:0xf')
        for cc in range(8):
            e(f'v_mfma_f32_16x16x16_bf16 {rng("v", DY+4*cc, 4)}, v[{ha}:{ha+1}], v[{G2+2*cc}:{G2+2*cc+1}], 0')
        state['ffn'] = True
    MLR = T[4]
    assert MLR % 2 == 0
    vMG = f'v{T[8]}'
    def mlissue(tagger):
        e(f's_lshl_b32 {sT0}, {sBH}, 8\ns_add_u32 {sT0}, {sT0}, {WS_ML}\nv_lshlrev_b32 {vMG}, 4, {i}\nv_add_u32 {vMG}, {sT0}, {vMG}')
        tagger(f'buffer_load_dwordx2 v[{S[0]}:{S[1]}], {vMG}, {SWS}, 0 offen sc1', 'ml')
    def mlcombine():
        checked('ml', [S[0], S[1]], lambda: mlissue(lambda s, t: e(s)))
        mi, li, mx = f'v{S[0]}', f'v{S[1]}', f'v{S[2]}'
        e(f'v_mov_b32 {mx}, {mi}')
        rowred('v_max_f32', mx)
        e(f'''v_sub_f32 {mi}, {mi}, {mx}
              v_sub_f32 {vF}, {vM}, {mx}
              v_mul_f32 {mi}, {LOG2E}, {mi}
              v_mul_f32 {vF}, {LOG2E}, {vF}
              v_exp_f32 {mi}, {mi}
              v_exp_f32 {vF}, {vF}
              v_mul_f32 {li}, {li}, {mi}''')
        rowred('v_add_f32', li)
        e(f'v_rcp_f32 {li}, {li}\nv_mul_f32 {vF}, {vF}, {li}')
        state['ml'] = True
    def complete(tag):
        return tag in e.vm and e.vm.index(tag) < e.done
    def progress():
        if state['q'] and not state['soft']:
            c = 0
            while state['kproc'] < 64 and complete(f'K{state["kproc"]+1}') and c < state['budget']:
                kpair(state['kproc']); state['kproc'] += 2; c += 2
            state['budget'] = catch if c >= 2 or state['budget'] >= 2 * catch else state['budget'] + 1
            if state['kproc'] == 64:
                softmax()
        if state['soft']:
            while state['vproc'] < 64 and complete(f'V{state["vproc"]}'):
                vstep(state['vproc']); state['vproc'] += 1
            while state['wop'] < 32 and complete(f'wo{state["wop"]+1}'):
                woperm(state['wop']); state['wop'] += 2
            if not state['ffn'] and complete('fg2') and complete('w23'):
                ffn_down()
            if not state['ml'] and complete('ml'):
                mlcombine()
    def window():
        if len(e.vm) - e.done >= D:
            e.wait(e.vm[len(e.vm) - D])
        progress()
    QG = 232
    def qissue(tagger):
        for k in range(4):
            if k == 2:
                e(f's_movk_i32 {sT0}, 0x1000')
            tagger(f'buffer_load_dwordx4 {rng("v", QG+4*k, 4)}, {vQG}, {SWS}, {sT0 if k >= 2 else 0} offen offset:{16*(k&1)} sc1', f'qg{k}')
    def flag_issue(tagger):
        tagger(f'buffer_load_dword v{QG}, {vFL}, {SDBG}, 0 offen sc1', 'flag')
    def qfinish():
        e.wait('qg3')
        checked('q', list(range(QG, QG + 16)), lambda: qissue(lambda s, t: e(s)))
        for k in range(0, 8, 2):
            e(f'v_pk_add_f32 v[{QG+k}:{QG+k+1}], v[{QG+k}:{QG+k+1}], v[{QG+8+k}:{QG+9+k}]')
        for k in range(4):
            e(f'v_permlane32_swap_b32 v{QG+k}, v{QG+4+k}')
        for k in (0, 2):
            e(f'v_pk_add_f32 v[{QG+k}:{QG+k+1}], v[{QG+k}:{QG+k+1}], v[{QG+4+k}:{QG+5+k}]')
        e(f'''v_permlane16_swap_b32 v{QG}, v{QG+2}
              v_permlane16_swap_b32 v{QG+1}, v{QG+3}
              v_pk_add_f32 v[{QG}:{QG+1}], v[{QG}:{QG+1}], v[{QG+2}:{QG+3}]
              v_cvt_pk_bf16_f32 v{Q[0]}, v{QG}, v{QG+1}
              v_cvt_pk_bf16_f32 v{Q[1]}, v{QG}, v{QG+1}
              v_permlane16_swap_b32 v{Q[0]}, v{Q[1]}
              v_mov_b32 v{Q[2]}, v{Q[0]}
              v_mov_b32 v{Q[3]}, v{Q[1]}
              v_permlane32_swap_b32 v{Q[0]}, v{Q[2]}
              v_permlane32_swap_b32 v{Q[1]}, v{Q[3]}''')
        state['q'] = True
        state['budget'] = catch
        stamp()
    e(f's_mov_b32 {sT1}, 0x01010101')
    while kn[0] < 64:
        n = kn[0]
        if n == n_flag:
            window(); flag_issue(e.vmem)
        if n == n_flag + gap:
            e.wait('flag')
            checked('flag', [QG], lambda: flag_issue(lambda s, t: e(s)), bad_if_ne=sT1)
            qissue(e.vmem)
        if n == n_flag + 2 * gap:
            assert n <= (QG - KBASE) // 4
            qfinish()
        window()
        if n >= KRING:
            assert state['kproc'] > n - KRING, (n, state)
        kissue()
    extra = {}
    for k in range(4):
        extra.setdefault(k, []).append(('w2', k))
    extra.setdefault(4, []).append(('fg', 0))
    extra.setdefault(5, []).append(('xres', 0))
    for k in range(32):
        extra.setdefault(wo_start + (k * (wo_end - wo_start)) // 32, []).append(('wo', k))
    extra.setdefault(n_ml, []).append(('ml', 0))
    if tailpf is not None:
        extra.setdefault(tailpf, []).append(('tpf', 0))
    XR = T[9]
    nv, m = 0, None
    while nv < 64:
        window()
        assert nv < VRING or state['vproc'] > nv - VRING, (nv, state)
        e.vmem(f'buffer_load_dwordx4 {rng("a", vreg(nv), 4)}, {vKO}, {SV}, {sVoff} offen {pol}', f'V{nv}')
        if nv < 63:
            e(f's_addk_i32 {sVoff}, 0x1000\ns_and_b32 {sVoff}, {sVoff}, {sMask}')
        nv += 1
        if state['soft'] and m is None:
            m0 = nv
            m = 0
        if m is not None:
            todo = extra.pop(m, [])
            if nv == 64:
                for k in sorted(extra):
                    todo += extra[k]
                assert not extra, extra
            for kind, k in todo:
                window()
                if kind == 'w2':
                    e.vmem(f'buffer_load_dwordx4 {rng("v", W2S+4*k, 4)}, {vW2}, {SW2}, 0 offen offset:{1024*k} {wpol}', f'w2{k}')
                elif kind == 'fg':
                    fgissue(e.vmem)
                elif kind == 'xres':
                    e.vmem(f'buffer_load_ushort v{XR}, {vOUT}, {SX}, 0 offen', 'xres')
                elif kind == 'ml':
                    mlissue(e.vmem)
                elif kind == 'tpf':
                    e(f's_lshl_b32 {sT0}, {sW}, 8\ns_add_u32 {sT0}, {sT0}, TAIL_OFF\nv_lshlrev_b32 {t3}, 2, {vL}\nv_add_u32 {t3}, {sT0}, {t3}')
                    e.vmem(f'buffer_load_dword v{S[3]}, {t3}, {SCODE}, 0 offen', 'tpf')
                elif kind == 'wo':
                    assert k < 8 or state['wop'] > k - 8, (k, state)
                    assert k < 24 or state['ffn']
                    e(f's_mov_b32 {sT0}, {(k >> 3)*32768 + ((k >> 2) & 1)*4096}')
                    e.vmem(f'buffer_load_dwordx4 {rng("v", stg(k), 4)}, {vWO}, {SWO}, {sT0} offen offset:{1024*(k & 3)} {wpol}', f'wo{k}')
            m += 1
    while state['vproc'] < 64:
        e.wait(f'V{state["vproc"]}')
        if state['vproc'] == 63:
            e('L_tail:')
            stamp()
        progress()
    assert state['wop'] == 32 and state['ffn'] and state['ml'], state
    assert T[19] % 2 == 1
    e(f'''v_mul_f32 v{ACC}, v{ACC}, {vF}
          v_mul_f32 v{ACC+1}, v{ACC+1}, {vF}
          v_mul_f32 v{ACC+2}, v{ACC+2}, {vF}
          v_mul_f32 v{ACC+3}, v{ACC+3}, {vF}
          v_cvt_pk_bf16_f32 v{ACC}, v{ACC}, v{ACC+1}
          v_cvt_pk_bf16_f32 v{ACC+1}, v{ACC+2}, v{ACC+3}
          ds_write_b64 {vOW}, v[{ACC}:{ACC+1}]
          s_waitcnt lgkmcnt(0)
          s_barrier''')
    AF = STG
    for t in range(4):
        e(f'ds_read_b128 {rng("v", AF+4*t, 4)}, {vOR} offset:{8192+64*t}')
    Z = A[0]
    def tile_add(cc):
        d = DY + 4 * cc
        e(f'v_pk_add_f32 v[{d}:{d+1}], v[{d}:{d+1}], v[{d+2}:{d+3}]')
        return d
    def tile_fin(cc):
        d = DY + 4 * cc
        if cc < 4:
            e(f'v_add_f32 v{Z+cc}, v{d}, v{d+1}')
        else:
            e(f'v_add_f32_dpp v{Z+cc-4}, v{d}, v{d+1} quad_perm:[0,1,2,3] row_mask:0x2 bank_mask:0xf')
    for cc in range(8):
        for t in range(4):
            if cc == 0:
                e(f's_waitcnt lgkmcnt({3-t})')
            e(f'v_mfma_f32_16x16x32_bf16 {rng("v", DY+4*cc, 4)}, {rng("v", AF+4*t, 4)}, {rng("v", F+32*t+4*cc, 4)}, {rng("v", DY+4*cc, 4)}')
            if cc >= 2 and t == 1:
                tile_add(cc - 2)
            if cc >= 2 and t == 3:
                tile_fin(cc - 2)
    tile_add(6)
    e('s_mov_b32 exec_hi, 0')
    tile_add(7)
    tile_fin(6)
    tile_fin(7)
    e(f'buffer_store_dwordx4 {rng("v", Z, 4)}, {vY}, {SWS}, 0 offen sc1')
    e(f's_cmp_lg_u32 {sW}, 0\ns_cbranch_scc1 L_end')
    e('s_mov_b32 exec_hi, -1')
    stamp()
    C = STG
    e(f's_mov_b32 {sSpin}, {spin}\ns_movk_i32 {sT0}, 0x2000')
    e('L_poll:')
    e(f'''buffer_load_dwordx4 {rng("v", C, 4)}, {vCON}, {SWS}, 0 offen sc1
          buffer_load_dwordx4 {rng("v", C+4, 4)}, {vCON}, {SWS}, {sT0} offen sc1
          s_sub_u32 {sSpin}, {sSpin}, 1
          s_cbranch_scc1 L_polled
          s_waitcnt vmcnt(1)
          v_max3_u32 {t2}, v{C}, v{C+1}, v{C+2}
          s_waitcnt vmcnt(0)
          v_max3_u32 {t3}, v{C+3}, v{C+4}, v{C+5}
          v_max3_u32 {t2}, {t2}, v{C+6}, v{C+7}
          v_max_u32 {t2}, {t2}, {t3}
          v_cmp_eq_u32 vcc, -1, {t2}''')
    if sleep:
        e(f's_cbranch_vccz L_polled\ns_sleep {sleep}\ns_branch L_poll')
    else:
        e('s_cbranch_vccnz L_poll')
    e('L_polled:')
    e('s_waitcnt vmcnt(0)')
    stamp()
    e(f'''v_pk_add_f32 v[{C}:{C+1}], v[{C}:{C+1}], v[{C+4}:{C+5}]
          v_pk_add_f32 v[{C+2}:{C+3}], v[{C+2}:{C+3}], v[{C+6}:{C+7}]
          v_lshlrev_b32 v{XR}, 16, v{XR}
          v_permlane32_swap_b32 v{C}, v{C+1}
          v_permlane32_swap_b32 v{C+2}, v{C+3}
          v_add_f32 v{C}, v{C}, v{C+1}
          v_add_f32 v{C+2}, v{C+2}, v{C+3}
          v_permlane16_swap_b32 v{C}, v{C+2}
          v_add_f32 v{C}, v{C}, v{C+2}''')
    rowred('v_add_f32', f'v{C}')
    e(f'''v_add_f32 v{C}, v{C}, v{XR}
          v_cvt_pk_bf16_f32 v{C}, v{C}, v{C}
          buffer_store_short v{C}, {vOUT}, {SOUT}, 0 offen''')
    if stamps:
        e('s_waitcnt vmcnt(0)')
        stamp()
        e('s_waitcnt lgkmcnt(0)\ns_lshl_b32 s0, s2, 7\ns_add_u32 s0, s0, 0x20000000\ns_mov_b64 exec, 1\nv_mov_b32 v0, 0')
        for k, r in enumerate([100] + stamp_regs[:nst[0]]):
            e(f'v_mov_b32 v2, s{r}\nv_mov_b32 v3, s{r+1}\nbuffer_store_dwordx2 v[2:3], v0, s[20:23], s0 offen offset:{8*k}')
        if dbgcnt:
            e(f'v_mov_b32 v2, s24\nv_mov_b32 v3, {sSpin}\nbuffer_store_dwordx2 v[2:3], v0, s[20:23], s0 offen offset:120')
    e('L_end:\ns_endpgm')
    for f in slow:
        f()
    e('L_codeend:')
    e.raw(f'.set CODE_BYTES, L_codeend - {K} - 64')
    e.raw(f'.set TAIL_OFF, L_tail - {K} - 64')
    e.raw('.section .rodata,"a"\n.p2align 6')
    e.raw(kernel_desc(K, 512, 102, accum=256))
    return e.text(), LDS, nst[0] + 1, e.nops

if __name__ == '__main__':
    cfgs = {}
    def add(name, **kw):
        cfgs[name] = kw
    exec(open(sys.argv[1]).read())
    BF = os.environ.get('BFLAGS', '-n 15 -c')
    run = ['#!/bin/bash']
    os.makedirs('co', exist_ok=True)
    for name, kw in cfgs.items():
        t, lds, ns, nops = gen(**kw)
        build(t, f'co/{name}')
        st = f'-t {ns}' if kw.get('stamps') else ''
        run.append(f'timeout 120 ./bench {BF} {st} co/{name}.co {NAME}_kernel:256:256:{lds}')
        print(name, 'nops', nops, 'bytes', os.popen(f"llvm-objdump -t co/{name}.co | grep -E 'L_codeend|L_tail|_kernel$' | awk '{{print $1, $NF}}'").read().split())
    open('run.sh', 'w').write('\n'.join(run) + '\n')
```

```python
import sys
from gen3 import gen, NAME
from asmlib import build
kw = eval('dict(' + (sys.argv[2] if len(sys.argv) > 2 else '') + ')')
t, lds, ns, nops = gen(**kw)
open(sys.argv[1], 'w').write(t)
build(t, '_final')
print('ok', len(t))
```

```python
import sys, os
from asmlib import NAME, kernel_desc, build
from emit import Emit

WS_Y, WS_Q, WS_ML, WS_FU = 0, 0x80000, 0xC0000, 0xC4000
WS_END = WS_FU + 242 * 2048
OOB = 0x40000000
LOG2E = 0x3fb8aa3b
SCALE = 0x3db504f3

def bitrev4(n):
    return ((n & 1) << 3) | ((n & 2) << 1) | ((n & 4) >> 1) | ((n & 8) >> 3)

HEADER = open('cdna_kernels/' + NAME + '.s.ref').read().split('; Override launch')[0] if os.path.exists('cdna_kernels/' + NAME + '.s.ref') else ''

def gen(D=9, k_first=4, n_flag=17, gap=None, catch=3, wo_start=8, wo_end=50, n_ml=30, stamps=False, rotmul=5,
        sleep=0, codepf=True, tailpf=None, pol='nt', wpol='nt', spin=400000, dbgcnt=False, hst=False):
    if hst:
        stamps = True
    gap = gap or D + 1
    e = Emit()
    K = NAME + '_kernel'
    LDS = 8192 + 2048
    sW = 's3'
    SK, SV, SWQ, SWO, SFU, SW2, SX, SWS, SDBG, SOUT, SCODE = [f's[{b}:{b+3}]' for b in range(28, 72, 4)]
    sXc, sJ, sHH, sH, sB, sS, sS8, sBH, sUnit, sDG, sCB, sT0, sT1, sT2, sKoff, sVoff, sMask, sF0, sPB, sIdleU, sIdleD = \
        [f's{n}' for n in range(72, 93)]
    sSelLo, sSelHi, sSpin = 's93', 's94', 's95'
    sMC, sMA = 's[96:97]', 's[98:99]'
    stamp_regs = [4, 6, 8, 10, 12, 14, 16, 18]
    nst = [0]
    def stamp():
        if stamps:
            r = stamp_regs[nst[0]]
            e(f's_memrealtime s[{r}:{r+1}]')
            nst[0] += 1
    vKO, M, Q, S, vY = 'v1', [2, 3, 4, 5], [6, 7, 8, 9], [10, 11, 12, 13], 'v14'
    vL = 'v15'
    A = [16, 20]
    ACC = 24
    T = list(range(28, 48))
    KBASE, KRING = 48, 52
    def kreg(n):
        return KBASE + 4 * (n % KRING)
    VRING = 16
    def vreg(n):
        return 4 * (n % VRING)
    rng = lambda p, b, n: f'{p}[{b}:{b+n-1}]'

    e.raw(HEADER.rstrip('\n'))
    e.raw(f'; @launch grid=(256,1,1) block=(256,1,1) lds={LDS}')
    e.raw('.amdgcn_target "amdgcn-amd-amdhsa--gfx950"\n.text')
    e.raw(f'.globl {K}\n.p2align 8\n.type {K},@function\n{K}:')
    e('s_cmp_ge_u32 s2, 256\ns_cbranch_scc1 L_end')
    e('s_load_dwordx16 s[4:19], s[0:1], 0\ns_load_dwordx8 s[20:27], s[0:1], 64')
    if stamps:
        e('s_memrealtime s[100:101]')
    e('s_getpc_b64 s[68:69]')
    e(f'v_lshrrev_b32 v2, 6, v0\nv_and_b32 {vL}, 63, v0\nv_readfirstlane_b32 {sW}, v2')
    e(f'''s_and_b32 {sXc}, s2, 7
          s_lshr_b32 {sJ}, s2, 3
          s_lshr_b32 {sHH}, {sJ}, 3
          s_lshl_b32 {sH}, {sXc}, 2
          s_add_u32 {sH}, {sH}, {sHH}
          s_bfe_u32 {sB}, {sJ}, 0x10002
          s_and_b32 {sS}, {sJ}, 3
          s_and_b32 {sS8}, {sJ}, 7
          s_lshl_b32 {sBH}, {sB}, 5
          s_add_u32 {sBH}, {sBH}, {sH}
          s_lshl_b32 {sPB}, {sH}, 2
          s_add_u32 {sPB}, {sPB}, {sS}''')
    e(f'''s_min_u32 {sT0}, {sXc}, 2
          s_mul_i32 {sUnit}, {sXc}, 30
          s_add_u32 {sUnit}, {sUnit}, {sT0}
          s_add_u32 {sUnit}, {sUnit}, {sJ}
          s_cmp_lt_u32 {sXc}, 2
          s_cselect_b32 {sT0}, 31, 30
          s_cmp_lt_u32 {sJ}, {sT0}
          s_cselect_b32 {sIdleU}, 0, {OOB}
          s_mul_i32 {sDG}, {sUnit}, 745
          s_lshr_b32 {sDG}, {sDG}, 13
          s_mul_i32 {sCB}, {sDG}, 11
          s_sub_u32 {sCB}, {sUnit}, {sCB}''')
    assert all((u * 745) >> 13 == u // 11 for u in range(260))
    g, i = f'v{T[0]}', f'v{T[1]}'
    t2, t3, t4, t5 = [f'v{T[k]}' for k in range(2, 6)]
    vXG, vWQ, vFU = [f'v{T[k]}' for k in range(6, 9)]
    e(f'''v_lshrrev_b32 {g}, 4, {vL}
          v_and_b32 {i}, 15, {vL}
          v_lshlrev_b32 {vKO}, 4, v0
          v_lshlrev_b32 {t2}, 5, {vL}''')
    e(f'''s_lshl_b32 {sT0}, {sS8}, 6
          s_lshl_b32 {sT1}, {sW}, 4
          s_add_u32 {sT0}, {sT0}, {sT1}
          s_mul_i32 {sT1}, {sDG}, 24
          s_and_b32 {sT2}, {sW}, 1
          s_mul_i32 {sT2}, {sT2}, 12
          s_add_u32 {sT1}, {sT1}, {sT2}''')
    e(f'''v_and_b32 {t3}, 3, {vL}
          v_lshl_add_u32 {t3}, {t3}, 2, {g}
          v_and_b32 {t4}, 4, {vL}
          v_cmp_eq_u32 vcc, 0, {t4}
          v_mov_b32 {t4}, {sT1}
          v_mov_b32 {t5}, {sT0}
          v_cndmask_b32 {t4}, {t4}, {t5}, vcc
          v_add_u32 {t3}, {t3}, {t4}
          v_bfe_u32 {t4}, {vL}, 3, 1
          v_lshl_add_u32 {t3}, {t4}, 9, {t3}
          v_lshlrev_b32 {vXG}, 1, {t3}''')
    e(f'''s_lshl_b32 {sT2}, {sW}, 4
          v_add_u32 {t3}, {sT2}, {g}
          v_lshlrev_b32 {t3}, 13, {t3}
          v_lshl_add_u32 {vWQ}, {i}, 4, {t3}
          v_add_u32 {t3}, {sT1}, {g}
          v_mul_u32_u24 {t3}, 2752, {t3}
          s_lshl_b32 {sT2}, {sCB}, 8
          s_add_u32 {sT2}, {sT2}, {sIdleU}
          v_lshl_add_u32 {t3}, {i}, 4, {t3}
          v_add_u32 {vFU}, {sT2}, {t3}''')
    e(f'''s_lshl_b32 {sT0}, {sBH}, 22
          s_lshl_b32 {sT1}, {sS}, 18
          s_add_u32 {sT0}, {sT0}, {sT1}
          s_add_u32 {sT0}, {sT0}, 0x300000
          s_lshl_b32 {sT1}, {sS8}, 19
          s_lshl_b32 {sT2}, {sH}, 8
          s_add_u32 {sT1}, {sT1}, {sT2}
          s_mul_i32 {sKoff}, s2, {rotmul}
          s_and_b32 {sKoff}, {sKoff}, 63
          s_lshl_b32 {sKoff}, {sKoff}, 12
          s_mov_b32 {sVoff}, {sKoff}
          s_mov_b32 {sMask}, 0x3ffff''')
    for b in (31, 35, 39, 43, 47, 51, 55, 59, 63, 67, 71):
        e(f's_mov_b32 s{b}, 0x20000')
    e(f'''s_mov_b32 s30, 0x40000
          s_mov_b32 s34, 0x40000
          s_mov_b32 s38, {63*8192+256}
          s_mov_b32 s42, 0x20000
          s_mov_b32 s46, {512*2752}
          s_mov_b32 s50, {1376*1024}
          s_mov_b32 s54, 2048
          s_mov_b32 s58, {WS_END}
          s_mov_b32 s62, 256
          s_mov_b32 s66, 2048
          s_mov_b32 s70, CODE_BYTES''')
    e('s_waitcnt lgkmcnt(0)')
    e(f'''s_mov_b32 s52, s4
          s_mov_b32 s53, s5''')
    XL = 208
    XU = 216
    XG = 232
    e.vmem(f'buffer_load_dwordx4 {rng("v", XL, 4)}, {t2}, {SX}, 0 offen', 'xl0')
    e.vmem(f'buffer_load_dwordx4 {rng("v", XL+4, 4)}, {t2}, {SX}, 0 offen offset:16', 'xl1')
    e.vmem(f'buffer_load_ushort v{XG}, {vXG}, {SX}, 0 offen', 'xg')
    e(f'''s_add_u32 s36, s10, {sT1}
          s_addc_u32 s37, s11, 0''')
    for t in range(4):
        if t:
            e(f's_mov_b32 {sT2}, {32768*t}')
        e.vmem(f'buffer_load_dwordx4 {rng("a", 64+4*t, 4)}, {vWQ}, {SWQ}, {sT2 if t else 0} offen {wpol}', f'wq{t}')
    e(f'''s_cmp_lt_u32 {sW}, 2
          s_cselect_b32 s44, s16, s18
          s_cselect_b32 s45, s17, s19''')
    for t in range(3):
        if t:
            e(f'v_add_u32 {vFU}, {4*2752}, {vFU}')
        e.vmem(f'buffer_load_dwordx4 {rng("a", 80+4*t, 4)}, {vFU}, {SFU}, 0 offen {wpol}', f'fu{t}')
    e(f'''s_add_u32 s28, s6, {sT0}
          s_addc_u32 s29, s7, 0
          s_add_u32 s32, s8, {sT0}
          s_addc_u32 s33, s9, 0''')
    kn = [0]
    def kissue():
        n = kn[0]
        e.vmem(f'buffer_load_dwordx4 {rng("v", kreg(n), 4)}, {vKO}, {SK}, {sKoff} offen {pol}', f'K{n}')
        e(f's_addk_i32 {sKoff}, 0x1000\ns_and_b32 {sKoff}, {sKoff}, {sMask}')
        kn[0] += 1
    for _ in range(k_first):
        kissue()
    e(f'''s_lshl_b32 {sT0}, {sH}, 17
          s_add_u32 s40, s12, {sT0}
          s_addc_u32 s41, s13, 0
          s_mov_b32 s48, s20
          s_mov_b32 s49, s21
          s_mov_b32 s56, s26
          s_mov_b32 s57, s27
          s_mov_b32 s60, s24
          s_mov_b32 s61, s25
          s_mov_b32 s64, s22
          s_mov_b32 s65, s23''')
    if stamps:
        e('s_mov_b32 s20, s26\ns_mov_b32 s21, s27\ns_mov_b32 s22, 0x40000000\ns_mov_b32 s23, 0x20000')
    if codepf:
        e(f'''s_lshl_b32 {sT0}, {sJ}, 2
              s_add_u32 {sT0}, {sT0}, {sW}
              s_lshl_b32 {sT0}, {sT0}, 8
              v_lshlrev_b32 {t2}, 2, {vL}
              v_add_u32 {t2}, {sT0}, {t2}''')
        e.vmem(f'buffer_load_dword v{XG+1}, {t2}, {SCODE}, 0 offen', 'cpf')
    e(f'''s_lshl_b32 {sT0}, {sB}, 4
          s_lshl_b32 {sT1}, {sW}, 2
          s_add_u32 {sT0}, {sT0}, {sT1}
          s_lshl_b32 {sT0}, {sT0}, 7
          s_add_u32 {sT0}, {sT0}, {sPB}
          s_lshl_b32 {sT0}, {sT0}, 7
          v_lshrrev_b32 {t2}, 2, {i}
          v_lshlrev_b32 {t2}, 14, {t2}
          v_and_b32 {t3}, 3, {vL}
          v_lshl_add_u32 {t2}, {t3}, 5, {t2}
          v_lshl_add_u32 {t2}, {g}, 4, {t2}
          v_add_u32 {t2}, {sT0}, {t2}
          s_lshl_b32 {sT1}, {sUnit}, 11
          s_lshl_b32 {sT2}, {sW}, 9
          s_add_u32 {sT1}, {sT1}, {sT2}
          s_add_u32 {sT1}, {sT1}, {WS_FU - 512}
          s_add_u32 {sT1}, {sT1}, {sIdleU}
          v_lshlrev_b32 {t3}, 4, {vL}
          v_add_u32 {t4}, {sT1}, {t3}
          v_cmp_gt_u32 vcc, 32, {vL}
          v_mov_b32 v{XU}, -1
          v_mov_b32 v{XU+1}, -1
          v_cndmask_b32 {vY}, {t4}, {t2}, vcc
          v_mov_b32 v{XU+2}, -1
          v_mov_b32 v{XU+3}, -1''')
    e.vmem(f'buffer_store_dwordx4 {rng("v", XU, 4)}, {vY}, {SWS}, 0 offen sc1', 'clr0')
    vML = f'v{T[9]}'
    e(f'''s_lshl_b32 {sT0}, {sH}, 3
          s_add_u32 {sT0}, {sT0}, {sS8}
          s_lshl_b32 {sT0}, {sT0}, 10
          s_add_u32 {sT0}, {sT0}, {WS_Q}
          s_lshl_b32 {sT1}, {sW}, 8
          s_add_u32 {sT1}, {sT1}, {sT0}
          v_add_u32 {t2}, {sT1}, {t3}
          s_lshl_b32 {sT1}, {sBH}, 4
          s_lshl_b32 {sT2}, {sS}, 2
          s_add_u32 {sT1}, {sT1}, {sT2}
          s_add_u32 {sT1}, {sT1}, {sW}
          s_lshl_b32 {sT1}, {sT1}, 4
          s_add_u32 {sT1}, {sT1}, {WS_ML}
          v_mov_b32 {t4}, {sT1}
          v_mov_b32 {t5}, {OOB}
          v_cmp_eq_u32 vcc, 16, {vL}
          v_cndmask_b32 {vML}, {t5}, {t4}, vcc
          v_cmp_gt_u32 vcc, 16, {vL}
          v_cndmask_b32 {t2}, {vML}, {t2}, vcc''')
    e.vmem(f'buffer_store_dwordx4 {rng("v", XU, 4)}, {t2}, {SWS}, 0 offen sc1', 'clr1')
    sQ = sT0
    e(f's_mov_b32 {sF0}, {sT0}')
    kissue(); kissue()
    e(f'''v_and_b32 {t2}, 1, {vL}
          v_lshlrev_b32 {t2}, 4, {t2}
          v_mov_b32 {t3}, 0xffff
          v_lshlrev_b32 {t2}, {t2}, {t3}
          v_bfe_u32 {t3}, {vL}, 1, 2''')
    for r in range(4):
        e(f'v_cmp_eq_u32 vcc, {r}, {t3}\nv_cndmask_b32 v{M[r]}, 0, {t2}, vcc')
    e(f'''s_mov_b32 s96, 0xcccccccc
          s_mov_b32 s97, 0xcccccccc
          s_mov_b32 s98, 0xaaaaaaaa
          s_mov_b32 s99, 0xaaaaaaaa
          s_mov_b32 {sSelLo}, 0x05040100
          s_mov_b32 {sSelHi}, 0x07060302''')

    def rowred(op, r, ctrls=('row_ror:8', 'row_ror:4', 'row_ror:2', 'row_ror:1')):
        for c in ctrls:
            e(f'{op}_dpp {r}, {r}, {r} {c} row_mask:0xf bank_mask:0xf')
    def swapred(op, r, tmp, n):
        e(f'v_mov_b32 {tmp}, {r}\nv_permlane{n}_swap_b32 {r}, {tmp}\n{op} {r}, {r}, {tmp}')
    def bf16r(dst, src):
        e(f'v_cvt_pk_bf16_f32 {dst}, {src}, {src}\nv_and_b32 {dst}, 0xffff0000, {dst}')

    e.wait('xl1')
    stamp()
    for k in range(8):
        e(f'v_lshlrev_b32 v{XU+2*k}, 16, v{XL+k}\nv_and_b32 v{XU+2*k+1}, 0xffff0000, v{XL+k}')
    for k in range(4):
        e(f'v_pk_add_f32 v[{XL+2*k}:{XL+2*k+1}], v[{XU+4*k}:{XU+4*k+1}], v[{XU+4*k+2}:{XU+4*k+3}]')
    e(f'''v_pk_add_f32 v[{XL}:{XL+1}], v[{XL}:{XL+1}], v[{XL+2}:{XL+3}]
          v_pk_add_f32 v[{XL+4}:{XL+5}], v[{XL+4}:{XL+5}], v[{XL+6}:{XL+7}]
          v_pk_add_f32 v[{XL}:{XL+1}], v[{XL}:{XL+1}], v[{XL+4}:{XL+5}]
          v_add_f32 {t2}, v{XL}, v{XL+1}''')
    kissue()
    rowred('v_add_f32', t2)
    swapred('v_add_f32', t2, t3, 16)
    e(f'v_mul_f32 {t2}, 0x3b000000, {t2}')
    for k in range(16):
        e(f'v_sub_f32 v{XU+k}, v{XU+k}, {t2}')
    kissue()
    e(f'v_mul_f32 {t4}, v{XU}, v{XU}\nv_mul_f32 {t5}, v{XU+1}, v{XU+1}')
    for k in range(2, 16, 2):
        e(f'v_fmac_f32 {t4}, v{XU+k}, v{XU+k}\nv_fmac_f32 {t5}, v{XU+k+1}, v{XU+k+1}')
    e(f'v_add_f32 {t4}, {t4}, {t5}')
    kissue()
    rowred('v_add_f32', t4)
    swapred('v_add_f32', t4, t3, 16)
    e(f'v_mul_f32 {t4}, 0x3b000000, {t4}')
    bf16r(t2, t2)
    bf16r(t4, t4)
    e(f'v_add_f32 {t4}, 0x3727c5ac, {t4}')
    bf16r(t4, t4)
    e(f'v_sqrt_f32 {t4}, {t4}')
    bf16r(t4, t4)
    e(f'''v_mov_b32 {t3}, {t2}
          v_mov_b32 {t5}, {t4}
          v_and_b32 v{XL}, 8, {vL}
          v_permlane32_swap_b32 {t2}, {t3}
          v_permlane32_swap_b32 {t4}, {t5}
          v_cmp_eq_u32 vcc, 0, v{XL}
          v_cndmask_b32 {t2}, {t3}, {t2}, vcc
          v_cndmask_b32 {t4}, {t5}, {t4}, vcc''')
    e.wait('xg')
    XN = f'v{XG}'
    e(f'v_lshlrev_b32 {XN}, 16, {XN}\nv_sub_f32 {XN}, {XN}, {t2}\nv_rcp_f32 {t5}, {t4}')
    bf16r(XN, XN)
    e(f'''v_mul_f32 {t2}, {XN}, {t5}
          v_fma_f32 {t3}, -{t2}, {t4}, {XN}
          v_fmac_f32 {t2}, {t3}, {t5}
          v_cvt_pk_bf16_f32 {XN}, {t2}, {t2}''')
    kissue()
    DQ, DF = 240, 244
    def abuild2(a, n0):
        for r in range(4):
            e(f'v_and_b32_dpp v{a+r}, {XN}, v{M[r]} row_newbcast:{n0} row_mask:0xf bank_mask:0x3')
        for r in range(4):
            e(f'v_and_b32_dpp v{a+r}, {XN}, v{M[r]} row_newbcast:{n0+8} row_mask:0xf bank_mask:0xc')
    for t in range(7):
        a = A[t & 1]
        abuild2(a, t)
        e.wait(f'wq{t}' if t < 4 else f'fu{t-4}')
        d = DQ if t < 4 else DF
        c = '0' if t in (0, 4) else rng('v', d, 4)
        e(f'v_mfma_f32_16x16x32_bf16 {rng("v", d, 4)}, {rng("v", a, 4)}, {rng("a", 64+4*t, 4)}, {c}')
        if t == 3:
            kissue()
    e(f'ds_write_b128 {vKO}, {rng("v", DQ, 4)}')
    e(f'ds_write_b128 {vKO}, {rng("v", DF, 4)} offset:4096')
    e.wait('clr1')
    e('s_waitcnt lgkmcnt(0)\ns_barrier')
    stamp()
    R0 = 216
    e(f'''v_lshlrev_b32 {t2}, 4, {vL}
          v_lshrrev_b32 {t3}, 1, {g}
          v_and_b32 {t4}, 1, {g}
          v_lshlrev_b32 {t4}, 2, {t4}
          v_lshl_add_u32 {t4}, {i}, 3, {t4}
          s_cmp_eq_u32 {sW}, 0
          s_cbranch_scc1 L_pubq
          s_cmp_eq_u32 {sW}, 3
          s_cbranch_scc1 L_pubflag''')
    e(f'''s_sub_u32 {sT1}, {sW}, 1
          s_lshl_b32 {sT2}, {sT1}, 3
          v_add_u32 {t2}, {sT2}, {t2}''')
    for k in range(4):
        e(f'ds_read_b64 v[{R0+2*k}:{R0+2*k+1}], {t2} offset:{4096+1024*k}')
    e(f'''s_lshl_b32 {sT1}, {sT1}, 4
          s_lshl_b32 {sT2}, {sUnit}, 11
          s_add_u32 {sT1}, {sT1}, {sT2}
          s_add_u32 {sT1}, {sT1}, {WS_FU}
          s_add_u32 {sT1}, {sT1}, {sIdleU}
          v_lshlrev_b32 {t3}, 10, {t3}
          v_lshl_add_u32 {t3}, {t4}, 3, {t3}
          v_add_u32 {t3}, {sT1}, {t3}
          s_waitcnt lgkmcnt(0)
          v_add_f32 v{R0+8}, v{R0}, v{R0+2}
          v_add_f32 v{R0+9}, v{R0+4}, v{R0+6}
          v_add_f32 v{R0+10}, v{R0+1}, v{R0+3}
          v_add_f32 v{R0+11}, v{R0+5}, v{R0+7}
          buffer_store_dwordx4 {rng("v", R0+8, 4)}, {t3}, {SWS}, 0 offen sc1
          s_branch L_pubdone''')
    e('L_pubq:')
    for k in range(4):
        e(f'ds_read_b128 {rng("v", R0+4*k, 4)}, {t2} offset:{1024*k}')
    e(f'''v_lshlrev_b32 {t3}, 9, {t3}
          v_lshl_add_u32 {t3}, {t4}, 2, {t3}
          v_add_u32 {t3}, {sF0}, {t3}
          s_waitcnt lgkmcnt(0)''')
    for k in (0, 2):
        e(f'v_pk_add_f32 v[{R0+k}:{R0+k+1}], v[{R0+k}:{R0+k+1}], v[{R0+4+k}:{R0+5+k}]')
        e(f'v_pk_add_f32 v[{R0+8+k}:{R0+9+k}], v[{R0+8+k}:{R0+9+k}], v[{R0+12+k}:{R0+13+k}]')
    for k in (0, 2):
        e(f'v_pk_add_f32 v[{R0+k}:{R0+k+1}], v[{R0+k}:{R0+k+1}], v[{R0+8+k}:{R0+9+k}]')
    e(f'buffer_store_dwordx4 {rng("v", R0, 4)}, {t3}, {SWS}, 0 offen sc1\ns_branch L_pubdone')
    e('L_pubflag:')
    e(f'''v_mov_b32 {t2}, s2
          v_mov_b32 {t3}, 1
          s_mov_b64 exec, 1
          buffer_store_byte {t3}, {t2}, {SDBG}, 0 offen sc1
          s_mov_b64 exec, -1''')
    e('L_pubdone:')
    e.vm.append('pub')
    e.fence(2)

    vFL, vQG, vWO, vW2, vFG, vOUT, vCON, vOW, vOR, vF = [f'v{T[k]}' for k in range(10, 20)]
    e(f'''s_lshl_b32 {sT0}, {sHH}, 2
          s_add_u32 {sT0}, {sT0}, {sS}
          s_sub_u32 {sT1}, 15, {sT0}
          s_cmp_lt_u32 {sXc}, 3
          s_cselect_b32 {sT2}, 15, 14
          s_cmp_lt_u32 {sT1}, {sT2}
          s_cselect_b32 {sIdleD}, 0, {OOB}
          s_min_u32 {sT2}, {sXc}, 3
          s_add_u32 {sT1}, {sT1}, {sT2}
          s_mul_i32 {sT2}, {sXc}, 14
          s_add_u32 {sT1}, {sT1}, {sT2}
          s_mul_i32 {sF0}, {sT1}, 12''')
    e(f'''s_lshr_b32 {sT1}, {sT0}, 3
          s_lshl_b32 {sT2}, {sXc}, 1
          s_add_u32 {sT1}, {sT1}, {sT2}
          s_and_b32 {sT0}, {sT0}, 7
          s_lshl_b32 {sT2}, {sB}, 4
          s_add_u32 {sT1}, {sT1}, {sT2}
          s_lshl_b32 {sT2}, {sT1}, 14
          s_lshl_b32 {sDG}, {sT0}, 4
          s_add_u32 {sT2}, {sT2}, {sDG}
          v_lshlrev_b32 {vCON}, 7, {vL}
          v_add_u32 {vCON}, {sT2}, {vCON}
          s_lshl_b32 {sT1}, {sT1}, 3
          s_add_u32 {sT1}, {sT1}, {sT0}
          s_lshl_b32 {sT1}, {sT1}, 3
          v_and_b32 {t2}, 1, {g}
          v_lshrrev_b32 {t3}, 1, {g}
          v_lshl_add_u32 {t2}, {t2}, 1, {t3}
          v_lshlrev_b32 {t2}, 1, {t2}
          v_add_u32 {t2}, {sT1}, {t2}
          v_mov_b32 {t3}, {OOB}
          v_cmp_eq_u32 vcc, 0, {i}
          v_cndmask_b32 {vOUT}, {t3}, {t2}, vcc''')
    kissue()
    if hst:
        e(f'v_max_u32 {vFL}, 16, {vL}\nv_lshlrev_b32 {vFL}, 2, {vFL}')
    else:
        e(f'v_lshlrev_b32 {vFL}, 2, {vL}')
    e(f'''
          s_lshl_b32 {sT0}, {sH}, 13
          s_lshl_b32 {sT1}, {sB}, 9
          s_add_u32 {sT0}, {sT0}, {sT1}
          s_add_u32 {sT0}, {sT0}, {WS_Q}
          v_lshlrev_b32 {t2}, 10, {g}
          v_lshl_add_u32 {t2}, {i}, 5, {t2}
          v_add_u32 {vQG}, {sT0}, {t2}
          s_lshl_b32 {sT0}, {sW}, 8
          v_lshlrev_b32 {t2}, 4, {i}
          v_add_u32 {t2}, {sT0}, {t2}
          v_lshl_add_u32 {vWO}, {g}, 13, {t2}
          s_lshl_b32 {sT0}, {sF0}, 10
          s_add_u32 {sT0}, {sT0}, {sIdleD}
          v_lshl_add_u32 {t2}, {g}, 12, {t2}
          v_add_u32 {t2}, {sT0}, {t2}
          v_cmp_gt_u32 vcc, 3, {g}
          v_cndmask_b32 {vW2}, {t3}, {t2}, vcc''')
    e(f'''v_and_b32 {t2}, 7, {vL}
          v_cmp_gt_u32 vcc, 6, {t2}
          v_lshl_add_u32 {t2}, {t2}, 1, {sF0}
          v_lshrrev_b32 {t4}, 3, {vL}
          v_mul_u32_u24 {t4}, 11, {t4}
          v_lshrrev_b32 {t5}, 7, {t2}
          v_add_u32 {t4}, {t4}, {t5}
          v_and_b32 {t2}, 127, {t2}
          v_lshlrev_b32 {t2}, 3, {t2}
          v_lshl_add_u32 {t2}, {t4}, 11, {t2}
          s_lshl_b32 {sT0}, {sB}, 10
          s_add_u32 {sT0}, {sT0}, {WS_FU}
          s_add_u32 {sT0}, {sT0}, {sIdleD}
          v_add_u32 {t2}, {sT0}, {t2}
          v_cndmask_b32 {vFG}, {t3}, {t2}, vcc''')
    e(f'''s_mul_i32 {sT0}, {sW}, 320
          s_add_u32 {sT0}, {sT0}, 8192
          v_and_b32 {t2}, 1, {g}
          v_lshlrev_b32 {t2}, 3, {t2}
          v_lshl_add_u32 {t2}, {i}, 4, {t2}
          v_add_u32 {vOW}, {sT0}, {t2}
          v_and_b32 {t2}, 3, {vL}
          v_mul_u32_u24 {t2}, 320, {t2}
          v_lshl_add_u32 {vOR}, {g}, 4, {t2}''')

    slow = []
    def checked(name, regsl, reissue, bad_if_ne=None):
        def test():
            if bad_if_ne is not None:
                e(f'v_cmp_ne_u32 vcc, {bad_if_ne}, v{regsl[0]}')
            else:
                acc = t2
                rs = list(regsl)
                if len(rs) == 2:
                    e(f'v_max_u32 {acc}, v{rs[0]}, v{rs[1]}')
                else:
                    e(f'v_max3_u32 {acc}, v{rs[0]}, v{rs[1]}, v{rs[2]}')
                    rs = rs[3:]
                    while rs:
                        if len(rs) == 1:
                            e(f'v_max_u32 {acc}, {acc}, v{rs[0]}'); rs = []
                        else:
                            e(f'v_max3_u32 {acc}, {acc}, v{rs[0]}, v{rs[1]}'); rs = rs[2:]
                e(f'v_cmp_eq_u32 vcc, -1, {acc}')
        test()
        e(f's_cbranch_vccnz L_slow_{name}\nL_ok_{name}:')
        def emit_slow():
            e(f'L_slow_{name}:')
            e(f's_mov_b32 {sSpin}, {spin}')
            e(f'L_retry_{name}:')
            if dbgcnt:
                e(f's_add_u32 s24, s24, {1 << (8 * ["flag", "q", "fu", "ml"].index(name))}')
            e('s_sleep 1')
            reissue()
            e('s_waitcnt vmcnt(0)')
            test()
            e(f's_cbranch_vccz L_ok_{name}')
            e(f's_sub_u32 {sSpin}, {sSpin}, 1\ns_cbranch_scc0 L_retry_{name}\ns_branch L_ok_{name}')
        slow.append(emit_slow)
    if dbgcnt:
        e('s_mov_b32 s24, 0')

    state = dict(q=False, kproc=0, soft=False, vproc=0, wop=0, ffn=False, ml=False)
    PD = [T[2], T[3], T[4], T[5]]
    L1, L2, L3 = [T[6], T[7]], [T[8], Q[0]], None
    lv = {}
    KT = [26, 27, 24, 25, 20, 21, 22, 23]
    def kpair(n):
        a, b = f'v{KT[0]}', f'v{KT[1]}'
        for k in range(4):
            for r, m in ((a, n), (b, n + 1)):
                e(f'v_dot2_f32_bf16 {r}, v{kreg(m)+k}, v{Q[k]}, {r if k else 0}')
        d1 = f'v{KT[2 + ((n >> 1) & 1)]}'
        e(f'v_add_f32_dpp {d1}, {a}, {a} row_ror:8 row_mask:0xf bank_mask:0x3')
        e(f'v_add_f32_dpp {d1}, {b}, {b} row_ror:8 row_mask:0xf bank_mask:0xc')
        if not (n >> 1) & 1:
            return
        x, y = f'v{KT[2]}', f'v{KT[3]}'
        d2 = f'v{KT[4 + ((n >> 2) & 1)]}'
        e(f'v_add_f32_dpp {d2}, {x}, {x} row_shl:4 row_mask:0xf bank_mask:0x5')
        e(f'v_add_f32_dpp {d2}, {y}, {y} row_shr:4 row_mask:0xf bank_mask:0xa')
        if not (n >> 2) & 1:
            return
        x, y = f'v{KT[4]}', f'v{KT[5]}'
        d3 = f'v{KT[6 + ((n >> 3) & 1)]}'
        e(f'v_add_f32_dpp {x}, {x}, {x} quad_perm:[2,3,0,1] row_mask:0xf bank_mask:0xf')
        e(f'v_add_f32_dpp {y}, {y}, {y} quad_perm:[2,3,0,1] row_mask:0xf bank_mask:0xf')
        e(f'v_cndmask_b32 {d3}, {x}, {y}, {sMC}')
        if not (n >> 3) & 1:
            return
        x, y = f'v{KT[6]}', f'v{KT[7]}'
        s = f'v{S[n >> 4]}'
        e(f'v_add_f32_dpp {x}, {x}, {x} quad_perm:[1,0,3,2] row_mask:0xf bank_mask:0xf')
        e(f'v_add_f32_dpp {y}, {y}, {y} quad_perm:[1,0,3,2] row_mask:0xf bank_mask:0xf')
        e(f'v_cndmask_b32 {s}, {x}, {y}, {sMA}')
        bf16r(s, s)
        e(f'v_mul_f32 {s}, {SCALE}, {s}')
        bf16r(s, s)
    vM, vLs = f'v{T[6]}', f'v{T[7]}'
    assert T[6] % 2 == 0
    def softmax():
        stamp()
        e(f'v_max3_f32 {vM}, v{S[0]}, v{S[1]}, v{S[2]}\nv_max_f32 {vM}, {vM}, v{S[3]}')
        rowred('v_max_f32', vM)
        swapred('v_max_f32', vM, t2, 16)
        swapred('v_max_f32', vM, t2, 32)
        for k in range(4):
            e(f'v_sub_f32 v{S[k]}, v{S[k]}, {vM}')
        for k in range(4):
            e(f'v_mul_f32 v{S[k]}, {LOG2E}, v{S[k]}')
        for k in range(4):
            e(f'v_exp_f32 v{S[k]}, v{S[k]}')
        for k in range(4):
            e(f'v_cvt_pk_bf16_f32 v{Q[k]}, v{S[k]}, v{S[k]}')
        abuild(0)
        e(f'v_add_f32 {vLs}, v{S[0]}, v{S[1]}\nv_add_f32 {t2}, v{S[2]}, v{S[3]}\nv_add_f32 {vLs}, {vLs}, {t2}')
        rowred('v_add_f32', vLs)
        swapred('v_add_f32', vLs, t2, 16)
        swapred('v_add_f32', vLs, t2, 32)
        e.vmem(f'buffer_store_dwordx2 v[{T[6]}:{T[7]}], {vML}, {SWS}, 0 offen sc1', 'mlpub')
        state['soft'] = True
    def abuild(n):
        a = A[n & 1]
        for r in range(4):
            e(f'v_and_b32_dpp v{a+r}, v{Q[n >> 4]}, v{M[r]} row_newbcast:{bitrev4(n & 15)} row_mask:0xf bank_mask:0xf')
    def vstep(n):
        c = rng('v', ACC, 4) if n else '0'
        e(f'v_mfma_f32_16x16x32_bf16 {rng("v", ACC, 4)}, {rng("v", A[n & 1], 4)}, {rng("a", vreg(n), 4)}, {c}')
        if n < 63:
            abuild(n + 1)
    F, DY, STG, G2, W2S, FGR = 128, 96, 64, 48, 224, 240
    def stg(k):
        return STG + 4 * (k % 8)
    def woperm(k):
        t, ee = k >> 3, k & 7
        for m in range(4):
            for hi in range(2):
                e(f'v_perm_b32 v{F + 32*t + 4*(2*m+hi) + ee//2}, v{stg(k+1)+m}, v{stg(k)+m}, {sSelHi if hi else sSelLo}')
    def fgissue(tagger):
        e(f'v_mov_b32 {t3}, {vFG}')
        for m in range(3):
            tagger(f'buffer_load_dwordx4 {rng("v", FGR+4*m, 4)}, {t3}, {SWS}, 0 offen sc1', f'fg{m}')
            if m < 2:
                e(f'v_add_u32 {t3}, {8*11*2048}, {t3}')
    def ffn_down():
        checked('fu', list(range(FGR, FGR + 12)), lambda: fgissue(lambda s, t: e(s)))
        for k in (0, 2):
            e(f'v_pk_add_f32 v[{FGR+k}:{FGR+k+1}], v[{FGR+k}:{FGR+k+1}], v[{FGR+4+k}:{FGR+5+k}]')
        for k in (0, 2):
            e(f'v_pk_add_f32 v[{FGR+k}:{FGR+k+1}], v[{FGR+k}:{FGR+k+1}], v[{FGR+8+k}:{FGR+9+k}]')
        for p in range(2):
            for m in range(4):
                for hi in range(2):
                    e(f'v_perm_b32 v{G2 + 2*(2*m+hi) + p}, v{W2S+8*p+4+m}, v{W2S+8*p+m}, {sSelHi if hi else sSelLo}')
        for k in range(4):
            e(f'v_add_f32_dpp v{FGR+k}, v{FGR+k}, v{FGR+k} row_ror:8 row_mask:0xf bank_mask:0xf')
        ga, up = f'v{FGR}', f'v{FGR+1}'
        e(f'''v_permlane32_swap_b32 v{FGR}, v{FGR+2}
              v_permlane32_swap_b32 v{FGR+1}, v{FGR+3}
              v_add_f32 {ga}, v{FGR}, v{FGR+2}
              v_add_f32 {up}, v{FGR+1}, v{FGR+3}''')
        swapred('v_add_f32', ga, t2, 16)
        swapred('v_add_f32', up, t3, 16)
        bf16r(ga, ga)
        bf16r(up, up)
        e(f'''v_mul_f32 {t2}, {LOG2E ^ 0x80000000}, {ga}
              v_exp_f32 {t2}, {t2}
              v_and_b32 {t4}, 3, {vL}
              v_add_f32 {t2}, 1.0, {t2}
              v_rcp_f32 {t2}, {t2}
              v_cmp_eq_u32 vcc, 0, {t4}
              v_mul_f32 {ga}, {ga}, {t2}
              v_cndmask_b32 {t4}, 0, -1, vcc''')
        bf16r(ga, ga)
        ha = FGR + 4
        e(f'''v_mul_f32 {ga}, {ga}, {up}
              v_mov_b32 v{ha}, 0
              v_mov_b32 {t2}, {ga}
              v_mov_b32 v{ha+1}, 0
              v_permlane32_swap_b32 {ga}, {t2}
              v_cvt_pk_bf16_f32 {ga}, {ga}, {t2}''')
        for gg in range(3):
            for p in range(2):
                e(f'v_and_b32_dpp v{ha+p}, {ga}, {t4} row_newbcast:{2*gg+p} row_mask:{hex(1 << gg)} bank_mask:0xf')
        for cc in range(8):
            e(f'v_mfma_f32_16x16x16_bf16 {rng("v", DY+4*cc, 4)}, v[{ha}:{ha+1}], v[{G2+2*cc}:{G2+2*cc+1}], 0')
        state['ffn'] = True
    MLR = T[4]
    assert MLR % 2 == 0
    vMG = f'v{T[8]}'
    def mlissue(tagger):
        e(f's_lshl_b32 {sT0}, {sBH}, 8\ns_add_u32 {sT0}, {sT0}, {WS_ML}\nv_lshlrev_b32 {vMG}, 4, {i}\nv_add_u32 {vMG}, {sT0}, {vMG}')
        tagger(f'buffer_load_dwordx2 v[{S[0]}:{S[1]}], {vMG}, {SWS}, 0 offen sc1', 'ml')
    def mlcombine():
        checked('ml', [S[0], S[1]], lambda: mlissue(lambda s, t: e(s)))
        mi, li, mx = f'v{S[0]}', f'v{S[1]}', f'v{S[2]}'
        e(f'v_mov_b32 {mx}, {mi}')
        rowred('v_max_f32', mx)
        e(f'''v_sub_f32 {mi}, {mi}, {mx}
              v_sub_f32 {vF}, {vM}, {mx}
              v_mul_f32 {mi}, {LOG2E}, {mi}
              v_mul_f32 {vF}, {LOG2E}, {vF}
              v_exp_f32 {mi}, {mi}
              v_exp_f32 {vF}, {vF}
              v_mul_f32 {li}, {li}, {mi}''')
        rowred('v_add_f32', li)
        e(f'v_rcp_f32 {li}, {li}\nv_mul_f32 {vF}, {vF}, {li}')
        state['ml'] = True
    def complete(tag):
        return tag in e.vm and e.vm.index(tag) < e.done
    def progress():
        if state['q'] and not state['soft']:
            c = 0
            while state['kproc'] < 64 and complete(f'K{state["kproc"]+1}') and c < state['budget']:
                kpair(state['kproc']); state['kproc'] += 2; c += 2
            state['budget'] = catch if c >= 2 or state['budget'] >= 2 * catch else state['budget'] + 1
            if state['kproc'] == 64:
                softmax()
        if state['soft']:
            while state['vproc'] < 64 and complete(f'V{state["vproc"]}'):
                vstep(state['vproc']); state['vproc'] += 1
            while state['wop'] < 32 and complete(f'wo{state["wop"]+1}'):
                woperm(state['wop']); state['wop'] += 2
            if not state['ffn'] and complete('fg2') and complete('w23'):
                ffn_down()
            if not state['ml'] and complete('ml'):
                mlcombine()
    def window():
        if len(e.vm) - e.done >= D:
            e.wait(e.vm[len(e.vm) - D])
        progress()
    QG = 232
    def qissue(tagger):
        for k in range(4):
            if k == 2:
                e(f's_movk_i32 {sT0}, 0x1000')
            tagger(f'buffer_load_dwordx4 {rng("v", QG+4*k, 4)}, {vQG}, {SWS}, {sT0 if k >= 2 else 0} offen offset:{16*(k&1)} sc1', f'qg{k}')
    def flag_issue(tagger):
        tagger(f'buffer_load_dword v{QG}, {vFL}, {SDBG}, 0 offen sc1', 'flag')
    def qfinish():
        e.wait('qg3')
        checked('q', list(range(QG, QG + 16)), lambda: qissue(lambda s, t: e(s)))
        for k in range(0, 8, 2):
            e(f'v_pk_add_f32 v[{QG+k}:{QG+k+1}], v[{QG+k}:{QG+k+1}], v[{QG+8+k}:{QG+9+k}]')
        for k in range(4):
            e(f'v_permlane32_swap_b32 v{QG+k}, v{QG+4+k}')
        for k in (0, 2):
            e(f'v_pk_add_f32 v[{QG+k}:{QG+k+1}], v[{QG+k}:{QG+k+1}], v[{QG+4+k}:{QG+5+k}]')
        e(f'''v_permlane16_swap_b32 v{QG}, v{QG+2}
              v_permlane16_swap_b32 v{QG+1}, v{QG+3}
              v_pk_add_f32 v[{QG}:{QG+1}], v[{QG}:{QG+1}], v[{QG+2}:{QG+3}]
              v_cvt_pk_bf16_f32 v{Q[0]}, v{QG}, v{QG+1}
              v_cvt_pk_bf16_f32 v{Q[1]}, v{QG}, v{QG+1}
              v_permlane16_swap_b32 v{Q[0]}, v{Q[1]}
              v_mov_b32 v{Q[2]}, v{Q[0]}
              v_mov_b32 v{Q[3]}, v{Q[1]}
              v_permlane32_swap_b32 v{Q[0]}, v{Q[2]}
              v_permlane32_swap_b32 v{Q[1]}, v{Q[3]}''')
        state['q'] = True
        state['budget'] = catch
        stamp()
    e(f's_mov_b32 {sT1}, 0x01010101')
    while kn[0] < 64:
        n = kn[0]
        if n == n_flag:
            window(); flag_issue(e.vmem)
        if n == n_flag + gap:
            e.wait('flag')
            checked('flag', [QG], lambda: flag_issue(lambda s, t: e(s)), bad_if_ne=sT1)
            qissue(e.vmem)
        if n == n_flag + 2 * gap:
            assert n <= (QG - KBASE) // 4
            qfinish()
        window()
        if n >= KRING:
            assert state['kproc'] > n - KRING, (n, state)
        kissue()
    extra = {}
    for k in range(4):
        extra.setdefault(k, []).append(('w2', k))
    extra.setdefault(4, []).append(('fg', 0))
    extra.setdefault(5, []).append(('xres', 0))
    for k in range(32):
        extra.setdefault(wo_start + (k * (wo_end - wo_start)) // 32, []).append(('wo', k))
    extra.setdefault(n_ml, []).append(('ml', 0))
    if tailpf is not None:
        extra.setdefault(tailpf, []).append(('tpf', 0))
    XR = T[9]
    nv, m = 0, None
    while nv < 64:
        window()
        assert nv < VRING or state['vproc'] > nv - VRING, (nv, state)
        e.vmem(f'buffer_load_dwordx4 {rng("a", vreg(nv), 4)}, {vKO}, {SV}, {sVoff} offen {pol}', f'V{nv}')
        if nv < 63:
            e(f's_addk_i32 {sVoff}, 0x1000\ns_and_b32 {sVoff}, {sVoff}, {sMask}')
        nv += 1
        if state['soft'] and m is None:
            m0 = nv
            m = 0
        if m is not None:
            todo = extra.pop(m, [])
            if nv == 64:
                for k in sorted(extra):
                    todo += extra[k]
                assert not extra, extra
            for kind, k in todo:
                window()
                if kind == 'w2':
                    e.vmem(f'buffer_load_dwordx4 {rng("v", W2S+4*k, 4)}, {vW2}, {SW2}, 0 offen offset:{1024*k} {wpol}', f'w2{k}')
                elif kind == 'fg':
                    fgissue(e.vmem)
                elif kind == 'xres':
                    e.vmem(f'buffer_load_ushort v{XR}, {vOUT}, {SX}, 0 offen', 'xres')
                elif kind == 'ml':
                    mlissue(e.vmem)
                elif kind == 'tpf':
                    e(f's_lshl_b32 {sT0}, {sW}, 8\ns_add_u32 {sT0}, {sT0}, TAIL_OFF\nv_lshlrev_b32 {t3}, 2, {vL}\nv_add_u32 {t3}, {sT0}, {t3}')
                    e.vmem(f'buffer_load_dword v{S[3]}, {t3}, {SCODE}, 0 offen', 'tpf')
                elif kind == 'wo':
                    assert k < 8 or state['wop'] > k - 8, (k, state)
                    assert k < 24 or state['ffn']
                    e(f's_mov_b32 {sT0}, {(k >> 3)*32768 + ((k >> 2) & 1)*4096}')
                    e.vmem(f'buffer_load_dwordx4 {rng("v", stg(k), 4)}, {vWO}, {SWO}, {sT0} offen offset:{1024*(k & 3)} {wpol}', f'wo{k}')
            m += 1
    while state['vproc'] < 64:
        e.wait(f'V{state["vproc"]}')
        if state['vproc'] == 63:
            e('L_tail:')
            stamp()
        progress()
    assert state['wop'] == 32 and state['ffn'] and state['ml'], state
    assert T[19] % 2 == 1
    e(f'''v_mul_f32 v{ACC}, v{ACC}, {vF}
          v_mul_f32 v{ACC+1}, v{ACC+1}, {vF}
          v_mul_f32 v{ACC+2}, v{ACC+2}, {vF}
          v_mul_f32 v{ACC+3}, v{ACC+3}, {vF}
          v_cvt_pk_bf16_f32 v{ACC}, v{ACC}, v{ACC+1}
          v_cvt_pk_bf16_f32 v{ACC+1}, v{ACC+2}, v{ACC+3}
          ds_write_b64 {vOW}, v[{ACC}:{ACC+1}]
          s_waitcnt lgkmcnt(0)
          s_barrier''')
    AF = STG
    for t in range(4):
        e(f'ds_read_b128 {rng("v", AF+4*t, 4)}, {vOR} offset:{8192+64*t}')
    Z = A[0]
    def tile_add(cc):
        d = DY + 4 * cc
        e(f'v_pk_add_f32 v[{d}:{d+1}], v[{d}:{d+1}], v[{d+2}:{d+3}]')
        return d
    def tile_fin(cc):
        d = DY + 4 * cc
        if cc < 4:
            e(f'v_add_f32 v{Z+cc}, v{d}, v{d+1}')
        else:
            e(f'v_add_f32_dpp v{Z+cc-4}, v{d}, v{d+1} quad_perm:[0,1,2,3] row_mask:0x2 bank_mask:0xf')
    for cc in range(8):
        for t in range(4):
            if cc == 0:
                e(f's_waitcnt lgkmcnt({3-t})')
            e(f'v_mfma_f32_16x16x32_bf16 {rng("v", DY+4*cc, 4)}, {rng("v", AF+4*t, 4)}, {rng("v", F+32*t+4*cc, 4)}, {rng("v", DY+4*cc, 4)}')
            if cc >= 2 and t == 1:
                tile_add(cc - 2)
            if cc >= 2 and t == 3:
                tile_fin(cc - 2)
    tile_add(6)
    e('s_mov_b32 exec_hi, 0')
    tile_add(7)
    tile_fin(6)
    tile_fin(7)
    e(f'buffer_store_dwordx4 {rng("v", Z, 4)}, {vY}, {SWS}, 0 offen sc1')
    e(f's_cmp_lg_u32 {sW}, 0\ns_cbranch_scc1 L_end')
    e('s_mov_b32 exec_hi, -1')
    stamp()
    C = STG
    e(f's_mov_b32 {sSpin}, {spin}\ns_movk_i32 {sT0}, 0x2000')
    e('L_poll:')
    e(f'''buffer_load_dwordx4 {rng("v", C, 4)}, {vCON}, {SWS}, 0 offen sc1
          buffer_load_dwordx4 {rng("v", C+4, 4)}, {vCON}, {SWS}, {sT0} offen sc1
          s_sub_u32 {sSpin}, {sSpin}, 1
          s_cbranch_scc1 L_polled
          s_waitcnt vmcnt(1)
          v_max3_u32 {t2}, v{C}, v{C+1}, v{C+2}
          s_waitcnt vmcnt(0)
          v_max3_u32 {t3}, v{C+3}, v{C+4}, v{C+5}
          v_max3_u32 {t2}, {t2}, v{C+6}, v{C+7}
          v_max_u32 {t2}, {t2}, {t3}
          v_cmp_eq_u32 vcc, -1, {t2}''')
    if sleep:
        e(f's_cbranch_vccz L_polled\ns_sleep {sleep}\ns_branch L_poll')
    else:
        e('s_cbranch_vccnz L_poll')
    e('L_polled:')
    e('s_waitcnt vmcnt(0)')
    stamp()
    e(f'''v_pk_add_f32 v[{C}:{C+1}], v[{C}:{C+1}], v[{C+4}:{C+5}]
          v_pk_add_f32 v[{C+2}:{C+3}], v[{C+2}:{C+3}], v[{C+6}:{C+7}]
          v_lshlrev_b32 v{XR}, 16, v{XR}
          v_permlane32_swap_b32 v{C}, v{C+1}
          v_permlane32_swap_b32 v{C+2}, v{C+3}
          v_add_f32 v{C}, v{C}, v{C+1}
          v_add_f32 v{C+2}, v{C+2}, v{C+3}
          v_permlane16_swap_b32 v{C}, v{C+2}
          v_add_f32 v{C}, v{C}, v{C+2}''')
    rowred('v_add_f32', f'v{C}')
    e(f'''v_add_f32 v{C}, v{C}, v{XR}
          v_cvt_pk_bf16_f32 v{C}, v{C}, v{C}
          buffer_store_short v{C}, {vOUT}, {SOUT}, 0 offen''')
    if stamps:
        e('s_waitcnt vmcnt(0)')
        stamp()
        e('s_waitcnt lgkmcnt(0)\ns_lshl_b32 s0, s2, 7\ns_add_u32 s0, s0, 0x20000000\ns_mov_b64 exec, 1\nv_mov_b32 v0, 0')
        if hst:
            for k, r in enumerate([100] + stamp_regs[:nst[0]]):
                e(f'v_mov_b32 v2, s{r}\nbuffer_atomic_umax v2, v0, {SDBG}, 0 offen offset:{4*k}')
            e(f's_not_b32 s1, s100\nv_mov_b32 v2, s1\nbuffer_atomic_umax v2, v0, {SDBG}, 0 offen offset:36')
            e(f's_not_b32 s1, s{stamp_regs[4]}\nv_mov_b32 v2, s1\nbuffer_atomic_umax v2, v0, {SDBG}, 0 offen offset:40')
            if dbgcnt:
                e(f'v_mov_b32 v2, s24\nbuffer_atomic_add v2, v0, {SDBG}, 0 offen offset:44')
        for k, r in enumerate([100] + stamp_regs[:nst[0]]):
            e(f'v_mov_b32 v2, s{r}\nv_mov_b32 v3, s{r+1}\nbuffer_store_dwordx2 v[2:3], v0, s[20:23], s0 offen offset:{8*k}')
        if dbgcnt:
            e(f'v_mov_b32 v2, s24\nv_mov_b32 v3, {sSpin}\nbuffer_store_dwordx2 v[2:3], v0, s[20:23], s0 offen offset:120')
    e('L_end:\ns_endpgm')
    for f in slow:
        f()
    e('L_codeend:')
    e.raw(f'.set CODE_BYTES, L_codeend - {K} - 64')
    e.raw(f'.set TAIL_OFF, L_tail - {K} - 64')
    e.raw('.section .rodata,"a"\n.p2align 6')
    e.raw(kernel_desc(K, 512, 102, accum=256))
    return e.text(), LDS, nst[0] + 1, e.nops

if __name__ == '__main__':
    cfgs = {}
    def add(name, **kw):
        cfgs[name] = kw
    exec(open(sys.argv[1]).read())
    BF = os.environ.get('BFLAGS', '-n 15 -c')
    run = ['#!/bin/bash']
    os.makedirs('co', exist_ok=True)
    for name, kw in cfgs.items():
        t, lds, ns, nops = gen(**kw)
        build(t, f'co/{name}')
        st = f'-t {ns}' if kw.get('stamps') else ''
        run.append(f'timeout 120 ./bench {BF} {st} co/{name}.co {NAME}_kernel:256:256:{lds}')
        print(name, 'nops', nops, 'bytes', os.popen(f"llvm-objdump -t co/{name}.co | grep -E 'L_codeend|L_tail|_kernel$' | awk '{{print $1, $NF}}'").read().split())
    open('run.sh', 'w').write('\n'.join(run) + '\n')
```

```python
import sys, os
from asmlib import NAME, kernel_desc, build
from emit import Emit

WS_Y, WS_Q, WS_ML, WS_FU = 0, 0x80000, 0xC0000, 0xC4000
WS_END = WS_FU + 242 * 2048
OOB = 0x40000000
LOG2E = 0x3fb8aa3b
SCALE = 0x3db504f3

def bitrev4(n):
    return ((n & 1) << 3) | ((n & 2) << 1) | ((n & 4) >> 1) | ((n & 8) >> 3)

HEADER = open('cdna_kernels/' + NAME + '.s.ref').read().split('; Override launch')[0] if os.path.exists('cdna_kernels/' + NAME + '.s.ref') else ''

def gen(D=9, k_first=4, n_flag=17, gap=None, catch=3, wo_start=8, wo_end=50, n_ml=30, stamps=False, rotmul=5,
        sleep=0, codepf=True, tailpf=None, pol='nt', wpol='nt', spin=400000, dbgcnt=False, hst=False, fixdur=0, amp=None):
    if hst:
        stamps = True
    gap = gap or D + 1
    e = Emit()
    K = NAME + '_kernel'
    LDS = 8192 + 2048
    sW = 's3'
    SK, SV, SWQ, SWO, SFU, SW2, SX, SWS, SDBG, SOUT, SCODE = [f's[{b}:{b+3}]' for b in range(28, 72, 4)]
    sXc, sJ, sHH, sH, sB, sS, sS8, sBH, sUnit, sDG, sCB, sT0, sT1, sT2, sKoff, sVoff, sMask, sF0, sPB, sIdleU, sIdleD = \
        [f's{n}' for n in range(72, 93)]
    sSelLo, sSelHi, sSpin = 's93', 's94', 's95'
    sMC, sMA = 's[96:97]', 's[98:99]'
    stamp_regs = [4, 6, 8, 10, 12, 14, 16, 18]
    nst = [0]
    def stamp():
        if stamps:
            r = stamp_regs[nst[0]]
            e(f's_memrealtime s[{r}:{r+1}]')
            nst[0] += 1
    vKO, M, Q, S, vY = 'v1', [2, 3, 4, 5], [6, 7, 8, 9], [10, 11, 12, 13], 'v14'
    vL = 'v15'
    A = [16, 20]
    ACC = 24
    T = list(range(28, 48))
    KBASE, KRING = 48, 52
    def kreg(n):
        return KBASE + 4 * (n % KRING)
    VRING = 16
    def vreg(n):
        return 4 * (n % VRING)
    rng = lambda p, b, n: f'{p}[{b}:{b+n-1}]'

    e.raw(HEADER.rstrip('\n'))
    e.raw(f'; @launch grid=(256,1,1) block=(256,1,1) lds={LDS}')
    e.raw('.amdgcn_target "amdgcn-amd-amdhsa--gfx950"\n.text')
    e.raw(f'.globl {K}\n.p2align 8\n.type {K},@function\n{K}:')
    e('s_cmp_ge_u32 s2, 256\ns_cbranch_scc1 L_end')
    e('s_load_dwordx16 s[4:19], s[0:1], 0\ns_load_dwordx8 s[20:27], s[0:1], 64')
    if stamps or fixdur:
        e('s_memrealtime s[100:101]')
    e('s_getpc_b64 s[68:69]')
    e(f'v_lshrrev_b32 v2, 6, v0\nv_and_b32 {vL}, 63, v0\nv_readfirstlane_b32 {sW}, v2')
    e(f'''s_and_b32 {sXc}, s2, 7
          s_lshr_b32 {sJ}, s2, 3
          s_lshr_b32 {sHH}, {sJ}, 3
          s_lshl_b32 {sH}, {sXc}, 2
          s_add_u32 {sH}, {sH}, {sHH}
          s_bfe_u32 {sB}, {sJ}, 0x10002
          s_and_b32 {sS}, {sJ}, 3
          s_and_b32 {sS8}, {sJ}, 7
          s_lshl_b32 {sBH}, {sB}, 5
          s_add_u32 {sBH}, {sBH}, {sH}
          s_lshl_b32 {sPB}, {sH}, 2
          s_add_u32 {sPB}, {sPB}, {sS}''')
    e(f'''s_min_u32 {sT0}, {sXc}, 2
          s_mul_i32 {sUnit}, {sXc}, 30
          s_add_u32 {sUnit}, {sUnit}, {sT0}
          s_add_u32 {sUnit}, {sUnit}, {sJ}
          s_cmp_lt_u32 {sXc}, 2
          s_cselect_b32 {sT0}, 31, 30
          s_cmp_lt_u32 {sJ}, {sT0}
          s_cselect_b32 {sIdleU}, 0, {OOB}
          s_mul_i32 {sDG}, {sUnit}, 745
          s_lshr_b32 {sDG}, {sDG}, 13
          s_mul_i32 {sCB}, {sDG}, 11
          s_sub_u32 {sCB}, {sUnit}, {sCB}''')
    assert all((u * 745) >> 13 == u // 11 for u in range(260))
    g, i = f'v{T[0]}', f'v{T[1]}'
    t2, t3, t4, t5 = [f'v{T[k]}' for k in range(2, 6)]
    vXG, vWQ, vFU = [f'v{T[k]}' for k in range(6, 9)]
    e(f'''v_lshrrev_b32 {g}, 4, {vL}
          v_and_b32 {i}, 15, {vL}
          v_lshlrev_b32 {vKO}, 4, v0
          v_lshlrev_b32 {t2}, 5, {vL}''')
    e(f'''s_lshl_b32 {sT0}, {sS8}, 6
          s_lshl_b32 {sT1}, {sW}, 4
          s_add_u32 {sT0}, {sT0}, {sT1}
          s_mul_i32 {sT1}, {sDG}, 24
          s_and_b32 {sT2}, {sW}, 1
          s_mul_i32 {sT2}, {sT2}, 12
          s_add_u32 {sT1}, {sT1}, {sT2}''')
    e(f'''v_and_b32 {t3}, 3, {vL}
          v_lshl_add_u32 {t3}, {t3}, 2, {g}
          v_and_b32 {t4}, 4, {vL}
          v_cmp_eq_u32 vcc, 0, {t4}
          v_mov_b32 {t4}, {sT1}
          v_mov_b32 {t5}, {sT0}
          v_cndmask_b32 {t4}, {t4}, {t5}, vcc
          v_add_u32 {t3}, {t3}, {t4}
          v_bfe_u32 {t4}, {vL}, 3, 1
          v_lshl_add_u32 {t3}, {t4}, 9, {t3}
          v_lshlrev_b32 {vXG}, 1, {t3}''')
    e(f'''s_lshl_b32 {sT2}, {sW}, 4
          v_add_u32 {t3}, {sT2}, {g}
          v_lshlrev_b32 {t3}, 13, {t3}
          v_lshl_add_u32 {vWQ}, {i}, 4, {t3}
          v_add_u32 {t3}, {sT1}, {g}
          v_mul_u32_u24 {t3}, 2752, {t3}
          s_lshl_b32 {sT2}, {sCB}, 8
          s_add_u32 {sT2}, {sT2}, {sIdleU}
          v_lshl_add_u32 {t3}, {i}, 4, {t3}
          v_add_u32 {vFU}, {sT2}, {t3}''')
    e(f'''s_lshl_b32 {sT0}, {sBH}, 22
          s_lshl_b32 {sT1}, {sS}, 18
          s_add_u32 {sT0}, {sT0}, {sT1}
          s_add_u32 {sT0}, {sT0}, 0x300000
          s_lshl_b32 {sT1}, {sS8}, 19
          s_lshl_b32 {sT2}, {sH}, 8
          s_add_u32 {sT1}, {sT1}, {sT2}
          s_mul_i32 {sKoff}, s2, {rotmul}
          s_and_b32 {sKoff}, {sKoff}, 63
          s_lshl_b32 {sKoff}, {sKoff}, 12
          s_mov_b32 {sVoff}, {sKoff}
          s_mov_b32 {sMask}, 0x3ffff''')
    for b in (31, 35, 39, 43, 47, 51, 55, 59, 63, 67, 71):
        e(f's_mov_b32 s{b}, 0x20000')
    e(f'''s_mov_b32 s30, 0x40000
          s_mov_b32 s34, 0x40000
          s_mov_b32 s38, {63*8192+256}
          s_mov_b32 s42, 0x20000
          s_mov_b32 s46, {512*2752}
          s_mov_b32 s50, {1376*1024}
          s_mov_b32 s54, 2048
          s_mov_b32 s58, {WS_END}
          s_mov_b32 s62, 256
          s_mov_b32 s66, 2048
          s_mov_b32 s70, CODE_BYTES''')
    e('s_waitcnt lgkmcnt(0)')
    e(f'''s_mov_b32 s52, s4
          s_mov_b32 s53, s5''')
    XL = 208
    XU = 216
    XG = 232
    e.vmem(f'buffer_load_dwordx4 {rng("v", XL, 4)}, {t2}, {SX}, 0 offen', 'xl0')
    e.vmem(f'buffer_load_dwordx4 {rng("v", XL+4, 4)}, {t2}, {SX}, 0 offen offset:16', 'xl1')
    e.vmem(f'buffer_load_ushort v{XG}, {vXG}, {SX}, 0 offen', 'xg')
    e(f'''s_add_u32 s36, s10, {sT1}
          s_addc_u32 s37, s11, 0''')
    for t in range(4):
        if t:
            e(f's_mov_b32 {sT2}, {32768*t}')
        e.vmem(f'buffer_load_dwordx4 {rng("a", 64+4*t, 4)}, {vWQ}, {SWQ}, {sT2 if t else 0} offen {wpol}', f'wq{t}')
    e(f'''s_cmp_lt_u32 {sW}, 2
          s_cselect_b32 s44, s16, s18
          s_cselect_b32 s45, s17, s19''')
    for t in range(3):
        if t:
            e(f'v_add_u32 {vFU}, {4*2752}, {vFU}')
        e.vmem(f'buffer_load_dwordx4 {rng("a", 80+4*t, 4)}, {vFU}, {SFU}, 0 offen {wpol}', f'fu{t}')
    e(f'''s_add_u32 s28, s6, {sT0}
          s_addc_u32 s29, s7, 0
          s_add_u32 s32, s8, {sT0}
          s_addc_u32 s33, s9, 0''')
    kn = [0]
    def kissue():
        n = kn[0]
        e.vmem(f'buffer_load_dwordx4 {rng("v", kreg(n), 4)}, {vKO}, {SK}, {sKoff} offen {pol}', f'K{n}')
        e(f's_addk_i32 {sKoff}, 0x1000\ns_and_b32 {sKoff}, {sKoff}, {sMask}')
        kn[0] += 1
    for _ in range(k_first):
        kissue()
    e(f'''s_lshl_b32 {sT0}, {sH}, 17
          s_add_u32 s40, s12, {sT0}
          s_addc_u32 s41, s13, 0
          s_mov_b32 s48, s20
          s_mov_b32 s49, s21
          s_mov_b32 s56, s26
          s_mov_b32 s57, s27
          s_mov_b32 s60, s24
          s_mov_b32 s61, s25
          s_mov_b32 s64, s22
          s_mov_b32 s65, s23''')
    if stamps:
        e('s_mov_b32 s20, s26\ns_mov_b32 s21, s27\ns_mov_b32 s22, 0x40000000\ns_mov_b32 s23, 0x20000')
    if codepf:
        e(f'''s_lshl_b32 {sT0}, {sJ}, 2
              s_add_u32 {sT0}, {sT0}, {sW}
              s_lshl_b32 {sT0}, {sT0}, 8
              v_lshlrev_b32 {t2}, 2, {vL}
              v_add_u32 {t2}, {sT0}, {t2}''')
        e.vmem(f'buffer_load_dword v{XG+1}, {t2}, {SCODE}, 0 offen', 'cpf')
    e(f'''s_lshl_b32 {sT0}, {sB}, 4
          s_lshl_b32 {sT1}, {sW}, 2
          s_add_u32 {sT0}, {sT0}, {sT1}
          s_lshl_b32 {sT0}, {sT0}, 7
          s_add_u32 {sT0}, {sT0}, {sPB}
          s_lshl_b32 {sT0}, {sT0}, 7
          v_lshrrev_b32 {t2}, 2, {i}
          v_lshlrev_b32 {t2}, 14, {t2}
          v_and_b32 {t3}, 3, {vL}
          v_lshl_add_u32 {t2}, {t3}, 5, {t2}
          v_lshl_add_u32 {t2}, {g}, 4, {t2}
          v_add_u32 {t2}, {sT0}, {t2}
          s_lshl_b32 {sT1}, {sUnit}, 11
          s_lshl_b32 {sT2}, {sW}, 9
          s_add_u32 {sT1}, {sT1}, {sT2}
          s_add_u32 {sT1}, {sT1}, {WS_FU - 512}
          s_add_u32 {sT1}, {sT1}, {sIdleU}
          v_lshlrev_b32 {t3}, 4, {vL}
          v_add_u32 {t4}, {sT1}, {t3}
          v_cmp_gt_u32 vcc, 32, {vL}
          v_mov_b32 v{XU}, -1
          v_mov_b32 v{XU+1}, -1
          v_cndmask_b32 {vY}, {t4}, {t2}, vcc
          v_mov_b32 v{XU+2}, -1
          v_mov_b32 v{XU+3}, -1''')
    e.vmem(f'buffer_store_dwordx4 {rng("v", XU, 4)}, {vY}, {SWS}, 0 offen sc1', 'clr0')
    vML = f'v{T[9]}'
    e(f'''s_lshl_b32 {sT0}, {sH}, 3
          s_add_u32 {sT0}, {sT0}, {sS8}
          s_lshl_b32 {sT0}, {sT0}, 10
          s_add_u32 {sT0}, {sT0}, {WS_Q}
          s_lshl_b32 {sT1}, {sW}, 8
          s_add_u32 {sT1}, {sT1}, {sT0}
          v_add_u32 {t2}, {sT1}, {t3}
          s_lshl_b32 {sT1}, {sBH}, 4
          s_lshl_b32 {sT2}, {sS}, 2
          s_add_u32 {sT1}, {sT1}, {sT2}
          s_add_u32 {sT1}, {sT1}, {sW}
          s_lshl_b32 {sT1}, {sT1}, 4
          s_add_u32 {sT1}, {sT1}, {WS_ML}
          v_mov_b32 {t4}, {sT1}
          v_mov_b32 {t5}, {OOB}
          v_cmp_eq_u32 vcc, 16, {vL}
          v_cndmask_b32 {vML}, {t5}, {t4}, vcc
          v_cmp_gt_u32 vcc, 16, {vL}
          v_cndmask_b32 {t2}, {vML}, {t2}, vcc''')
    e.vmem(f'buffer_store_dwordx4 {rng("v", XU, 4)}, {t2}, {SWS}, 0 offen sc1', 'clr1')
    sQ = sT0
    e(f's_mov_b32 {sF0}, {sT0}')
    kissue(); kissue()
    e(f'''v_and_b32 {t2}, 1, {vL}
          v_lshlrev_b32 {t2}, 4, {t2}
          v_mov_b32 {t3}, 0xffff
          v_lshlrev_b32 {t2}, {t2}, {t3}
          v_bfe_u32 {t3}, {vL}, 1, 2''')
    for r in range(4):
        e(f'v_cmp_eq_u32 vcc, {r}, {t3}\nv_cndmask_b32 v{M[r]}, 0, {t2}, vcc')
    e(f'''s_mov_b32 s96, 0xcccccccc
          s_mov_b32 s97, 0xcccccccc
          s_mov_b32 s98, 0xaaaaaaaa
          s_mov_b32 s99, 0xaaaaaaaa
          s_mov_b32 {sSelLo}, 0x05040100
          s_mov_b32 {sSelHi}, 0x07060302''')

    def rowred(op, r, ctrls=('row_ror:8', 'row_ror:4', 'row_ror:2', 'row_ror:1')):
        for c in ctrls:
            e(f'{op}_dpp {r}, {r}, {r} {c} row_mask:0xf bank_mask:0xf')
    def swapred(op, r, tmp, n):
        e(f'v_mov_b32 {tmp}, {r}\nv_permlane{n}_swap_b32 {r}, {tmp}\n{op} {r}, {r}, {tmp}')
    def bf16r(dst, src):
        e(f'v_cvt_pk_bf16_f32 {dst}, {src}, {src}\nv_and_b32 {dst}, 0xffff0000, {dst}')

    e.wait('xl1')
    stamp()
    for k in range(8):
        e(f'v_lshlrev_b32 v{XU+2*k}, 16, v{XL+k}\nv_and_b32 v{XU+2*k+1}, 0xffff0000, v{XL+k}')
    for k in range(4):
        e(f'v_pk_add_f32 v[{XL+2*k}:{XL+2*k+1}], v[{XU+4*k}:{XU+4*k+1}], v[{XU+4*k+2}:{XU+4*k+3}]')
    e(f'''v_pk_add_f32 v[{XL}:{XL+1}], v[{XL}:{XL+1}], v[{XL+2}:{XL+3}]
          v_pk_add_f32 v[{XL+4}:{XL+5}], v[{XL+4}:{XL+5}], v[{XL+6}:{XL+7}]
          v_pk_add_f32 v[{XL}:{XL+1}], v[{XL}:{XL+1}], v[{XL+4}:{XL+5}]
          v_add_f32 {t2}, v{XL}, v{XL+1}''')
    kissue()
    rowred('v_add_f32', t2)
    swapred('v_add_f32', t2, t3, 16)
    e(f'v_mul_f32 {t2}, 0x3b000000, {t2}')
    for k in range(16):
        e(f'v_sub_f32 v{XU+k}, v{XU+k}, {t2}')
    kissue()
    e(f'v_mul_f32 {t4}, v{XU}, v{XU}\nv_mul_f32 {t5}, v{XU+1}, v{XU+1}')
    for k in range(2, 16, 2):
        e(f'v_fmac_f32 {t4}, v{XU+k}, v{XU+k}\nv_fmac_f32 {t5}, v{XU+k+1}, v{XU+k+1}')
    e(f'v_add_f32 {t4}, {t4}, {t5}')
    kissue()
    rowred('v_add_f32', t4)
    swapred('v_add_f32', t4, t3, 16)
    e(f'v_mul_f32 {t4}, 0x3b000000, {t4}')
    bf16r(t2, t2)
    bf16r(t4, t4)
    e(f'v_add_f32 {t4}, 0x3727c5ac, {t4}')
    bf16r(t4, t4)
    e(f'v_sqrt_f32 {t4}, {t4}')
    bf16r(t4, t4)
    e(f'''v_mov_b32 {t3}, {t2}
          v_mov_b32 {t5}, {t4}
          v_and_b32 v{XL}, 8, {vL}
          v_permlane32_swap_b32 {t2}, {t3}
          v_permlane32_swap_b32 {t4}, {t5}
          v_cmp_eq_u32 vcc, 0, v{XL}
          v_cndmask_b32 {t2}, {t3}, {t2}, vcc
          v_cndmask_b32 {t4}, {t5}, {t4}, vcc''')
    e.wait('xg')
    XN = f'v{XG}'
    e(f'v_lshlrev_b32 {XN}, 16, {XN}\nv_sub_f32 {XN}, {XN}, {t2}\nv_rcp_f32 {t5}, {t4}')
    bf16r(XN, XN)
    e(f'''v_mul_f32 {t2}, {XN}, {t5}
          v_fma_f32 {t3}, -{t2}, {t4}, {XN}
          v_fmac_f32 {t2}, {t3}, {t5}
          v_cvt_pk_bf16_f32 {XN}, {t2}, {t2}''')
    kissue()
    DQ, DF = 240, 244
    def abuild2(a, n0):
        for r in range(4):
            e(f'v_and_b32_dpp v{a+r}, {XN}, v{M[r]} row_newbcast:{n0} row_mask:0xf bank_mask:0x3')
        for r in range(4):
            e(f'v_and_b32_dpp v{a+r}, {XN}, v{M[r]} row_newbcast:{n0+8} row_mask:0xf bank_mask:0xc')
    for t in range(7):
        a = A[t & 1]
        abuild2(a, t)
        e.wait(f'wq{t}' if t < 4 else f'fu{t-4}')
        d = DQ if t < 4 else DF
        c = '0' if t in (0, 4) else rng('v', d, 4)
        e(f'v_mfma_f32_16x16x32_bf16 {rng("v", d, 4)}, {rng("v", a, 4)}, {rng("a", 64+4*t, 4)}, {c}')
        if t == 3:
            kissue()
    e(f'ds_write_b128 {vKO}, {rng("v", DQ, 4)}')
    e(f'ds_write_b128 {vKO}, {rng("v", DF, 4)} offset:4096')
    e.wait('clr1')
    e('s_waitcnt lgkmcnt(0)\ns_barrier')
    stamp()
    R0 = 216
    e(f'''v_lshlrev_b32 {t2}, 4, {vL}
          v_lshrrev_b32 {t3}, 1, {g}
          v_and_b32 {t4}, 1, {g}
          v_lshlrev_b32 {t4}, 2, {t4}
          v_lshl_add_u32 {t4}, {i}, 3, {t4}
          s_cmp_eq_u32 {sW}, 0
          s_cbranch_scc1 L_pubq
          s_cmp_eq_u32 {sW}, 3
          s_cbranch_scc1 L_pubflag''')
    e(f'''s_sub_u32 {sT1}, {sW}, 1
          s_lshl_b32 {sT2}, {sT1}, 3
          v_add_u32 {t2}, {sT2}, {t2}''')
    for k in range(4):
        e(f'ds_read_b64 v[{R0+2*k}:{R0+2*k+1}], {t2} offset:{4096+1024*k}')
    e(f'''s_lshl_b32 {sT1}, {sT1}, 4
          s_lshl_b32 {sT2}, {sUnit}, 11
          s_add_u32 {sT1}, {sT1}, {sT2}
          s_add_u32 {sT1}, {sT1}, {WS_FU}
          s_add_u32 {sT1}, {sT1}, {sIdleU}
          v_lshlrev_b32 {t3}, 10, {t3}
          v_lshl_add_u32 {t3}, {t4}, 3, {t3}
          v_add_u32 {t3}, {sT1}, {t3}
          s_waitcnt lgkmcnt(0)
          v_add_f32 v{R0+8}, v{R0}, v{R0+2}
          v_add_f32 v{R0+9}, v{R0+4}, v{R0+6}
          v_add_f32 v{R0+10}, v{R0+1}, v{R0+3}
          v_add_f32 v{R0+11}, v{R0+5}, v{R0+7}
          buffer_store_dwordx4 {rng("v", R0+8, 4)}, {t3}, {SWS}, 0 offen sc1
          s_branch L_pubdone''')
    e('L_pubq:')
    for k in range(4):
        e(f'ds_read_b128 {rng("v", R0+4*k, 4)}, {t2} offset:{1024*k}')
    e(f'''v_lshlrev_b32 {t3}, 9, {t3}
          v_lshl_add_u32 {t3}, {t4}, 2, {t3}
          v_add_u32 {t3}, {sF0}, {t3}
          s_waitcnt lgkmcnt(0)''')
    for k in (0, 2):
        e(f'v_pk_add_f32 v[{R0+k}:{R0+k+1}], v[{R0+k}:{R0+k+1}], v[{R0+4+k}:{R0+5+k}]')
        e(f'v_pk_add_f32 v[{R0+8+k}:{R0+9+k}], v[{R0+8+k}:{R0+9+k}], v[{R0+12+k}:{R0+13+k}]')
    for k in (0, 2):
        e(f'v_pk_add_f32 v[{R0+k}:{R0+k+1}], v[{R0+k}:{R0+k+1}], v[{R0+8+k}:{R0+9+k}]')
    e(f'buffer_store_dwordx4 {rng("v", R0, 4)}, {t3}, {SWS}, 0 offen sc1\ns_branch L_pubdone')
    e('L_pubflag:')
    e(f'''v_mov_b32 {t2}, s2
          v_mov_b32 {t3}, 1
          s_mov_b64 exec, 1
          buffer_store_byte {t3}, {t2}, {SDBG}, 0 offen sc1
          s_mov_b64 exec, -1''')
    e('L_pubdone:')
    e.vm.append('pub')
    e.fence(2)

    vFL, vQG, vWO, vW2, vFG, vOUT, vCON, vOW, vOR, vF = [f'v{T[k]}' for k in range(10, 20)]
    e(f'''s_lshl_b32 {sT0}, {sHH}, 2
          s_add_u32 {sT0}, {sT0}, {sS}
          s_sub_u32 {sT1}, 15, {sT0}
          s_cmp_lt_u32 {sXc}, 3
          s_cselect_b32 {sT2}, 15, 14
          s_cmp_lt_u32 {sT1}, {sT2}
          s_cselect_b32 {sIdleD}, 0, {OOB}
          s_min_u32 {sT2}, {sXc}, 3
          s_add_u32 {sT1}, {sT1}, {sT2}
          s_mul_i32 {sT2}, {sXc}, 14
          s_add_u32 {sT1}, {sT1}, {sT2}
          s_mul_i32 {sF0}, {sT1}, 12''')
    e(f'''s_lshr_b32 {sT1}, {sT0}, 3
          s_lshl_b32 {sT2}, {sXc}, 1
          s_add_u32 {sT1}, {sT1}, {sT2}
          s_and_b32 {sT0}, {sT0}, 7
          s_lshl_b32 {sT2}, {sB}, 4
          s_add_u32 {sT1}, {sT1}, {sT2}
          s_lshl_b32 {sT2}, {sT1}, 14
          s_lshl_b32 {sDG}, {sT0}, 4
          s_add_u32 {sT2}, {sT2}, {sDG}
          v_lshlrev_b32 {vCON}, 7, {vL}
          v_add_u32 {vCON}, {sT2}, {vCON}
          s_lshl_b32 {sT1}, {sT1}, 3
          s_add_u32 {sT1}, {sT1}, {sT0}
          s_lshl_b32 {sT1}, {sT1}, 3
          v_and_b32 {t2}, 1, {g}
          v_lshrrev_b32 {t3}, 1, {g}
          v_lshl_add_u32 {t2}, {t2}, 1, {t3}
          v_lshlrev_b32 {t2}, 1, {t2}
          v_add_u32 {t2}, {sT1}, {t2}
          v_mov_b32 {t3}, {OOB}
          v_cmp_eq_u32 vcc, 0, {i}
          v_cndmask_b32 {vOUT}, {t3}, {t2}, vcc''')
    kissue()
    if hst:
        e(f'v_max_u32 {vFL}, 16, {vL}\nv_lshlrev_b32 {vFL}, 2, {vFL}')
    else:
        e(f'v_lshlrev_b32 {vFL}, 2, {vL}')
    e(f'''
          s_lshl_b32 {sT0}, {sH}, 13
          s_lshl_b32 {sT1}, {sB}, 9
          s_add_u32 {sT0}, {sT0}, {sT1}
          s_add_u32 {sT0}, {sT0}, {WS_Q}
          v_lshlrev_b32 {t2}, 10, {g}
          v_lshl_add_u32 {t2}, {i}, 5, {t2}
          v_add_u32 {vQG}, {sT0}, {t2}
          s_lshl_b32 {sT0}, {sW}, 8
          v_lshlrev_b32 {t2}, 4, {i}
          v_add_u32 {t2}, {sT0}, {t2}
          v_lshl_add_u32 {vWO}, {g}, 13, {t2}
          s_lshl_b32 {sT0}, {sF0}, 10
          s_add_u32 {sT0}, {sT0}, {sIdleD}
          v_lshl_add_u32 {t2}, {g}, 12, {t2}
          v_add_u32 {t2}, {sT0}, {t2}
          v_cmp_gt_u32 vcc, 3, {g}
          v_cndmask_b32 {vW2}, {t3}, {t2}, vcc''')
    e(f'''v_and_b32 {t2}, 7, {vL}
          v_cmp_gt_u32 vcc, 6, {t2}
          v_lshl_add_u32 {t2}, {t2}, 1, {sF0}
          v_lshrrev_b32 {t4}, 3, {vL}
          v_mul_u32_u24 {t4}, 11, {t4}
          v_lshrrev_b32 {t5}, 7, {t2}
          v_add_u32 {t4}, {t4}, {t5}
          v_and_b32 {t2}, 127, {t2}
          v_lshlrev_b32 {t2}, 3, {t2}
          v_lshl_add_u32 {t2}, {t4}, 11, {t2}
          s_lshl_b32 {sT0}, {sB}, 10
          s_add_u32 {sT0}, {sT0}, {WS_FU}
          s_add_u32 {sT0}, {sT0}, {sIdleD}
          v_add_u32 {t2}, {sT0}, {t2}
          v_cndmask_b32 {vFG}, {t3}, {t2}, vcc''')
    e(f'''s_mul_i32 {sT0}, {sW}, 320
          s_add_u32 {sT0}, {sT0}, 8192
          v_and_b32 {t2}, 1, {g}
          v_lshlrev_b32 {t2}, 3, {t2}
          v_lshl_add_u32 {t2}, {i}, 4, {t2}
          v_add_u32 {vOW}, {sT0}, {t2}
          v_and_b32 {t2}, 3, {vL}
          v_mul_u32_u24 {t2}, 320, {t2}
          v_lshl_add_u32 {vOR}, {g}, 4, {t2}''')

    slow = []
    def checked(name, regsl, reissue, bad_if_ne=None):
        def test():
            if bad_if_ne is not None:
                e(f'v_cmp_ne_u32 vcc, {bad_if_ne}, v{regsl[0]}')
            else:
                acc = t2
                rs = list(regsl)
                if len(rs) == 2:
                    e(f'v_max_u32 {acc}, v{rs[0]}, v{rs[1]}')
                else:
                    e(f'v_max3_u32 {acc}, v{rs[0]}, v{rs[1]}, v{rs[2]}')
                    rs = rs[3:]
                    while rs:
                        if len(rs) == 1:
                            e(f'v_max_u32 {acc}, {acc}, v{rs[0]}'); rs = []
                        else:
                            e(f'v_max3_u32 {acc}, {acc}, v{rs[0]}, v{rs[1]}'); rs = rs[2:]
                e(f'v_cmp_eq_u32 vcc, -1, {acc}')
        test()
        e(f's_cbranch_vccnz L_slow_{name}\nL_ok_{name}:')
        def emit_slow():
            e(f'L_slow_{name}:')
            e(f's_mov_b32 {sSpin}, {spin}')
            e(f'L_retry_{name}:')
            if dbgcnt:
                e(f's_add_u32 s24, s24, {1 << (8 * ["flag", "q", "fu", "ml"].index(name))}')
            e('s_sleep 1')
            reissue()
            e('s_waitcnt vmcnt(0)')
            test()
            e(f's_cbranch_vccz L_ok_{name}')
            e(f's_sub_u32 {sSpin}, {sSpin}, 1\ns_cbranch_scc0 L_retry_{name}\ns_branch L_ok_{name}')
        slow.append(emit_slow)
    if dbgcnt:
        e('s_mov_b32 s24, 0')

    state = dict(q=False, kproc=0, soft=False, vproc=0, wop=0, ffn=False, ml=False)
    PD = [T[2], T[3], T[4], T[5]]
    L1, L2, L3 = [T[6], T[7]], [T[8], Q[0]], None
    lv = {}
    KT = [26, 27, 24, 25, 20, 21, 22, 23]
    def kpair(n):
        a, b = f'v{KT[0]}', f'v{KT[1]}'
        for k in range(4):
            for r, m in ((a, n), (b, n + 1)):
                e(f'v_dot2_f32_bf16 {r}, v{kreg(m)+k}, v{Q[k]}, {r if k else 0}')
        d1 = f'v{KT[2 + ((n >> 1) & 1)]}'
        e(f'v_add_f32_dpp {d1}, {a}, {a} row_ror:8 row_mask:0xf bank_mask:0x3')
        e(f'v_add_f32_dpp {d1}, {b}, {b} row_ror:8 row_mask:0xf bank_mask:0xc')
        if not (n >> 1) & 1:
            return
        x, y = f'v{KT[2]}', f'v{KT[3]}'
        d2 = f'v{KT[4 + ((n >> 2) & 1)]}'
        e(f'v_add_f32_dpp {d2}, {x}, {x} row_shl:4 row_mask:0xf bank_mask:0x5')
        e(f'v_add_f32_dpp {d2}, {y}, {y} row_shr:4 row_mask:0xf bank_mask:0xa')
        if not (n >> 2) & 1:
            return
        x, y = f'v{KT[4]}', f'v{KT[5]}'
        d3 = f'v{KT[6 + ((n >> 3) & 1)]}'
        e(f'v_add_f32_dpp {x}, {x}, {x} quad_perm:[2,3,0,1] row_mask:0xf bank_mask:0xf')
        e(f'v_add_f32_dpp {y}, {y}, {y} quad_perm:[2,3,0,1] row_mask:0xf bank_mask:0xf')
        e(f'v_cndmask_b32 {d3}, {x}, {y}, {sMC}')
        if not (n >> 3) & 1:
            return
        x, y = f'v{KT[6]}', f'v{KT[7]}'
        s = f'v{S[n >> 4]}'
        e(f'v_add_f32_dpp {x}, {x}, {x} quad_perm:[1,0,3,2] row_mask:0xf bank_mask:0xf')
        e(f'v_add_f32_dpp {y}, {y}, {y} quad_perm:[1,0,3,2] row_mask:0xf bank_mask:0xf')
        e(f'v_cndmask_b32 {s}, {x}, {y}, {sMA}')
        bf16r(s, s)
        e(f'v_mul_f32 {s}, {SCALE}, {s}')
        bf16r(s, s)
    vM, vLs = f'v{T[6]}', f'v{T[7]}'
    assert T[6] % 2 == 0
    def softmax():
        stamp()
        e(f'v_max3_f32 {vM}, v{S[0]}, v{S[1]}, v{S[2]}\nv_max_f32 {vM}, {vM}, v{S[3]}')
        rowred('v_max_f32', vM)
        swapred('v_max_f32', vM, t2, 16)
        swapred('v_max_f32', vM, t2, 32)
        for k in range(4):
            e(f'v_sub_f32 v{S[k]}, v{S[k]}, {vM}')
        for k in range(4):
            e(f'v_mul_f32 v{S[k]}, {LOG2E}, v{S[k]}')
        for k in range(4):
            e(f'v_exp_f32 v{S[k]}, v{S[k]}')
        for k in range(4):
            e(f'v_cvt_pk_bf16_f32 v{Q[k]}, v{S[k]}, v{S[k]}')
        abuild(0)
        e(f'v_add_f32 {vLs}, v{S[0]}, v{S[1]}\nv_add_f32 {t2}, v{S[2]}, v{S[3]}\nv_add_f32 {vLs}, {vLs}, {t2}')
        rowred('v_add_f32', vLs)
        swapred('v_add_f32', vLs, t2, 16)
        swapred('v_add_f32', vLs, t2, 32)
        e.vmem(f'buffer_store_dwordx2 v[{T[6]}:{T[7]}], {vML}, {SWS}, 0 offen sc1', 'mlpub')
        state['soft'] = True
    def abuild(n):
        a = A[n & 1]
        for r in range(4):
            e(f'v_and_b32_dpp v{a+r}, v{Q[n >> 4]}, v{M[r]} row_newbcast:{bitrev4(n & 15)} row_mask:0xf bank_mask:0xf')
    def vstep(n):
        c = rng('v', ACC, 4) if n else '0'
        e(f'v_mfma_f32_16x16x32_bf16 {rng("v", ACC, 4)}, {rng("v", A[n & 1], 4)}, {rng("a", vreg(n), 4)}, {c}')
        if n < 63:
            abuild(n + 1)
    F, DY, STG, G2, W2S, FGR = 128, 96, 64, 48, 224, 240
    def stg(k):
        return STG + 4 * (k % 8)
    def woperm(k):
        t, ee = k >> 3, k & 7
        for m in range(4):
            for hi in range(2):
                e(f'v_perm_b32 v{F + 32*t + 4*(2*m+hi) + ee//2}, v{stg(k+1)+m}, v{stg(k)+m}, {sSelHi if hi else sSelLo}')
    def fgissue(tagger):
        e(f'v_mov_b32 {t3}, {vFG}')
        for m in range(3):
            tagger(f'buffer_load_dwordx4 {rng("v", FGR+4*m, 4)}, {t3}, {SWS}, 0 offen sc1', f'fg{m}')
            if m < 2:
                e(f'v_add_u32 {t3}, {8*11*2048}, {t3}')
    def ffn_down():
        checked('fu', list(range(FGR, FGR + 12)), lambda: fgissue(lambda s, t: e(s)))
        for k in (0, 2):
            e(f'v_pk_add_f32 v[{FGR+k}:{FGR+k+1}], v[{FGR+k}:{FGR+k+1}], v[{FGR+4+k}:{FGR+5+k}]')
        for k in (0, 2):
            e(f'v_pk_add_f32 v[{FGR+k}:{FGR+k+1}], v[{FGR+k}:{FGR+k+1}], v[{FGR+8+k}:{FGR+9+k}]')
        for p in range(2):
            for m in range(4):
                for hi in range(2):
                    e(f'v_perm_b32 v{G2 + 2*(2*m+hi) + p}, v{W2S+8*p+4+m}, v{W2S+8*p+m}, {sSelHi if hi else sSelLo}')
        for k in range(4):
            e(f'v_add_f32_dpp v{FGR+k}, v{FGR+k}, v{FGR+k} row_ror:8 row_mask:0xf bank_mask:0xf')
        ga, up = f'v{FGR}', f'v{FGR+1}'
        e(f'''v_permlane32_swap_b32 v{FGR}, v{FGR+2}
              v_permlane32_swap_b32 v{FGR+1}, v{FGR+3}
              v_add_f32 {ga}, v{FGR}, v{FGR+2}
              v_add_f32 {up}, v{FGR+1}, v{FGR+3}''')
        swapred('v_add_f32', ga, t2, 16)
        swapred('v_add_f32', up, t3, 16)
        bf16r(ga, ga)
        bf16r(up, up)
        e(f'''v_mul_f32 {t2}, {LOG2E ^ 0x80000000}, {ga}
              v_exp_f32 {t2}, {t2}
              v_and_b32 {t4}, 3, {vL}
              v_add_f32 {t2}, 1.0, {t2}
              v_rcp_f32 {t2}, {t2}
              v_cmp_eq_u32 vcc, 0, {t4}
              v_mul_f32 {ga}, {ga}, {t2}
              v_cndmask_b32 {t4}, 0, -1, vcc''')
        bf16r(ga, ga)
        ha = FGR + 4
        e(f'''v_mul_f32 {ga}, {ga}, {up}
              v_mov_b32 v{ha}, 0
              v_mov_b32 {t2}, {ga}
              v_mov_b32 v{ha+1}, 0
              v_permlane32_swap_b32 {ga}, {t2}
              v_cvt_pk_bf16_f32 {ga}, {ga}, {t2}''')
        for gg in range(3):
            for p in range(2):
                e(f'v_and_b32_dpp v{ha+p}, {ga}, {t4} row_newbcast:{2*gg+p} row_mask:{hex(1 << gg)} bank_mask:0xf')
        for cc in range(8):
            e(f'v_mfma_f32_16x16x16_bf16 {rng("v", DY+4*cc, 4)}, v[{ha}:{ha+1}], v[{G2+2*cc}:{G2+2*cc+1}], 0')
        state['ffn'] = True
    MLR = T[4]
    assert MLR % 2 == 0
    vMG = f'v{T[8]}'
    def mlissue(tagger):
        e(f's_lshl_b32 {sT0}, {sBH}, 8\ns_add_u32 {sT0}, {sT0}, {WS_ML}\nv_lshlrev_b32 {vMG}, 4, {i}\nv_add_u32 {vMG}, {sT0}, {vMG}')
        tagger(f'buffer_load_dwordx2 v[{S[0]}:{S[1]}], {vMG}, {SWS}, 0 offen sc1', 'ml')
    def mlcombine():
        checked('ml', [S[0], S[1]], lambda: mlissue(lambda s, t: e(s)))
        mi, li, mx = f'v{S[0]}', f'v{S[1]}', f'v{S[2]}'
        e(f'v_mov_b32 {mx}, {mi}')
        rowred('v_max_f32', mx)
        e(f'''v_sub_f32 {mi}, {mi}, {mx}
              v_sub_f32 {vF}, {vM}, {mx}
              v_mul_f32 {mi}, {LOG2E}, {mi}
              v_mul_f32 {vF}, {LOG2E}, {vF}
              v_exp_f32 {mi}, {mi}
              v_exp_f32 {vF}, {vF}
              v_mul_f32 {li}, {li}, {mi}''')
        rowred('v_add_f32', li)
        e(f'v_rcp_f32 {li}, {li}\nv_mul_f32 {vF}, {vF}, {li}')
        state['ml'] = True
    def complete(tag):
        return tag in e.vm and e.vm.index(tag) < e.done
    def progress():
        if state['q'] and not state['soft']:
            c = 0
            while state['kproc'] < 64 and complete(f'K{state["kproc"]+1}') and c < state['budget']:
                kpair(state['kproc']); state['kproc'] += 2; c += 2
            state['budget'] = catch if c >= 2 or state['budget'] >= 2 * catch else state['budget'] + 1
            if state['kproc'] == 64:
                softmax()
        if state['soft']:
            while state['vproc'] < 64 and complete(f'V{state["vproc"]}'):
                vstep(state['vproc']); state['vproc'] += 1
            while state['wop'] < 32 and complete(f'wo{state["wop"]+1}'):
                woperm(state['wop']); state['wop'] += 2
            if not state['ffn'] and complete('fg2') and complete('w23'):
                ffn_down()
            if not state['ml'] and complete('ml'):
                mlcombine()
    def window():
        if len(e.vm) - e.done >= D:
            e.wait(e.vm[len(e.vm) - D])
        progress()
    QG = 232
    def qissue(tagger):
        for k in range(4):
            if k == 2:
                e(f's_movk_i32 {sT0}, 0x1000')
            tagger(f'buffer_load_dwordx4 {rng("v", QG+4*k, 4)}, {vQG}, {SWS}, {sT0 if k >= 2 else 0} offen offset:{16*(k&1)} sc1', f'qg{k}')
    def flag_issue(tagger):
        tagger(f'buffer_load_dword v{QG}, {vFL}, {SDBG}, 0 offen sc1', 'flag')
    def qfinish():
        e.wait('qg3')
        checked('q', list(range(QG, QG + 16)), lambda: qissue(lambda s, t: e(s)))
        for k in range(0, 8, 2):
            e(f'v_pk_add_f32 v[{QG+k}:{QG+k+1}], v[{QG+k}:{QG+k+1}], v[{QG+8+k}:{QG+9+k}]')
        for k in range(4):
            e(f'v_permlane32_swap_b32 v{QG+k}, v{QG+4+k}')
        for k in (0, 2):
            e(f'v_pk_add_f32 v[{QG+k}:{QG+k+1}], v[{QG+k}:{QG+k+1}], v[{QG+4+k}:{QG+5+k}]')
        e(f'''v_permlane16_swap_b32 v{QG}, v{QG+2}
              v_permlane16_swap_b32 v{QG+1}, v{QG+3}
              v_pk_add_f32 v[{QG}:{QG+1}], v[{QG}:{QG+1}], v[{QG+2}:{QG+3}]
              v_cvt_pk_bf16_f32 v{Q[0]}, v{QG}, v{QG+1}
              v_cvt_pk_bf16_f32 v{Q[1]}, v{QG}, v{QG+1}
              v_permlane16_swap_b32 v{Q[0]}, v{Q[1]}
              v_mov_b32 v{Q[2]}, v{Q[0]}
              v_mov_b32 v{Q[3]}, v{Q[1]}
              v_permlane32_swap_b32 v{Q[0]}, v{Q[2]}
              v_permlane32_swap_b32 v{Q[1]}, v{Q[3]}''')
        state['q'] = True
        state['budget'] = catch
        stamp()
    e(f's_mov_b32 {sT1}, 0x01010101')
    while kn[0] < 64:
        n = kn[0]
        if n == n_flag:
            window(); flag_issue(e.vmem)
        if n == n_flag + gap:
            e.wait('flag')
            checked('flag', [QG], lambda: flag_issue(lambda s, t: e(s)), bad_if_ne=sT1)
            qissue(e.vmem)
        if n == n_flag + 2 * gap:
            assert n <= (QG - KBASE) // 4
            qfinish()
        window()
        if n >= KRING:
            assert state['kproc'] > n - KRING, (n, state)
        kissue()
    extra = {}
    for k in range(4):
        extra.setdefault(k, []).append(('w2', k))
    extra.setdefault(4, []).append(('fg', 0))
    extra.setdefault(5, []).append(('xres', 0))
    for k in range(32):
        extra.setdefault(wo_start + (k * (wo_end - wo_start)) // 32, []).append(('wo', k))
    extra.setdefault(n_ml, []).append(('ml', 0))
    if tailpf is not None:
        extra.setdefault(tailpf, []).append(('tpf', 0))
    XR = T[9]
    nv, m = 0, None
    while nv < 64:
        window()
        assert nv < VRING or state['vproc'] > nv - VRING, (nv, state)
        e.vmem(f'buffer_load_dwordx4 {rng("a", vreg(nv), 4)}, {vKO}, {SV}, {sVoff} offen {pol}', f'V{nv}')
        if nv < 63:
            e(f's_addk_i32 {sVoff}, 0x1000\ns_and_b32 {sVoff}, {sVoff}, {sMask}')
        nv += 1
        if state['soft'] and m is None:
            m0 = nv
            m = 0
        if m is not None:
            todo = extra.pop(m, [])
            if nv == 64:
                for k in sorted(extra):
                    todo += extra[k]
                assert not extra, extra
            for kind, k in todo:
                window()
                if kind == 'w2':
                    e.vmem(f'buffer_load_dwordx4 {rng("v", W2S+4*k, 4)}, {vW2}, {SW2}, 0 offen offset:{1024*k} {wpol}', f'w2{k}')
                elif kind == 'fg':
                    fgissue(e.vmem)
                elif kind == 'xres':
                    e.vmem(f'buffer_load_ushort v{XR}, {vOUT}, {SX}, 0 offen', 'xres')
                elif kind == 'ml':
                    mlissue(e.vmem)
                elif kind == 'tpf':
                    e(f's_lshl_b32 {sT0}, {sW}, 8\ns_add_u32 {sT0}, {sT0}, TAIL_OFF\nv_lshlrev_b32 {t3}, 2, {vL}\nv_add_u32 {t3}, {sT0}, {t3}')
                    e.vmem(f'buffer_load_dword v{S[3]}, {t3}, {SCODE}, 0 offen', 'tpf')
                elif kind == 'wo':
                    assert k < 8 or state['wop'] > k - 8, (k, state)
                    assert k < 24 or state['ffn']
                    e(f's_mov_b32 {sT0}, {(k >> 3)*32768 + ((k >> 2) & 1)*4096}')
                    e.vmem(f'buffer_load_dwordx4 {rng("v", stg(k), 4)}, {vWO}, {SWO}, {sT0} offen offset:{1024*(k & 3)} {wpol}', f'wo{k}')
            m += 1
    while state['vproc'] < 64:
        e.wait(f'V{state["vproc"]}')
        if state['vproc'] == 63:
            e('L_tail:')
            stamp()
        progress()
    assert state['wop'] == 32 and state['ffn'] and state['ml'], state
    assert T[19] % 2 == 1
    e(f'''v_mul_f32 v{ACC}, v{ACC}, {vF}
          v_mul_f32 v{ACC+1}, v{ACC+1}, {vF}
          v_mul_f32 v{ACC+2}, v{ACC+2}, {vF}
          v_mul_f32 v{ACC+3}, v{ACC+3}, {vF}
          v_cvt_pk_bf16_f32 v{ACC}, v{ACC}, v{ACC+1}
          v_cvt_pk_bf16_f32 v{ACC+1}, v{ACC+2}, v{ACC+3}
          ds_write_b64 {vOW}, v[{ACC}:{ACC+1}]
          s_waitcnt lgkmcnt(0)
          s_barrier''')
    AF = STG
    for t in range(4):
        e(f'ds_read_b128 {rng("v", AF+4*t, 4)}, {vOR} offset:{8192+64*t}')
    Z = A[0]
    def tile_add(cc):
        d = DY + 4 * cc
        e(f'v_pk_add_f32 v[{d}:{d+1}], v[{d}:{d+1}], v[{d+2}:{d+3}]')
        return d
    def tile_fin(cc):
        d = DY + 4 * cc
        if cc < 4:
            e(f'v_add_f32 v{Z+cc}, v{d}, v{d+1}')
        else:
            e(f'v_add_f32_dpp v{Z+cc-4}, v{d}, v{d+1} quad_perm:[0,1,2,3] row_mask:0x2 bank_mask:0xf')
    for cc in range(8):
        for t in range(4):
            if cc == 0:
                e(f's_waitcnt lgkmcnt({3-t})')
            e(f'v_mfma_f32_16x16x32_bf16 {rng("v", DY+4*cc, 4)}, {rng("v", AF+4*t, 4)}, {rng("v", F+32*t+4*cc, 4)}, {rng("v", DY+4*cc, 4)}')
            if cc >= 2 and t == 1:
                tile_add(cc - 2)
            if cc >= 2 and t == 3:
                tile_fin(cc - 2)
    tile_add(6)
    e('s_mov_b32 exec_hi, 0')
    tile_add(7)
    tile_fin(6)
    tile_fin(7)
    e(f'buffer_store_dwordx4 {rng("v", Z, 4)}, {vY}, {SWS}, 0 offen sc1')
    e(f's_cmp_lg_u32 {sW}, 0\ns_cbranch_scc1 L_end')
    e('s_mov_b32 exec_hi, -1')
    stamp()
    C = STG
    e(f's_mov_b32 {sSpin}, {spin}\ns_movk_i32 {sT0}, 0x2000')
    e('L_poll:')
    e(f'''buffer_load_dwordx4 {rng("v", C, 4)}, {vCON}, {SWS}, 0 offen sc1
          buffer_load_dwordx4 {rng("v", C+4, 4)}, {vCON}, {SWS}, {sT0} offen sc1
          s_sub_u32 {sSpin}, {sSpin}, 1
          s_cbranch_scc1 L_polled
          s_waitcnt vmcnt(1)
          v_max3_u32 {t2}, v{C}, v{C+1}, v{C+2}
          s_waitcnt vmcnt(0)
          v_max3_u32 {t3}, v{C+3}, v{C+4}, v{C+5}
          v_max3_u32 {t2}, {t2}, v{C+6}, v{C+7}
          v_max_u32 {t2}, {t2}, {t3}
          v_cmp_eq_u32 vcc, -1, {t2}''')
    if sleep:
        e(f's_cbranch_vccz L_polled\ns_sleep {sleep}\ns_branch L_poll')
    else:
        e('s_cbranch_vccnz L_poll')
    e('L_polled:')
    e('s_waitcnt vmcnt(0)')
    stamp()
    e(f'''v_pk_add_f32 v[{C}:{C+1}], v[{C}:{C+1}], v[{C+4}:{C+5}]
          v_pk_add_f32 v[{C+2}:{C+3}], v[{C+2}:{C+3}], v[{C+6}:{C+7}]
          v_lshlrev_b32 v{XR}, 16, v{XR}
          v_permlane32_swap_b32 v{C}, v{C+1}
          v_permlane32_swap_b32 v{C+2}, v{C+3}
          v_add_f32 v{C}, v{C}, v{C+1}
          v_add_f32 v{C+2}, v{C+2}, v{C+3}
          v_permlane16_swap_b32 v{C}, v{C+2}
          v_add_f32 v{C}, v{C}, v{C+2}''')
    rowred('v_add_f32', f'v{C}')
    e(f'''v_add_f32 v{C}, v{C}, v{XR}
          v_cvt_pk_bf16_f32 v{C}, v{C}, v{C}
          buffer_store_short v{C}, {vOUT}, {SOUT}, 0 offen''')
    if fixdur:
        e('s_cmp_lg_u32 s2, 0\ns_cbranch_scc1 L_end')
        if amp is not None:
            e(f's_waitcnt lgkmcnt(0)\ns_sub_u32 s1, s{stamp_regs[amp]}, s100\ns_mul_i32 s1, s1, 10\ns_add_u32 s1, s1, {fixdur}')
        else:
            e(f's_mov_b32 s1, {fixdur}')
        e('L_hold:\ns_memrealtime s[24:25]\ns_waitcnt lgkmcnt(0)\ns_sub_u32 s24, s24, s100\ns_cmp_lt_u32 s24, s1\ns_cbranch_scc1 L_hold\ns_endpgm')
    if stamps:
        e('s_waitcnt vmcnt(0)')
        stamp()
        e('s_waitcnt lgkmcnt(0)\ns_lshl_b32 s0, s2, 7\ns_add_u32 s0, s0, 0x20000000\ns_mov_b64 exec, 1\nv_mov_b32 v0, 0')
        if hst:
            for k, r in enumerate([100] + stamp_regs[:nst[0]]):
                e(f'v_mov_b32 v2, s{r}\nbuffer_atomic_umax v2, v0, {SDBG}, 0 offen offset:{4*k}')
            e(f's_not_b32 s1, s100\nv_mov_b32 v2, s1\nbuffer_atomic_umax v2, v0, {SDBG}, 0 offen offset:36')
            e(f's_not_b32 s1, s{stamp_regs[4]}\nv_mov_b32 v2, s1\nbuffer_atomic_umax v2, v0, {SDBG}, 0 offen offset:40')
            if dbgcnt:
                e(f'v_mov_b32 v2, s24\nbuffer_atomic_add v2, v0, {SDBG}, 0 offen offset:44')
        for k, r in enumerate([100] + stamp_regs[:nst[0]]):
            e(f'v_mov_b32 v2, s{r}\nv_mov_b32 v3, s{r+1}\nbuffer_store_dwordx2 v[2:3], v0, s[20:23], s0 offen offset:{8*k}')
        if dbgcnt:
            e(f'v_mov_b32 v2, s24\nv_mov_b32 v3, {sSpin}\nbuffer_store_dwordx2 v[2:3], v0, s[20:23], s0 offen offset:120')
    e('L_end:\ns_endpgm')
    for f in slow:
        f()
    e('L_codeend:')
    e.raw(f'.set CODE_BYTES, L_codeend - {K} - 64')
    e.raw(f'.set TAIL_OFF, L_tail - {K} - 64')
    e.raw('.section .rodata,"a"\n.p2align 6')
    e.raw(kernel_desc(K, 512, 102, accum=256))
    return e.text(), LDS, nst[0] + 1, e.nops

if __name__ == '__main__':
    cfgs = {}
    def add(name, **kw):
        cfgs[name] = kw
    exec(open(sys.argv[1]).read())
    BF = os.environ.get('BFLAGS', '-n 15 -c')
    run = ['#!/bin/bash']
    os.makedirs('co', exist_ok=True)
    for name, kw in cfgs.items():
        t, lds, ns, nops = gen(**kw)
        build(t, f'co/{name}')
        st = f'-t {ns}' if kw.get('stamps') else ''
        run.append(f'timeout 120 ./bench {BF} {st} co/{name}.co {NAME}_kernel:256:256:{lds}')
        print(name, 'nops', nops, 'bytes', os.popen(f"llvm-objdump -t co/{name}.co | grep -E 'L_codeend|L_tail|_kernel$' | awk '{{print $1, $NF}}'").read().split())
    open('run.sh', 'w').write('\n'.join(run) + '\n')
```

```python
import re

REG = re.compile(r'\b([vas])(\d+)\b|\b([vas])\[(\d+):(\d+)\]|\b(vcc|exec|m0)\b')
TRANS = ('v_exp_f32', 'v_log_f32', 'v_rcp_f32', 'v_rsq_f32', 'v_sqrt_f32')

def regs(txt):
    out = []
    for m in REG.finditer(txt):
        if m.group(1):
            out.append((m.group(1), int(m.group(2))))
        elif m.group(3):
            out += [(m.group(3), k) for k in range(int(m.group(4)), int(m.group(5)) + 1)]
        else:
            out.append(('s', m.group(6)))
    return out

def split_ops(s):
    ops, depth, cur = [], 0, ''
    for ch in s:
        if ch == '[':
            depth += 1
        if ch == ']':
            depth -= 1
        if ch == ',' and depth == 0:
            ops.append(cur.strip()); cur = ''
        else:
            cur += ch
    if cur.strip():
        ops.append(cur.strip())
    return ops

class Ins:
    def __init__(self, text):
        self.text = text
        p = text.split(None, 1)
        self.op = p[0]
        ops = split_ops(p[1]) if len(p) > 1 else []
        self.mods = ''
        if ops and not self.op.startswith('s_waitcnt'):
            t = ops[-1].split(None, 1)
            ops[-1] = t[0]
            self.mods = t[1] if len(t) > 1 else ''
        self.ops = ops
        op = self.op
        self.mfma = op.startswith('v_mfma') or op.startswith('v_smfmac')
        self.valu = op.startswith('v_') and not self.mfma
        self.dot = op.startswith('v_dot')
        self.trans = any(op.startswith(t) for t in TRANS)
        self.dpp = '_dpp' in op
        self.vmem = op.startswith('buffer_') or op.startswith('global_')
        self.ds = op.startswith('ds_')
        self.perml = op.startswith('v_permlane')
        self.rdlane = op.startswith('v_readlane') or op.startswith('v_readfirstlane')
        self.big = '32x32' in op
        self.slots = 1
        if op == 's_nop':
            self.slots = int(ops[0], 0) + 1
        R = [regs(o) for o in ops]
        self.w, self.r = set(), set()
        self.srcc = set(); self.srcab = set()
        self.wide_store = set()
        if self.mfma:
            self.w = set(R[0]); self.srcab = set(R[1]) | set(R[2]); self.srcc = set(R[3])
            if op.startswith('v_smfmac'):
                self.srcab |= self.srcc; self.srcc = set(R[0])
            self.r = self.srcab | self.srcc
        elif self.valu:
            if self.perml:
                self.w = set(R[0]) | set(R[1]); self.r = set(self.w)
            else:
                self.w = set(R[0])
                for x in R[1:]:
                    self.r |= set(x)
                if op.startswith(('v_dot2c', 'v_fmac')):
                    self.r |= self.w; self.srcc = set(R[0])
                if op.startswith('v_dot2_'):
                    self.srcc = set(R[3]); self.srcab = set(R[1]) | set(R[2])
                if op.startswith('v_dot2c'):
                    self.srcab = set(R[1]) | set(R[2])
                if self.dpp and not ('row_mask:0xf' in self.mods and 'bank_mask:0xf' in self.mods and 'row_sh' not in self.mods):
                    self.r |= self.w
                if op.startswith('v_cndmask') and len(ops) == 3:
                    self.r.add(('s', 'vcc'))
        elif self.vmem:
            if '_load' in op and 'lds' not in self.mods.split():
                self.w = set(R[0])
                for x in R[1:]:
                    self.r |= set(x)
            else:
                for x in R:
                    self.r |= set(x)
                if 'store' in op and ('x4' in op or 'x3' in op):
                    self.wide_store = set(R[0])
        elif self.ds:
            if 'read' in op or 'permute' in op or 'swizzle' in op:
                self.w = set(R[0])
                for x in R[1:]:
                    self.r |= set(x)
            else:
                for x in R:
                    self.r |= set(x)

def need(p, c):
    n = 0
    pv = {x for x in p.w if x[0] in 'va'}
    ps = {x for x in p.w if x[0] == 's'}
    if p.valu:
        if pv & c.r:
            if c.dpp: n = max(n, 2)
            if c.mfma: n = max(n, 2)
            if c.perml: n = max(n, 2)
            if c.rdlane: n = max(n, 1)
            if p.trans and not c.trans: n = max(n, 1)
        if p.dot and (pv & (c.r | c.w)):
            if c.dot and c.op == p.op and not (pv & c.srcab) and (pv & c.srcc):
                pass
            else:
                n = max(n, 3)
        if ps:
            if c.valu and (ps & c.r): n = max(n, 4 if c.rdlane else 2)
            if c.vmem and (ps & c.r): n = max(n, 5)
    if p.mfma:
        x = 4 if p.big else 0
        if c.mfma:
            if pv & c.srcab: n = max(n, 8 + x)
            if pv & c.srcc:
                if not (c.op == p.op and c.srcc == pv): n = max(n, 6 + x)
            elif pv & c.w:
                n = max(n, 6 + x)
        elif (c.valu or c.vmem or c.ds) and (pv & (c.r | c.w)):
            n = max(n, 8 + x)
        if c.valu and (p.srcc & c.w): n = max(n, 3 + x)
    if p.wide_store and (p.wide_store & c.w): n = max(n, 2)
    return n

class Emit:
    def __init__(self):
        self.lines = []
        self.hist = []
        self.vm = []
        self.done = 0
        self.nops = 0
    def raw(self, s):
        self.lines.append(s)
    def __call__(self, text):
        for l in text.split('\n'):
            l = l.strip()
            if not l:
                continue
            if l.endswith(':') or l.startswith(('.', ';')):
                self.lines.append(l)
                continue
            c = Ins(l.split(';')[0].strip())
            dist, req = 0, 0
            for p in reversed(self.hist):
                req = max(req, need(p, c) - dist)
                dist += p.slots
                if dist >= 14:
                    break
            if req > 0:
                self.nops += req
                nop = Ins(f's_nop {req-1}')
                self.lines.append('    ' + nop.text); self.hist.append(nop)
            self.lines.append('    ' + l)
            self.hist.append(c)
            self.hist = self.hist[-20:]
    def fence(self, n=8):
        self(f's_nop {n-1}')
    def vmem(self, text, tag):
        assert tag not in self.vm, tag
        self(text)
        self.vm.append(tag)
    def wait(self, tag):
        k = self.vm.index(tag) + 1
        if k <= self.done:
            return
        n = len(self.vm) - k
        assert n <= 63, (tag, n)
        self(f's_waitcnt vmcnt({n})')
        self.done = k
    def waitall(self):
        self('s_waitcnt vmcnt(0)')
        self.done = len(self.vm)
    def text(self):
        return '\n'.join(self.lines) + '\n'
```

```python
import sys, os
from asmlib import NAME, kernel_desc, build
from emit import Emit

FU_STRIDE = 4224
WS_Y, WS_Q, WS_ML, WS_EP, WS_FU = 0, 0x80000, 0xC0000, 0xC4000, 0xC5000
WS_END = WS_FU + 256 * FU_STRIDE
OOB = 0x40000000
LOG2E = 0x3fb8aa3b
SCALE = 0x3db504f3

def bitrev4(n):
    return ((n & 1) << 3) | ((n & 2) << 1) | ((n & 4) >> 1) | ((n & 8) >> 3)

REF = 'cdna_kernels/' + NAME + '.s.ref'
HEADER = open(REF).read().split('; Override launch')[0] if os.path.exists(REF) else ''

NOTES = '''; Design: one launch, 256 workgroups (b, head, quarter of the 4096-key window) x 4 waves, one workgroup per CU.
;  - q projection and FFN-up are split over rows across workgroups and handed over through d_ws; FFN-down and
;    the output projection are applied per workgroup, and 4 output columns per workgroup are summed at the end.
;  - Every hand-off word carries this launch's tag (epoch word found in d_ws, + 1) in its low mantissa bits; a
;    reader that finds another tag (or a writer on another XCD) re-publishes write-through and polls.'''

def gen(D=9, k0=2, k1=2, ksp=(1, 1, 1, 1, 1), kpost=(1, 1, 1), n_q=24, gap=None, catch=3, wo_start=8, wo_end=50, n_ml=30,
        ex0=0, vring=16, rotmul=5, sleep=2, codepf=True, tailpf=None, pol='nt', wpol='nt', xpol='', gpol='', spin=400000,
        inv=False, stamps=False, dbgcnt=False, off=(), permtest=False, fixdur=0, amp=None):
    gap = gap or D + 1
    e = Emit()
    K = NAME + '_kernel'
    LDS_O = 12288
    LDS = LDS_O + 2048
    sW = 's3'
    SK, SV, SWQ, SWO, SFU, SW2, SX, SWS, SOUT, SCODE = [f's[{b}:{b+3}]' for b in range(28, 68, 4)]
    sXc, sJ, sHH, sH, sB, sS, sS8, sBH, sC0, sNch, sT0, sT1, sT2, sKoff, sVoff, sMask, sPB, sU, sXcc, sId = [f's{n}' for n in range(68, 88)]
    sSelLo, sSelHi, sSpin, sM8, sM12, sM3 = [f's{n}' for n in range(88, 94)]
    sMC, sMA = 's[94:95]', 's[96:97]'
    sEp = 's0'
    sCnt = 's98'
    stamp_regs = [4, 6, 8, 10, 12, 14, 16, 18]
    nst = [0]
    def stamp():
        if stamps:
            r = stamp_regs[nst[0]]
            e(f's_memrealtime s[{r}:{r+1}]')
            nst[0] += 1
    vKO, M, Q, S, vY, vL = 'v1', [2, 3, 4, 5], [6, 7, 8, 9], [10, 11, 12, 13], 'v14', 'v15'
    A = [16, 20]
    ACC = 24
    g, i, t2, t3, t4, t5 = [f'v{k}' for k in range(28, 34)]
    vM, vLs = 'v34', 'v35'
    vXG, vWQ, vFU = 'v34', 'v35', 'v36'
    vMG, vML, vTB = 'v36', 'v37', 'v38'
    vQG, vWO, vW2, vFG, vOUT, vCON, vOW, vOR, vF = [f'v{k}' for k in range(39, 48)]
    vTA = 'v0'
    KBASE, KRING = 48, 52
    kreg = lambda n: KBASE + 4 * (n % KRING)
    vreg = lambda n: 4 * (n % vring)
    rng = lambda p, b, n: f'{p}[{b}:{b+n-1}]'
    AWQ, AFU = 192, 208
    AQD, AFD, AQA, AFA = 224, 228, 232, 233
    assert 4 * vring <= AWQ

    e.raw(HEADER.rstrip('\n'))
    e.raw(NOTES)
    e.raw(f'; @launch grid=(256,1,1) block=(256,1,1) lds={LDS}')
    e.raw('.amdgcn_target "amdgcn-amd-amdhsa--gfx950"\n.text')
    e.raw(f'.globl {K}\n.p2align 8\n.type {K},@function\n{K}:')
    e('s_load_dwordx16 s[4:19], s[0:1], 0\ns_load_dwordx8 s[20:27], s[0:1], 64')
    if stamps or fixdur:
        e('s_memrealtime s[100:101]')
    e('s_cmp_ge_u32 s2, 256\ns_cbranch_scc1 L_end')
    e(f's_mov_b32 {sId}, s2')
    if permtest:
        e(f's_lshr_b32 {sT0}, s2, 5\ns_and_b32 s2, s2, 31\ns_lshl_b32 s2, s2, 3\ns_or_b32 s2, s2, {sT0}')
    e(f'''s_and_b32 {sXc}, s2, 7
          s_lshr_b32 {sJ}, s2, 3
          s_lshr_b32 {sHH}, s2, 6
          s_lshl2_add_u32 {sH}, {sXc}, {sHH}
          s_bfe_u32 {sB}, s2, 0x10005
          s_and_b32 {sS}, {sJ}, 3
          s_lshl_b32 {sBH}, {sB}, 5
          s_add_u32 {sBH}, {sBH}, {sH}
          s_lshl4_add_u32 {sT0}, {sBH}, {sS}
          s_add_u32 {sT0}, {sT0}, 12
          s_lshl_b32 {sT0}, {sT0}, 18
          s_mul_i32 {sKoff}, s2, {rotmul << 12}
          s_mov_b32 {sMask}, 0x3ffff
          s_and_b32 {sKoff}, {sKoff}, {sMask}
          v_lshlrev_b32 {vKO}, 4, v0
          s_mov_b32 s30, 0x40000
          s_mov_b32 s31, 0x20000
          v_lshrrev_b32 v2, 6, v0
          v_and_b32 {vL}, 63, v0
          s_mov_b32 {sVoff}, {sKoff}
          v_readfirstlane_b32 {sW}, v2
          s_waitcnt lgkmcnt(0)
          s_add_u32 s28, s6, {sT0}
          s_addc_u32 s29, s7, 0''')
    kn = [0]
    def kissue():
        n = kn[0]
        e.vmem(f'buffer_load_dwordx4 {rng("v", kreg(n), 4)}, {vKO}, {SK}, {sKoff} offen {pol}', f'K{n}')
        e(f's_addk_i32 {sKoff}, 0x1000\ns_and_b32 {sKoff}, {sKoff}, {sMask}')
        kn[0] += 1
    for _ in range(k0):
        kissue()
    XL, XU, XG, DQ, DF = 208, 216, 232, 236, 240
    e(f'''s_load_dword {sEp}, s[26:27], {WS_EP}
          s_add_u32 s32, s8, {sT0}
          s_addc_u32 s33, s9, 0
          s_mov_b32 s52, s4
          s_mov_b32 s53, s5
          s_mov_b32 s54, 2048
          s_mov_b32 s55, 0x20000
          v_lshlrev_b32 {t2}, 5, {vL}''')
    e.vmem(f'buffer_load_dwordx4 {rng("v", XL, 4)}, {t2}, {SX}, 0 offen {xpol}', 'xl0')
    e.vmem(f'buffer_load_dwordx4 {rng("v", XL+4, 4)}, {t2}, {SX}, 0 offen offset:16 {xpol}', 'xl1')
    e(f'''s_and_b32 {sS8}, {sJ}, 7
          v_lshrrev_b32 {g}, 4, {vL}
          v_and_b32 {i}, 15, {vL}
          s_lshl_b32 {sT1}, {sS8}, 19
          s_lshl_b32 {sT2}, {sH}, 8
          s_add_u32 {sT1}, {sT1}, {sT2}
          s_add_u32 s36, s10, {sT1}
          s_addc_u32 s37, s11, 0
          s_mov_b32 s38, {63*8192+256}
          s_mov_b32 s39, 0x20000
          v_lshrrev_b32 {t3}, 4, v0
          v_and_b32 {t4}, 12, {t3}
          v_lshl_add_u32 {t3}, {t4}, 2, {g}
          v_lshlrev_b32 {t3}, 13, {t3}
          v_lshl_add_u32 {vWQ}, {i}, 4, {t3}''')
    if 'wq' in off: e(f'v_mov_b32 {vWQ}, {OOB}')
    for t in range(4):
        if t:
            e(f's_mov_b32 {sT2}, {32768*t}')
        e.vmem(f'buffer_load_dwordx4 {rng("a", AWQ+4*t, 4)}, {vWQ}, {SWQ}, {sT2 if t else 0} offen {wpol}', f'wq{t}')
    e(f'''s_mul_i32 {sC0}, {sXc}, 43
          s_add_u32 {sC0}, {sC0}, 1
          s_lshr_b32 {sC0}, {sC0}, 1
          s_and_b32 {sT1}, {sXc}, 1
          s_sub_u32 {sNch}, 22, {sT1}
          s_and_b32 {sT1}, {sW}, 1
          s_lshl1_add_u32 {sT1}, {sJ}, {sT1}
          s_lshl_b32 {sT1}, {sT1}, 3
          v_lshrrev_b32 {t3}, 5, {vL}
          v_add_u32 {t3}, {sT1}, {t3}
          v_mul_u32_u24 {t3}, 2752, {t3}
          v_and_b32 {t4}, 31, {vL}
          v_cmp_gt_u32 vcc, {sNch}, {t4}
          v_add_u32 {t4}, {sC0}, {t4}
          v_lshl_add_u32 {t3}, {t4}, 4, {t3}
          v_mov_b32 {t5}, {OOB}
          v_cndmask_b32 {vFU}, {t5}, {t3}, vcc
          s_cmp_lt_u32 {sW}, 2
          s_cselect_b32 s44, s16, s18
          s_cselect_b32 s45, s17, s19
          s_mov_b32 s46, {512*2752}
          s_mov_b32 s47, 0x20000''')
    if 'fu' in off: e(f'v_mov_b32 {vFU}, {OOB}')
    for t in range(4):
        if t:
            e(f's_movk_i32 {sT2}, {5504*t}')
        e.vmem(f'buffer_load_dwordx4 {rng("a", AFU+4*t, 4)}, {vFU}, {SFU}, {sT2 if t else 0} offen {wpol}', f'fu{t}')
    e(f'''s_lshl2_add_u32 {sT0}, {sS8}, {sW}
          s_lshl_b32 {sT0}, {sT0}, 4
          v_and_b32 {t3}, 3, {vL}
          v_lshl_add_u32 {t4}, {t3}, 2, {g}
          v_add_u32 {t4}, {sT0}, {t4}
          v_lshrrev_b32 {t5}, 5, {vL}
          v_lshl_add_u32 {t3}, {t3}, 1, {t5}
          v_add_u32 {t3}, {sT1}, {t3}
          v_and_b32 {t5}, 4, {vL}
          v_cmp_eq_u32 vcc, 0, {t5}
          v_bfe_u32 {t5}, {vL}, 3, 1
          v_cndmask_b32 {t3}, {t3}, {t4}, vcc
          v_lshl_add_u32 {t3}, {t5}, 9, {t3}
          v_lshlrev_b32 {vXG}, 1, {t3}''')
    e.vmem(f'buffer_load_ushort v{XG}, {vXG}, {SX}, 0 offen {xpol}', 'xg')
    for _ in range(k1):
        kissue()
    e(f'''s_mov_b32 s34, 0x40000
          s_mov_b32 s35, 0x20000
          s_lshl_b32 {sT0}, {sH}, 17
          s_add_u32 s40, s12, {sT0}
          s_addc_u32 s41, s13, 0
          s_mov_b32 s42, 0x20000
          s_mov_b32 s43, 0x20000
          s_mov_b32 s48, s20
          s_mov_b32 s49, s21
          s_mov_b32 s50, {1376*1024}
          s_mov_b32 s51, 0x20000
          s_mov_b32 s56, s26
          s_mov_b32 s57, s27
          s_mov_b32 s58, {WS_END}
          s_mov_b32 s59, 0x20000
          s_mov_b32 s60, s22
          s_mov_b32 s61, s23
          s_mov_b32 s62, 2048
          s_mov_b32 s63, 0x20000''')
    if stamps:
        e('s_mov_b32 s20, s26\ns_mov_b32 s21, s27\ns_mov_b32 s22, 0x40000000\ns_mov_b32 s23, 0x20000')
    if codepf or tailpf is not None:
        e('s_getpc_b64 s[64:65]\nL_pc:\ns_mov_b32 s66, L_codeend - L_pc\ns_mov_b32 s67, 0x20000')
    if codepf:
        e(f'''s_lshl2_add_u32 {sT0}, {sJ}, {sW}
              s_lshl_b32 {sT0}, {sT0}, 8
              v_lshl_add_u32 {t2}, {vL}, 2, {sT0}''')
        e.vmem(f'buffer_load_dword {vF}, {t2}, {SCODE}, 0 offen', 'cpf')
    e(f'''v_and_b32 {t2}, 1, {vL}
          v_lshlrev_b32 {t2}, 4, {t2}
          v_mov_b32 {t3}, 0xffff
          v_lshlrev_b32 {t2}, {t2}, {t3}
          v_bfe_u32 {t3}, {vL}, 1, 2
          v_cmp_eq_u32 s[4:5], 0, {t3}
          v_cmp_eq_u32 s[6:7], 1, {t3}
          v_cmp_eq_u32 s[8:9], 2, {t3}
          v_cmp_eq_u32 s[10:11], 3, {t3}''')
    for r in range(4):
        e(f'v_cndmask_b32 v{M[r]}, 0, {t2}, s[{4+2*r}:{5+2*r}]')
    e(f'''s_mov_b32 s94, 0xcccccccc
          s_mov_b32 s95, 0xcccccccc
          s_mov_b32 s96, 0xaaaaaaaa
          s_mov_b32 s97, 0xaaaaaaaa
          s_mov_b32 {sSelLo}, 0x05040100
          s_mov_b32 {sSelHi}, 0x07060302
          s_movk_i32 {sM8}, 0xff
          s_movk_i32 {sM12}, 0xfff
          s_movk_i32 {sM3}, 7
          s_getreg_b32 {sXcc}, hwreg(HW_REG_XCC_ID, 0, 4)''')
    if dbgcnt:
        e(f's_mov_b32 {sCnt}, 0')

    def rowred(op, r):
        for c in ('row_ror:8', 'row_ror:4', 'row_ror:2', 'row_ror:1'):
            e(f'{op}_dpp {r}, {r}, {r} {c} row_mask:0xf bank_mask:0xf')
    def swapred(op, r, tmp, n):
        e(f'v_mov_b32 {tmp}, {r}\nv_permlane{n}_swap_b32 {r}, {tmp}\n{op} {r}, {r}, {tmp}')
    def bf16r(dst, src):
        e(f'v_cvt_pk_bf16_f32 {dst}, {src}, {src}\nv_and_b32 {dst}, 0xffff0000, {dst}')
    def pk(op, d, a, b):
        e(f'v_pk_{op}_f32 v[{d}:{d+1}], v[{a}:{a+1}], v[{b}:{b+1}]')

    e.wait('xl1')
    stamp()
    for k in range(8):
        e(f'v_lshlrev_b32 v{XU+2*k}, 16, v{XL+k}\nv_and_b32 v{XU+2*k+1}, 0xffff0000, v{XL+k}')
    for k in range(4):
        pk('add', XL + 2 * k, XU + 4 * k, XU + 4 * k + 2)
    pk('add', XL, XL, XL + 2); pk('add', XL + 4, XL + 4, XL + 6); pk('add', XL, XL, XL + 4)
    e(f'v_add_f32 {t2}, v{XL}, v{XL+1}')
    for _ in range(ksp[0]): kissue()
    rowred('v_add_f32', t2)
    swapred('v_add_f32', t2, t3, 16)
    e(f'v_mul_f32 {t2}, 0x3b000000, {t2}')
    for k in range(0, 16, 2):
        e(f'v_pk_add_f32 v[{XU+k}:{XU+k+1}], v[{XU+k}:{XU+k+1}], v[30:31] op_sel_hi:[1,0] neg_lo:[0,1] neg_hi:[0,1]')
    for _ in range(ksp[1]): kissue()
    pk('mul', XL, XU, XU); pk('mul', XL + 2, XU + 2, XU + 2)
    for k in range(4, 16, 4):
        e(f'v_pk_fma_f32 v[{XL}:{XL+1}], v[{XU+k}:{XU+k+1}], v[{XU+k}:{XU+k+1}], v[{XL}:{XL+1}]')
        e(f'v_pk_fma_f32 v[{XL+2}:{XL+3}], v[{XU+k+2}:{XU+k+3}], v[{XU+k+2}:{XU+k+3}], v[{XL+2}:{XL+3}]')
    pk('add', XL, XL, XL + 2)
    e(f'v_add_f32 {t4}, v{XL}, v{XL+1}')
    for _ in range(ksp[2]): kissue()
    rowred('v_add_f32', t4)
    swapred('v_add_f32', t4, t3, 16)
    e(f'v_mul_f32 {t4}, 0x3b000000, {t4}')
    bf16r(t2, t2)
    bf16r(t4, t4)
    e(f'v_add_f32 {t4}, 0x3727c5ac, {t4}')
    bf16r(t4, t4)
    e(f'v_sqrt_f32 {t4}, {t4}')
    bf16r(t4, t4)
    e(f'''v_mov_b32 {t3}, {t2}
          v_mov_b32 {t5}, {t4}
          v_and_b32 v{XL}, 8, {vL}
          v_permlane32_swap_b32 {t2}, {t3}
          v_permlane32_swap_b32 {t4}, {t5}
          v_cmp_eq_u32 vcc, 0, v{XL}
          v_cndmask_b32 {t2}, {t3}, {t2}, vcc
          v_cndmask_b32 {t4}, {t5}, {t4}, vcc''')
    e.wait('xg')
    XN = f'v{XG}'
    e(f'v_lshlrev_b32 {XN}, 16, {XN}\nv_sub_f32 {XN}, {XN}, {t2}\nv_rcp_f32 {t5}, {t4}')
    bf16r(XN, XN)
    e(f'''v_mul_f32 {t2}, {XN}, {t5}
          v_fma_f32 {t3}, -{t2}, {t4}, {XN}
          v_fmac_f32 {t2}, {t3}, {t5}
          v_cvt_pk_bf16_f32 {XN}, {t2}, {t2}''')
    for _ in range(ksp[3]): kissue()
    for t in range(8):
        a = A[t & 1]
        for r in range(4):
            e(f'v_and_b32_dpp v{a+r}, {XN}, v{M[r]} row_newbcast:{t} row_mask:0xf bank_mask:0x3')
        for r in range(4):
            e(f'v_and_b32_dpp v{a+r}, {XN}, v{M[r]} row_newbcast:{t+8} row_mask:0xf bank_mask:0xc')
        if t < 4:
            e(f'v_mfma_f32_16x16x32_bf16 {rng("v", DQ, 4)}, {rng("v", a, 4)}, {rng("a", AWQ+4*t, 4)}, {rng("v", DQ, 4) if t else 0}')
        else:
            e(f'v_mfma_f32_32x32x16_bf16 {rng("v", DF, 16)}, {rng("v", a, 4)}, {rng("a", AFU+4*(t-4), 4)}, {rng("v", DF, 16) if t > 4 else 0}')
        if t == 3:
            for _ in range(ksp[4]): kissue()
    e(f'''ds_write_b128 {vKO}, {rng("v", DQ, 4)}
          s_lshl_b32 {sT0}, {sW}, 10
          v_add_u32 {t2}, {sT0}, {vKO}
          ds_write_b128 {t2}, {rng("v", DF, 4)} offset:4096
          ds_write_b128 {t2}, {rng("v", DF+4, 4)} offset:5120''')
    vRF, vRQ, vSF, vSQ = 'v208', 'v209', 'v210', 'v211'
    e(f'''s_lshr_b32 {sT0}, {sW}, 1
          s_lshl_b32 {sT0}, {sT0}, 10
          s_and_b32 {sT1}, {sW}, 1
          s_lshl3_add_u32 {sT0}, {sT1}, {sT0}
          v_lshl_add_u32 {vRF}, {vL}, 4, {sT0}
          s_lshl_b32 {sT0}, {sW}, 8
          v_lshl_add_u32 {vRQ}, {i}, 4, {sT0}
          s_lshl_b32 {sT1}, {sXc}, 5
          s_add_u32 {sT1}, {sT1}, {sJ}
          s_mul_i32 {sT1}, {sT1}, {FU_STRIDE}
          s_lshl2_add_u32 {sT1}, {sT0}, {sT1}
          s_add_u32 {sT1}, {sT1}, {WS_FU}
          v_and_b32 {t3}, 31, {vL}
          v_cmp_gt_u32 vcc, {sNch}, {t3}
          v_lshrrev_b32 {t4}, 5, {vL}
          v_lshl_add_u32 {t3}, {t3}, 1, {t4}
          v_lshl_add_u32 {t3}, {t3}, 4, {sT1}
          v_mov_b32 {t5}, {OOB}
          v_cndmask_b32 {vSF}, {t5}, {t3}, vcc
          s_lshl3_add_u32 {sT1}, {sH}, {sS8}
          s_lshl_b32 {sT1}, {sT1}, 10
          s_add_u32 {sT1}, {sT1}, {WS_Q}
          v_add_u32 {t3}, {sT1}, {vRQ}
          v_cmp_gt_u32 vcc, 16, {vL}
          v_cndmask_b32 {vSQ}, {t5}, {t3}, vcc''')
    if 'pub' in off: e(f'v_mov_b32 {vSF}, {OOB}\nv_mov_b32 {vSQ}, {OOB}')
    e('s_waitcnt lgkmcnt(0)\ns_barrier')
    stamp()
    R0, R1 = 216, 232
    for k in range(4):
        e(f'ds_read_b128 {rng("v", R0+4*k, 4)}, {vRQ} offset:{1024*k}')
    for k in range(4):
        e(f'ds_read_b64 v[{R1+2*k}:{R1+2*k+1}], {vRF} offset:{4096+2048*k}')
    e(f'''s_add_u32 {sEp}, {sEp}, 1
          s_and_b32 {sT1}, {sEp}, {sM12}
          v_mov_b32 {vTA}, {sT1}
          v_xor_b32 {vTB}, {sXcc}, {vTA}
          v_accvgpr_write_b32 a{AQA}, {vSQ}
          v_accvgpr_write_b32 a{AFA}, {vSF}
          s_waitcnt lgkmcnt(4)''')
    def tag(r, vts, m):
        for k, vt in enumerate(vts):
            e(f'v_bfi_b32 v{r+k}, {m}, {vt}, v{r+k}')
    pk('add', R0, R0, R0 + 4); pk('add', R0 + 2, R0 + 2, R0 + 6); pk('add', R0 + 8, R0 + 8, R0 + 12); pk('add', R0 + 10, R0 + 10, R0 + 14)
    pk('add', R0, R0, R0 + 8); pk('add', R0 + 2, R0 + 2, R0 + 10)
    tag(R0, [vTA, vTA, vTB, vTB], sM3)
    e.vmem(f'buffer_store_dwordx4 {rng("v", R0, 4)}, {vSQ}, {SWS}, 0 offen', 'pubq')
    e(f'''s_waitcnt lgkmcnt(0)
          v_add_f32 v{R1+8}, v{R1}, v{R1+2}
          v_add_f32 v{R1+9}, v{R1+4}, v{R1+6}
          v_add_f32 v{R1+10}, v{R1+1}, v{R1+3}
          v_add_f32 v{R1+11}, v{R1+5}, v{R1+7}''')
    tag(R1 + 8, [vTA, vTA, vTA, vTB], sM8)
    e.vmem(f'buffer_store_dwordx4 {rng("v", R1+8, 4)}, {vSF}, {SWS}, 0 offen', 'pubf')
    for k in range(4):
        e(f'v_accvgpr_write_b32 a{AQD+k}, v{R0+k}\nv_accvgpr_write_b32 a{AFD+k}, v{R1+8+k}')
    for _ in range(kpost[0]): kissue()

    e(f'''s_lshl2_add_u32 {sPB}, {sH}, {sS}
          s_lshl2_add_u32 {sT0}, {sB}, {sW}
          s_lshl_b32 {sT0}, {sT0}, 9
          s_add_u32 {sT0}, {sT0}, {sPB}
          s_lshl_b32 {sT0}, {sT0}, 7
          v_lshrrev_b32 {t2}, 2, {i}
          v_lshlrev_b32 {t2}, 14, {t2}
          v_and_b32 {t3}, 3, {vL}
          v_lshl_add_u32 {t2}, {t3}, 5, {t2}
          v_lshl_add_u32 {t2}, {g}, 4, {t2}
          v_add_u32 {vY}, {sT0}, {t2}
          s_lshl2_add_u32 {sT1}, {sBH}, {sS}
          s_lshl2_add_u32 {sT1}, {sT1}, {sW}
          s_lshl3_add_u32 {sT1}, {sT1}, {WS_ML}
          v_mov_b32 {t4}, {sT1}
          v_cmp_eq_u32 vcc, 0, {vL}
          v_mul_u32_u24 {t3}, 320, {t3}
          v_cndmask_b32 {vML}, {t5}, {t4}, vcc
          v_lshl_add_u32 {vOR}, {g}, 4, {t3}
          s_mul_i32 {sT0}, {sW}, 320
          s_add_u32 {sT0}, {sT0}, {LDS_O}
          v_and_b32 {t2}, 1, {g}
          v_lshlrev_b32 {t3}, 3, {t2}
          v_lshl_add_u32 {t3}, {i}, 4, {t3}
          v_add_u32 {vOW}, {sT0}, {t3}''')
    e(f'''s_lshl2_add_u32 {sU}, {sHH}, {sS}
          s_lshr_b32 {sT1}, {sU}, 3
          s_lshl1_add_u32 {sT1}, {sXc}, {sT1}
          s_lshl4_add_u32 {sT1}, {sB}, {sT1}
          s_and_b32 {sT0}, {sU}, 7
          s_lshl_b32 {sT2}, {sT1}, 14
          s_lshl4_add_u32 {sT2}, {sT0}, {sT2}
          v_lshl_add_u32 {vCON}, {vL}, 7, {sT2}
          s_lshl3_add_u32 {sT1}, {sT1}, {sT0}
          s_lshl_b32 {sT1}, {sT1}, 3
          v_lshrrev_b32 {t3}, 1, {g}
          v_lshl_add_u32 {t2}, {t2}, 1, {t3}
          v_lshl_add_u32 {t2}, {t2}, 1, {sT1}
          v_cmp_eq_u32 vcc, 0, {i}
          v_cndmask_b32 {vOUT}, {t5}, {t2}, vcc''')
    for _ in range(kpost[1]): kissue()
    e(f'''s_lshl_b32 {sT0}, {sH}, 13
          s_lshl_b32 {sT1}, {sB}, 9
          s_add_u32 {sT0}, {sT0}, {sT1}
          s_add_u32 {sT0}, {sT0}, {WS_Q}
          v_lshlrev_b32 {t2}, 10, {g}
          v_lshl_add_u32 {t2}, {i}, 4, {t2}
          v_add_u32 {vQG}, {sT0}, {t2}
          s_lshl_b32 {sT0}, {sW}, 8
          v_lshl_add_u32 {t2}, {i}, 4, {sT0}
          v_lshl_add_u32 {vWO}, {g}, 13, {t2}
          s_mul_i32 {sU}, {sU}, 12
          s_lshl_b32 {sNch}, {sNch}, 3
          s_lshl3_add_u32 {sT0}, {sC0}, {sU}
          s_lshl_b32 {sT0}, {sT0}, 10
          s_cmp_lt_u32 {sU}, {sNch}
          s_cselect_b32 {sT0}, {sT0}, {OOB}
          s_cselect_b32 {sU}, {sU}, 0
          v_lshl_add_u32 {t2}, {g}, 12, {t2}
          v_add_u32 {t2}, {sT0}, {t2}
          v_cmp_gt_u32 vcc, 3, {g}
          v_cndmask_b32 {vW2}, {t5}, {t2}, vcc''')
    for _ in range(kpost[2]): kissue()
    e(f'''v_and_b32 {t2}, 7, {vL}
          v_cmp_gt_u32 s[24:25], 6, {t2}
          v_lshl_add_u32 {t2}, {t2}, 1, {sU}
          v_cmp_gt_u32 vcc, {sNch}, {t2}
          v_lshrrev_b32 {t4}, 3, {vL}
          v_mul_u32_u24 {t4}, {FU_STRIDE}, {t4}
          s_and_b64 vcc, vcc, s[24:25]
          v_bfe_u32 {t3}, {t2}, 1, 1
          v_lshl_add_u32 {t4}, {t3}, 10, {t4}
          v_lshrrev_b32 {t2}, 2, {t2}
          v_lshl_add_u32 {t2}, {t2}, 4, {t4}
          s_mul_i32 {sT0}, {sXc}, {32*FU_STRIDE}
          s_lshl_b32 {sT1}, {sB}, 11
          s_add_u32 {sT0}, {sT0}, {sT1}
          s_add_u32 {sT0}, {sT0}, {WS_FU}
          v_add_u32 {t2}, {sT0}, {t2}
          v_cndmask_b32 {vFG}, {t5}, {t2}, vcc''')
    for nm, r in (('qg', vQG), ('w2', vW2), ('fg', vFG), ('mlpub', vML), ('wo', vWO)):
        if nm in off: e(f'v_mov_b32 {r}, {OOB}')

    slow = []
    def orred(regsl, m, dst):
        rs = list(regsl)
        if len(rs) == 1:
            e(f'v_and_b32 {t2}, {m}, v{rs[0]}')
        else:
            if len(rs) == 2:
                e(f'v_or_b32 {t2}, v{rs[0]}, v{rs[1]}')
            else:
                e(f'v_or3_b32 {t2}, v{rs[0]}, v{rs[1]}, v{rs[2]}')
                rs = rs[3:]
                while rs:
                    if len(rs) == 1:
                        e(f'v_or_b32 {t2}, {t2}, v{rs[0]}'); rs = []
                    else:
                        e(f'v_or3_b32 {t2}, {t2}, v{rs[0]}, v{rs[1]}'); rs = rs[2:]
            e(f'v_and_b32 {t2}, {m}, {t2}')
        e(f'v_cmp_ne_u32 {dst}, 0, {t2}')
    def untag(regsl, vts, m, dst='vcc'):
        for r, vt in zip(regsl, vts):
            e(f'v_xor_b32 v{r}, {vt}, v{r}')
        orred(regsl, m, dst)
    def checked(name, regsl, kinds, ta, tb, m, republish, reissue):
        if 'check' in off:
            return
        untag(regsl, [ta if k == 'A' else tb for k in kinds], m)
        e(f's_cbranch_vccnz L_slow_{name}\nL_ok_{name}:')
        def emit_slow():
            e(f'L_slow_{name}:')
            republish()
            e(f's_mov_b32 {sSpin}, {spin}')
            e(f'L_retry_{name}:')
            if dbgcnt:
                e(f's_add_u32 {sCnt}, {sCnt}, {1 << (8 * ["flag", "q", "fu", "ml"].index(name))}')
            if inv:
                e('buffer_inv sc1')
            reissue()
            e('s_waitcnt vmcnt(0)')
            ra = [r for r, k in zip(regsl, kinds) if k == 'A']
            untag(ra, [ta] * len(ra), m)
            for r, k in zip(regsl, kinds):
                if k != 'A':
                    e(f'v_bfi_b32 v{r}, {m}, 0, v{r}')
            e(f's_cbranch_vccz L_ok_{name}')
            e(f's_sleep 1\ns_sub_u32 {sSpin}, {sSpin}, 1\ns_cbranch_scc0 L_retry_{name}\ns_branch L_ok_{name}')
        slow.append(emit_slow)

    state = dict(q=False, kproc=0, soft=False, vproc=0, wop=0, ffn=False, ml=False, budget=catch)
    KT = [26, 27, 24, 25, 20, 21, 22, 23]
    def kpair(n):
        a, b = f'v{KT[0]}', f'v{KT[1]}'
        for k in range(4):
            for r, m in ((a, n), (b, n + 1)):
                e(f'v_dot2_f32_bf16 {r}, v{kreg(m)+k}, v{Q[k]}, {r if k else 0}')
        d1 = f'v{KT[2 + ((n >> 1) & 1)]}'
        e(f'v_add_f32_dpp {d1}, {a}, {a} row_ror:8 row_mask:0xf bank_mask:0x3')
        e(f'v_add_f32_dpp {d1}, {b}, {b} row_ror:8 row_mask:0xf bank_mask:0xc')
        if not (n >> 1) & 1:
            return
        x, y = f'v{KT[2]}', f'v{KT[3]}'
        d2 = f'v{KT[4 + ((n >> 2) & 1)]}'
        e(f'v_add_f32_dpp {d2}, {x}, {x} row_shl:4 row_mask:0xf bank_mask:0x5')
        e(f'v_add_f32_dpp {d2}, {y}, {y} row_shr:4 row_mask:0xf bank_mask:0xa')
        if not (n >> 2) & 1:
            return
        x, y = f'v{KT[4]}', f'v{KT[5]}'
        d3 = f'v{KT[6 + ((n >> 3) & 1)]}'
        e(f'v_add_f32_dpp {x}, {x}, {x} quad_perm:[2,3,0,1] row_mask:0xf bank_mask:0xf')
        e(f'v_add_f32_dpp {y}, {y}, {y} quad_perm:[2,3,0,1] row_mask:0xf bank_mask:0xf')
        e(f'v_cndmask_b32 {d3}, {x}, {y}, {sMC}')
        if not (n >> 3) & 1:
            return
        x, y = f'v{KT[6]}', f'v{KT[7]}'
        s = f'v{S[n >> 4]}'
        e(f'v_add_f32_dpp {x}, {x}, {x} quad_perm:[1,0,3,2] row_mask:0xf bank_mask:0xf')
        e(f'v_add_f32_dpp {y}, {y}, {y} quad_perm:[1,0,3,2] row_mask:0xf bank_mask:0xf')
        e(f'v_cndmask_b32 {s}, {x}, {y}, {sMA}')
        bf16r(s, s)
        e(f'v_mul_f32 {s}, {SCALE}, {s}')
        bf16r(s, s)
    def mlstore(tagger, p):
        e(f'v_bfi_b32 {t4}, {sM12}, {vTA}, {vM}\nv_bfi_b32 {t5}, {sM12}, {vTB}, {vLs}')
        tagger(f'buffer_store_dwordx2 v[32:33], {vML}, {SWS}, 0 offen {p}', 'mlpub')
    def softmax():
        stamp()
        e(f'v_max3_f32 {vM}, v{S[0]}, v{S[1]}, v{S[2]}\nv_max_f32 {vM}, {vM}, v{S[3]}')
        rowred('v_max_f32', vM)
        swapred('v_max_f32', vM, t2, 16)
        swapred('v_max_f32', vM, t2, 32)
        for k in range(4):
            e(f'v_sub_f32 v{S[k]}, v{S[k]}, {vM}')
        for k in range(4):
            e(f'v_mul_f32 v{S[k]}, {LOG2E}, v{S[k]}')
        for k in range(4):
            e(f'v_exp_f32 v{S[k]}, v{S[k]}')
        for k in range(4):
            e(f'v_cvt_pk_bf16_f32 v{Q[k]}, v{S[k]}, v{S[k]}')
        e(f'v_add_f32 {vLs}, v{S[0]}, v{S[1]}\nv_add_f32 {t2}, v{S[2]}, v{S[3]}\nv_add_f32 {vLs}, {vLs}, {t2}')
        abuild(0)
        rowred('v_add_f32', vLs)
        swapred('v_add_f32', vLs, t2, 16)
        swapred('v_add_f32', vLs, t2, 32)
        mlstore(e.vmem, '')
        state['soft'] = True
    def abuild(n):
        a = A[n & 1]
        for r in range(4):
            e(f'v_and_b32_dpp v{a+r}, v{Q[n >> 4]}, v{M[r]} row_newbcast:{bitrev4(n & 15)} row_mask:0xf bank_mask:0xf')
    def vstep(n):
        c = rng('v', ACC, 4) if n else '0'
        e(f'v_mfma_f32_16x16x32_bf16 {rng("v", ACC, 4)}, {rng("v", A[n & 1], 4)}, {rng("a", vreg(n), 4)}, {c}')
        if n < 63:
            abuild(n + 1)
    F, DY, STG, G2, W2S, FGR = 128, 96, 64, 48, 224, 240
    stg = lambda k: STG + 4 * (k % 8)
    def woperm(k):
        t, ee = k >> 3, k & 7
        for m in range(4):
            for hi in range(2):
                e(f'v_perm_b32 v{F + 32*t + 4*(2*m+hi) + ee//2}, v{stg(k+1)+m}, v{stg(k)+m}, {sSelHi if hi else sSelLo}')
    plain = lambda s, t: e(s)
    def fgissue(tagger, p):
        for m in range(4):
            if m:
                e(f's_mov_b32 {sT0}, {8*FU_STRIDE*m}')
            tagger(f'buffer_load_dwordx4 {rng("v", FGR+4*m, 4)}, {vFG}, {SWS}, {sT0 if m else 0} offen {p}', f'fg{m}')
    def republish(ad, aa):
        e(f'v_accvgpr_read_b32 {t2}, a{aa}\nbuffer_store_dwordx4 {rng("a", ad, 4)}, {t2}, {SWS}, 0 offen sc1')
    def ffn_down():
        e(f'''v_cmp_gt_u32 vcc, s58, {vFG}
              v_and_b32 {t4}, {sM8}, {vTA}
              v_and_b32 {t5}, {sM8}, {vTB}
              v_cndmask_b32 {t4}, 0, {t4}, vcc
              v_cndmask_b32 {t5}, 0, {t5}, vcc''')
        checked('fu', list(range(FGR, FGR + 16)), 'AAAB' * 4, t4, t5, sM8, lambda: republish(AFD, AFA), lambda: fgissue(plain, 'sc1'))
        for k in (0, 2):
            pk('add', FGR + k, FGR + k, FGR + 4 + k); pk('add', FGR + 8 + k, FGR + 8 + k, FGR + 12 + k)
        for k in (0, 2):
            pk('add', FGR + k, FGR + k, FGR + 8 + k)
        for p in range(2):
            for m in range(4):
                for hi in range(2):
                    e(f'v_perm_b32 v{G2 + 2*(2*m+hi) + p}, v{W2S+8*p+4+m}, v{W2S+8*p+m}, {sSelHi if hi else sSelLo}')
        for k in range(4):
            e(f'v_add_f32_dpp v{FGR+k}, v{FGR+k}, v{FGR+k} row_ror:8 row_mask:0xf bank_mask:0xf')
        ga, up = f'v{FGR}', f'v{FGR+1}'
        e(f'''v_permlane32_swap_b32 v{FGR}, v{FGR+2}
              v_permlane32_swap_b32 v{FGR+1}, v{FGR+3}
              v_add_f32 {ga}, v{FGR}, v{FGR+2}
              v_add_f32 {up}, v{FGR+1}, v{FGR+3}''')
        swapred('v_add_f32', ga, t2, 16)
        swapred('v_add_f32', up, t3, 16)
        bf16r(ga, ga)
        bf16r(up, up)
        e(f'''v_mul_f32 {t2}, {LOG2E ^ 0x80000000}, {ga}
              v_exp_f32 {t2}, {t2}
              v_and_b32 {t4}, 3, {vL}
              v_add_f32 {t2}, 1.0, {t2}
              v_rcp_f32 {t2}, {t2}
              v_cmp_eq_u32 vcc, 0, {t4}
              v_mul_f32 {ga}, {ga}, {t2}
              v_cndmask_b32 {t4}, 0, -1, vcc''')
        bf16r(ga, ga)
        ha = FGR + 4
        e(f'''v_mul_f32 {ga}, {ga}, {up}
              v_mov_b32 v{ha}, 0
              v_mov_b32 {t2}, {ga}
              v_mov_b32 v{ha+1}, 0
              v_permlane32_swap_b32 {ga}, {t2}
              v_cvt_pk_bf16_f32 {ga}, {ga}, {t2}''')
        for gg in range(3):
            for p in range(2):
                e(f'v_and_b32_dpp v{ha+p}, {ga}, {t4} row_newbcast:{2*gg+p} row_mask:{hex(1 << gg)} bank_mask:0xf')
        for cc in range(8):
            e(f'v_mfma_f32_16x16x16_bf16 {rng("v", DY+4*cc, 4)}, v[{ha}:{ha+1}], v[{G2+2*cc}:{G2+2*cc+1}], 0')
        state['ffn'] = True
    def mlissue(tagger, p):
        e(f's_lshl_b32 {sT0}, {sBH}, 7\ns_add_u32 {sT0}, {sT0}, {WS_ML}\nv_lshl_add_u32 {vMG}, {i}, 3, {sT0}')
        if 'ml' in off: e(f'v_mov_b32 {vMG}, {OOB}')
        tagger(f'buffer_load_dwordx2 v[{S[0]}:{S[1]}], {vMG}, {SWS}, 0 offen {p}', 'ml')
    def mlcombine():
        checked('ml', [S[0], S[1]], 'AB', vTA, vTB, sM12, lambda: mlstore(plain, 'sc1'), lambda: mlissue(plain, 'sc1'))
        mi, li, mx = f'v{S[0]}', f'v{S[1]}', f'v{S[2]}'
        e(f'v_mov_b32 {mx}, {mi}')
        rowred('v_max_f32', mx)
        e(f'''v_sub_f32 {mi}, {mi}, {mx}
              v_sub_f32 {vF}, {vM}, {mx}
              v_mul_f32 {mi}, {LOG2E}, {mi}
              v_mul_f32 {vF}, {LOG2E}, {vF}
              v_exp_f32 {mi}, {mi}
              v_exp_f32 {vF}, {vF}
              v_mul_f32 {li}, {li}, {mi}''')
        rowred('v_add_f32', li)
        e(f'v_rcp_f32 {li}, {li}\nv_mul_f32 {vF}, {vF}, {li}')
        state['ml'] = True
    complete = lambda tag: tag in e.vm and e.vm.index(tag) < e.done
    def progress():
        if state['q'] and not state['soft']:
            c = 0
            while state['kproc'] < 64 and complete(f'K{state["kproc"]+1}') and c < state['budget']:
                kpair(state['kproc']); state['kproc'] += 2; c += 2
            state['budget'] = catch if c >= 2 or state['budget'] >= 2 * catch else state['budget'] + 1
            if state['kproc'] == 64:
                softmax()
        if state['soft']:
            while state['vproc'] < 64 and complete(f'V{state["vproc"]}'):
                vstep(state['vproc']); state['vproc'] += 1
            while state['wop'] < 32 and complete(f'wo{state["wop"]+1}'):
                woperm(state['wop']); state['wop'] += 2
            if not state['ffn'] and complete('fg3') and complete('w23'):
                ffn_down()
            if not state['ml'] and complete('ml'):
                mlcombine()
    def window():
        k = len(e.vm) - D
        if k >= e.done:
            e.wait(e.vm[k])
        progress()
    QG = 232
    def qissue(tagger, p):
        for k in range(4):
            if k == 2:
                e(f's_movk_i32 {sT0}, 0x1000')
            tagger(f'buffer_load_dwordx4 {rng("v", QG+4*k, 4)}, {vQG}, {SWS}, {sT0 if k >= 2 else 0} offen offset:{256*(k&1)} {p}', f'qg{k}')
    def qfinish():
        e(f'v_and_b32 {t4}, 7, {vTA}\nv_and_b32 {t5}, 7, {vTB}')
        e.wait('qg3')
        checked('q', list(range(QG, QG + 16)), 'AABB' * 4, t4, t5, sM3, lambda: republish(AQD, AQA), lambda: qissue(plain, 'sc1'))
        for k in range(0, 8, 2):
            pk('add', QG + k, QG + k, QG + 8 + k)
        for k in range(4):
            e(f'v_permlane32_swap_b32 v{QG+k}, v{QG+4+k}')
        for k in (0, 2):
            pk('add', QG + k, QG + k, QG + 4 + k)
        e(f'''v_permlane16_swap_b32 v{QG}, v{QG+2}
              v_permlane16_swap_b32 v{QG+1}, v{QG+3}
              v_pk_add_f32 v[{QG}:{QG+1}], v[{QG}:{QG+1}], v[{QG+2}:{QG+3}]
              v_cvt_pk_bf16_f32 v{Q[0]}, v{QG}, v{QG+1}
              v_cvt_pk_bf16_f32 v{Q[1]}, v{QG}, v{QG+1}
              v_permlane16_swap_b32 v{Q[0]}, v{Q[1]}
              v_mov_b32 v{Q[2]}, v{Q[0]}
              v_mov_b32 v{Q[3]}, v{Q[1]}
              v_permlane32_swap_b32 v{Q[0]}, v{Q[2]}
              v_permlane32_swap_b32 v{Q[1]}, v{Q[3]}''')
        state['q'] = True
        stamp()
    assert kn[0] <= n_q
    while kn[0] < 64:
        n = kn[0]
        if n == n_q:
            window(); qissue(e.vmem, gpol)
        if n == n_q + gap:
            assert n <= (QG - KBASE) // 4
            qfinish()
        window()
        if n >= KRING:
            assert state['kproc'] > n - KRING, (n, state)
        kissue()
    extra = {}
    for k in range(4):
        extra.setdefault(ex0 + k, []).append(('w2', k))
    extra.setdefault(ex0 + 4, []).append(('fg', 0))
    extra.setdefault(ex0 + 5, []).append(('xres', 0))
    for k in range(32):
        extra.setdefault(wo_start + (k * (wo_end - wo_start)) // 32, []).append(('wo', k))
    extra.setdefault(n_ml, []).append(('ml', 0))
    if tailpf is not None:
        extra.setdefault(tailpf, []).append(('tpf', 0))
    XR = S[3]
    nv, m = 0, None
    while nv < 64:
        window()
        assert nv < vring or state['vproc'] > nv - vring, (nv, state)
        e.vmem(f'buffer_load_dwordx4 {rng("a", vreg(nv), 4)}, {vKO}, {SV}, {sVoff} offen {pol}', f'V{nv}')
        if nv < 63:
            e(f's_addk_i32 {sVoff}, 0x1000\ns_and_b32 {sVoff}, {sVoff}, {sMask}')
        nv += 1
        if state['soft'] and m is None:
            m = 0
        if m is not None:
            for kind, k in extra.pop(m, []):
                window()
                if kind == 'w2':
                    e.vmem(f'buffer_load_dwordx4 {rng("v", W2S+4*k, 4)}, {vW2}, {SW2}, 0 offen offset:{1024*k} {wpol}', f'w2{k}')
                elif kind == 'fg':
                    fgissue(e.vmem, gpol)
                elif kind == 'xres':
                    e.vmem(f'buffer_load_ushort v{XR}, {vOUT}, {SX}, 0 offen {xpol}', 'xres')
                elif kind == 'ml':
                    mlissue(e.vmem, gpol)
                elif kind == 'tpf':
                    e(f's_lshl_b32 {sT0}, {sW}, 8\ns_add_u32 {sT0}, {sT0}, L_tail - L_pc\nv_lshl_add_u32 {t3}, {vL}, 2, {sT0}')
                    e.vmem(f'buffer_load_dword v{S[2]}, {t3}, {SCODE}, 0 offen', 'tpf')
                    assert state['ml']
                elif kind == 'wo':
                    assert k < 8 or state['wop'] > k - 8, (k, state)
                    assert k < 24 or state['ffn']
                    e(f's_mov_b32 {sT0}, {(k >> 3)*32768 + ((k >> 2) & 1)*4096}')
                    e.vmem(f'buffer_load_dwordx4 {rng("v", stg(k), 4)}, {vWO}, {SWO}, {sT0} offen offset:{1024*(k & 3)} {wpol}', f'wo{k}')
            m += 1
    assert not extra, extra
    while state['vproc'] < 64:
        e.wait(f'V{state["vproc"]}')
        if state['vproc'] == 63:
            e('L_tail:')
            stamp()
        progress()
    assert state['wop'] == 32 and state['ffn'] and state['ml'], state
    e(f'''v_mul_f32 v{ACC}, v{ACC}, {vF}
          v_mul_f32 v{ACC+1}, v{ACC+1}, {vF}
          v_mul_f32 v{ACC+2}, v{ACC+2}, {vF}
          v_mul_f32 v{ACC+3}, v{ACC+3}, {vF}
          v_cvt_pk_bf16_f32 v{ACC}, v{ACC}, v{ACC+1}
          v_cvt_pk_bf16_f32 v{ACC+1}, v{ACC+2}, v{ACC+3}
          ds_write_b64 {vOW}, v[{ACC}:{ACC+1}]
          s_waitcnt lgkmcnt(0)
          s_barrier''')
    AF = STG
    for t in range(4):
        e(f'ds_read_b128 {rng("v", AF+4*t, 4)}, {vOR} offset:{LDS_O+64*t}')
    Z = A[0]
    def tile_add(cc):
        pk('add', DY + 4 * cc, DY + 4 * cc, DY + 4 * cc + 2)
    def tile_fin(cc):
        d = DY + 4 * cc
        if cc < 4:
            e(f'v_add_f32 v{Z+cc}, v{d}, v{d+1}')
        else:
            e(f'v_add_f32_dpp v{Z+cc-4}, v{d}, v{d+1} quad_perm:[0,1,2,3] row_mask:0x2 bank_mask:0xf')
            e(f'v_bfi_b32 v{Z+cc-4}, {sM12}, {vTA}, v{Z+cc-4}')
    for cc in range(8):
        for t in range(4):
            if cc == 0:
                e(f's_waitcnt lgkmcnt({3-t})')
            e(f'v_mfma_f32_16x16x32_bf16 {rng("v", DY+4*cc, 4)}, {rng("v", AF+4*t, 4)}, {rng("v", F+32*t+4*cc, 4)}, {rng("v", DY+4*cc, 4)}')
            if cc >= 2 and t == 1:
                tile_add(cc - 2)
            if cc >= 2 and t == 3:
                tile_fin(cc - 2)
    tile_add(6)
    e('s_mov_b32 exec_hi, 0')
    tile_add(7)
    tile_fin(6)
    tile_fin(7)
    e(f'buffer_store_dwordx4 {rng("v", Z, 4)}, {vY}, {SWS}, 0 offen sc1')
    e(f's_cmp_lg_u32 {sW}, 0\ns_cbranch_scc1 L_end')
    stamp()
    C = STG
    mA, mB = 's[24:25]', 's[26:27]'
    e(f's_mov_b32 {sSpin}, {spin}\ns_movk_i32 {sT0}, 0x2000\ns_mov_b64 {mA}, -1\ns_mov_b64 {mB}, -1')
    e('L_poll:')
    e(f'''s_mov_b64 exec, {mA}
          buffer_load_dwordx4 {rng("v", C, 4)}, {vCON}, {SWS}, 0 offen sc1
          s_mov_b64 exec, {mB}
          buffer_load_dwordx4 {rng("v", C+4, 4)}, {vCON}, {SWS}, {sT0} offen sc1
          s_sub_u32 {sSpin}, {sSpin}, 1
          s_cbranch_scc1 L_polled
          s_mov_b64 exec, {mA}
          s_waitcnt vmcnt(0)''')
    untag(list(range(C, C + 4)), [vTA] * 4, sM12, dst=mA)
    e(f's_mov_b64 exec, {mB}')
    untag(list(range(C + 4, C + 8)), [vTA] * 4, sM12, dst=mB)
    e(f's_or_b64 vcc, {mA}, {mB}')
    if sleep:
        e(f's_cbranch_scc0 L_polled\ns_sleep {sleep}\ns_branch L_poll')
    else:
        e('s_cbranch_scc1 L_poll')
    e('L_polled:')
    e('s_mov_b64 exec, -1')
    stamp()
    pk('add', C, C, C + 4); pk('add', C + 2, C + 2, C + 6)
    e(f'''v_lshlrev_b32 v{XR}, 16, v{XR}
          v_permlane32_swap_b32 v{C}, v{C+1}
          v_permlane32_swap_b32 v{C+2}, v{C+3}
          v_add_f32 v{C}, v{C}, v{C+1}
          v_add_f32 v{C+2}, v{C+2}, v{C+3}
          v_permlane16_swap_b32 v{C}, v{C+2}
          v_add_f32 v{C}, v{C}, v{C+2}''')
    rowred('v_add_f32', f'v{C}')
    e(f'''v_add_f32 v{C}, v{C}, v{XR}
          v_cvt_pk_bf16_f32 v{C}, v{C}, v{C}
          buffer_store_short v{C}, {vOUT}, {SOUT}, 0 offen''')
    e(f'''s_cmp_eq_u32 s2, 0
          s_cselect_b32 {sT0}, {WS_EP}, {OOB}
          v_mov_b32 {t2}, {sEp}
          v_mov_b32 {t3}, {sT0}
          s_mov_b64 exec, 1
          buffer_store_dword {t2}, {t3}, {SWS}, 0 offen sc1''')
    if fixdur:
        e('s_cmp_lg_u32 s2, 0\ns_cbranch_scc1 L_end')
        if amp is not None:
            e(f's_waitcnt lgkmcnt(0)\ns_sub_u32 s1, s{stamp_regs[amp]}, s100\ns_mul_i32 s1, s1, 10\ns_add_u32 s1, s1, {fixdur}')
        else:
            e(f's_mov_b32 s1, {fixdur}')
        e('L_hold:\ns_memrealtime s[24:25]\ns_waitcnt lgkmcnt(0)\ns_sub_u32 s24, s24, s100\ns_cmp_lt_u32 s24, s1\ns_cbranch_scc1 L_hold\ns_endpgm')
    if stamps:
        e('s_waitcnt vmcnt(0)')
        stamp()
        e(f's_waitcnt lgkmcnt(0)\ns_lshl_b32 s0, {sId}, 7\ns_add_u32 s0, s0, 0x20000000\nv_mov_b32 v0, 0')
        for k, r in enumerate([100] + stamp_regs[:nst[0]]):
            e(f'v_mov_b32 v2, s{r}\nv_mov_b32 v3, s{r+1}\nbuffer_store_dwordx2 v[2:3], v0, s[20:23], s0 offen offset:{8*k}')
        if dbgcnt:
            e(f'v_mov_b32 v2, {sCnt}\nv_mov_b32 v3, {sSpin}\nbuffer_store_dwordx2 v[2:3], v0, s[20:23], s0 offen offset:120')
    e('L_end:\ns_endpgm')
    for f in slow:
        f()
    e('L_codeend:')
    e.raw('.section .rodata,"a"\n.p2align 6')
    e.raw(kernel_desc(K, 512, 102, accum=256))
    return e.text(), LDS, nst[0] + 1, e.nops

if __name__ == '__main__':
    cfgs = {}
    def add(name, **kw):
        cfgs[name] = kw
    exec(open(sys.argv[1]).read())
    BF = os.environ.get('BFLAGS', '-n 15 -c')
    os.makedirs('co', exist_ok=True)
    names = []
    for name, kw in cfgs.items():
        t, lds, ns, nops = gen(**kw)
        build(t, f'co/{name}')
        st = f'-t {ns}' if kw.get('stamps') else ''
        names.append(f'co/{name}.co')
        print(name, 'nops', nops, 'len', len(t))
    open('run.sh', 'w').write(f'#!/bin/bash\ntimeout 300 ./bench {BF} {st} {NAME}_kernel:256:256:{lds} ' + ' '.join(names) + '\n')
```

```python
import sys, os
from asmlib import NAME, kernel_desc, build
from emit import Emit

FU_STRIDE = 4224
WS_Y, WS_Q, WS_ML, WS_EP, WS_FU = 0, 0x80000, 0xC0000, 0xC4000, 0xC5000
WS_END = WS_FU + 256 * FU_STRIDE
OOB = 0x40000000
LOG2E = 0x3fb8aa3b
SCALE = 0x3db504f3

def bitrev4(n):
    return ((n & 1) << 3) | ((n & 2) << 1) | ((n & 4) >> 1) | ((n & 8) >> 3)

REF = 'cdna_kernels/' + NAME + '.s.ref'
HEADER = open(REF).read().split('; Override launch')[0] if os.path.exists(REF) else ''

NOTES = '''; Design: one launch, 256 workgroups (b, head, quarter of the 4096-key window) x 4 waves, one workgroup per CU.
;  - q projection and FFN-up are split over rows across workgroups and handed over through d_ws; FFN-down and
;    the output projection are applied per workgroup, and 4 output columns per workgroup are summed at the end.
;  - Every hand-off word carries this launch's tag (epoch word found in d_ws, + 1) in its low mantissa bits; a
;    reader that finds another tag (or a writer on another XCD) re-publishes write-through and polls.'''

def gen(D=9, k0=2, k1=2, ksp=(1, 1, 1, 1, 1), kpost=(1, 1, 1), n_q=24, gap=None, catch=3, wo_start=8, wo_end=50, n_ml=30,
        ex0=0, vring=16, rotmul=5, sleep=2, codepf=True, tailpf=None, pol='nt', wpol='nt', xpol='', gpol='', spin=400000,
        inv=False, stamps=False, dbgcnt=False, off=(), permtest=False, fixdur=0, amp=None, stset='main', stwave=0, touch=(), Dend=None, nend=44, Dk=None, kw=False, ypol='sc1', asleep=(8, 8), n_fg=None):
    gap = gap or D + 1
    e = Emit()
    K = NAME + '_kernel'
    LDS_O = 12288
    LDS = LDS_O + 2048
    sW = 's3'
    SK, SV, SWQ, SWO, SFU, SW2, SX, SWS, SOUT, SCODE = [f's[{b}:{b+3}]' for b in range(28, 68, 4)]
    sXc, sJ, sHH, sH, sB, sS, sS8, sBH, sC0, sNch, sT0, sT1, sT2, sKoff, sVoff, sMask, sPB, sU, sXcc, sId = [f's{n}' for n in range(68, 88)]
    sSelLo, sSelHi, sSpin, sM8, sM12, sM3 = [f's{n}' for n in range(88, 94)]
    sMC, sMA = 's[94:95]', 's[96:97]'
    sEp = 's0'
    sCnt = 's98'
    stamp_regs = [4, 6, 8, 10, 12, 14, 16, 18]
    nst = [0]
    def stamp(which='main'):
        if stamps and stset in which.split(','):
            r = stamp_regs[nst[0]]
            e(f's_memrealtime s[{r}:{r+1}]')
            nst[0] += 1
    vKO, M, Q, S, vY, vL = 'v1', [2, 3, 4, 5], [6, 7, 8, 9], [10, 11, 12, 13], 'v14', 'v15'
    A = [16, 20]
    ACC = 24
    g, i, t2, t3, t4, t5 = [f'v{k}' for k in range(28, 34)]
    vM, vLs = 'v34', 'v35'
    vXG, vWQ, vFU = 'v34', 'v35', 'v36'
    vMG, vML, vTB = 'v36', 'v37', 'v38'
    vQG, vWO, vW2, vFG, vOUT, vCON, vOW, vOR, vF = [f'v{k}' for k in range(39, 48)]
    vTA = 'v0'
    KBASE, KRING = 48, 52
    kreg = lambda n: KBASE + 4 * (n % KRING)
    vreg = lambda n: 4 * (n % vring)
    rng = lambda p, b, n: f'{p}[{b}:{b+n-1}]'
    AWQ, AFU = 192, 208
    AQD, AFD, AQA, AFA = 224, 228, 232, 233
    assert 4 * vring <= AWQ

    e.raw(HEADER.rstrip('\n'))
    e.raw(NOTES)
    e.raw(f'; @launch grid=(256,1,1) block=(256,1,1) lds={LDS}')
    e.raw('.amdgcn_target "amdgcn-amd-amdhsa--gfx950"\n.text')
    e.raw(f'.globl {K}\n.p2align 8\n.type {K},@function\n{K}:')
    e('s_load_dwordx16 s[4:19], s[0:1], 0\ns_load_dwordx8 s[20:27], s[0:1], 64')
    if stamps or fixdur:
        e('s_memrealtime s[100:101]')
    e('s_cmp_ge_u32 s2, 256\ns_cbranch_scc1 L_end')
    e(f's_mov_b32 {sId}, s2')
    if permtest:
        e(f's_lshr_b32 {sT0}, s2, 5\ns_and_b32 s2, s2, 31\ns_lshl_b32 s2, s2, 3\ns_or_b32 s2, s2, {sT0}')
    e(f'''s_and_b32 {sXc}, s2, 7
          s_lshr_b32 {sJ}, s2, 3
          s_lshr_b32 {sHH}, s2, 6
          s_lshl2_add_u32 {sH}, {sXc}, {sHH}
          s_bfe_u32 {sB}, s2, 0x10005
          s_and_b32 {sS}, {sJ}, 3
          s_lshl_b32 {sBH}, {sB}, 5
          s_add_u32 {sBH}, {sBH}, {sH}
          s_lshl4_add_u32 {sT0}, {sBH}, {sS}
          s_add_u32 {sT0}, {sT0}, 12
          s_lshl_b32 {sT0}, {sT0}, 18
          s_mul_i32 {sKoff}, s2, {rotmul << 12}
          s_mov_b32 {sMask}, 0x3ffff
          s_and_b32 {sKoff}, {sKoff}, {sMask}
          v_lshlrev_b32 {vKO}, 4, v0
          s_mov_b32 s30, 0x40000
          s_mov_b32 s31, 0x20000
          v_lshrrev_b32 v2, 6, v0
          v_and_b32 {vL}, 63, v0
          s_mov_b32 {sVoff}, {sKoff}
          v_readfirstlane_b32 {sW}, v2
          s_waitcnt lgkmcnt(0)
          s_add_u32 s28, s6, {sT0}
          s_addc_u32 s29, s7, 0''')
    if stamps and stset == 'head':
        e('s_memrealtime s[14:15]')
    kn = [0]
    def kissue():
        n = kn[0]
        e.vmem(f'buffer_load_dwordx4 {rng("v", kreg(n), 4)}, {vKO}, {SK}, {sKoff} offen {pol}', f'K{n}')
        e(f's_addk_i32 {sKoff}, 0x1000\ns_and_b32 {sKoff}, {sKoff}, {sMask}')
        kn[0] += 1
    def kspr():
        if kw:
            k = len(e.vm) - (Dk or D)
            if k >= e.done:
                e.wait(e.vm[k])
        kissue()
    for _ in range(k0):
        kissue()
    XL, XU, XG, DQ, DF = 208, 216, 232, 236, 240
    e(f'''s_load_dword {sEp}, s[26:27], {WS_EP}
          s_add_u32 s32, s8, {sT0}
          s_addc_u32 s33, s9, 0
          s_mov_b32 s52, s4
          s_mov_b32 s53, s5
          s_mov_b32 s54, 2048
          s_mov_b32 s55, 0x20000
          v_lshlrev_b32 {t2}, 5, {vL}''')
    e.vmem(f'buffer_load_dwordx4 {rng("v", XL, 4)}, {t2}, {SX}, 0 offen {xpol}', 'xl0')
    e.vmem(f'buffer_load_dwordx4 {rng("v", XL+4, 4)}, {t2}, {SX}, 0 offen offset:16 {xpol}', 'xl1')
    e(f'''s_and_b32 {sS8}, {sJ}, 7
          v_lshrrev_b32 {g}, 4, {vL}
          v_and_b32 {i}, 15, {vL}
          s_lshl_b32 {sT1}, {sS8}, 19
          s_lshl_b32 {sT2}, {sH}, 8
          s_add_u32 {sT1}, {sT1}, {sT2}
          s_add_u32 s36, s10, {sT1}
          s_addc_u32 s37, s11, 0
          s_mov_b32 s38, {63*8192+256}
          s_mov_b32 s39, 0x20000
          v_lshrrev_b32 {t3}, 4, v0
          v_and_b32 {t4}, 12, {t3}
          v_lshl_add_u32 {t3}, {t4}, 2, {g}
          v_lshlrev_b32 {t3}, 13, {t3}
          v_lshl_add_u32 {vWQ}, {i}, 4, {t3}''')
    if 'wq' in off: e(f'v_mov_b32 {vWQ}, {OOB}')
    for t in range(4):
        if t:
            e(f's_mov_b32 {sT2}, {32768*t}')
        e.vmem(f'buffer_load_dwordx4 {rng("a", AWQ+4*t, 4)}, {vWQ}, {SWQ}, {sT2 if t else 0} offen {wpol}', f'wq{t}')
    e(f'''s_mul_i32 {sC0}, {sXc}, 43
          s_add_u32 {sC0}, {sC0}, 1
          s_lshr_b32 {sC0}, {sC0}, 1
          s_and_b32 {sT1}, {sXc}, 1
          s_sub_u32 {sNch}, 22, {sT1}
          s_and_b32 {sT1}, {sW}, 1
          s_lshl1_add_u32 {sT1}, {sJ}, {sT1}
          s_lshl_b32 {sT1}, {sT1}, 3
          v_lshrrev_b32 {t3}, 5, {vL}
          v_add_u32 {t3}, {sT1}, {t3}
          v_mul_u32_u24 {t3}, 2752, {t3}
          v_and_b32 {t4}, 31, {vL}
          v_cmp_gt_u32 vcc, {sNch}, {t4}
          v_add_u32 {t4}, {sC0}, {t4}
          v_lshl_add_u32 {t3}, {t4}, 4, {t3}
          v_mov_b32 {t5}, {OOB}
          v_cndmask_b32 {vFU}, {t5}, {t3}, vcc
          s_cmp_lt_u32 {sW}, 2
          s_cselect_b32 s44, s16, s18
          s_cselect_b32 s45, s17, s19
          s_mov_b32 s46, {512*2752}
          s_mov_b32 s47, 0x20000''')
    if 'fu' in off: e(f'v_mov_b32 {vFU}, {OOB}')
    for t in range(4):
        if t:
            e(f's_movk_i32 {sT2}, {5504*t}')
        e.vmem(f'buffer_load_dwordx4 {rng("a", AFU+4*t, 4)}, {vFU}, {SFU}, {sT2 if t else 0} offen {wpol}', f'fu{t}')
    e(f'''s_lshl2_add_u32 {sT0}, {sS8}, {sW}
          s_lshl_b32 {sT0}, {sT0}, 4
          v_and_b32 {t3}, 3, {vL}
          v_lshl_add_u32 {t4}, {t3}, 2, {g}
          v_add_u32 {t4}, {sT0}, {t4}
          v_lshrrev_b32 {t5}, 5, {vL}
          v_lshl_add_u32 {t3}, {t3}, 1, {t5}
          v_add_u32 {t3}, {sT1}, {t3}
          v_and_b32 {t5}, 4, {vL}
          v_cmp_eq_u32 vcc, 0, {t5}
          v_bfe_u32 {t5}, {vL}, 3, 1
          v_cndmask_b32 {t3}, {t3}, {t4}, vcc
          v_lshl_add_u32 {t3}, {t5}, 9, {t3}
          v_lshlrev_b32 {vXG}, 1, {t3}''')
    e.vmem(f'buffer_load_ushort v{XG}, {vXG}, {SX}, 0 offen {xpol}', 'xg')
    for _ in range(k1):
        kissue()
    e(f'''s_mov_b32 s34, 0x40000
          s_mov_b32 s35, 0x20000
          s_lshl_b32 {sT0}, {sH}, 17
          s_add_u32 s40, s12, {sT0}
          s_addc_u32 s41, s13, 0
          s_mov_b32 s42, 0x20000
          s_mov_b32 s43, 0x20000
          s_mov_b32 s48, s20
          s_mov_b32 s49, s21
          s_mov_b32 s50, {1376*1024}
          s_mov_b32 s51, 0x20000
          s_mov_b32 s56, s26
          s_mov_b32 s57, s27
          s_mov_b32 s58, {WS_END}
          s_mov_b32 s59, 0x20000
          s_mov_b32 s60, s22
          s_mov_b32 s61, s23
          s_mov_b32 s62, 2048
          s_mov_b32 s63, 0x20000''')
    if stamps:
        e('s_mov_b32 s20, s26\ns_mov_b32 s21, s27\ns_mov_b32 s22, 0x40000000\ns_mov_b32 s23, 0x20000')
    if codepf or tailpf is not None:
        e('s_getpc_b64 s[64:65]\nL_pc:\ns_mov_b32 s66, L_codeend - L_pc\ns_mov_b32 s67, 0x20000')
    if touch:
        e(f'v_mov_b32 {t2}, 0')
        for k, nm in enumerate(touch):
            srd = dict(V=SV, wo=SWO, w2=SW2, ws=SWS, out=SOUT)[nm]
            e.vmem(f'buffer_load_dword {vF}, {t2}, {srd}, 0 offen nt', 'touch' + nm)
    if codepf:
        e(f'''s_lshl2_add_u32 {sT0}, {sJ}, {sW}
              s_lshl_b32 {sT0}, {sT0}, 8
              v_lshl_add_u32 {t2}, {vL}, 2, {sT0}''')
        e.vmem(f'buffer_load_dword {vF}, {t2}, {SCODE}, 0 offen', 'cpf')
    e(f'''v_and_b32 {t2}, 1, {vL}
          v_lshlrev_b32 {t2}, 4, {t2}
          v_mov_b32 {t3}, 0xffff
          v_lshlrev_b32 {t2}, {t2}, {t3}
          v_bfe_u32 {t3}, {vL}, 1, 2
          v_cmp_eq_u32 s[4:5], 0, {t3}
          v_cmp_eq_u32 s[6:7], 1, {t3}
          v_cmp_eq_u32 s[8:9], 2, {t3}
          v_cmp_eq_u32 s[10:11], 3, {t3}''')
    for r in range(4):
        e(f'v_cndmask_b32 v{M[r]}, 0, {t2}, s[{4+2*r}:{5+2*r}]')
    e(f'''s_mov_b32 s94, 0xcccccccc
          s_mov_b32 s95, 0xcccccccc
          s_mov_b32 s96, 0xaaaaaaaa
          s_mov_b32 s97, 0xaaaaaaaa
          s_mov_b32 {sSelLo}, 0x05040100
          s_mov_b32 {sSelHi}, 0x07060302
          s_movk_i32 {sM8}, 0xff
          s_movk_i32 {sM12}, 0xfff
          s_movk_i32 {sM3}, 7
          s_getreg_b32 {sXcc}, hwreg(HW_REG_XCC_ID, 0, 4)''')
    if dbgcnt:
        e(f's_mov_b32 {sCnt}, 0')

    def rowred(op, r):
        for c in ('row_ror:8', 'row_ror:4', 'row_ror:2', 'row_ror:1'):
            e(f'{op}_dpp {r}, {r}, {r} {c} row_mask:0xf bank_mask:0xf')
    def swapred(op, r, tmp, n):
        e(f'v_mov_b32 {tmp}, {r}\nv_permlane{n}_swap_b32 {r}, {tmp}\n{op} {r}, {r}, {tmp}')
    def bf16r(dst, src):
        e(f'v_cvt_pk_bf16_f32 {dst}, {src}, {src}\nv_and_b32 {dst}, 0xffff0000, {dst}')
    def pk(op, d, a, b):
        e(f'v_pk_{op}_f32 v[{d}:{d+1}], v[{a}:{a+1}], v[{b}:{b+1}]')

    if stamps and stset == 'head':
        e.wait('K0')
        e('s_waitcnt lgkmcnt(0)\ns_mov_b64 s[4:5], s[14:15]')
        nst[0] = 1
        stamp('head')
    e.wait('xl1')
    stamp('main,head')
    for k in range(8):
        e(f'v_lshlrev_b32 v{XU+2*k}, 16, v{XL+k}\nv_and_b32 v{XU+2*k+1}, 0xffff0000, v{XL+k}')
    for k in range(4):
        pk('add', XL + 2 * k, XU + 4 * k, XU + 4 * k + 2)
    pk('add', XL, XL, XL + 2); pk('add', XL + 4, XL + 4, XL + 6); pk('add', XL, XL, XL + 4)
    e(f'v_add_f32 {t2}, v{XL}, v{XL+1}')
    for _ in range(ksp[0]): kspr()
    rowred('v_add_f32', t2)
    swapred('v_add_f32', t2, t3, 16)
    e(f'v_mul_f32 {t2}, 0x3b000000, {t2}')
    for k in range(0, 16, 2):
        e(f'v_pk_add_f32 v[{XU+k}:{XU+k+1}], v[{XU+k}:{XU+k+1}], v[30:31] op_sel_hi:[1,0] neg_lo:[0,1] neg_hi:[0,1]')
    for _ in range(ksp[1]): kspr()
    pk('mul', XL, XU, XU); pk('mul', XL + 2, XU + 2, XU + 2)
    for k in range(4, 16, 4):
        e(f'v_pk_fma_f32 v[{XL}:{XL+1}], v[{XU+k}:{XU+k+1}], v[{XU+k}:{XU+k+1}], v[{XL}:{XL+1}]')
        e(f'v_pk_fma_f32 v[{XL+2}:{XL+3}], v[{XU+k+2}:{XU+k+3}], v[{XU+k+2}:{XU+k+3}], v[{XL+2}:{XL+3}]')
    pk('add', XL, XL, XL + 2)
    e(f'v_add_f32 {t4}, v{XL}, v{XL+1}')
    for _ in range(ksp[2]): kspr()
    rowred('v_add_f32', t4)
    swapred('v_add_f32', t4, t3, 16)
    e(f'v_mul_f32 {t4}, 0x3b000000, {t4}')
    bf16r(t2, t2)
    bf16r(t4, t4)
    e(f'v_add_f32 {t4}, 0x3727c5ac, {t4}')
    bf16r(t4, t4)
    e(f'v_sqrt_f32 {t4}, {t4}')
    bf16r(t4, t4)
    e(f'''v_mov_b32 {t3}, {t2}
          v_mov_b32 {t5}, {t4}
          v_and_b32 v{XL}, 8, {vL}
          v_permlane32_swap_b32 {t2}, {t3}
          v_permlane32_swap_b32 {t4}, {t5}
          v_cmp_eq_u32 vcc, 0, v{XL}
          v_cndmask_b32 {t2}, {t3}, {t2}, vcc
          v_cndmask_b32 {t4}, {t5}, {t4}, vcc''')
    e.wait('xg')
    XN = f'v{XG}'
    e(f'v_lshlrev_b32 {XN}, 16, {XN}\nv_sub_f32 {XN}, {XN}, {t2}\nv_rcp_f32 {t5}, {t4}')
    bf16r(XN, XN)
    e(f'''v_mul_f32 {t2}, {XN}, {t5}
          v_fma_f32 {t3}, -{t2}, {t4}, {XN}
          v_fmac_f32 {t2}, {t3}, {t5}
          v_cvt_pk_bf16_f32 {XN}, {t2}, {t2}''')
    for _ in range(ksp[3]): kspr()
    for t in range(8):
        a = A[t & 1]
        for r in range(4):
            e(f'v_and_b32_dpp v{a+r}, {XN}, v{M[r]} row_newbcast:{t} row_mask:0xf bank_mask:0x3')
        for r in range(4):
            e(f'v_and_b32_dpp v{a+r}, {XN}, v{M[r]} row_newbcast:{t+8} row_mask:0xf bank_mask:0xc')
        if t < 4:
            e(f'v_mfma_f32_16x16x32_bf16 {rng("v", DQ, 4)}, {rng("v", a, 4)}, {rng("a", AWQ+4*t, 4)}, {rng("v", DQ, 4) if t else 0}')
        else:
            e(f'v_mfma_f32_32x32x16_bf16 {rng("v", DF, 16)}, {rng("v", a, 4)}, {rng("a", AFU+4*(t-4), 4)}, {rng("v", DF, 16) if t > 4 else 0}')
        if t == 3:
            for _ in range(ksp[4]): kspr()
    e(f'''ds_write_b128 {vKO}, {rng("v", DQ, 4)}
          s_lshl_b32 {sT0}, {sW}, 10
          v_add_u32 {t2}, {sT0}, {vKO}
          ds_write_b128 {t2}, {rng("v", DF, 4)} offset:4096
          ds_write_b128 {t2}, {rng("v", DF+4, 4)} offset:5120''')
    vRF, vRQ, vSF, vSQ = 'v208', 'v209', 'v210', 'v211'
    e(f'''s_lshr_b32 {sT0}, {sW}, 1
          s_lshl_b32 {sT0}, {sT0}, 10
          s_and_b32 {sT1}, {sW}, 1
          s_lshl3_add_u32 {sT0}, {sT1}, {sT0}
          v_lshl_add_u32 {vRF}, {vL}, 4, {sT0}
          s_lshl_b32 {sT0}, {sW}, 8
          v_lshl_add_u32 {vRQ}, {i}, 4, {sT0}
          s_lshl_b32 {sT1}, {sXc}, 5
          s_add_u32 {sT1}, {sT1}, {sJ}
          s_mul_i32 {sT1}, {sT1}, {FU_STRIDE}
          s_lshl2_add_u32 {sT1}, {sT0}, {sT1}
          s_add_u32 {sT1}, {sT1}, {WS_FU}
          v_and_b32 {t3}, 31, {vL}
          v_cmp_gt_u32 vcc, {sNch}, {t3}
          v_lshrrev_b32 {t4}, 5, {vL}
          v_lshl_add_u32 {t3}, {t3}, 1, {t4}
          v_lshl_add_u32 {t3}, {t3}, 4, {sT1}
          v_mov_b32 {t5}, {OOB}
          v_cndmask_b32 {vSF}, {t5}, {t3}, vcc
          s_lshl3_add_u32 {sT1}, {sH}, {sS8}
          s_lshl_b32 {sT1}, {sT1}, 10
          s_add_u32 {sT1}, {sT1}, {WS_Q}
          v_add_u32 {t3}, {sT1}, {vRQ}
          v_cmp_gt_u32 vcc, 16, {vL}
          v_cndmask_b32 {vSQ}, {t5}, {t3}, vcc''')
    if 'pub' in off: e(f'v_mov_b32 {vSF}, {OOB}\nv_mov_b32 {vSQ}, {OOB}')
    stamp('head')
    e('s_waitcnt lgkmcnt(0)\ns_barrier')
    stamp('main,head')
    R0, R1 = 216, 232
    for k in range(4):
        e(f'ds_read_b128 {rng("v", R0+4*k, 4)}, {vRQ} offset:{1024*k}')
    for k in range(4):
        e(f'ds_read_b64 v[{R1+2*k}:{R1+2*k+1}], {vRF} offset:{4096+2048*k}')
    e(f'''s_add_u32 {sEp}, {sEp}, 1
          s_and_b32 {sT1}, {sEp}, {sM12}
          v_mov_b32 {vTA}, {sT1}
          v_xor_b32 {vTB}, {sXcc}, {vTA}
          v_accvgpr_write_b32 a{AQA}, {vSQ}
          v_accvgpr_write_b32 a{AFA}, {vSF}
          s_waitcnt lgkmcnt(4)''')
    def tag(r, vts, m):
        for k, vt in enumerate(vts):
            e(f'v_bfi_b32 v{r+k}, {m}, {vt}, v{r+k}')
    pk('add', R0, R0, R0 + 4); pk('add', R0 + 2, R0 + 2, R0 + 6); pk('add', R0 + 8, R0 + 8, R0 + 12); pk('add', R0 + 10, R0 + 10, R0 + 14)
    pk('add', R0, R0, R0 + 8); pk('add', R0 + 2, R0 + 2, R0 + 10)
    tag(R0, [vTA, vTA, vTB, vTB], sM3)
    e.vmem(f'buffer_store_dwordx4 {rng("v", R0, 4)}, {vSQ}, {SWS}, 0 offen', 'pubq')
    e(f'''s_waitcnt lgkmcnt(0)
          v_add_f32 v{R1+8}, v{R1}, v{R1+2}
          v_add_f32 v{R1+9}, v{R1+4}, v{R1+6}
          v_add_f32 v{R1+10}, v{R1+1}, v{R1+3}
          v_add_f32 v{R1+11}, v{R1+5}, v{R1+7}''')
    tag(R1 + 8, [vTA, vTA, vTA, vTB], sM8)
    e.vmem(f'buffer_store_dwordx4 {rng("v", R1+8, 4)}, {vSF}, {SWS}, 0 offen', 'pubf')
    for k in range(4):
        e(f'v_accvgpr_write_b32 a{AQD+k}, v{R0+k}\nv_accvgpr_write_b32 a{AFD+k}, v{R1+8+k}')
    for _ in range(kpost[0]): kspr()

    e(f'''s_lshl2_add_u32 {sPB}, {sH}, {sS}
          s_lshl2_add_u32 {sT0}, {sB}, {sW}
          s_lshl_b32 {sT0}, {sT0}, 9
          s_add_u32 {sT0}, {sT0}, {sPB}
          s_lshl_b32 {sT0}, {sT0}, 7
          v_lshrrev_b32 {t2}, 2, {i}
          v_lshlrev_b32 {t2}, 14, {t2}
          v_and_b32 {t3}, 3, {vL}
          v_lshl_add_u32 {t2}, {t3}, 5, {t2}
          v_lshl_add_u32 {t2}, {g}, 4, {t2}
          v_add_u32 {vY}, {sT0}, {t2}
          s_lshl2_add_u32 {sT1}, {sBH}, {sS}
          s_lshl2_add_u32 {sT1}, {sT1}, {sW}
          s_lshl3_add_u32 {sT1}, {sT1}, {WS_ML}
          v_mov_b32 {t4}, {sT1}
          v_cmp_eq_u32 vcc, 0, {vL}
          v_mul_u32_u24 {t3}, 320, {t3}
          v_cndmask_b32 {vML}, {t5}, {t4}, vcc
          v_lshl_add_u32 {vOR}, {g}, 4, {t3}
          s_mul_i32 {sT0}, {sW}, 320
          s_add_u32 {sT0}, {sT0}, {LDS_O}
          v_and_b32 {t2}, 1, {g}
          v_lshlrev_b32 {t3}, 3, {t2}
          v_lshl_add_u32 {t3}, {i}, 4, {t3}
          v_add_u32 {vOW}, {sT0}, {t3}''')
    e(f'''s_lshl2_add_u32 {sU}, {sHH}, {sS}
          s_lshr_b32 {sT1}, {sU}, 3
          s_lshl1_add_u32 {sT1}, {sXc}, {sT1}
          s_lshl4_add_u32 {sT1}, {sB}, {sT1}
          s_and_b32 {sT0}, {sU}, 7
          s_lshl_b32 {sT2}, {sT1}, 14
          s_lshl4_add_u32 {sT2}, {sT0}, {sT2}
          v_lshl_add_u32 {vCON}, {vL}, 7, {sT2}
          s_lshl3_add_u32 {sT1}, {sT1}, {sT0}
          s_lshl_b32 {sT1}, {sT1}, 3
          v_lshrrev_b32 {t3}, 1, {g}
          v_lshl_add_u32 {t2}, {t2}, 1, {t3}
          v_lshl_add_u32 {t2}, {t2}, 1, {sT1}
          v_cmp_eq_u32 vcc, 0, {i}
          v_cndmask_b32 {vOUT}, {t5}, {t2}, vcc''')
    for _ in range(kpost[1]): kspr()
    e(f'''s_lshl_b32 {sT0}, {sH}, 13
          s_lshl_b32 {sT1}, {sB}, 9
          s_add_u32 {sT0}, {sT0}, {sT1}
          s_add_u32 {sT0}, {sT0}, {WS_Q}
          v_lshlrev_b32 {t2}, 10, {g}
          v_lshl_add_u32 {t2}, {i}, 4, {t2}
          v_add_u32 {vQG}, {sT0}, {t2}
          s_lshl_b32 {sT0}, {sW}, 8
          v_lshl_add_u32 {t2}, {i}, 4, {sT0}
          v_lshl_add_u32 {vWO}, {g}, 13, {t2}
          s_mul_i32 {sU}, {sU}, 12
          s_lshl_b32 {sNch}, {sNch}, 3
          s_lshl3_add_u32 {sT0}, {sC0}, {sU}
          s_lshl_b32 {sT0}, {sT0}, 10
          s_cmp_lt_u32 {sU}, {sNch}
          s_cselect_b32 {sT0}, {sT0}, {OOB}
          s_cselect_b32 {sU}, {sU}, 0
          v_lshl_add_u32 {t2}, {g}, 12, {t2}
          v_add_u32 {t2}, {sT0}, {t2}
          v_cmp_gt_u32 vcc, 3, {g}
          v_cndmask_b32 {vW2}, {t5}, {t2}, vcc''')
    for _ in range(kpost[2]): kspr()
    e(f'''v_and_b32 {t2}, 7, {vL}
          v_cmp_gt_u32 s[24:25], 6, {t2}
          v_lshl_add_u32 {t2}, {t2}, 1, {sU}
          v_cmp_gt_u32 vcc, {sNch}, {t2}
          v_lshrrev_b32 {t4}, 3, {vL}
          v_mul_u32_u24 {t4}, {FU_STRIDE}, {t4}
          s_and_b64 vcc, vcc, s[24:25]
          v_bfe_u32 {t3}, {t2}, 1, 1
          v_lshl_add_u32 {t4}, {t3}, 10, {t4}
          v_lshrrev_b32 {t2}, 2, {t2}
          v_lshl_add_u32 {t2}, {t2}, 4, {t4}
          s_mul_i32 {sT0}, {sXc}, {32*FU_STRIDE}
          s_lshl_b32 {sT1}, {sB}, 11
          s_add_u32 {sT0}, {sT0}, {sT1}
          s_add_u32 {sT0}, {sT0}, {WS_FU}
          v_add_u32 {t2}, {sT0}, {t2}
          v_cndmask_b32 {vFG}, {t5}, {t2}, vcc''')
    for nm, r in (('qg', vQG), ('w2', vW2), ('fg', vFG), ('mlpub', vML), ('wo', vWO), ('y', vY), ('con', vCON)):
        if nm in off: e(f'v_mov_b32 {r}, {OOB}')

    slow = []
    def orred(regsl, m, dst):
        rs = list(regsl)
        if len(rs) == 1:
            e(f'v_and_b32 {t2}, {m}, v{rs[0]}')
        else:
            if len(rs) == 2:
                e(f'v_or_b32 {t2}, v{rs[0]}, v{rs[1]}')
            else:
                e(f'v_or3_b32 {t2}, v{rs[0]}, v{rs[1]}, v{rs[2]}')
                rs = rs[3:]
                while rs:
                    if len(rs) == 1:
                        e(f'v_or_b32 {t2}, {t2}, v{rs[0]}'); rs = []
                    else:
                        e(f'v_or3_b32 {t2}, {t2}, v{rs[0]}, v{rs[1]}'); rs = rs[2:]
            e(f'v_and_b32 {t2}, {m}, {t2}')
        e(f'v_cmp_ne_u32 {dst}, 0, {t2}')
    def untag(regsl, vts, m, dst='vcc'):
        for r, vt in zip(regsl, vts):
            e(f'v_xor_b32 v{r}, {vt}, v{r}')
        orred(regsl, m, dst)
    def checked(name, regsl, kinds, ta, tb, m, republish, reissue):
        if 'check' in off:
            return
        untag(regsl, [ta if k == 'A' else tb for k in kinds], m)
        e(f's_cbranch_vccnz L_slow_{name}\nL_ok_{name}:')
        def emit_slow():
            e(f'L_slow_{name}:')
            republish()
            e(f's_mov_b32 {sSpin}, {spin}')
            e(f'L_retry_{name}:')
            if dbgcnt:
                e(f's_add_u32 {sCnt}, {sCnt}, {1 << (8 * ["flag", "q", "fu", "ml"].index(name))}')
            if inv:
                e('buffer_inv sc1')
            reissue()
            e('s_waitcnt vmcnt(0)')
            ra = [r for r, k in zip(regsl, kinds) if k == 'A']
            untag(ra, [ta] * len(ra), m)
            for r, k in zip(regsl, kinds):
                if k != 'A':
                    e(f'v_bfi_b32 v{r}, {m}, 0, v{r}')
            e(f's_cbranch_vccz L_ok_{name}')
            e(f's_sleep 1\ns_sub_u32 {sSpin}, {sSpin}, 1\ns_cbranch_scc0 L_retry_{name}\ns_branch L_ok_{name}')
        slow.append(emit_slow)

    state = dict(q=False, kproc=0, soft=False, vproc=0, wop=0, ffn=False, ml=False, budget=catch)
    KT = [26, 27, 24, 25, 20, 21, 22, 23]
    def kpair(n):
        a, b = f'v{KT[0]}', f'v{KT[1]}'
        for k in range(4):
            for r, m in ((a, n), (b, n + 1)):
                e(f'v_dot2_f32_bf16 {r}, v{kreg(m)+k}, v{Q[k]}, {r if k else 0}')
        d1 = f'v{KT[2 + ((n >> 1) & 1)]}'
        e(f'v_add_f32_dpp {d1}, {a}, {a} row_ror:8 row_mask:0xf bank_mask:0x3')
        e(f'v_add_f32_dpp {d1}, {b}, {b} row_ror:8 row_mask:0xf bank_mask:0xc')
        if not (n >> 1) & 1:
            return
        x, y = f'v{KT[2]}', f'v{KT[3]}'
        d2 = f'v{KT[4 + ((n >> 2) & 1)]}'
        e(f'v_add_f32_dpp {d2}, {x}, {x} row_shl:4 row_mask:0xf bank_mask:0x5')
        e(f'v_add_f32_dpp {d2}, {y}, {y} row_shr:4 row_mask:0xf bank_mask:0xa')
        if not (n >> 2) & 1:
            return
        x, y = f'v{KT[4]}', f'v{KT[5]}'
        d3 = f'v{KT[6 + ((n >> 3) & 1)]}'
        e(f'v_add_f32_dpp {x}, {x}, {x} quad_perm:[2,3,0,1] row_mask:0xf bank_mask:0xf')
        e(f'v_add_f32_dpp {y}, {y}, {y} quad_perm:[2,3,0,1] row_mask:0xf bank_mask:0xf')
        e(f'v_cndmask_b32 {d3}, {x}, {y}, {sMC}')
        if not (n >> 3) & 1:
            return
        x, y = f'v{KT[6]}', f'v{KT[7]}'
        s = f'v{S[n >> 4]}'
        e(f'v_add_f32_dpp {x}, {x}, {x} quad_perm:[1,0,3,2] row_mask:0xf bank_mask:0xf')
        e(f'v_add_f32_dpp {y}, {y}, {y} quad_perm:[1,0,3,2] row_mask:0xf bank_mask:0xf')
        e(f'v_cndmask_b32 {s}, {x}, {y}, {sMA}')
        bf16r(s, s)
        e(f'v_mul_f32 {s}, {SCALE}, {s}')
        bf16r(s, s)
    def mlstore(tagger, p):
        e(f'v_bfi_b32 {t4}, {sM12}, {vTA}, {vM}\nv_bfi_b32 {t5}, {sM12}, {vTB}, {vLs}')
        tagger(f'buffer_store_dwordx2 v[32:33], {vML}, {SWS}, 0 offen {p}', 'mlpub')
    def softmax():
        stamp()
        e(f'v_max3_f32 {vM}, v{S[0]}, v{S[1]}, v{S[2]}\nv_max_f32 {vM}, {vM}, v{S[3]}')
        rowred('v_max_f32', vM)
        swapred('v_max_f32', vM, t2, 16)
        swapred('v_max_f32', vM, t2, 32)
        for k in range(4):
            e(f'v_sub_f32 v{S[k]}, v{S[k]}, {vM}')
        for k in range(4):
            e(f'v_mul_f32 v{S[k]}, {LOG2E}, v{S[k]}')
        for k in range(4):
            e(f'v_exp_f32 v{S[k]}, v{S[k]}')
        for k in range(4):
            e(f'v_cvt_pk_bf16_f32 v{Q[k]}, v{S[k]}, v{S[k]}')
        e(f'v_add_f32 {vLs}, v{S[0]}, v{S[1]}\nv_add_f32 {t2}, v{S[2]}, v{S[3]}\nv_add_f32 {vLs}, {vLs}, {t2}')
        abuild(0)
        rowred('v_add_f32', vLs)
        swapred('v_add_f32', vLs, t2, 16)
        swapred('v_add_f32', vLs, t2, 32)
        mlstore(e.vmem, '')
        state['soft'] = True
    def abuild(n):
        a = A[n & 1]
        for r in range(4):
            e(f'v_and_b32_dpp v{a+r}, v{Q[n >> 4]}, v{M[r]} row_newbcast:{bitrev4(n & 15)} row_mask:0xf bank_mask:0xf')
    def vstep(n):
        c = rng('v', ACC, 4) if n else '0'
        e(f'v_mfma_f32_16x16x32_bf16 {rng("v", ACC, 4)}, {rng("v", A[n & 1], 4)}, {rng("a", vreg(n), 4)}, {c}')
        if n < 63:
            abuild(n + 1)
    F, DY, STG, G2, W2S, FGR = 128, 96, 64, 48, 224, 240
    stg = lambda k: STG + 4 * (k % 8)
    def woperm(k):
        t, ee = k >> 3, k & 7
        for m in range(4):
            for hi in range(2):
                e(f'v_perm_b32 v{F + 32*t + 4*(2*m+hi) + ee//2}, v{stg(k+1)+m}, v{stg(k)+m}, {sSelHi if hi else sSelLo}')
    plain = lambda s, t: e(s)
    AFG = 176
    assert 4 * vring <= AFG
    def fgissue(tagger, p, acc=False):
        for m in range(4):
            if m:
                e(f's_mov_b32 {sT0}, {8*FU_STRIDE*m}')
            tagger(f'buffer_load_dwordx4 {rng("a", AFG+4*m, 4) if acc else rng("v", FGR+4*m, 4)}, {vFG}, {SWS}, {sT0 if m else 0} offen {p}', f'fg{m}')
    def republish(ad, aa):
        e(f'v_accvgpr_read_b32 {t2}, a{aa}\nbuffer_store_dwordx4 {rng("a", ad, 4)}, {t2}, {SWS}, 0 offen sc1')
    def ffn_down():
        if n_fg is not None:
            for k in range(16):
                e(f'v_accvgpr_read_b32 v{FGR+k}, a{AFG+k}')
        e(f'''v_cmp_gt_u32 vcc, s58, {vFG}
              v_and_b32 {t4}, {sM8}, {vTA}
              v_and_b32 {t5}, {sM8}, {vTB}
              v_cndmask_b32 {t4}, 0, {t4}, vcc
              v_cndmask_b32 {t5}, 0, {t5}, vcc''')
        checked('fu', list(range(FGR, FGR + 16)), 'AAAB' * 4, t4, t5, sM8, lambda: republish(AFD, AFA), lambda: fgissue(plain, 'sc1'))
        for k in (0, 2):
            pk('add', FGR + k, FGR + k, FGR + 4 + k); pk('add', FGR + 8 + k, FGR + 8 + k, FGR + 12 + k)
        for k in (0, 2):
            pk('add', FGR + k, FGR + k, FGR + 8 + k)
        for p in range(2):
            for m in range(4):
                for hi in range(2):
                    e(f'v_perm_b32 v{G2 + 2*(2*m+hi) + p}, v{W2S+8*p+4+m}, v{W2S+8*p+m}, {sSelHi if hi else sSelLo}')
        for k in range(4):
            e(f'v_add_f32_dpp v{FGR+k}, v{FGR+k}, v{FGR+k} row_ror:8 row_mask:0xf bank_mask:0xf')
        ga, up = f'v{FGR}', f'v{FGR+1}'
        e(f'''v_permlane32_swap_b32 v{FGR}, v{FGR+2}
              v_permlane32_swap_b32 v{FGR+1}, v{FGR+3}
              v_add_f32 {ga}, v{FGR}, v{FGR+2}
              v_add_f32 {up}, v{FGR+1}, v{FGR+3}''')
        swapred('v_add_f32', ga, t2, 16)
        swapred('v_add_f32', up, t3, 16)
        bf16r(ga, ga)
        bf16r(up, up)
        e(f'''v_mul_f32 {t2}, {LOG2E ^ 0x80000000}, {ga}
              v_exp_f32 {t2}, {t2}
              v_and_b32 {t4}, 3, {vL}
              v_add_f32 {t2}, 1.0, {t2}
              v_rcp_f32 {t2}, {t2}
              v_cmp_eq_u32 vcc, 0, {t4}
              v_mul_f32 {ga}, {ga}, {t2}
              v_cndmask_b32 {t4}, 0, -1, vcc''')
        bf16r(ga, ga)
        ha = FGR + 4
        e(f'''v_mul_f32 {ga}, {ga}, {up}
              v_mov_b32 v{ha}, 0
              v_mov_b32 {t2}, {ga}
              v_mov_b32 v{ha+1}, 0
              v_permlane32_swap_b32 {ga}, {t2}
              v_cvt_pk_bf16_f32 {ga}, {ga}, {t2}''')
        for gg in range(3):
            for p in range(2):
                e(f'v_and_b32_dpp v{ha+p}, {ga}, {t4} row_newbcast:{2*gg+p} row_mask:{hex(1 << gg)} bank_mask:0xf')
        for cc in range(8):
            e(f'v_mfma_f32_16x16x16_bf16 {rng("v", DY+4*cc, 4)}, v[{ha}:{ha+1}], v[{G2+2*cc}:{G2+2*cc+1}], 0')
        state['ffn'] = True
    def mlissue(tagger, p):
        e(f's_lshl_b32 {sT0}, {sBH}, 7\ns_add_u32 {sT0}, {sT0}, {WS_ML}\nv_lshl_add_u32 {vMG}, {i}, 3, {sT0}')
        if 'ml' in off: e(f'v_mov_b32 {vMG}, {OOB}')
        tagger(f'buffer_load_dwordx2 v[{S[0]}:{S[1]}], {vMG}, {SWS}, 0 offen {p}', 'ml')
    def mlcombine():
        checked('ml', [S[0], S[1]], 'AB', vTA, vTB, sM12, lambda: mlstore(plain, 'sc1'), lambda: mlissue(plain, 'sc1'))
        mi, li, mx = f'v{S[0]}', f'v{S[1]}', f'v{S[2]}'
        e(f'v_mov_b32 {mx}, {mi}')
        rowred('v_max_f32', mx)
        e(f'''v_sub_f32 {mi}, {mi}, {mx}
              v_sub_f32 {vF}, {vM}, {mx}
              v_mul_f32 {mi}, {LOG2E}, {mi}
              v_mul_f32 {vF}, {LOG2E}, {vF}
              v_exp_f32 {mi}, {mi}
              v_exp_f32 {vF}, {vF}
              v_mul_f32 {li}, {li}, {mi}''')
        rowred('v_add_f32', li)
        e(f'v_rcp_f32 {li}, {li}\nv_mul_f32 {vF}, {vF}, {li}')
        state['ml'] = True
    complete = lambda tag: tag in e.vm and e.vm.index(tag) < e.done
    def progress():
        if state['q'] and not state['soft']:
            c = 0
            while state['kproc'] < 64 and complete(f'K{state["kproc"]+1}') and c < state['budget']:
                kpair(state['kproc']); state['kproc'] += 2; c += 2
            state['budget'] = catch if c >= 2 or state['budget'] >= 2 * catch else state['budget'] + 1
            if state['kproc'] == 64:
                softmax()
        if state['soft']:
            while state['vproc'] < 64 and complete(f'V{state["vproc"]}'):
                vstep(state['vproc']); state['vproc'] += 1
            while state['wop'] < 32 and complete(f'wo{state["wop"]+1}'):
                woperm(state['wop']); state['wop'] += 2
            if not state['ffn'] and complete('fg3') and complete('w23'):
                ffn_down()
            if not state['ml'] and complete('ml'):
                mlcombine()
    def window():
        d = D
        if Dend and f'V{nend}' in e.vm: d = Dend
        if Dk and 'V0' not in e.vm: d = Dk
        k = len(e.vm) - d
        if k >= e.done:
            e.wait(e.vm[k])
        progress()
    QG = 232
    def qissue(tagger, p):
        for k in range(4):
            if k == 2:
                e(f's_movk_i32 {sT0}, 0x1000')
            tagger(f'buffer_load_dwordx4 {rng("v", QG+4*k, 4)}, {vQG}, {SWS}, {sT0 if k >= 2 else 0} offen offset:{256*(k&1)} {p}', f'qg{k}')
    def qfinish():
        e(f'v_and_b32 {t4}, 7, {vTA}\nv_and_b32 {t5}, 7, {vTB}')
        e.wait('qg3')
        checked('q', list(range(QG, QG + 16)), 'AABB' * 4, t4, t5, sM3, lambda: republish(AQD, AQA), lambda: qissue(plain, 'sc1'))
        for k in range(0, 8, 2):
            pk('add', QG + k, QG + k, QG + 8 + k)
        for k in range(4):
            e(f'v_permlane32_swap_b32 v{QG+k}, v{QG+4+k}')
        for k in (0, 2):
            pk('add', QG + k, QG + k, QG + 4 + k)
        e(f'''v_permlane16_swap_b32 v{QG}, v{QG+2}
              v_permlane16_swap_b32 v{QG+1}, v{QG+3}
              v_pk_add_f32 v[{QG}:{QG+1}], v[{QG}:{QG+1}], v[{QG+2}:{QG+3}]
              v_cvt_pk_bf16_f32 v{Q[0]}, v{QG}, v{QG+1}
              v_cvt_pk_bf16_f32 v{Q[1]}, v{QG}, v{QG+1}
              v_permlane16_swap_b32 v{Q[0]}, v{Q[1]}
              v_mov_b32 v{Q[2]}, v{Q[0]}
              v_mov_b32 v{Q[3]}, v{Q[1]}
              v_permlane32_swap_b32 v{Q[0]}, v{Q[2]}
              v_permlane32_swap_b32 v{Q[1]}, v{Q[3]}''')
        state['q'] = True
        stamp()
    assert kn[0] <= n_q
    while kn[0] < 64:
        n = kn[0]
        if n == n_q:
            window(); qissue(e.vmem, gpol)
        if n == n_fg:
            window(); fgissue(e.vmem, gpol, acc=True)
        if n == n_q + gap:
            assert n <= (QG - KBASE) // 4
            qfinish()
        window()
        if n >= KRING:
            assert state['kproc'] > n - KRING, (n, state)
        kissue()
    extra = {}
    for k in range(4):
        extra.setdefault(ex0 + k, []).append(('w2', k))
    if n_fg is None:
        extra.setdefault(ex0 + 4, []).append(('fg', 0))
    extra.setdefault(ex0 + 5, []).append(('xres', 0))
    for k in range(32):
        extra.setdefault(wo_start + (k * (wo_end - wo_start)) // 32, []).append(('wo', k))
    extra.setdefault(n_ml, []).append(('ml', 0))
    if tailpf is not None:
        extra.setdefault(tailpf, []).append(('tpf', 0))
    XR = S[3]
    nv, m = 0, None
    while nv < 64:
        window()
        assert nv < vring or state['vproc'] > nv - vring, (nv, state)
        e.vmem(f'buffer_load_dwordx4 {rng("a", vreg(nv), 4)}, {vKO}, {SV}, {sVoff} offen {pol}', f'V{nv}')
        if nv < 63:
            e(f's_addk_i32 {sVoff}, 0x1000\ns_and_b32 {sVoff}, {sVoff}, {sMask}')
        nv += 1
        if state['soft'] and m is None:
            m = 0
        if m is not None:
            for kind, k in extra.pop(m, []):
                window()
                if kind == 'w2':
                    e.vmem(f'buffer_load_dwordx4 {rng("v", W2S+4*k, 4)}, {vW2}, {SW2}, 0 offen offset:{1024*k} {wpol}', f'w2{k}')
                elif kind == 'fg':
                    fgissue(e.vmem, gpol)
                elif kind == 'xres':
                    e.vmem(f'buffer_load_ushort v{XR}, {vOUT}, {SX}, 0 offen {xpol}', 'xres')
                elif kind == 'ml':
                    mlissue(e.vmem, gpol)
                elif kind == 'tpf':
                    e(f's_lshl_b32 {sT0}, {sW}, 8\ns_add_u32 {sT0}, {sT0}, L_tail - L_pc\nv_lshl_add_u32 {t3}, {vL}, 2, {sT0}')
                    e.vmem(f'buffer_load_dword v{S[2]}, {t3}, {SCODE}, 0 offen', 'tpf')
                    assert state['ml']
                elif kind == 'wo':
                    assert k < 8 or state['wop'] > k - 8, (k, state)
                    assert k < 24 or state['ffn']
                    e(f's_mov_b32 {sT0}, {(k >> 3)*32768 + ((k >> 2) & 1)*4096}')
                    e.vmem(f'buffer_load_dwordx4 {rng("v", stg(k), 4)}, {vWO}, {SWO}, {sT0} offen offset:{1024*(k & 3)} {wpol}', f'wo{k}')
            m += 1
    assert not extra, extra
    while state['vproc'] < 64:
        e.wait(f'V{state["vproc"]}')
        if state['vproc'] == 63:
            e('L_tail:')
            stamp('main,tail,head')
        progress()
    assert state['wop'] == 32 and state['ffn'] and state['ml'], state
    e(f'''v_mul_f32 v{ACC}, v{ACC}, {vF}
          v_mul_f32 v{ACC+1}, v{ACC+1}, {vF}
          v_mul_f32 v{ACC+2}, v{ACC+2}, {vF}
          v_mul_f32 v{ACC+3}, v{ACC+3}, {vF}
          v_cvt_pk_bf16_f32 v{ACC}, v{ACC}, v{ACC+1}
          v_cvt_pk_bf16_f32 v{ACC+1}, v{ACC+2}, v{ACC+3}
          ds_write_b64 {vOW}, v[{ACC}:{ACC+1}]''')
    stamp('tail')
    e('s_waitcnt lgkmcnt(0)\ns_barrier')
    stamp('tail')
    if stamps and stset == 'tail':
        e('s_waitcnt lgkmcnt(0)')
    AF = STG
    for t in range(4):
        e(f'ds_read_b128 {rng("v", AF+4*t, 4)}, {vOR} offset:{LDS_O+64*t}')
    Z = A[0]
    def tile_add(cc):
        pk('add', DY + 4 * cc, DY + 4 * cc, DY + 4 * cc + 2)
    def tile_fin(cc):
        d = DY + 4 * cc
        if cc < 4:
            e(f'v_add_f32 v{Z+cc}, v{d}, v{d+1}')
        else:
            e(f'v_add_f32_dpp v{Z+cc-4}, v{d}, v{d+1} quad_perm:[0,1,2,3] row_mask:0x2 bank_mask:0xf')
            e(f'v_bfi_b32 v{Z+cc-4}, {sM12}, {vTA}, v{Z+cc-4}')
    for cc in range(8):
        for t in range(4):
            if cc == 0:
                e(f's_waitcnt lgkmcnt({3-t})')
            e(f'v_mfma_f32_16x16x32_bf16 {rng("v", DY+4*cc, 4)}, {rng("v", AF+4*t, 4)}, {rng("v", F+32*t+4*cc, 4)}, {rng("v", DY+4*cc, 4)}')
            if cc >= 2 and t == 1:
                tile_add(cc - 2)
            if cc >= 2 and t == 3:
                tile_fin(cc - 2)
    tile_add(6)
    e('s_mov_b32 exec_hi, 0')
    tile_add(7)
    tile_fin(6)
    tile_fin(7)
    e(f'buffer_store_dwordx4 {rng("v", Z, 4)}, {vY}, {SWS}, 0 offen {ypol}')
    e(f's_cmp_lg_u32 {sW}, {stwave}\ns_cbranch_scc1 L_end')
    stamp('main,tail')
    if stamps and stset == 'tail':
        e('s_waitcnt vmcnt(0)')
        stamp('tail')
    C = STG
    mA, mB = 's[24:25]', 's[26:27]'
    e(f's_mov_b32 {sSpin}, {spin}\ns_movk_i32 {sT0}, 0x2000\ns_mov_b64 {mA}, -1\ns_mov_b64 {mB}, -1')
    e('L_poll:')
    e(f'''s_mov_b64 exec, {mA}
          buffer_load_dwordx4 {rng("v", C, 4)}, {vCON}, {SWS}, 0 offen sc1
          s_mov_b64 exec, {mB}
          buffer_load_dwordx4 {rng("v", C+4, 4)}, {vCON}, {SWS}, {sT0} offen sc1
          s_sub_u32 {sSpin}, {sSpin}, 1
          s_cbranch_scc1 L_polled
          s_mov_b64 exec, {mA}
          s_waitcnt vmcnt(0)''')
    untag(list(range(C, C + 4)), [vTA] * 4, sM12, dst=mA)
    e(f's_mov_b64 exec, {mB}')
    untag(list(range(C + 4, C + 8)), [vTA] * 4, sM12, dst=mB)
    e(f's_or_b64 vcc, {mA}, {mB}')
    if 'con' in off: e('s_branch L_polled')
    if asleep:
        thr, big = asleep
        e(f'''s_cbranch_scc0 L_polled
              s_bcnt1_i32_b64 {sT1}, {mA}
              s_bcnt1_i32_b64 {sT2}, {mB}
              s_add_u32 {sT1}, {sT1}, {sT2}
              s_cmp_le_u32 {sT1}, {thr}
              s_cbranch_scc1 L_poll
              s_sleep {big}
              s_branch L_poll''')
    elif sleep:
        e(f's_cbranch_scc0 L_polled\ns_sleep {sleep}\ns_branch L_poll')
    else:
        e('s_cbranch_scc1 L_poll')
    e('L_polled:')
    e('s_mov_b64 exec, -1')
    stamp('main,tail')
    pk('add', C, C, C + 4); pk('add', C + 2, C + 2, C + 6)
    e(f'''v_lshlrev_b32 v{XR}, 16, v{XR}
          v_permlane32_swap_b32 v{C}, v{C+1}
          v_permlane32_swap_b32 v{C+2}, v{C+3}
          v_add_f32 v{C}, v{C}, v{C+1}
          v_add_f32 v{C+2}, v{C+2}, v{C+3}
          v_permlane16_swap_b32 v{C}, v{C+2}
          v_add_f32 v{C}, v{C}, v{C+2}''')
    rowred('v_add_f32', f'v{C}')
    e(f'''v_add_f32 v{C}, v{C}, v{XR}
          v_cvt_pk_bf16_f32 v{C}, v{C}, v{C}
          buffer_store_short v{C}, {vOUT}, {SOUT}, 0 offen''')
    e(f'''s_cmp_eq_u32 s2, 0
          s_cselect_b32 {sT0}, {WS_EP}, {OOB}
          v_mov_b32 {t2}, {sEp}
          v_mov_b32 {t3}, {sT0}
          s_mov_b64 exec, 1
          buffer_store_dword {t2}, {t3}, {SWS}, 0 offen sc1''')
    if fixdur:
        e('s_cmp_lg_u32 s2, 0\ns_cbranch_scc1 L_end')
        if amp is not None:
            e(f's_waitcnt lgkmcnt(0)\ns_sub_u32 s1, s{stamp_regs[amp]}, s100\ns_mul_i32 s1, s1, 10\ns_add_u32 s1, s1, {fixdur}')
        else:
            e(f's_mov_b32 s1, {fixdur}')
        e('L_hold:\ns_memrealtime s[24:25]\ns_waitcnt lgkmcnt(0)\ns_sub_u32 s24, s24, s100\ns_cmp_lt_u32 s24, s1\ns_cbranch_scc1 L_hold\ns_endpgm')
    if stamps:
        stamp('tail')
        e('s_waitcnt vmcnt(0)')
        stamp('main,tail,head')
        e(f's_waitcnt lgkmcnt(0)\ns_lshl_b32 s0, {sId}, 7\ns_add_u32 s0, s0, 0x20000000\nv_mov_b32 v0, 0')
        for k, r in enumerate([100] + stamp_regs[:nst[0]]):
            e(f'v_mov_b32 v2, s{r}\nv_mov_b32 v3, s{r+1}\nbuffer_store_dwordx2 v[2:3], v0, s[20:23], s0 offen offset:{8*k}')
        if dbgcnt:
            e(f'v_mov_b32 v2, {sCnt}\nv_mov_b32 v3, {sSpin}\nbuffer_store_dwordx2 v[2:3], v0, s[20:23], s0 offen offset:120')
    e('L_end:\ns_endpgm')
    for f in slow:
        f()
    e('L_codeend:')
    e.raw('.section .rodata,"a"\n.p2align 6')
    e.raw(kernel_desc(K, 512, 102, accum=256))
    return e.text(), LDS, nst[0] + 1, e.nops

if __name__ == '__main__':
    cfgs = {}
    def add(name, **kw):
        cfgs[name] = kw
    exec(open(sys.argv[1]).read())
    BF = os.environ.get('BFLAGS', '-n 15 -c')
    os.makedirs('co', exist_ok=True)
    names = []
    for name, kw in cfgs.items():
        t, lds, ns, nops = gen(**kw)
        build(t, f'co/{name}')
        st = f'-t {ns}' if kw.get('stamps') else ''
        names.append(f'co/{name}.co')
        print(name, 'nops', nops, 'len', len(t))
    open('run.sh', 'w').write(f'#!/bin/bash\ntimeout 300 ./bench {BF} {st} {NAME}_kernel:256:256:{lds} ' + ' '.join(names) + '\n')
```

```python
import sys, os
from asmlib import NAME, kernel_desc, build
from emit import Emit

FU_STRIDE = 2176
WS_Y, WS_Q, WS_ML, WS_EP, WS_FU = 0, 0x80000, 0xC0000, 0xC4000, 0xC5000
WS_END = WS_FU + 256 * FU_STRIDE
OOB = 0x40000000
LOG2E = 0x3fb8aa3b
SCALE = 0x3db504f3

def bitrev4(n):
    return ((n & 1) << 3) | ((n & 2) << 1) | ((n & 4) >> 1) | ((n & 8) >> 3)

REF = 'cdna_kernels/' + NAME + '.s.ref'
HEADER = open(REF).read().split('; Override launch')[0] if os.path.exists(REF) else ''

NOTES = '''; Design: one launch, 256 workgroups (b, head, quarter of the 4096-key window) x 4 waves, one workgroup per CU.
;  - q projection and FFN-up are split over rows across workgroups and handed over through d_ws; FFN-down and
;    the output projection are applied per workgroup, and 4 output columns per workgroup are summed at the end.
;  - Every hand-off word carries this launch's tag (epoch word found in d_ws, + 1) in its low mantissa bits; a
;    reader that finds another tag (or a writer on another XCD) re-publishes write-through and polls.'''

def gen(D=9, k0=2, k1=2, ksp=(1, 1, 1, 1, 1), kpost=(1, 1, 1), n_q=24, gap=None, catch=3, wo_start=8, wo_end=50, n_ml=30,
        ex0=0, vring=16, rotmul=5, sleep=2, codepf=True, tailpf=None, pol='nt', wpol='nt', xpol='', gpol='', spin=400000,
        stamps=False, dbgcnt=False, off=(), permtest=False, fixdur=0, amp=None, stset='main', stwave=0, touch=(), Dend=None, nend=44, Dk=None, kw=False, ypol='sc1', asleep=(8, 6), n_fg=None, few=0, clk=False, cw=16, ypf=None, ypfpol='sc1', ppol='sc1', pipe=None):
    gap = gap or D + 1
    e = Emit()
    K = NAME + '_kernel'
    LDS_O = 8192
    LDS = LDS_O + 2048
    sW = 's3'
    SK, SV, SWQ, SWO, SFU, SW2, SX, SWS, SOUT, SCODE = [f's[{b}:{b+3}]' for b in range(28, 68, 4)]
    sXc, sJ, sHH, sH, sB, sS, sS8, sBH, sC0, sNch, sT0, sT1, sT2, sKoff, sVoff, sMask, sPB, sU, sXcc, sId = [f's{n}' for n in range(68, 88)]
    sSelLo, sSelHi, sSpin, sM8, sM12, sM3 = [f's{n}' for n in range(88, 94)]
    sMC, sMA = 's[94:95]', 's[96:97]'
    sEp, sCon = 's0', 's1'
    sCnt = 's98'
    stamp_regs = [4, 6, 8, 10, 12, 14, 16, 18]
    nst = [0]
    def stamp(which='main'):
        if stamps and stset in which.split(','):
            r = stamp_regs[nst[0]]
            e(f's_memrealtime s[{r}:{r+1}]')
            nst[0] += 1
    vKO, M, Q, S, vY, vL = 'v1', [2, 3, 4, 5], [6, 7, 8, 9], [10, 11, 12, 13], 'v14', 'v15'
    A = [16, 20]
    ACC = 24
    g, i, t2, t3, t4, t5 = [f'v{k}' for k in range(28, 34)]
    vM, vLs = 'v34', 'v35'
    vXG, vWQ, vFU = 'v34', 'v35', 'v36'
    vMG, vML, vTB = 'v36', 'v37', 'v38'
    vQG, vWO, vW2, vFG, vOUT, vCON, vOW, vOR, vF = [f'v{k}' for k in range(39, 48)]
    vTA = 'v0'
    KBASE, KRING = 48, 52
    kreg = lambda n: KBASE + 4 * (n % KRING)
    vreg = lambda n: 4 * (n % vring)
    rng = lambda p, b, n: f'{p}[{b}:{b+n-1}]'
    AWQ, AFU = 192, 208
    AQD, AFD, AQA, AFA = 224, 228, 232, 233
    assert 4 * vring <= AWQ

    e.raw(HEADER.rstrip('\n'))
    e.raw(NOTES)
    e.raw(f'; @launch grid=(256,1,1) block=(256,1,1) lds={LDS}')
    e.raw('.amdgcn_target "amdgcn-amd-amdhsa--gfx950"\n.text')
    e.raw(f'.globl {K}\n.p2align 8\n.type {K},@function\n{K}:')
    e('s_load_dwordx16 s[4:19], s[0:1], 0\ns_load_dwordx8 s[20:27], s[0:1], 64')
    if stamps or fixdur:
        e('s_memrealtime s[100:101]')
    if clk:
        e('s_memtime s[98:99]')
    e('s_cmp_ge_u32 s2, 256\ns_cbranch_scc1 L_end')
    e(f's_mov_b32 {sId}, s2')
    if permtest:
        e(f's_lshr_b32 {sT0}, s2, 5\ns_and_b32 s2, s2, 31\ns_lshl_b32 s2, s2, 3\ns_or_b32 s2, s2, {sT0}')
    e(f'''s_and_b32 {sXc}, s2, 7
          s_lshr_b32 {sJ}, s2, 3
          s_lshr_b32 {sHH}, s2, 6
          s_lshl2_add_u32 {sH}, {sXc}, {sHH}
          s_bfe_u32 {sB}, s2, 0x10005
          s_and_b32 {sS}, {sJ}, 3
          s_lshl_b32 {sBH}, {sB}, 5
          s_add_u32 {sBH}, {sBH}, {sH}
          s_lshl4_add_u32 {sT0}, {sBH}, {sS}
          s_add_u32 {sT0}, {sT0}, 12
          s_lshl_b32 {sT0}, {sT0}, 18
          s_mul_i32 {sKoff}, s2, {rotmul << 12}
          s_mov_b32 {sMask}, 0x3ffff
          s_and_b32 {sKoff}, {sKoff}, {sMask}
          v_lshlrev_b32 {vKO}, 4, v0
          s_mov_b32 s30, 0x40000
          s_mov_b32 s31, 0x20000
          v_lshrrev_b32 v2, 6, v0
          v_and_b32 {vL}, 63, v0
          s_mov_b32 {sVoff}, {sKoff}
          v_readfirstlane_b32 {sW}, v2
          s_waitcnt lgkmcnt(0)
          s_add_u32 s28, s6, {sT0}
          s_addc_u32 s29, s7, 0''')
    if stamps and stset == 'head':
        e('s_memrealtime s[14:15]')
    kn = [0]
    def kissue():
        n = kn[0]
        e.vmem(f'buffer_load_dwordx4 {rng("v", kreg(n), 4)}, {vKO}, {SK}, {sKoff} offen {pol}', f'K{n}')
        e(f's_addk_i32 {sKoff}, 0x1000\ns_and_b32 {sKoff}, {sKoff}, {sMask}')
        kn[0] += 1
    def kspr():
        if kw:
            k = len(e.vm) - (Dk or D)
            if k >= e.done:
                e.wait(e.vm[k])
        kissue()
    for _ in range(k0):
        kissue()
    XL, XU, XG, DQ, DF = 208, 216, 232, 236, 240
    e(f'''s_load_dword {sEp}, s[26:27], {WS_EP}
          s_add_u32 s32, s8, {sT0}
          s_addc_u32 s33, s9, 0
          s_mov_b32 s52, s4
          s_mov_b32 s53, s5
          s_mov_b32 s54, 2048
          s_mov_b32 s55, 0x20000
          v_lshlrev_b32 {t2}, 5, {vL}''')
    e.vmem(f'buffer_load_dwordx4 {rng("v", XL, 4)}, {t2}, {SX}, 0 offen {xpol}', 'xl0')
    e.vmem(f'buffer_load_dwordx4 {rng("v", XL+4, 4)}, {t2}, {SX}, 0 offen offset:16 {xpol}', 'xl1')
    e(f'''s_and_b32 {sS8}, {sJ}, 7
          v_lshrrev_b32 {g}, 4, {vL}
          v_and_b32 {i}, 15, {vL}
          s_lshl_b32 {sT1}, {sS8}, 19
          s_lshl_b32 {sT2}, {sH}, 8
          s_add_u32 {sT1}, {sT1}, {sT2}
          s_add_u32 s36, s10, {sT1}
          s_addc_u32 s37, s11, 0
          s_mov_b32 s38, {63*8192+256}
          s_mov_b32 s39, 0x20000
          v_lshrrev_b32 {t3}, 4, v0
          v_and_b32 {t4}, 12, {t3}
          v_lshl_add_u32 {t3}, {t4}, 2, {g}
          v_lshlrev_b32 {t3}, 13, {t3}
          v_lshl_add_u32 {vWQ}, {i}, 4, {t3}''')
    if 'wq' in off: e(f'v_mov_b32 {vWQ}, {OOB}')
    for t in range(4):
        if t:
            e(f's_mov_b32 {sT2}, {32768*t}')
        e.vmem(f'buffer_load_dwordx4 {rng("a", AWQ+4*t, 4)}, {vWQ}, {SWQ}, {sT2 if t else 0} offen {wpol}', f'wq{t}')
    e(f'''s_mul_i32 {sC0}, {sXc}, 43
          s_add_u32 {sC0}, {sC0}, 1
          s_lshr_b32 {sC0}, {sC0}, 1
          s_and_b32 {sT1}, {sXc}, 1
          s_sub_u32 {sNch}, 22, {sT1}
          s_and_b32 {sT2}, {sJ}, {sT1}
          s_sub_u32 {sPB}, 11, {sT2}
          s_and_b32 {sT2}, {sJ}, 1
          s_mul_i32 {sT2}, {sT2}, 11
          s_add_u32 {sT2}, {sT2}, {sC0}
          s_and_b32 {sT1}, {sW}, 1
          s_and_b32 {sT0}, {sJ}, 30
          s_add_u32 {sT1}, {sT1}, {sT0}
          s_lshl_b32 {sT1}, {sT1}, 4
          v_add_u32 {t3}, {sT1}, {g}
          v_mul_u32_u24 {t3}, 2752, {t3}
          v_cmp_gt_u32 vcc, {sPB}, {i}
          v_add_u32 {t4}, {sT2}, {i}
          v_lshl_add_u32 {t3}, {t4}, 4, {t3}
          v_mov_b32 {t5}, {OOB}
          v_cndmask_b32 {vFU}, {t5}, {t3}, vcc
          s_cmp_lt_u32 {sW}, 2
          s_cselect_b32 s44, s16, s18
          s_cselect_b32 s45, s17, s19
          s_mov_b32 s46, {512*2752}
          s_mov_b32 s47, 0x20000''')
    if 'fu' in off: e(f'v_mov_b32 {vFU}, {OOB}')
    for t in range(4):
        if t:
            e(f's_mov_b32 {sT2}, {11008*t}')
        e.vmem(f'buffer_load_dwordx4 {rng("a", AFU+4*t, 4)}, {vFU}, {SFU}, {sT2 if t else 0} offen {wpol}', f'fu{t}')
    e(f'''s_lshl2_add_u32 {sT0}, {sS8}, {sW}
          s_lshl_b32 {sT0}, {sT0}, 4
          v_and_b32 {t5}, 4, {vL}
          v_cmp_eq_u32 vcc, 0, {t5}
          v_mov_b32 {t4}, {sT0}
          v_mov_b32 {t5}, {sT1}
          v_and_b32 {t3}, 3, {vL}
          v_cndmask_b32 {t4}, {t5}, {t4}, vcc
          v_lshl_add_u32 {t3}, {t3}, 2, {g}
          v_bfe_u32 {t5}, {vL}, 3, 1
          v_add_u32 {t3}, {t3}, {t4}
          v_lshl_add_u32 {t3}, {t5}, 9, {t3}
          v_lshlrev_b32 {vXG}, 1, {t3}''')
    e.vmem(f'buffer_load_ushort v{XG}, {vXG}, {SX}, 0 offen {xpol}', 'xg')
    for _ in range(k1):
        kissue()
    e(f'''s_mov_b32 s34, 0x40000
          s_mov_b32 s35, 0x20000
          s_lshl_b32 {sT0}, {sH}, 17
          s_add_u32 s40, s12, {sT0}
          s_addc_u32 s41, s13, 0
          s_mov_b32 s42, 0x20000
          s_mov_b32 s43, 0x20000
          s_mov_b32 s48, s20
          s_mov_b32 s49, s21
          s_mov_b32 s50, {1376*1024}
          s_mov_b32 s51, 0x20000
          s_mov_b32 s56, s26
          s_mov_b32 s57, s27
          s_mov_b32 s58, {WS_END}
          s_mov_b32 s59, 0x20000
          s_mov_b32 s60, s22
          s_mov_b32 s61, s23
          s_mov_b32 s62, 2048
          s_mov_b32 s63, 0x20000''')
    if stamps:
        e('s_mov_b32 s20, s26\ns_mov_b32 s21, s27\ns_mov_b32 s22, 0x40000000\ns_mov_b32 s23, 0x20000')
    if codepf or tailpf is not None:
        e('s_getpc_b64 s[64:65]\nL_pc:\ns_mov_b32 s66, L_codeend - L_pc\ns_mov_b32 s67, 0x20000')
    if touch:
        e(f'v_mov_b32 {t2}, 0')
        for k, nm in enumerate(touch):
            srd = dict(V=SV, wo=SWO, w2=SW2, ws=SWS, out=SOUT)[nm]
            e.vmem(f'buffer_load_dword {vF}, {t2}, {srd}, 0 offen nt', 'touch' + nm)
    if codepf:
        e(f'''s_lshl2_add_u32 {sT0}, {sJ}, {sW}
              s_lshl_b32 {sT0}, {sT0}, 8
              v_lshl_add_u32 {t2}, {vL}, 2, {sT0}''')
        e.vmem(f'buffer_load_dword {vF}, {t2}, {SCODE}, 0 offen', 'cpf')
    e(f'''v_and_b32 {t2}, 1, {vL}
          v_lshlrev_b32 {t2}, 4, {t2}
          v_mov_b32 {t3}, 0xffff
          v_lshlrev_b32 {t2}, {t2}, {t3}
          v_bfe_u32 {t3}, {vL}, 1, 2
          v_cmp_eq_u32 s[4:5], 0, {t3}
          v_cmp_eq_u32 s[6:7], 1, {t3}
          v_cmp_eq_u32 s[8:9], 2, {t3}
          v_cmp_eq_u32 s[10:11], 3, {t3}''')
    for r in range(4):
        e(f'v_cndmask_b32 v{M[r]}, 0, {t2}, s[{4+2*r}:{5+2*r}]')
    e(f'''s_mov_b32 s94, 0xcccccccc
          s_mov_b32 s95, 0xcccccccc
          s_mov_b32 s96, 0xaaaaaaaa
          s_mov_b32 s97, 0xaaaaaaaa
          s_mov_b32 {sSelLo}, 0x05040100
          s_mov_b32 {sSelHi}, 0x07060302
          s_movk_i32 {sM8}, 0xff
          s_movk_i32 {sM12}, 0xfff
          s_movk_i32 {sM3}, 7
          s_getreg_b32 {sXcc}, hwreg(HW_REG_XCC_ID, 0, 4)''')
    if dbgcnt:
        e(f's_mov_b32 {sCnt}, 0')

    def rowred(op, r):
        for c in ('row_ror:8', 'row_ror:4', 'row_ror:2', 'row_ror:1'):
            e(f'{op}_dpp {r}, {r}, {r} {c} row_mask:0xf bank_mask:0xf')
    def swapred(op, r, tmp, n):
        e(f'v_mov_b32 {tmp}, {r}\nv_permlane{n}_swap_b32 {r}, {tmp}\n{op} {r}, {r}, {tmp}')
    def bf16r(dst, src):
        e(f'v_cvt_pk_bf16_f32 {dst}, {src}, {src}\nv_and_b32 {dst}, 0xffff0000, {dst}')
    def pk(op, d, a, b):
        e(f'v_pk_{op}_f32 v[{d}:{d+1}], v[{a}:{a+1}], v[{b}:{b+1}]')

    if stamps and stset == 'head':
        e.wait('K0')
        e('s_waitcnt lgkmcnt(0)\ns_mov_b64 s[4:5], s[14:15]')
        nst[0] = 1
        stamp('head')
    e.wait('xl1')
    stamp('main,head')
    for k in range(8):
        e(f'v_lshlrev_b32 v{XU+2*k}, 16, v{XL+k}\nv_and_b32 v{XU+2*k+1}, 0xffff0000, v{XL+k}')
    for k in range(4):
        pk('add', XL + 2 * k, XU + 4 * k, XU + 4 * k + 2)
    pk('add', XL, XL, XL + 2); pk('add', XL + 4, XL + 4, XL + 6); pk('add', XL, XL, XL + 4)
    e(f'v_add_f32 {t2}, v{XL}, v{XL+1}')
    for _ in range(ksp[0]): kspr()
    rowred('v_add_f32', t2)
    swapred('v_add_f32', t2, t3, 16)
    e(f'v_mul_f32 {t2}, 0x3b000000, {t2}')
    for k in range(0, 16, 2):
        e(f'v_pk_add_f32 v[{XU+k}:{XU+k+1}], v[{XU+k}:{XU+k+1}], v[30:31] op_sel_hi:[1,0] neg_lo:[0,1] neg_hi:[0,1]')
    for _ in range(ksp[1]): kspr()
    pk('mul', XL, XU, XU); pk('mul', XL + 2, XU + 2, XU + 2)
    for k in range(4, 16, 4):
        e(f'v_pk_fma_f32 v[{XL}:{XL+1}], v[{XU+k}:{XU+k+1}], v[{XU+k}:{XU+k+1}], v[{XL}:{XL+1}]')
        e(f'v_pk_fma_f32 v[{XL+2}:{XL+3}], v[{XU+k+2}:{XU+k+3}], v[{XU+k+2}:{XU+k+3}], v[{XL+2}:{XL+3}]')
    pk('add', XL, XL, XL + 2)
    e(f'v_add_f32 {t4}, v{XL}, v{XL+1}')
    for _ in range(ksp[2]): kspr()
    rowred('v_add_f32', t4)
    swapred('v_add_f32', t4, t3, 16)
    e(f'v_mul_f32 {t4}, 0x3b000000, {t4}')
    bf16r(t2, t2)
    bf16r(t4, t4)
    e(f'v_add_f32 {t4}, 0x3727c5ac, {t4}')
    bf16r(t4, t4)
    e(f'v_sqrt_f32 {t4}, {t4}')
    bf16r(t4, t4)
    e(f'''v_mov_b32 {t3}, {t2}
          v_mov_b32 {t5}, {t4}
          v_and_b32 v{XL}, 8, {vL}
          v_permlane32_swap_b32 {t2}, {t3}
          v_permlane32_swap_b32 {t4}, {t5}
          v_cmp_eq_u32 vcc, 0, v{XL}
          v_cndmask_b32 {t2}, {t3}, {t2}, vcc
          v_cndmask_b32 {t4}, {t5}, {t4}, vcc''')
    e.wait('xg')
    XN = f'v{XG}'
    e(f'v_lshlrev_b32 {XN}, 16, {XN}\nv_sub_f32 {XN}, {XN}, {t2}\nv_rcp_f32 {t5}, {t4}')
    bf16r(XN, XN)
    e(f'''v_mul_f32 {t2}, {XN}, {t5}
          v_fma_f32 {t3}, -{t2}, {t4}, {XN}
          v_fmac_f32 {t2}, {t3}, {t5}
          v_cvt_pk_bf16_f32 {XN}, {t2}, {t2}''')
    for _ in range(ksp[3]): kspr()
    for t in range(8):
        a = A[t & 1]
        for r in range(4):
            e(f'v_and_b32_dpp v{a+r}, {XN}, v{M[r]} row_newbcast:{t} row_mask:0xf bank_mask:0x3')
        for r in range(4):
            e(f'v_and_b32_dpp v{a+r}, {XN}, v{M[r]} row_newbcast:{t+8} row_mask:0xf bank_mask:0xc')
        if t < 4:
            e(f'v_mfma_f32_16x16x32_bf16 {rng("v", DQ, 4)}, {rng("v", a, 4)}, {rng("a", AWQ+4*t, 4)}, {rng("v", DQ, 4) if t else 0}')
        else:
            e(f'v_mfma_f32_16x16x32_bf16 {rng("v", DF, 4)}, {rng("v", a, 4)}, {rng("a", AFU+4*(t-4), 4)}, {rng("v", DF, 4) if t > 4 else 0}')
        if t == 3:
            for _ in range(ksp[4]): kspr()
    e(f'ds_write_b128 {vKO}, {rng("v", DQ, 4)}')
    vRF, vRQ, vSF, vSQ = 'v208', 'v209', 'v210', 'v211'
    e(f'''s_lshr_b32 {sT0}, {sW}, 1
          s_lshl_b32 {sT0}, {sT0}, 9
          s_and_b32 {sT1}, {sW}, 1
          s_lshl3_add_u32 {sT0}, {sT1}, {sT0}
          v_and_b32 {t3}, 31, {vL}
          v_lshl_add_u32 {vRF}, {t3}, 4, {sT0}
          s_lshl_b32 {sT0}, {sW}, 8
          v_lshl_add_u32 {vRQ}, {i}, 4, {sT0}
          ds_write_b128 {vKO}, {rng("v", DF, 4)} offset:4096
          s_lshl_b32 {sT1}, {sXc}, 5
          s_add_u32 {sT1}, {sT1}, {sJ}
          s_mul_i32 {sT1}, {sT1}, {FU_STRIDE}
          s_lshl1_add_u32 {sT1}, {sT0}, {sT1}
          s_add_u32 {sT1}, {sT1}, {WS_FU}
          v_and_b32 {t3}, 47, {vL}
          v_cmp_gt_u32 vcc, {sPB}, {t3}
          v_lshl_add_u32 {t3}, {i}, 1, {g}
          v_lshl_add_u32 {t3}, {t3}, 4, {sT1}
          v_mov_b32 {t5}, {OOB}
          v_cndmask_b32 {vSF}, {t5}, {t3}, vcc
          s_lshl3_add_u32 {sT1}, {sH}, {sS8}
          s_lshl_b32 {sT1}, {sT1}, 10
          s_add_u32 {sT1}, {sT1}, {WS_Q}
          v_add_u32 {t3}, {sT1}, {vRQ}
          v_cmp_gt_u32 vcc, 16, {vL}
          v_cndmask_b32 {vSQ}, {t5}, {t3}, vcc''')
    if 'pub' in off: e(f'v_mov_b32 {vSF}, {OOB}\nv_mov_b32 {vSQ}, {OOB}')
    stamp('head')
    e('s_waitcnt lgkmcnt(0)\ns_barrier')
    stamp('main,head')
    R0, R1 = 216, 232
    for k in range(4):
        e(f'ds_read_b128 {rng("v", R0+4*k, 4)}, {vRQ} offset:{1024*k}')
    for k in range(4):
        e(f'ds_read_b64 v[{R1+2*k}:{R1+2*k+1}], {vRF} offset:{4096+1024*k}')
    e(f'''s_add_u32 {sEp}, {sEp}, 1
          s_and_b32 {sT1}, {sEp}, {sM12}
          v_mov_b32 {vTA}, {sT1}
          v_xor_b32 {vTB}, {sXcc}, {vTA}
          s_xor_b32 {sXcc}, {sXcc}, {sEp}
          v_accvgpr_write_b32 a{AQA}, {vSQ}
          v_accvgpr_write_b32 a{AFA}, {vSF}
          s_waitcnt lgkmcnt(4)''')
    def tag(r, vts, m):
        for k, vt in enumerate(vts):
            e(f'v_bfi_b32 v{r+k}, {m}, {vt}, v{r+k}')
    pk('add', R0, R0, R0 + 4); pk('add', R0 + 2, R0 + 2, R0 + 6); pk('add', R0 + 8, R0 + 8, R0 + 12); pk('add', R0 + 10, R0 + 10, R0 + 14)
    pk('add', R0, R0, R0 + 8); pk('add', R0 + 2, R0 + 2, R0 + 10)
    tag(R0, [vTA, vTA, vTB, vTB], sM3)
    e.vmem(f'buffer_store_dwordx4 {rng("v", R0, 4)}, {vSQ}, {SWS}, 0 offen', 'pubq')
    e(f'''s_waitcnt lgkmcnt(0)
          v_add_f32 v{R1+8}, v{R1}, v{R1+2}
          v_add_f32 v{R1+9}, v{R1+4}, v{R1+6}
          v_add_f32 v{R1+10}, v{R1+1}, v{R1+3}
          v_add_f32 v{R1+11}, v{R1+5}, v{R1+7}''')
    tag(R1 + 8, [vTA, vTA, vTA, vTB], sM8)
    e.vmem(f'buffer_store_dwordx4 {rng("v", R1+8, 4)}, {vSF}, {SWS}, 0 offen', 'pubf')
    for k in range(4):
        e(f'v_accvgpr_write_b32 a{AQD+k}, v{R0+k}\nv_accvgpr_write_b32 a{AFD+k}, v{R1+8+k}')
    for _ in range(kpost[0]): kspr()

    e(f'''s_lshl2_add_u32 {sPB}, {sH}, {sS}
          s_lshl2_add_u32 {sT0}, {sB}, {sW}
          s_lshl_b32 {sT0}, {sT0}, 9
          s_add_u32 {sT0}, {sT0}, {sPB}
          s_lshl_b32 {sT0}, {sT0}, 7
          v_lshrrev_b32 {t2}, 2, {i}
          v_lshlrev_b32 {t2}, 14, {t2}
          v_and_b32 {t3}, 3, {vL}
          v_lshl_add_u32 {t2}, {t3}, 5, {t2}
          v_lshl_add_u32 {t2}, {g}, 4, {t2}
          v_add_u32 {vY}, {sT0}, {t2}
          s_lshl2_add_u32 {sT1}, {sBH}, {sS}
          s_lshl2_add_u32 {sT1}, {sT1}, {sW}
          s_lshl4_add_u32 {sT1}, {sT1}, {WS_ML}
          v_mov_b32 {t4}, {sT1}
          v_cmp_eq_u32 vcc, 0, {vL}
          v_mul_u32_u24 {t3}, 320, {t3}
          v_cndmask_b32 {vML}, {t5}, {t4}, vcc
          v_lshl_add_u32 {vOR}, {g}, 4, {t3}
          s_mul_i32 {sT0}, {sW}, 320
          s_add_u32 {sT0}, {sT0}, {LDS_O}
          v_and_b32 {t2}, 1, {g}
          v_lshlrev_b32 {t3}, 3, {t2}
          v_lshl_add_u32 {t3}, {i}, 4, {t3}
          v_add_u32 {vOW}, {sT0}, {t3}''')
    if cw == 4:
        e(f'''s_lshl2_add_u32 {sU}, {sHH}, {sS}
              s_lshr_b32 {sT1}, {sU}, 3
              s_lshl1_add_u32 {sT1}, {sXc}, {sT1}
              s_lshl4_add_u32 {sT1}, {sB}, {sT1}
              s_and_b32 {sT0}, {sU}, 7
              s_lshl_b32 {sT2}, {sT1}, 14
              s_lshl4_add_u32 {sT2}, {sT0}, {sT2}
              v_lshl_add_u32 {vCON}, {vL}, 7, {sT2}
              s_lshl3_add_u32 {sT1}, {sT1}, {sT0}
              s_lshl_b32 {sT1}, {sT1}, 3
              v_lshrrev_b32 {t3}, 1, {g}
              v_lshl_add_u32 {t2}, {t2}, 1, {t3}
              v_lshl_add_u32 {t2}, {t2}, 1, {sT1}
              v_cmp_eq_u32 vcc, 0, {i}
              v_cndmask_b32 {vOUT}, {t5}, {t2}, vcc''')
    else:
        LP = cw // 4
        lg = LP.bit_length() - 1
        e(f'''s_lshl2_add_u32 {sU}, {sHH}, {sS}
              s_lshr_b32 {sT1}, {sU}, 3
              s_lshl1_add_u32 {sT1}, {sXc}, {sT1}
              s_lshl4_add_u32 {sT1}, {sB}, {sT1}
              s_and_b32 {sT0}, {sU}, 7
              s_and_b32 {sCon}, {sU}, {LP-1}
              s_lshl_b32 {sT2}, {sT1}, 14
              s_lshl4_add_u32 {sT2}, {sT0}, {sT2}
              s_lshl_b32 {sS8}, {sW}, 12
              s_add_u32 {sT2}, {sT2}, {sS8}
              v_lshrrev_b32 {t3}, {lg}, {vL}
              v_lshl_add_u32 {t3}, {t3}, 7, {sT2}
              v_and_b32 {t4}, {LP-1}, {vL}
              v_lshl_add_u32 {vCON}, {t4}, 4, {t3}
              s_lshl3_add_u32 {sT1}, {sT1}, {sT0}
              s_lshl_b32 {sT1}, {sT1}, 3
              v_lshrrev_b32 {t3}, 1, {g}
              v_lshl_add_u32 {t2}, {t2}, 1, {t3}
              v_lshl_add_u32 {t2}, {i}, 2, {t2}
              v_lshl_add_u32 {t2}, {t2}, 1, {sT1}
              v_cmp_gt_u32 vcc, {LP}, {i}
              v_cndmask_b32 {vOUT}, {t5}, {t2}, vcc''')
    for _ in range(kpost[1]): kspr()
    e(f'''s_lshl_b32 {sT0}, {sH}, 13
          s_lshl_b32 {sT1}, {sB}, 9
          s_add_u32 {sT0}, {sT0}, {sT1}
          s_add_u32 {sT0}, {sT0}, {WS_Q}
          v_lshlrev_b32 {t2}, 10, {g}
          v_lshl_add_u32 {t2}, {i}, 4, {t2}
          v_add_u32 {vQG}, {sT0}, {t2}
          s_lshl_b32 {sT0}, {sW}, 8
          v_lshl_add_u32 {t2}, {i}, 4, {sT0}
          v_lshl_add_u32 {vWO}, {g}, 13, {t2}
          s_mul_i32 {sU}, {sU}, 12
          s_lshl_b32 {sNch}, {sNch}, 3
          s_lshl3_add_u32 {sT0}, {sC0}, {sU}
          s_lshl_b32 {sT0}, {sT0}, 10
          s_cmp_lt_u32 {sU}, {sNch}
          s_cselect_b32 {sT0}, {sT0}, {OOB}
          s_cselect_b32 {sU}, {sU}, 0
          v_lshl_add_u32 {t2}, {g}, 12, {t2}
          v_add_u32 {t2}, {sT0}, {t2}
          v_cmp_gt_u32 vcc, 3, {g}
          v_cndmask_b32 {vW2}, {t5}, {t2}, vcc''')
    for _ in range(kpost[2]): kspr()
    e(f'''v_and_b32 {t2}, 7, {vL}
          v_cmp_gt_u32 s[24:25], 6, {t2}
          v_lshl_add_u32 {t2}, {t2}, 1, {sU}
          s_movk_i32 {sT1}, 88
          s_cmp_ge_u32 {sU}, {sT1}
          s_cselect_b32 {sT0}, 0, {sT1}
          v_mov_b32 {t3}, {sT0}
          v_cndmask_b32 {t2}, {t3}, {t2}, s[24:25]
          v_cmp_le_u32 s[24:25], {sT1}, {t2}
          v_cmp_gt_u32 vcc, {sNch}, {t2}
          v_lshrrev_b32 {t4}, 3, {vL}
          v_cndmask_b32 {t3}, 0, 1, s[24:25]
          v_lshl_add_u32 {t4}, {t4}, 1, {t3}
          v_mul_u32_u24 {t4}, {FU_STRIDE}, {t4}
          v_mul_u32_u24 {t3}, 88, {t3}
          v_sub_u32 {t2}, {t2}, {t3}
          v_bfe_u32 {t3}, {t2}, 1, 1
          v_lshl_add_u32 {t4}, {t3}, 9, {t4}
          v_lshrrev_b32 {t2}, 2, {t2}
          v_lshl_add_u32 {t2}, {t2}, 4, {t4}
          s_mul_i32 {sT0}, {sXc}, {32*FU_STRIDE}
          s_lshl_b32 {sT1}, {sB}, 10
          s_add_u32 {sT0}, {sT0}, {sT1}
          s_add_u32 {sT0}, {sT0}, {WS_FU}
          v_add_u32 {t2}, {sT0}, {t2}
          v_cndmask_b32 {vFG}, {t5}, {t2}, vcc''')
    for nm, r in (('qg', vQG), ('w2', vW2), ('fg', vFG), ('mlpub', vML), ('wo', vWO), ('y', vY), ('con', vCON)):
        if nm in off: e(f'v_mov_b32 {r}, {OOB}')

    slow = []
    def orred(regsl, m, dst, full=()):
        rs = list(regsl)
        if len(rs) == 1:
            e(f'v_and_b32 {t2}, {m}, v{rs[0]}')
        else:
            if len(rs) == 2:
                e(f'v_or_b32 {t2}, v{rs[0]}, v{rs[1]}')
            else:
                e(f'v_or3_b32 {t2}, v{rs[0]}, v{rs[1]}, v{rs[2]}')
                rs = rs[3:]
                while rs:
                    if len(rs) == 1:
                        e(f'v_or_b32 {t2}, {t2}, v{rs[0]}'); rs = []
                    else:
                        e(f'v_or3_b32 {t2}, {t2}, v{rs[0]}, v{rs[1]}'); rs = rs[2:]
            e(f'v_and_b32 {t2}, {m}, {t2}')
        for r in full:
            e(f'v_or_b32 {t2}, {t2}, v{r}')
        e(f'v_cmp_ne_u32 {dst}, 0, {t2}')
    def untag(regsl, vts, m, dst='vcc'):
        for r, vt in zip(regsl, vts):
            e(f'v_xor_b32 v{r}, {vt}, v{r}')
        orred(regsl, m, dst)
    def checked(name, regsl, kinds, ta, tb, m, republish, reissue):
        if 'check' in off:
            return
        def test(sel):
            for r, k in zip(regsl, kinds):
                if k in sel:
                    e(f'v_xor_b32 v{r}, {dict(A=ta, B=tb, F=sEp, G=sXcc)[k]}, v{r}')
            orred([r for r, k in zip(regsl, kinds) if k in sel and k in 'AB'], m, 'vcc',
                  [r for r, k in zip(regsl, kinds) if k in sel and k in 'FG'])
        test('ABFG')
        e(f's_cbranch_vccnz L_slow_{name}\nL_ok_{name}:')
        def emit_slow():
            e(f'L_slow_{name}:')
            republish()
            e(f's_mov_b32 {sSpin}, {spin}')
            e(f'L_miss_{name}:')
            e(f's_mov_b32 {sT1}, 0\ns_sleep 1')
            e(f'L_retry_{name}:')
            if dbgcnt:
                e(f's_add_u32 {sCnt}, {sCnt}, {1 << (8 * ["flag", "q", "fu", "ml"].index(name))}')
            e(f's_sub_u32 {sSpin}, {sSpin}, 1\ns_cbranch_scc1 L_ok_{name}')
            reissue()
            e('s_waitcnt vmcnt(0)')
            test('AF')
            for r, k in zip(regsl, kinds):
                if k == 'B':
                    e(f'v_bfi_b32 v{r}, {m}, 0, v{r}')
            e(f's_cbranch_vccnz L_miss_{name}')
            e(f's_xor_b32 {sT1}, {sT1}, 1\ns_cbranch_scc1 L_retry_{name}\ns_branch L_ok_{name}')
        slow.append(emit_slow)

    state = dict(q=False, kproc=0, soft=False, vproc=0, wop=0, ffn=False, ml=False, budget=catch)
    KT = [26, 27, 24, 25, 20, 21, 22, 23]
    def kpair(n):
        a, b = f'v{KT[0]}', f'v{KT[1]}'
        for k in range(4):
            for r, m in ((a, n), (b, n + 1)):
                e(f'v_dot2_f32_bf16 {r}, v{kreg(m)+k}, v{Q[k]}, {r if k else 0}')
        d1 = f'v{KT[2 + ((n >> 1) & 1)]}'
        e(f'v_add_f32_dpp {d1}, {a}, {a} row_ror:8 row_mask:0xf bank_mask:0x3')
        e(f'v_add_f32_dpp {d1}, {b}, {b} row_ror:8 row_mask:0xf bank_mask:0xc')
        if not (n >> 1) & 1:
            return
        x, y = f'v{KT[2]}', f'v{KT[3]}'
        d2 = f'v{KT[4 + ((n >> 2) & 1)]}'
        e(f'v_add_f32_dpp {d2}, {x}, {x} row_shl:4 row_mask:0xf bank_mask:0x5')
        e(f'v_add_f32_dpp {d2}, {y}, {y} row_shr:4 row_mask:0xf bank_mask:0xa')
        if not (n >> 2) & 1:
            return
        x, y = f'v{KT[4]}', f'v{KT[5]}'
        d3 = f'v{KT[6 + ((n >> 3) & 1)]}'
        e(f'v_add_f32_dpp {x}, {x}, {x} quad_perm:[2,3,0,1] row_mask:0xf bank_mask:0xf')
        e(f'v_add_f32_dpp {y}, {y}, {y} quad_perm:[2,3,0,1] row_mask:0xf bank_mask:0xf')
        e(f'v_cndmask_b32 {d3}, {x}, {y}, {sMC}')
        if not (n >> 3) & 1:
            return
        x, y = f'v{KT[6]}', f'v{KT[7]}'
        s = f'v{S[n >> 4]}'
        e(f'v_add_f32_dpp {x}, {x}, {x} quad_perm:[1,0,3,2] row_mask:0xf bank_mask:0xf')
        e(f'v_add_f32_dpp {y}, {y}, {y} quad_perm:[1,0,3,2] row_mask:0xf bank_mask:0xf')
        e(f'v_cndmask_b32 {s}, {x}, {y}, {sMA}')
        bf16r(s, s)
        e(f'v_mul_f32 {s}, {SCALE}, {s}')
        bf16r(s, s)
    def mlstore(tagger, p):
        e(f'v_bfi_b32 {t2}, {sM12}, {vTA}, {vM}\nv_bfi_b32 {t3}, {sM12}, {vTA}, {vLs}\nv_mov_b32 {t4}, {sEp}\nv_mov_b32 {t5}, {sXcc}')
        tagger(f'buffer_store_dwordx4 v[30:33], {vML}, {SWS}, 0 offen {p}', 'mlpub')
    def softmax():
        stamp()
        e(f'v_max3_f32 {vM}, v{S[0]}, v{S[1]}, v{S[2]}\nv_max_f32 {vM}, {vM}, v{S[3]}')
        rowred('v_max_f32', vM)
        swapred('v_max_f32', vM, t2, 16)
        swapred('v_max_f32', vM, t2, 32)
        for k in range(4):
            e(f'v_sub_f32 v{S[k]}, v{S[k]}, {vM}')
        for k in range(4):
            e(f'v_mul_f32 v{S[k]}, {LOG2E}, v{S[k]}')
        for k in range(4):
            e(f'v_exp_f32 v{S[k]}, v{S[k]}')
        for k in range(4):
            e(f'v_cvt_pk_bf16_f32 v{Q[k]}, v{S[k]}, v{S[k]}')
        e(f'v_add_f32 {vLs}, v{S[0]}, v{S[1]}\nv_add_f32 {t2}, v{S[2]}, v{S[3]}\nv_add_f32 {vLs}, {vLs}, {t2}')
        abuild(0)
        rowred('v_add_f32', vLs)
        swapred('v_add_f32', vLs, t2, 16)
        swapred('v_add_f32', vLs, t2, 32)
        mlstore(e.vmem, '')
        state['soft'] = True
    def abuild(n):
        a = A[n & 1]
        for r in range(4):
            e(f'v_and_b32_dpp v{a+r}, v{Q[n >> 4]}, v{M[r]} row_newbcast:{bitrev4(n & 15)} row_mask:0xf bank_mask:0xf')
    def vstep(n):
        c = rng('v', ACC, 4) if n else '0'
        e(f'v_mfma_f32_16x16x32_bf16 {rng("v", ACC, 4)}, {rng("v", A[n & 1], 4)}, {rng("a", vreg(n), 4)}, {c}')
        if n < 63:
            abuild(n + 1)
    F, DY, STG, G2, W2S, FGR = 128, 96, 64, 48, 224, 240
    stg = lambda k: STG + 4 * (k % 8)
    def woperm(k):
        t, ee = k >> 3, k & 7
        for m in range(4):
            for hi in range(2):
                e(f'v_perm_b32 v{F + 32*t + 4*(2*m+hi) + ee//2}, v{stg(k+1)+m}, v{stg(k)+m}, {sSelHi if hi else sSelLo}')
    plain = lambda s, t: e(s)
    AFG = 176
    assert 4 * vring <= AFG
    def fgissue(tagger, p, acc=False):
        for m in range(2):
            if m:
                e(f's_mov_b32 {sT0}, {16*FU_STRIDE*m}')
            tagger(f'buffer_load_dwordx4 {rng("a", AFG+4*m, 4) if acc else rng("v", FGR+4*m, 4)}, {vFG}, {SWS}, {sT0 if m else 0} offen {p}', f'fg{m}')
    def republish(ad, aa):
        e(f'v_accvgpr_read_b32 {t2}, a{aa}\nbuffer_store_dwordx4 {rng("a", ad, 4)}, {t2}, {SWS}, 0 offen sc1')
    def ffn_down():
        if n_fg is not None:
            for k in range(8):
                e(f'v_accvgpr_read_b32 v{FGR+k}, a{AFG+k}')
        e(f'''v_cmp_gt_u32 vcc, s58, {vFG}
              v_and_b32 {t4}, {sM8}, {vTA}
              v_and_b32 {t5}, {sM8}, {vTB}
              v_cndmask_b32 {t4}, 0, {t4}, vcc
              v_cndmask_b32 {t5}, 0, {t5}, vcc''')
        checked('fu', list(range(FGR, FGR + 8)), 'AAAB' * 2, t4, t5, sM8, lambda: republish(AFD, AFA), lambda: fgissue(plain, 'sc1'))
        for k in (0, 2):
            pk('add', FGR + k, FGR + k, FGR + 4 + k)
        for p in range(2):
            for m in range(4):
                for hi in range(2):
                    e(f'v_perm_b32 v{G2 + 2*(2*m+hi) + p}, v{W2S+8*p+4+m}, v{W2S+8*p+m}, {sSelHi if hi else sSelLo}')
        for k in range(4):
            e(f'v_add_f32_dpp v{FGR+k}, v{FGR+k}, v{FGR+k} row_ror:8 row_mask:0xf bank_mask:0xf')
        ga, up = f'v{FGR}', f'v{FGR+1}'
        e(f'''v_permlane32_swap_b32 v{FGR}, v{FGR+2}
              v_permlane32_swap_b32 v{FGR+1}, v{FGR+3}
              v_add_f32 {ga}, v{FGR}, v{FGR+2}
              v_add_f32 {up}, v{FGR+1}, v{FGR+3}''')
        swapred('v_add_f32', ga, t2, 16)
        swapred('v_add_f32', up, t3, 16)
        bf16r(ga, ga)
        bf16r(up, up)
        e(f'''v_mul_f32 {t2}, {LOG2E ^ 0x80000000}, {ga}
              v_exp_f32 {t2}, {t2}
              v_and_b32 {t4}, 3, {vL}
              v_add_f32 {t2}, 1.0, {t2}
              v_rcp_f32 {t2}, {t2}
              v_cmp_eq_u32 vcc, 0, {t4}
              v_mul_f32 {ga}, {ga}, {t2}
              v_cndmask_b32 {t4}, 0, -1, vcc''')
        bf16r(ga, ga)
        ha = FGR + 4
        e(f'''v_mul_f32 {ga}, {ga}, {up}
              v_mov_b32 v{ha}, 0
              v_mov_b32 {t2}, {ga}
              v_mov_b32 v{ha+1}, 0
              v_permlane32_swap_b32 {ga}, {t2}
              v_cvt_pk_bf16_f32 {ga}, {ga}, {t2}''')
        for gg in range(3):
            for p in range(2):
                e(f'v_and_b32_dpp v{ha+p}, {ga}, {t4} row_newbcast:{2*gg+p} row_mask:{hex(1 << gg)} bank_mask:0xf')
        for cc in range(8):
            e(f'v_mfma_f32_16x16x16_bf16 {rng("v", DY+4*cc, 4)}, v[{ha}:{ha+1}], v[{G2+2*cc}:{G2+2*cc+1}], 0')
        state['ffn'] = True
    def mlissue(tagger, p):
        e(f's_lshl_b32 {sT0}, {sBH}, 8\ns_add_u32 {sT0}, {sT0}, {WS_ML}\nv_lshl_add_u32 {vMG}, {i}, 4, {sT0}')
        if 'ml' in off: e(f'v_mov_b32 {vMG}, {OOB}')
        tagger(f'buffer_load_dwordx4 v[{S[0]}:{S[3]}], {vMG}, {SWS}, 0 offen {p}', 'ml')
    def mlcombine():
        checked('ml', S, 'AAFG', vTA, vTB, sM12, lambda: mlstore(plain, 'sc1'), lambda: mlissue(plain, 'sc1'))
        mi, li, mx = f'v{S[0]}', f'v{S[1]}', f'v{S[2]}'
        e(f'v_mov_b32 {mx}, {mi}')
        rowred('v_max_f32', mx)
        e(f'''v_sub_f32 {mi}, {mi}, {mx}
              v_sub_f32 {vF}, {vM}, {mx}
              v_mul_f32 {mi}, {LOG2E}, {mi}
              v_mul_f32 {vF}, {LOG2E}, {vF}
              v_exp_f32 {mi}, {mi}
              v_exp_f32 {vF}, {vF}
              v_mul_f32 {li}, {li}, {mi}''')
        rowred('v_add_f32', li)
        e(f'v_rcp_f32 {li}, {li}\nv_mul_f32 {vF}, {vF}, {li}')
        state['ml'] = True
    complete = lambda tag: tag in e.vm and e.vm.index(tag) < e.done
    def progress():
        if state['q'] and not state['soft']:
            c = 0
            while state['kproc'] < 64 and complete(f'K{state["kproc"]+1}') and c < state['budget']:
                kpair(state['kproc']); state['kproc'] += 2; c += 2
            state['budget'] = catch if c >= 2 or state['budget'] >= 2 * catch else state['budget'] + 1
            if state['kproc'] == 64:
                softmax()
        if state['soft']:
            while state['vproc'] < 64 and complete(f'V{state["vproc"]}'):
                vstep(state['vproc']); state['vproc'] += 1
            while state['wop'] < 32 and complete(f'wo{state["wop"]+1}'):
                woperm(state['wop']); state['wop'] += 2
            if not state['ffn'] and complete('fg1') and complete('w23'):
                ffn_down()
            if not state['ml'] and complete('ml'):
                mlcombine()
    def window():
        d = D
        if Dend and f'V{nend}' in e.vm: d = Dend
        if Dk and 'V0' not in e.vm: d = Dk
        k = len(e.vm) - d
        if k >= e.done:
            e.wait(e.vm[k])
        progress()
    QG = 232
    def qissue(tagger, p):
        for k in range(4):
            if k == 2:
                e(f's_movk_i32 {sT0}, 0x1000')
            tagger(f'buffer_load_dwordx4 {rng("v", QG+4*k, 4)}, {vQG}, {SWS}, {sT0 if k >= 2 else 0} offen offset:{256*(k&1)} {p}', f'qg{k}')
    def qfinish():
        e(f'v_and_b32 {t4}, 7, {vTA}\nv_and_b32 {t5}, 7, {vTB}')
        e.wait('qg3')
        checked('q', list(range(QG, QG + 16)), 'AABB' * 4, t4, t5, sM3, lambda: republish(AQD, AQA), lambda: qissue(plain, 'sc1'))
        for k in range(0, 8, 2):
            pk('add', QG + k, QG + k, QG + 8 + k)
        for k in range(4):
            e(f'v_permlane32_swap_b32 v{QG+k}, v{QG+4+k}')
        for k in (0, 2):
            pk('add', QG + k, QG + k, QG + 4 + k)
        e(f'''v_permlane16_swap_b32 v{QG}, v{QG+2}
              v_permlane16_swap_b32 v{QG+1}, v{QG+3}
              v_pk_add_f32 v[{QG}:{QG+1}], v[{QG}:{QG+1}], v[{QG+2}:{QG+3}]
              v_cvt_pk_bf16_f32 v{Q[0]}, v{QG}, v{QG+1}
              v_cvt_pk_bf16_f32 v{Q[1]}, v{QG}, v{QG+1}
              v_permlane16_swap_b32 v{Q[0]}, v{Q[1]}
              v_mov_b32 v{Q[2]}, v{Q[0]}
              v_mov_b32 v{Q[3]}, v{Q[1]}
              v_permlane32_swap_b32 v{Q[0]}, v{Q[2]}
              v_permlane32_swap_b32 v{Q[1]}, v{Q[3]}''')
        state['q'] = True
        stamp()
    assert kn[0] <= n_q
    while kn[0] < 64:
        n = kn[0]
        if n == n_q:
            window(); qissue(e.vmem, gpol)
        if n == n_fg:
            window(); fgissue(e.vmem, gpol, acc=True)
        if n == n_q + gap:
            assert n <= (QG - KBASE) // 4
            qfinish()
        window()
        if n >= KRING:
            assert state['kproc'] > n - KRING, (n, state)
        kissue()
    extra = {}
    for k in range(4):
        extra.setdefault(ex0 + k, []).append(('w2', k))
    if n_fg is None:
        extra.setdefault(ex0 + 4, []).append(('fg', 0))
    extra.setdefault(ex0 + 5, []).append(('xres', 0))
    for k in range(32):
        extra.setdefault(wo_start + (k * (wo_end - wo_start)) // 32, []).append(('wo', k))
    extra.setdefault(n_ml, []).append(('ml', 0))
    if tailpf is not None:
        extra.setdefault(tailpf, []).append(('tpf', 0))
    if ypf is not None:
        extra.setdefault(ypf, []).append(('ypf', 0))
    XR = 39
    nv, m = 0, None
    while nv < 64:
        window()
        assert nv < vring or state['vproc'] > nv - vring, (nv, state)
        e.vmem(f'buffer_load_dwordx4 {rng("a", vreg(nv), 4)}, {vKO}, {SV}, {sVoff} offen {pol}', f'V{nv}')
        if nv < 63:
            e(f's_addk_i32 {sVoff}, 0x1000\ns_and_b32 {sVoff}, {sVoff}, {sMask}')
        nv += 1
        if state['soft'] and m is None:
            m = 0
        if m is not None:
            for kind, k in extra.pop(m, []):
                window()
                if kind == 'w2':
                    e.vmem(f'buffer_load_dwordx4 {rng("v", W2S+4*k, 4)}, {vW2}, {SW2}, 0 offen offset:{1024*k} {wpol}', f'w2{k}')
                elif kind == 'fg':
                    fgissue(e.vmem, gpol)
                elif kind == 'xres':
                    e.vmem(f'buffer_load_ushort v{XR}, {vOUT}, {SX}, 0 offen {xpol}', 'xres')
                elif kind == 'ml':
                    mlissue(e.vmem, gpol)
                elif kind == 'ypf':
                    e(f's_cmp_lg_u32 {sCon}, 0\ns_cselect_b32 {sT0}, {OOB}, 0\nv_add_u32 {t3}, {sT0}, {vCON}')
                    for kk in range(cw // 8):
                        e.vmem(f'buffer_load_dwordx4 {rng("a", AWQ+4*kk, 4)}, {t3}, {SWS}, 0 offen offset:{(256 // cw) * 128 * kk} {ypfpol}', f'ypf{kk}')
                elif kind == 'tpf':
                    e(f's_lshl_b32 {sT0}, {sW}, 8\ns_add_u32 {sT0}, {sT0}, L_tail - L_pc\nv_lshl_add_u32 {t3}, {vL}, 2, {sT0}')
                    e.vmem(f'buffer_load_dword v{S[2]}, {t3}, {SCODE}, 0 offen', 'tpf')
                    assert state['ml']
                elif kind == 'wo':
                    assert k < 8 or state['wop'] > k - 8, (k, state)
                    assert k < 24 or state['ffn']
                    e(f's_mov_b32 {sT0}, {(k >> 3)*32768 + ((k >> 2) & 1)*4096}')
                    e.vmem(f'buffer_load_dwordx4 {rng("v", stg(k), 4)}, {vWO}, {SWO}, {sT0} offen offset:{1024*(k & 3)} {wpol}', f'wo{k}')
            m += 1
    assert not extra, extra
    while state['vproc'] < 64:
        e.wait(f'V{state["vproc"]}')
        if state['vproc'] == 63:
            e('L_tail:')
            stamp('main,tail,head')
        progress()
    assert state['wop'] == 32 and state['ffn'] and state['ml'], state
    e(f'''v_mul_f32 v{ACC}, v{ACC}, {vF}
          v_mul_f32 v{ACC+1}, v{ACC+1}, {vF}
          v_mul_f32 v{ACC+2}, v{ACC+2}, {vF}
          v_mul_f32 v{ACC+3}, v{ACC+3}, {vF}
          v_cvt_pk_bf16_f32 v{ACC}, v{ACC}, v{ACC+1}
          v_cvt_pk_bf16_f32 v{ACC+1}, v{ACC+2}, v{ACC+3}
          ds_write_b64 {vOW}, v[{ACC}:{ACC+1}]''')
    stamp('tail')
    e('s_waitcnt lgkmcnt(0)\ns_barrier')
    stamp('tail')
    if stamps and stset == 'tail':
        e('s_waitcnt lgkmcnt(0)')
    AF = STG
    for t in range(4):
        e(f'ds_read_b128 {rng("v", AF+4*t, 4)}, {vOR} offset:{LDS_O+64*t}')
    Z = A[0]
    def tile_add(cc):
        pk('add', DY + 4 * cc, DY + 4 * cc, DY + 4 * cc + 2)
    def tile_fin(cc):
        d = DY + 4 * cc
        if cc < 4:
            e(f'v_add_f32 v{Z+cc}, v{d}, v{d+1}')
        else:
            e(f'v_add_f32_dpp v{Z+cc-4}, v{d}, v{d+1} quad_perm:[0,1,2,3] row_mask:0x2 bank_mask:0xf')
            e(f'v_bfi_b32 v{Z+cc-4}, {sM12}, {vTA}, v{Z+cc-4}')
    for cc in range(8):
        for t in range(4):
            if cc == 0:
                e(f's_waitcnt lgkmcnt({3-t})')
            e(f'v_mfma_f32_16x16x32_bf16 {rng("v", DY+4*cc, 4)}, {rng("v", AF+4*t, 4)}, {rng("v", F+32*t+4*cc, 4)}, {rng("v", DY+4*cc, 4)}')
            if cc >= 2 and t == 1:
                tile_add(cc - 2)
            if cc >= 2 and t == 3:
                tile_fin(cc - 2)
    tile_add(6)
    e('s_mov_b32 exec_hi, 0')
    tile_add(7)
    tile_fin(6)
    tile_fin(7)
    e(f'buffer_store_dwordx4 {rng("v", Z, 4)}, {vY}, {SWS}, 0 offen {ypol}')
    if cw == 4:
        e(f's_cmp_lg_u32 {sW}, {stwave}\ns_cbranch_scc1 L_end')
        stamp('main,tail')
        if stamps and stset == 'tail':
            e('s_waitcnt vmcnt(0)')
            stamp('tail')
        C = STG
        mA, mB = 's[24:25]', 's[26:27]'
        e(f's_mov_b32 {sSpin}, {spin}\ns_movk_i32 {sT0}, 0x2000\ns_mov_b64 {mA}, -1\ns_mov_b64 {mB}, -1')
        if few:
            e(f's_lshr_b32 {sT1}, s2, 3\ns_and_b32 {sT1}, {sT1}, {few}\ns_cbranch_scc1 L_polled')
        e('L_poll:')
        e(f'''s_mov_b64 exec, {mA}
              buffer_load_dwordx4 {rng("v", C, 4)}, {vCON}, {SWS}, 0 offen sc1
              s_mov_b64 exec, {mB}
              buffer_load_dwordx4 {rng("v", C+4, 4)}, {vCON}, {SWS}, {sT0} offen sc1
              s_sub_u32 {sSpin}, {sSpin}, 1
              s_cbranch_scc1 L_polled
              s_mov_b64 exec, {mA}
              s_waitcnt vmcnt(0)''')
        untag(list(range(C, C + 4)), [vTA] * 4, sM12, dst=mA)
        e(f's_mov_b64 exec, {mB}')
        untag(list(range(C + 4, C + 8)), [vTA] * 4, sM12, dst=mB)
        e(f's_or_b64 vcc, {mA}, {mB}')
        if 'con' in off: e('s_branch L_polled')
        if asleep:
            thr, big = asleep
            e(f'''s_cbranch_scc0 L_polled
                  s_bcnt1_i32_b64 {sT1}, {mA}
                  s_bcnt1_i32_b64 {sT2}, {mB}
                  s_add_u32 {sT1}, {sT1}, {sT2}
                  s_cmp_le_u32 {sT1}, {thr}
                  s_cbranch_scc1 L_poll
                  s_sleep {big}
                  s_branch L_poll''')
        elif sleep:
            e(f's_cbranch_scc0 L_polled\ns_sleep {sleep}\ns_branch L_poll')
        else:
            e('s_cbranch_scc1 L_poll')
        e('L_polled:')
        e('s_mov_b64 exec, -1')
        stamp('main,tail')
        pk('add', C, C, C + 4); pk('add', C + 2, C + 2, C + 6)
        e(f'''v_lshlrev_b32 v{XR}, 16, v{XR}
              v_permlane32_swap_b32 v{C}, v{C+1}
              v_permlane32_swap_b32 v{C+2}, v{C+3}
              v_add_f32 v{C}, v{C}, v{C+1}
              v_add_f32 v{C+2}, v{C+2}, v{C+3}
              v_permlane16_swap_b32 v{C}, v{C+2}
              v_add_f32 v{C}, v{C}, v{C+2}''')
        rowred('v_add_f32', f'v{C}')
        e(f'''v_add_f32 v{C}, v{C}, v{XR}
              v_cvt_pk_bf16_f32 v{C}, v{C}, v{C}
              buffer_store_short v{C}, {vOUT}, {SOUT}, 0 offen''')
    else:
        LP = cw // 4
        NL = LP // 2
        step = (64 // LP) * 128
        C = STG
        mk = [f's[{68+2*k}:{69+2*k}]' for k in range(NL)]
        if stamps:
            e(f's_cmp_lg_u32 {sCon}, 0\ns_cselect_b32 {sT1}, {sW}, 0\ns_cmp_lg_u32 {sT1}, 0\ns_cbranch_scc1 L_end')
            stamp('main,tail,poll')
            if stset == 'poll':
                e('s_waitcnt lgkmcnt(0)\ns_mov_b64 s[6:7], s[4:5]\ns_mov_b64 s[8:9], s[4:5]\ns_mov_b64 s[10:11], s[4:5]\ns_mov_b64 s[12:13], s[4:5]')
            e(f's_mov_b32 {sSpin}, {spin}\ns_cmp_lg_u32 {sCon}, 0\ns_cbranch_scc1 L_nocon')
        else:
            e(f's_cmp_lg_u32 {sCon}, 0\ns_cbranch_scc1 L_end')
        e(f's_mov_b32 {sSpin}, {spin}')
        for k in range(NL):
            e(f's_mov_b64 {mk[k]}, -1')
        e('L_poll:')
        if stamps and stset == 'poll':
            e('s_memrealtime s[8:9]')
        for k in range(NL):
            e(f's_mov_b64 exec, {mk[k]}')
            e(f'buffer_load_dwordx4 {rng("v", C+4*k, 4)}, {vCON}, {SWS}, 0 offen offset:{step*k} {ppol}')
        e(f's_sub_u32 {sSpin}, {sSpin}, 1\ns_cbranch_scc1 L_polled')
        for k in range(NL):
            e(f's_mov_b64 exec, {mk[k]}')
            if k == 0:
                e('s_waitcnt vmcnt(0)')
                if stamps and stset == 'poll':
                    e(f's_cmp_lg_u32 {sSpin}, {spin-1}\ns_cbranch_scc1 L_nf\ns_memrealtime s[6:7]\nL_nf:')
                    nst[0] = 3
            untag(list(range(C + 4*k, C + 4*k + 4)), [vTA] * 4, sM12, dst=mk[k])
        if NL == 1:
            e(f's_or_b64 vcc, {mk[0]}, {mk[0]}')
        else:
            e(f's_or_b64 vcc, {mk[0]}, {mk[1]}')
            for k in range(2, NL):
                e(f's_or_b64 vcc, vcc, {mk[k]}')
        if pipe:
            thr, big, P, gapsl = pipe
            e(f'''s_cbranch_scc0 L_polled
                  s_bcnt1_i32_b64 {sT1}, vcc
                  s_cmp_le_u32 {sT1}, {thr}
                  s_cbranch_scc1 L_pp''')
            if big:
                e(f's_sleep {big}')
            e('s_branch L_poll\nL_pp:')
            def pissue(p):
                for k in range(NL):
                    e(f's_or_b64 exec, {mk[k]}, 1')
                    e(f'buffer_load_dwordx4 {rng("v", F+4*(NL*p+k), 4)}, {vCON}, {SWS}, 0 offen offset:{step*k} {ppol}')
            for p in range(P):
                pissue(p)
                if p < P - 1:
                    e(f's_sleep {gapsl + 1}')
            e('L_ppl:')
            for p in range(P):
                e(f's_waitcnt vmcnt({NL*(P-1)})')
                for k in range(NL):
                    e(f's_mov_b64 exec, {mk[k]}')
                    for r in range(4):
                        e(f'v_xor_b32 v{C+4*k+r}, {vTA}, v{F+4*(NL*p+k)+r}')
                    orred(list(range(C + 4*k, C + 4*k + 4)), sM12, mk[k])
                e(f's_or_b64 vcc, {mk[0]}, {mk[-1]}')
                for k in range(1, NL - 1):
                    e(f's_or_b64 vcc, vcc, {mk[k]}')
                e('s_cbranch_scc0 L_polled')
                pissue(p)
                if gapsl:
                    e(f's_sleep {gapsl}')
            e(f's_sub_u32 {sSpin}, {sSpin}, 1\ns_cbranch_scc0 L_ppl')
        elif asleep:
            thr, big = asleep
            e(f'''s_cbranch_scc0 L_polled
                  s_bcnt1_i32_b64 {sT1}, vcc
                  s_cmp_le_u32 {sT1}, {thr}
                  s_cbranch_scc1 L_poll
                  s_sleep {big}
                  s_branch L_poll''')
        elif sleep:
            e(f's_cbranch_scc0 L_polled\ns_sleep {sleep}\ns_branch L_poll')
        else:
            e('s_cbranch_scc1 L_poll')
        e('L_polled:')
        e('s_mov_b64 exec, -1')
        stamp('main,tail,poll')
        if NL == 4:
            pk('add', C, C, C + 4); pk('add', C + 8, C + 8, C + 12); pk('add', C + 2, C + 2, C + 6); pk('add', C + 10, C + 10, C + 14)
            pk('add', C, C, C + 8); pk('add', C + 2, C + 2, C + 10)
        elif NL == 2:
            pk('add', C, C, C + 4); pk('add', C + 2, C + 2, C + 6)
        e(f'''v_lshrrev_b32 {t2}, 2, {vKO}
              v_lshlrev_b32 {t3}, 2, {vL}
              v_permlane32_swap_b32 v{C}, v{C+1}
              v_permlane32_swap_b32 v{C+2}, v{C+3}
              v_add_f32 v{C}, v{C}, v{C+1}
              v_add_f32 v{C+2}, v{C+2}, v{C+3}
              v_lshlrev_b32 v{XR}, 16, v{XR}
              v_permlane16_swap_b32 v{C}, v{C+2}
              v_add_f32 v{C}, v{C}, v{C+2}''')
        for d in (8, 4, 2):
            if LP <= d:
                e(f'v_add_f32_dpp v{C}, v{C}, v{C} row_ror:{d} row_mask:0xf bank_mask:0xf')
        e(f'''ds_write_b32 {t2}, v{C}
              s_waitcnt lgkmcnt(0)
              s_barrier
              s_cmp_lg_u32 {sW}, {stwave}
              s_cbranch_scc1 L_end''')
        stamp('poll')
        e(f'''ds_read2st64_b32 v[{C}:{C+1}], {t3} offset0:0 offset1:1
              ds_read2st64_b32 v[{C+2}:{C+3}], {t3} offset0:2 offset1:3
              s_waitcnt lgkmcnt(0)''')
        pk('add', C, C, C + 2)
        e(f'''v_add_f32 v{C}, v{C}, v{C+1}
              v_add_f32 v{C}, v{C}, v{XR}
              v_cvt_pk_bf16_f32 v{C}, v{C}, v{C}
              buffer_store_short v{C}, {vOUT}, {SOUT}, 0 offen''')
    e(f'''s_cmp_eq_u32 s2, 0
          s_cselect_b32 {sT0}, {WS_EP}, {OOB}
          v_mov_b32 {t2}, {sEp}
          v_mov_b32 {t3}, {sT0}
          s_mov_b64 exec, 1
          buffer_store_dword {t2}, {t3}, {SWS}, 0 offen sc1''')
    if fixdur:
        e('s_cmp_lg_u32 s2, 0\ns_cbranch_scc1 L_end')
        if amp is not None:
            e(f's_waitcnt lgkmcnt(0)\ns_sub_u32 s1, s{stamp_regs[amp]}, s100\ns_mul_i32 s1, s1, 10\ns_add_u32 s1, s1, {fixdur}')
        else:
            e(f's_mov_b32 s1, {fixdur}')
        e('L_hold:\ns_memrealtime s[24:25]\ns_waitcnt lgkmcnt(0)\ns_sub_u32 s24, s24, s100\ns_cmp_lt_u32 s24, s1\ns_cbranch_scc1 L_hold\ns_endpgm')
    if stamps:
        if cw != 4:
            e(f's_branch L_st\nL_nocon:\ns_mov_b64 exec, 1\ns_waitcnt lgkmcnt(0)\ns_mov_b64 s[{stamp_regs[nst[0]-1]}:{stamp_regs[nst[0]-1]+1}], s[{stamp_regs[nst[0]-2]}:{stamp_regs[nst[0]-2]+1}]\nL_st:')
        stamp('tail')
        e('s_waitcnt vmcnt(0)')
        stamp('main,tail,head,poll')
        e(f's_waitcnt lgkmcnt(0)\ns_lshl_b32 s0, {sId}, 7\ns_add_u32 s0, s0, 0x20000000\nv_mov_b32 v0, 0')
        for k, r in enumerate([100] + stamp_regs[:nst[0]]):
            e(f'v_mov_b32 v2, s{r}\nv_mov_b32 v3, s{r+1}\nbuffer_store_dwordx2 v[2:3], v0, s[20:23], s0 offen offset:{8*k}')
        if clk:
            e(f's_memtime s[24:25]\ns_waitcnt lgkmcnt(0)\ns_sub_u32 s24, s24, s98\ns_sub_u32 {sSpin}, 400000, s24')
            e(f'v_mov_b32 v2, 0\nv_mov_b32 v3, {sSpin}\nbuffer_store_dwordx2 v[2:3], v0, s[20:23], s0 offen offset:120')
        if dbgcnt:
            e(f'v_mov_b32 v2, {sCnt}\nv_mov_b32 v3, {sSpin}\nbuffer_store_dwordx2 v[2:3], v0, s[20:23], s0 offen offset:120')
    e('L_end:\ns_endpgm')
    for f in slow:
        f()
    e('L_codeend:')
    e.raw('.section .rodata,"a"\n.p2align 6')
    e.raw(kernel_desc(K, 512, 102, accum=256))
    return e.text(), LDS, nst[0] + 1, e.nops

if __name__ == '__main__':
    cfgs = {}
    def add(name, **kw):
        cfgs[name] = kw
    exec(open(sys.argv[1]).read())
    BF = os.environ.get('BFLAGS', '-n 15 -c')
    os.makedirs('co', exist_ok=True)
    names = []
    for name, kw in cfgs.items():
        t, lds, ns, nops = gen(**kw)
        build(t, f'co/{name}')
        st = f'-t {ns}' if kw.get('stamps') else ''
        names.append(f'co/{name}.co')
        print(name, 'nops', nops, 'len', len(t))
    open('run.sh', 'w').write(f'#!/bin/bash\ntimeout 300 ./bench {BF} {st} {NAME}_kernel:256:256:{lds} ' + ' '.join(names) + '\n')
```

```python
import sys, os
from asmlib import NAME, kernel_desc, build
from emit import Emit

FU_STRIDE = 2176
WS_Y, WS_Q, WS_ML, WS_EP, WS_FU = 0, 0x80000, 0xC0000, 0xC4000, 0xC5000
WS_END = WS_FU + 256 * FU_STRIDE
OOB = 0x40000000
LOG2E = 0x3fb8aa3b
SCALE = 0x3db504f3

def bitrev4(n):
    return ((n & 1) << 3) | ((n & 2) << 1) | ((n & 4) >> 1) | ((n & 8) >> 3)

REF = 'cdna_kernels/' + NAME + '.s.ref'
HEADER = open(REF).read().split('; Override launch')[0] if os.path.exists(REF) else ''

NOTES = '''; Design: one launch, 256 workgroups (b, head, quarter of the 4096-key window) x 4 waves, one workgroup per CU.
;  - q projection and FFN-up are split over rows across workgroups and handed over through d_ws; FFN-down and
;    the output projection are applied per workgroup, and 4 output columns per workgroup are summed at the end.
;  - Every hand-off word carries this launch's tag (epoch word found in d_ws, + 1) in its low mantissa bits; a
;    reader that finds another tag (or a writer on another XCD) re-publishes write-through and polls.'''

def gen(D=9, k0=2, k1=2, ksp=(1, 1, 1, 1, 1), kpost=(1, 1, 1), n_q=24, gap=None, catch=3, wo_start=8, wo_end=50, n_ml=30,
        ex0=0, vring=16, rotmul=5, sleep=2, codepf=True, tailpf=None, pol='nt', wpol='nt', xpol='', gpol='', spin=400000,
        stamps=False, dbgcnt=False, off=(), permtest=False, fixdur=0, amp=None, stset='main', stwave=0, touch=(), Dend=None, nend=44, Dk=None, kw=False, ypol='sc1', asleep=(8, 6), n_fg=None, few=0, clk=False, cw=16, ypf=None, ypfpol='sc1', ppol='sc1', pipe=None, cpf0=True, wbl2=None, woa=None, w2a=None, al4=False, slowpen=0):
    gap = gap or D + 1
    e = Emit()
    K = NAME + '_kernel'
    LDS_O = 8192
    LDS = LDS_O + 2048
    sW = 's3'
    SK, SV, SWQ, SWO, SFU, SW2, SX, SWS, SOUT, SCODE = [f's[{b}:{b+3}]' for b in range(28, 68, 4)]
    sXc, sJ, sHH, sH, sB, sS, sS8, sBH, sC0, sNch, sT0, sT1, sT2, sKoff, sVoff, sMask, sPB, sU, sXcc, sId = [f's{n}' for n in range(68, 88)]
    sSelLo, sSelHi, sSpin, sM8, sM12, sM3 = [f's{n}' for n in range(88, 94)]
    sMC, sMA = 's[94:95]', 's[96:97]'
    sEp, sCon = 's0', 's1'
    sCnt = 's98'
    stamp_regs = [4, 6, 8, 10, 12, 14, 16, 18]
    nst = [0]
    def stamp(which='main'):
        if stamps and stset in which.split(','):
            r = stamp_regs[nst[0]]
            e(f's_memrealtime s[{r}:{r+1}]')
            nst[0] += 1
    vKO, M, Q, S, vY, vL = 'v1', [2, 3, 4, 5], [6, 7, 8, 9], [10, 11, 12, 13], 'v14', 'v15'
    A = [16, 20]
    ACC = 24
    g, i, t2, t3, t4, t5 = [f'v{k}' for k in range(28, 34)]
    vM, vLs = 'v34', 'v35'
    vXG, vWQ, vFU = 'v34', 'v35', 'v36'
    vMG, vML, vTB = 'v36', 'v37', 'v38'
    vQG, vWO, vW2, vFG, vOUT, vCON, vOW, vOR, vF = [f'v{k}' for k in range(39, 48)]
    vTA = 'v0'
    KBASE, KRING = 48, 52
    kreg = lambda n: KBASE + 4 * (n % KRING)
    vreg = lambda n: 4 * (n % vring)
    rng = lambda p, b, n: f'{p}[{b}:{b+n-1}]'
    AWQ, AFU = 192, 208
    AQD, AFD, AQA, AFA = 224, 228, 232, 233
    assert 4 * vring <= AWQ

    e.raw(HEADER.rstrip('\n'))
    e.raw(NOTES)
    e.raw(f'; @launch grid=(256,1,1) block=(256,1,1) lds={LDS}')
    e.raw('.amdgcn_target "amdgcn-amd-amdhsa--gfx950"\n.text')
    e.raw(f'.globl {K}\n.p2align 8\n.type {K},@function\n{K}:')
    e('s_load_dwordx16 s[4:19], s[0:1], 0\ns_load_dwordx8 s[20:27], s[0:1], 64')
    if stamps or fixdur:
        e('s_memrealtime s[100:101]')
    if clk:
        e('s_memtime s[98:99]')
    e('s_cmp_ge_u32 s2, 256\ns_cbranch_scc1 L_end')
    e(f's_mov_b32 {sId}, s2')
    if permtest:
        e(f's_lshr_b32 {sT0}, s2, 5\ns_and_b32 s2, s2, 31\ns_lshl_b32 s2, s2, 3\ns_or_b32 s2, s2, {sT0}')
    e(f'''s_and_b32 {sXc}, s2, 7
          s_lshr_b32 {sJ}, s2, 3
          s_lshr_b32 {sHH}, s2, 6
          s_lshl2_add_u32 {sH}, {sXc}, {sHH}
          s_bfe_u32 {sB}, s2, 0x10005
          s_and_b32 {sS}, {sJ}, 3
          s_lshl_b32 {sBH}, {sB}, 5
          s_add_u32 {sBH}, {sBH}, {sH}
          s_lshl4_add_u32 {sT0}, {sBH}, {sS}
          s_add_u32 {sT0}, {sT0}, 12
          s_lshl_b32 {sT0}, {sT0}, 18
          s_mul_i32 {sKoff}, s2, {rotmul << 12}
          s_mov_b32 {sMask}, 0x3ffff
          s_and_b32 {sKoff}, {sKoff}, {sMask}
          v_lshlrev_b32 {vKO}, 4, v0
          s_mov_b32 s30, 0x40000
          s_mov_b32 s31, 0x20000
          v_lshrrev_b32 v2, 6, v0
          v_and_b32 {vL}, 63, v0
          s_mov_b32 {sVoff}, {sKoff}
          v_readfirstlane_b32 {sW}, v2''')
    if codepf and cpf0:
        e(f'''s_getpc_b64 s[64:65]
              L_pc:
              s_mov_b32 s66, L_codeend - L_pc
              s_mov_b32 s67, 0x20000
              s_lshl_b32 {sT1}, {sJ}, 10
              v_lshl_add_u32 {t2}, v0, 2, {sT1}''')
        e.vmem(f'buffer_load_dword {vF}, {t2}, {SCODE}, 0 offen', 'cpf')
    e(f'''s_waitcnt lgkmcnt(0)
          s_add_u32 s28, s6, {sT0}
          s_addc_u32 s29, s7, 0''')
    if stamps and stset == 'head':
        e('s_memrealtime s[14:15]')
    kn = [0]
    def kissue():
        n = kn[0]
        e.vmem(f'buffer_load_dwordx4 {rng("v", kreg(n), 4)}, {vKO}, {SK}, {sKoff} offen {pol}', f'K{n}')
        e(f's_addk_i32 {sKoff}, 0x1000\ns_and_b32 {sKoff}, {sKoff}, {sMask}')
        kn[0] += 1
    def kspr():
        if kw:
            k = len(e.vm) - (Dk or D)
            if k >= e.done:
                e.wait(e.vm[k])
        kissue()
    for _ in range(k0):
        kissue()
    XL, XU, XG, DQ, DF = 208, 216, 232, 236, 240
    e(f'''s_load_dword {sEp}, s[26:27], {WS_EP}
          s_add_u32 s32, s8, {sT0}
          s_addc_u32 s33, s9, 0
          s_mov_b32 s52, s4
          s_mov_b32 s53, s5
          s_mov_b32 s54, 2048
          s_mov_b32 s55, 0x20000
          v_lshlrev_b32 {t2}, 5, {vL}''')
    e.vmem(f'buffer_load_dwordx4 {rng("v", XL, 4)}, {t2}, {SX}, 0 offen {xpol}', 'xl0')
    e.vmem(f'buffer_load_dwordx4 {rng("v", XL+4, 4)}, {t2}, {SX}, 0 offen offset:16 {xpol}', 'xl1')
    e(f'''s_and_b32 {sS8}, {sJ}, 7
          v_lshrrev_b32 {g}, 4, {vL}
          v_and_b32 {i}, 15, {vL}
          s_lshl_b32 {sT1}, {sS8}, 19
          s_lshl_b32 {sT2}, {sH}, 8
          s_add_u32 {sT1}, {sT1}, {sT2}
          s_add_u32 s36, s10, {sT1}
          s_addc_u32 s37, s11, 0
          s_mov_b32 s38, {63*8192+256}
          s_mov_b32 s39, 0x20000
          v_lshrrev_b32 {t3}, 4, v0
          v_and_b32 {t4}, 12, {t3}
          v_lshl_add_u32 {t3}, {t4}, 2, {g}
          v_lshlrev_b32 {t3}, 13, {t3}
          v_lshl_add_u32 {vWQ}, {i}, 4, {t3}''')
    if 'wq' in off: e(f'v_mov_b32 {vWQ}, {OOB}')
    for t in range(4):
        if t:
            e(f's_mov_b32 {sT2}, {32768*t}')
        e.vmem(f'buffer_load_dwordx4 {rng("a", AWQ+4*t, 4)}, {vWQ}, {SWQ}, {sT2 if t else 0} offen {wpol}', f'wq{t}')
    HB = 12 if al4 else 11
    if al4:
        e(f'''s_mul_i32 {sC0}, {sXc}, 43
              s_add_u32 {sNch}, {sC0}, 47
              s_add_u32 {sC0}, {sC0}, 4
              s_lshr_b32 {sC0}, {sC0}, 3
              s_lshr_b32 {sNch}, {sNch}, 3
              s_sub_u32 {sNch}, {sNch}, {sC0}
              s_lshl_b32 {sC0}, {sC0}, 2
              s_lshl_b32 {sNch}, {sNch}, 2''')
        assert [(43*x+47 >> 3) - (43*x+4 >> 3) for x in range(8)].count(6) == 3 and (43*8+4) >> 3 == 43
    else:
        e(f'''s_mul_i32 {sC0}, {sXc}, 43
              s_add_u32 {sC0}, {sC0}, 1
              s_lshr_b32 {sC0}, {sC0}, 1
              s_and_b32 {sT1}, {sXc}, 1
              s_sub_u32 {sNch}, 22, {sT1}''')
    e(f'''s_sub_u32 {sPB}, {sNch}, {HB}
          s_and_b32 {sT2}, {sJ}, 1
          s_cselect_b32 {sPB}, {sPB}, {HB}
          s_mul_i32 {sT2}, {sT2}, {HB}
          s_add_u32 {sT2}, {sT2}, {sC0}
          s_and_b32 {sT1}, {sW}, 1
          s_and_b32 {sT0}, {sJ}, 30
          s_add_u32 {sT1}, {sT1}, {sT0}
          s_lshl_b32 {sT1}, {sT1}, 4
          v_add_u32 {t3}, {sT1}, {g}
          v_mul_u32_u24 {t3}, 2752, {t3}
          v_cmp_gt_u32 vcc, {sPB}, {i}
          v_add_u32 {t4}, {sT2}, {i}
          v_lshl_add_u32 {t3}, {t4}, 4, {t3}
          v_mov_b32 {t5}, {OOB}
          v_cndmask_b32 {vFU}, {t5}, {t3}, vcc
          s_cmp_lt_u32 {sW}, 2
          s_cselect_b32 s44, s16, s18
          s_cselect_b32 s45, s17, s19
          s_mov_b32 s46, {512*2752}
          s_mov_b32 s47, 0x20000''')
    if 'fu' in off: e(f'v_mov_b32 {vFU}, {OOB}')
    for t in range(4):
        if t:
            e(f's_mov_b32 {sT2}, {11008*t}')
        e.vmem(f'buffer_load_dwordx4 {rng("a", AFU+4*t, 4)}, {vFU}, {SFU}, {sT2 if t else 0} offen {wpol}', f'fu{t}')
    e(f'''s_lshl2_add_u32 {sT0}, {sS8}, {sW}
          s_lshl_b32 {sT0}, {sT0}, 4
          v_and_b32 {t5}, 4, {vL}
          v_cmp_eq_u32 vcc, 0, {t5}
          v_mov_b32 {t4}, {sT0}
          v_mov_b32 {t5}, {sT1}
          v_and_b32 {t3}, 3, {vL}
          v_cndmask_b32 {t4}, {t5}, {t4}, vcc
          v_lshl_add_u32 {t3}, {t3}, 2, {g}
          v_bfe_u32 {t5}, {vL}, 3, 1
          v_add_u32 {t3}, {t3}, {t4}
          v_lshl_add_u32 {t3}, {t5}, 9, {t3}
          v_lshlrev_b32 {vXG}, 1, {t3}''')
    e.vmem(f'buffer_load_ushort v{XG}, {vXG}, {SX}, 0 offen {xpol}', 'xg')
    for _ in range(k1):
        kissue()
    e(f'''s_mov_b32 s34, 0x40000
          s_mov_b32 s35, 0x20000
          s_lshl_b32 {sT0}, {sH}, 17
          s_add_u32 s40, s12, {sT0}
          s_addc_u32 s41, s13, 0
          s_mov_b32 s42, 0x20000
          s_mov_b32 s43, 0x20000
          s_mov_b32 s48, s20
          s_mov_b32 s49, s21
          s_mov_b32 s50, {1376*1024}
          s_mov_b32 s51, 0x20000
          s_mov_b32 s56, s26
          s_mov_b32 s57, s27
          s_mov_b32 s58, {WS_END}
          s_mov_b32 s59, 0x20000
          s_mov_b32 s60, s22
          s_mov_b32 s61, s23
          s_mov_b32 s62, 2048
          s_mov_b32 s63, 0x20000''')
    if stamps:
        e('s_mov_b32 s20, s26\ns_mov_b32 s21, s27\ns_mov_b32 s22, 0x40000000\ns_mov_b32 s23, 0x20000')
    if (codepf or tailpf is not None) and not (codepf and cpf0):
        e('s_getpc_b64 s[64:65]\nL_pc:\ns_mov_b32 s66, L_codeend - L_pc\ns_mov_b32 s67, 0x20000')
    if touch:
        e(f'v_mov_b32 {t2}, 0')
        for k, nm in enumerate(touch):
            srd = dict(V=SV, wo=SWO, w2=SW2, ws=SWS, out=SOUT)[nm]
            e.vmem(f'buffer_load_dword {vF}, {t2}, {srd}, 0 offen nt', 'touch' + nm)
    if codepf and not cpf0:
        e(f'''s_lshl2_add_u32 {sT0}, {sJ}, {sW}
              s_lshl_b32 {sT0}, {sT0}, 8
              v_lshl_add_u32 {t2}, {vL}, 2, {sT0}''')
        e.vmem(f'buffer_load_dword {vF}, {t2}, {SCODE}, 0 offen', 'cpf')
    e(f'''v_and_b32 {t2}, 1, {vL}
          v_lshlrev_b32 {t2}, 4, {t2}
          v_mov_b32 {t3}, 0xffff
          v_lshlrev_b32 {t2}, {t2}, {t3}
          v_bfe_u32 {t3}, {vL}, 1, 2
          v_cmp_eq_u32 s[4:5], 0, {t3}
          v_cmp_eq_u32 s[6:7], 1, {t3}
          v_cmp_eq_u32 s[8:9], 2, {t3}
          v_cmp_eq_u32 s[10:11], 3, {t3}''')
    for r in range(4):
        e(f'v_cndmask_b32 v{M[r]}, 0, {t2}, s[{4+2*r}:{5+2*r}]')
    e(f'''s_mov_b32 s94, 0xcccccccc
          s_mov_b32 s95, 0xcccccccc
          s_mov_b32 s96, 0xaaaaaaaa
          s_mov_b32 s97, 0xaaaaaaaa
          s_mov_b32 {sSelLo}, 0x05040100
          s_mov_b32 {sSelHi}, 0x07060302
          s_movk_i32 {sM8}, 0xff
          s_movk_i32 {sM12}, 0xfff
          s_movk_i32 {sM3}, 7
          s_getreg_b32 {sXcc}, hwreg(HW_REG_XCC_ID, 0, 4)''')
    if dbgcnt:
        e(f's_mov_b32 {sCnt}, 0')

    def rowred(op, r):
        for c in ('row_ror:8', 'row_ror:4', 'row_ror:2', 'row_ror:1'):
            e(f'{op}_dpp {r}, {r}, {r} {c} row_mask:0xf bank_mask:0xf')
    def swapred(op, r, tmp, n):
        e(f'v_mov_b32 {tmp}, {r}\nv_permlane{n}_swap_b32 {r}, {tmp}\n{op} {r}, {r}, {tmp}')
    def bf16r(dst, src):
        e(f'v_cvt_pk_bf16_f32 {dst}, {src}, {src}\nv_and_b32 {dst}, 0xffff0000, {dst}')
    def pk(op, d, a, b):
        e(f'v_pk_{op}_f32 v[{d}:{d+1}], v[{a}:{a+1}], v[{b}:{b+1}]')

    if stamps and stset == 'head':
        e.wait('K0')
        e('s_waitcnt lgkmcnt(0)\ns_mov_b64 s[4:5], s[14:15]')
        nst[0] = 1
        stamp('head')
    e.wait('xl1')
    stamp('main,head')
    for k in range(8):
        e(f'v_lshlrev_b32 v{XU+2*k}, 16, v{XL+k}\nv_and_b32 v{XU+2*k+1}, 0xffff0000, v{XL+k}')
    for k in range(4):
        pk('add', XL + 2 * k, XU + 4 * k, XU + 4 * k + 2)
    pk('add', XL, XL, XL + 2); pk('add', XL + 4, XL + 4, XL + 6); pk('add', XL, XL, XL + 4)
    e(f'v_add_f32 {t2}, v{XL}, v{XL+1}')
    for _ in range(ksp[0]): kspr()
    rowred('v_add_f32', t2)
    swapred('v_add_f32', t2, t3, 16)
    e(f'v_mul_f32 {t2}, 0x3b000000, {t2}')
    for k in range(0, 16, 2):
        e(f'v_pk_add_f32 v[{XU+k}:{XU+k+1}], v[{XU+k}:{XU+k+1}], v[30:31] op_sel_hi:[1,0] neg_lo:[0,1] neg_hi:[0,1]')
    for _ in range(ksp[1]): kspr()
    pk('mul', XL, XU, XU); pk('mul', XL + 2, XU + 2, XU + 2)
    for k in range(4, 16, 4):
        e(f'v_pk_fma_f32 v[{XL}:{XL+1}], v[{XU+k}:{XU+k+1}], v[{XU+k}:{XU+k+1}], v[{XL}:{XL+1}]')
        e(f'v_pk_fma_f32 v[{XL+2}:{XL+3}], v[{XU+k+2}:{XU+k+3}], v[{XU+k+2}:{XU+k+3}], v[{XL+2}:{XL+3}]')
    pk('add', XL, XL, XL + 2)
    e(f'v_add_f32 {t4}, v{XL}, v{XL+1}')
    for _ in range(ksp[2]): kspr()
    rowred('v_add_f32', t4)
    swapred('v_add_f32', t4, t3, 16)
    e(f'v_mul_f32 {t4}, 0x3b000000, {t4}')
    bf16r(t2, t2)
    bf16r(t4, t4)
    e(f'v_add_f32 {t4}, 0x3727c5ac, {t4}')
    bf16r(t4, t4)
    e(f'v_sqrt_f32 {t4}, {t4}')
    bf16r(t4, t4)
    e(f'''v_mov_b32 {t3}, {t2}
          v_mov_b32 {t5}, {t4}
          v_and_b32 v{XL}, 8, {vL}
          v_permlane32_swap_b32 {t2}, {t3}
          v_permlane32_swap_b32 {t4}, {t5}
          v_cmp_eq_u32 vcc, 0, v{XL}
          v_cndmask_b32 {t2}, {t3}, {t2}, vcc
          v_cndmask_b32 {t4}, {t5}, {t4}, vcc''')
    e.wait('xg')
    XN = f'v{XG}'
    e(f'v_lshlrev_b32 {XN}, 16, {XN}\nv_sub_f32 {XN}, {XN}, {t2}\nv_rcp_f32 {t5}, {t4}')
    bf16r(XN, XN)
    e(f'''v_mul_f32 {t2}, {XN}, {t5}
          v_fma_f32 {t3}, -{t2}, {t4}, {XN}
          v_fmac_f32 {t2}, {t3}, {t5}
          v_cvt_pk_bf16_f32 {XN}, {t2}, {t2}''')
    for _ in range(ksp[3]): kspr()
    for t in range(8):
        a = A[t & 1]
        for r in range(4):
            e(f'v_and_b32_dpp v{a+r}, {XN}, v{M[r]} row_newbcast:{t} row_mask:0xf bank_mask:0x3')
        for r in range(4):
            e(f'v_and_b32_dpp v{a+r}, {XN}, v{M[r]} row_newbcast:{t+8} row_mask:0xf bank_mask:0xc')
        if t < 4:
            e(f'v_mfma_f32_16x16x32_bf16 {rng("v", DQ, 4)}, {rng("v", a, 4)}, {rng("a", AWQ+4*t, 4)}, {rng("v", DQ, 4) if t else 0}')
        else:
            e(f'v_mfma_f32_16x16x32_bf16 {rng("v", DF, 4)}, {rng("v", a, 4)}, {rng("a", AFU+4*(t-4), 4)}, {rng("v", DF, 4) if t > 4 else 0}')
        if t == 3:
            for _ in range(ksp[4]): kspr()
    e(f'ds_write_b128 {vKO}, {rng("v", DQ, 4)}')
    vRF, vRQ, vSF, vSQ = 'v208', 'v209', 'v210', 'v211'
    e(f'''s_lshr_b32 {sT0}, {sW}, 1
          s_lshl_b32 {sT0}, {sT0}, 9
          s_and_b32 {sT1}, {sW}, 1
          s_lshl3_add_u32 {sT0}, {sT1}, {sT0}
          v_and_b32 {t3}, 31, {vL}
          v_lshl_add_u32 {vRF}, {t3}, 4, {sT0}
          s_lshl_b32 {sT0}, {sW}, 8
          v_lshl_add_u32 {vRQ}, {i}, 4, {sT0}
          ds_write_b128 {vKO}, {rng("v", DF, 4)} offset:4096
          s_lshl_b32 {sT1}, {sXc}, 5
          s_add_u32 {sT1}, {sT1}, {sJ}
          s_mul_i32 {sT1}, {sT1}, {FU_STRIDE}
          s_lshl1_add_u32 {sT1}, {sT0}, {sT1}
          s_add_u32 {sT1}, {sT1}, {WS_FU}
          v_and_b32 {t3}, 47, {vL}
          v_cmp_gt_u32 vcc, {sPB}, {t3}
          v_lshl_add_u32 {t3}, {i}, 1, {g}
          v_lshl_add_u32 {t3}, {t3}, 4, {sT1}
          v_mov_b32 {t5}, {OOB}
          v_cndmask_b32 {vSF}, {t5}, {t3}, vcc
          s_lshl3_add_u32 {sT1}, {sH}, {sS8}
          s_lshl_b32 {sT1}, {sT1}, 10
          s_add_u32 {sT1}, {sT1}, {WS_Q}
          v_add_u32 {t3}, {sT1}, {vRQ}
          v_cmp_gt_u32 vcc, 16, {vL}
          v_cndmask_b32 {vSQ}, {t5}, {t3}, vcc''')
    if 'pub' in off: e(f'v_mov_b32 {vSF}, {OOB}\nv_mov_b32 {vSQ}, {OOB}')
    stamp('head')
    e('s_waitcnt lgkmcnt(0)\ns_barrier')
    stamp('main,head')
    R0, R1 = 216, 232
    for k in range(4):
        e(f'ds_read_b128 {rng("v", R0+4*k, 4)}, {vRQ} offset:{1024*k}')
    for k in range(4):
        e(f'ds_read_b64 v[{R1+2*k}:{R1+2*k+1}], {vRF} offset:{4096+1024*k}')
    e(f'''s_add_u32 {sEp}, {sEp}, 1
          s_and_b32 {sT1}, {sEp}, {sM12}
          v_mov_b32 {vTA}, {sT1}
          v_xor_b32 {vTB}, {sXcc}, {vTA}
          s_xor_b32 {sXcc}, {sXcc}, {sEp}
          v_accvgpr_write_b32 a{AQA}, {vSQ}
          v_accvgpr_write_b32 a{AFA}, {vSF}
          s_waitcnt lgkmcnt(4)''')
    def tag(r, vts, m):
        for k, vt in enumerate(vts):
            e(f'v_bfi_b32 v{r+k}, {m}, {vt}, v{r+k}')
    pk('add', R0, R0, R0 + 4); pk('add', R0 + 2, R0 + 2, R0 + 6); pk('add', R0 + 8, R0 + 8, R0 + 12); pk('add', R0 + 10, R0 + 10, R0 + 14)
    pk('add', R0, R0, R0 + 8); pk('add', R0 + 2, R0 + 2, R0 + 10)
    tag(R0, [vTA, vTA, vTB, vTB], sM3)
    e.vmem(f'buffer_store_dwordx4 {rng("v", R0, 4)}, {vSQ}, {SWS}, 0 offen', 'pubq')
    e(f'''s_waitcnt lgkmcnt(0)
          v_add_f32 v{R1+8}, v{R1}, v{R1+2}
          v_add_f32 v{R1+9}, v{R1+4}, v{R1+6}
          v_add_f32 v{R1+10}, v{R1+1}, v{R1+3}
          v_add_f32 v{R1+11}, v{R1+5}, v{R1+7}''')
    tag(R1 + 8, [vTA, vTA, vTA, vTB], sM8)
    e.vmem(f'buffer_store_dwordx4 {rng("v", R1+8, 4)}, {vSF}, {SWS}, 0 offen', 'pubf')
    for k in range(4):
        e(f'v_accvgpr_write_b32 a{AQD+k}, v{R0+k}\nv_accvgpr_write_b32 a{AFD+k}, v{R1+8+k}')
    for _ in range(kpost[0]): kspr()

    e(f'''s_lshl2_add_u32 {sPB}, {sH}, {sS}
          s_lshl2_add_u32 {sT0}, {sB}, {sW}
          s_lshl_b32 {sT0}, {sT0}, 9
          s_add_u32 {sT0}, {sT0}, {sPB}
          s_lshl_b32 {sT0}, {sT0}, 7
          v_lshrrev_b32 {t2}, 2, {i}
          v_lshlrev_b32 {t2}, 14, {t2}
          v_and_b32 {t3}, 3, {vL}
          v_lshl_add_u32 {t2}, {t3}, 5, {t2}
          v_lshl_add_u32 {t2}, {g}, 4, {t2}
          v_add_u32 {vY}, {sT0}, {t2}
          s_lshl2_add_u32 {sT1}, {sBH}, {sS}
          s_lshl2_add_u32 {sT1}, {sT1}, {sW}
          s_lshl4_add_u32 {sT1}, {sT1}, {WS_ML}
          v_mov_b32 {t4}, {sT1}
          v_cmp_eq_u32 vcc, 0, {vL}
          v_mul_u32_u24 {t3}, 320, {t3}
          v_cndmask_b32 {vML}, {t5}, {t4}, vcc
          v_lshl_add_u32 {vOR}, {g}, 4, {t3}
          s_mul_i32 {sT0}, {sW}, 320
          s_add_u32 {sT0}, {sT0}, {LDS_O}
          v_and_b32 {t2}, 1, {g}
          v_lshlrev_b32 {t3}, 3, {t2}
          v_lshl_add_u32 {t3}, {i}, 4, {t3}
          v_add_u32 {vOW}, {sT0}, {t3}''')
    if cw == 4:
        e(f'''s_lshl2_add_u32 {sU}, {sHH}, {sS}
              s_lshr_b32 {sT1}, {sU}, 3
              s_lshl1_add_u32 {sT1}, {sXc}, {sT1}
              s_lshl4_add_u32 {sT1}, {sB}, {sT1}
              s_and_b32 {sT0}, {sU}, 7
              s_lshl_b32 {sT2}, {sT1}, 14
              s_lshl4_add_u32 {sT2}, {sT0}, {sT2}
              v_lshl_add_u32 {vCON}, {vL}, 7, {sT2}
              s_lshl3_add_u32 {sT1}, {sT1}, {sT0}
              s_lshl_b32 {sT1}, {sT1}, 3
              v_lshrrev_b32 {t3}, 1, {g}
              v_lshl_add_u32 {t2}, {t2}, 1, {t3}
              v_lshl_add_u32 {t2}, {t2}, 1, {sT1}
              v_cmp_eq_u32 vcc, 0, {i}
              v_cndmask_b32 {vOUT}, {t5}, {t2}, vcc''')
    else:
        LP = cw // 4
        lg = LP.bit_length() - 1
        e(f'''s_lshl2_add_u32 {sU}, {sHH}, {sS}
              s_lshr_b32 {sT1}, {sU}, 3
              s_lshl1_add_u32 {sT1}, {sXc}, {sT1}
              s_lshl4_add_u32 {sT1}, {sB}, {sT1}
              s_and_b32 {sT0}, {sU}, 7
              s_and_b32 {sCon}, {sU}, {LP-1}
              s_lshl_b32 {sT2}, {sT1}, 14
              s_lshl4_add_u32 {sT2}, {sT0}, {sT2}
              s_lshl_b32 {sS8}, {sW}, 12
              s_add_u32 {sT2}, {sT2}, {sS8}
              v_lshrrev_b32 {t3}, {lg}, {vL}
              v_lshl_add_u32 {t3}, {t3}, 7, {sT2}
              v_and_b32 {t4}, {LP-1}, {vL}
              v_lshl_add_u32 {vCON}, {t4}, 4, {t3}
              s_lshl3_add_u32 {sT1}, {sT1}, {sT0}
              s_lshl_b32 {sT1}, {sT1}, 3
              v_lshrrev_b32 {t3}, 1, {g}
              v_lshl_add_u32 {t2}, {t2}, 1, {t3}
              v_lshl_add_u32 {t2}, {i}, 2, {t2}
              v_lshl_add_u32 {t2}, {t2}, 1, {sT1}
              v_cmp_gt_u32 vcc, {LP}, {i}
              v_cndmask_b32 {vOUT}, {t5}, {t2}, vcc''')
    for _ in range(kpost[1]): kspr()
    e(f'''s_lshl_b32 {sT0}, {sH}, 13
          s_lshl_b32 {sT1}, {sB}, 9
          s_add_u32 {sT0}, {sT0}, {sT1}
          s_add_u32 {sT0}, {sT0}, {WS_Q}
          v_lshlrev_b32 {t2}, 10, {g}
          v_lshl_add_u32 {t2}, {i}, 4, {t2}
          v_add_u32 {vQG}, {sT0}, {t2}
          s_lshl_b32 {sT0}, {sW}, 8
          v_lshl_add_u32 {t2}, {i}, 4, {sT0}
          v_lshl_add_u32 {vWO}, {g}, 13, {t2}
          s_mul_i32 {sU}, {sU}, 12
          s_lshl_b32 {sNch}, {sNch}, 3
          s_lshl3_add_u32 {sT0}, {sC0}, {sU}
          s_lshl_b32 {sT0}, {sT0}, 10
          s_cmp_lt_u32 {sU}, {sNch}
          s_cselect_b32 {sT0}, {sT0}, {OOB}
          s_cselect_b32 {sU}, {sU}, 0
          v_lshl_add_u32 {t2}, {g}, 12, {t2}
          v_add_u32 {t2}, {sT0}, {t2}
          v_cmp_gt_u32 vcc, 3, {g}
          v_cndmask_b32 {vW2}, {t5}, {t2}, vcc''')
    for _ in range(kpost[2]): kspr()
    e(f'''v_and_b32 {t2}, 7, {vL}
          v_cmp_gt_u32 s[24:25], 6, {t2}
          v_lshl_add_u32 {t2}, {t2}, 1, {sU}
          s_movk_i32 {sT1}, {8*HB}
          s_cmp_ge_u32 {sU}, {sT1}
          s_cselect_b32 {sT0}, 0, {sT1}
          v_mov_b32 {t3}, {sT0}
          v_cndmask_b32 {t2}, {t3}, {t2}, s[24:25]
          v_cmp_le_u32 s[24:25], {sT1}, {t2}
          v_cmp_gt_u32 vcc, {sNch}, {t2}
          v_lshrrev_b32 {t4}, 3, {vL}
          v_cndmask_b32 {t3}, 0, 1, s[24:25]
          v_lshl_add_u32 {t4}, {t4}, 1, {t3}
          v_mul_u32_u24 {t4}, {FU_STRIDE}, {t4}
          v_mul_u32_u24 {t3}, {8*HB}, {t3}
          v_sub_u32 {t2}, {t2}, {t3}
          v_bfe_u32 {t3}, {t2}, 1, 1
          v_lshl_add_u32 {t4}, {t3}, 9, {t4}
          v_lshrrev_b32 {t2}, 2, {t2}
          v_lshl_add_u32 {t2}, {t2}, 4, {t4}
          s_mul_i32 {sT0}, {sXc}, {32*FU_STRIDE}
          s_lshl_b32 {sT1}, {sB}, 10
          s_add_u32 {sT0}, {sT0}, {sT1}
          s_add_u32 {sT0}, {sT0}, {WS_FU}
          v_add_u32 {t2}, {sT0}, {t2}
          v_cndmask_b32 {vFG}, {t5}, {t2}, vcc''')
    for nm, r in (('qg', vQG), ('w2', vW2), ('fg', vFG), ('mlpub', vML), ('wo', vWO), ('y', vY), ('con', vCON)):
        if nm in off: e(f'v_mov_b32 {r}, {OOB}')

    slow = []
    def orred(regsl, m, dst, full=()):
        rs = list(regsl)
        if len(rs) == 1:
            e(f'v_and_b32 {t2}, {m}, v{rs[0]}')
        else:
            if len(rs) == 2:
                e(f'v_or_b32 {t2}, v{rs[0]}, v{rs[1]}')
            else:
                e(f'v_or3_b32 {t2}, v{rs[0]}, v{rs[1]}, v{rs[2]}')
                rs = rs[3:]
                while rs:
                    if len(rs) == 1:
                        e(f'v_or_b32 {t2}, {t2}, v{rs[0]}'); rs = []
                    else:
                        e(f'v_or3_b32 {t2}, {t2}, v{rs[0]}, v{rs[1]}'); rs = rs[2:]
            e(f'v_and_b32 {t2}, {m}, {t2}')
        for r in full:
            e(f'v_or_b32 {t2}, {t2}, v{r}')
        e(f'v_cmp_ne_u32 {dst}, 0, {t2}')
    def untag(regsl, vts, m, dst='vcc'):
        for r, vt in zip(regsl, vts):
            e(f'v_xor_b32 v{r}, {vt}, v{r}')
        orred(regsl, m, dst)
    def checked(name, regsl, kinds, ta, tb, m, republish, reissue):
        if 'check' in off:
            return
        def test(sel):
            for r, k in zip(regsl, kinds):
                if k in sel:
                    e(f'v_xor_b32 v{r}, {dict(A=ta, B=tb, F=sEp, G=sXcc)[k]}, v{r}')
            orred([r for r, k in zip(regsl, kinds) if k in sel and k in 'AB'], m, 'vcc',
                  [r for r, k in zip(regsl, kinds) if k in sel and k in 'FG'])
        test('ABFG')
        e(f's_cbranch_vccnz L_slow_{name}\nL_ok_{name}:')
        def emit_slow():
            e(f'L_slow_{name}:')
            republish()
            if slowpen:
                e(f's_mov_b32 {sSpin}, {slowpen}\nL_pen_{name}:\ns_sleep 127\ns_sub_u32 {sSpin}, {sSpin}, 1\ns_cbranch_scc0 L_pen_{name}')
            e(f's_mov_b32 {sSpin}, {spin}')
            e(f'L_miss_{name}:')
            e(f's_mov_b32 {sT1}, 0\ns_sleep 1')
            e(f'L_retry_{name}:')
            if dbgcnt:
                e(f's_add_u32 {sCnt}, {sCnt}, {1 << (8 * ["flag", "q", "fu", "ml"].index(name))}')
            e(f's_sub_u32 {sSpin}, {sSpin}, 1\ns_cbranch_scc1 L_ok_{name}')
            reissue()
            e('s_waitcnt vmcnt(0)')
            test('AF')
            for r, k in zip(regsl, kinds):
                if k == 'B':
                    e(f'v_bfi_b32 v{r}, {m}, 0, v{r}')
            e(f's_cbranch_vccnz L_miss_{name}')
            e(f's_xor_b32 {sT1}, {sT1}, 1\ns_cbranch_scc1 L_retry_{name}\ns_branch L_ok_{name}')
        slow.append(emit_slow)

    state = dict(q=False, kproc=0, soft=False, vproc=0, wop=0, ffn=False, ml=False, budget=catch)
    KT = [26, 27, 24, 25, 20, 21, 22, 23]
    def kpair(n):
        a, b = f'v{KT[0]}', f'v{KT[1]}'
        for k in range(4):
            for r, m in ((a, n), (b, n + 1)):
                e(f'v_dot2_f32_bf16 {r}, v{kreg(m)+k}, v{Q[k]}, {r if k else 0}')
        d1 = f'v{KT[2 + ((n >> 1) & 1)]}'
        e(f'v_add_f32_dpp {d1}, {a}, {a} row_ror:8 row_mask:0xf bank_mask:0x3')
        e(f'v_add_f32_dpp {d1}, {b}, {b} row_ror:8 row_mask:0xf bank_mask:0xc')
        if not (n >> 1) & 1:
            return
        x, y = f'v{KT[2]}', f'v{KT[3]}'
        d2 = f'v{KT[4 + ((n >> 2) & 1)]}'
        e(f'v_add_f32_dpp {d2}, {x}, {x} row_shl:4 row_mask:0xf bank_mask:0x5')
        e(f'v_add_f32_dpp {d2}, {y}, {y} row_shr:4 row_mask:0xf bank_mask:0xa')
        if not (n >> 2) & 1:
            return
        x, y = f'v{KT[4]}', f'v{KT[5]}'
        d3 = f'v{KT[6 + ((n >> 3) & 1)]}'
        e(f'v_add_f32_dpp {x}, {x}, {x} quad_perm:[2,3,0,1] row_mask:0xf bank_mask:0xf')
        e(f'v_add_f32_dpp {y}, {y}, {y} quad_perm:[2,3,0,1] row_mask:0xf bank_mask:0xf')
        e(f'v_cndmask_b32 {d3}, {x}, {y}, {sMC}')
        if not (n >> 3) & 1:
            return
        x, y = f'v{KT[6]}', f'v{KT[7]}'
        s = f'v{S[n >> 4]}'
        e(f'v_add_f32_dpp {x}, {x}, {x} quad_perm:[1,0,3,2] row_mask:0xf bank_mask:0xf')
        e(f'v_add_f32_dpp {y}, {y}, {y} quad_perm:[1,0,3,2] row_mask:0xf bank_mask:0xf')
        e(f'v_cndmask_b32 {s}, {x}, {y}, {sMA}')
        bf16r(s, s)
        e(f'v_mul_f32 {s}, {SCALE}, {s}')
        bf16r(s, s)
    def mlstore(tagger, p):
        e(f'v_bfi_b32 {t2}, {sM12}, {vTA}, {vM}\nv_bfi_b32 {t3}, {sM12}, {vTA}, {vLs}\nv_mov_b32 {t4}, {sEp}\nv_mov_b32 {t5}, {sXcc}')
        tagger(f'buffer_store_dwordx4 v[30:33], {vML}, {SWS}, 0 offen {p}', 'mlpub')
    def softmax():
        stamp()
        e(f'v_max3_f32 {vM}, v{S[0]}, v{S[1]}, v{S[2]}\nv_max_f32 {vM}, {vM}, v{S[3]}')
        rowred('v_max_f32', vM)
        swapred('v_max_f32', vM, t2, 16)
        swapred('v_max_f32', vM, t2, 32)
        for k in range(4):
            e(f'v_sub_f32 v{S[k]}, v{S[k]}, {vM}')
        for k in range(4):
            e(f'v_mul_f32 v{S[k]}, {LOG2E}, v{S[k]}')
        for k in range(4):
            e(f'v_exp_f32 v{S[k]}, v{S[k]}')
        for k in range(4):
            e(f'v_cvt_pk_bf16_f32 v{Q[k]}, v{S[k]}, v{S[k]}')
        e(f'v_add_f32 {vLs}, v{S[0]}, v{S[1]}\nv_add_f32 {t2}, v{S[2]}, v{S[3]}\nv_add_f32 {vLs}, {vLs}, {t2}')
        abuild(0)
        rowred('v_add_f32', vLs)
        swapred('v_add_f32', vLs, t2, 16)
        swapred('v_add_f32', vLs, t2, 32)
        mlstore(e.vmem, '')
        state['soft'] = True
    def abuild(n):
        a = A[n & 1]
        for r in range(4):
            e(f'v_and_b32_dpp v{a+r}, v{Q[n >> 4]}, v{M[r]} row_newbcast:{bitrev4(n & 15)} row_mask:0xf bank_mask:0xf')
    def vstep(n):
        c = rng('v', ACC, 4) if n else '0'
        e(f'v_mfma_f32_16x16x32_bf16 {rng("v", ACC, 4)}, {rng("v", A[n & 1], 4)}, {rng("a", vreg(n), 4)}, {c}')
        if n < 63:
            abuild(n + 1)
    F, DY, STG, G2, W2S, FGR = 128, 96, 64, 48, 224, 240
    stg = lambda k: STG + 4 * (k % 8)
    def woperm(k):
        t, ee = k >> 3, k & 7
        if woa:
            for kk in (k, k + 1):
                for m in range(4):
                    e(f'v_accvgpr_read_b32 v{stg(kk)+m}, a{AWO+4*kk+m}')
        for m in range(4):
            for hi in range(2):
                e(f'v_perm_b32 v{F + 32*t + 4*(2*m+hi) + ee//2}, v{stg(k+1)+m}, v{stg(k)+m}, {sSelHi if hi else sSelLo}')
    plain = lambda s, t: e(s)
    AFG, AWO, AW2 = 236, 64, 192
    assert 4 * vring <= (AWO if woa else 192)
    def fgissue(tagger, p, acc=False):
        for m in range(2):
            if m:
                e(f's_mov_b32 {sT0}, {16*FU_STRIDE*m}')
            tagger(f'buffer_load_dwordx4 {rng("a", AFG+4*m, 4) if acc else rng("v", FGR+4*m, 4)}, {vFG}, {SWS}, {sT0 if m else 0} offen {p}', f'fg{m}')
    def republish(ad, aa):
        e(f'v_accvgpr_read_b32 {t2}, a{aa}\nbuffer_store_dwordx4 {rng("a", ad, 4)}, {t2}, {SWS}, 0 offen sc1')
    def ffn_down():
        if w2a:
            for k in range(16):
                e(f'v_accvgpr_read_b32 v{W2S+k}, a{AW2+k}')
        if n_fg is not None:
            for k in range(8):
                e(f'v_accvgpr_read_b32 v{FGR+k}, a{AFG+k}')
        e(f'''v_cmp_gt_u32 vcc, s58, {vFG}
              v_and_b32 {t4}, {sM8}, {vTA}
              v_and_b32 {t5}, {sM8}, {vTB}
              v_cndmask_b32 {t4}, 0, {t4}, vcc
              v_cndmask_b32 {t5}, 0, {t5}, vcc''')
        checked('fu', list(range(FGR, FGR + 8)), 'AAAB' * 2, t4, t5, sM8, lambda: republish(AFD, AFA), lambda: fgissue(plain, 'sc1'))
        for k in (0, 2):
            pk('add', FGR + k, FGR + k, FGR + 4 + k)
        for p in range(2):
            for m in range(4):
                for hi in range(2):
                    e(f'v_perm_b32 v{G2 + 2*(2*m+hi) + p}, v{W2S+8*p+4+m}, v{W2S+8*p+m}, {sSelHi if hi else sSelLo}')
        for k in range(4):
            e(f'v_add_f32_dpp v{FGR+k}, v{FGR+k}, v{FGR+k} row_ror:8 row_mask:0xf bank_mask:0xf')
        ga, up = f'v{FGR}', f'v{FGR+1}'
        e(f'''v_permlane32_swap_b32 v{FGR}, v{FGR+2}
              v_permlane32_swap_b32 v{FGR+1}, v{FGR+3}
              v_add_f32 {ga}, v{FGR}, v{FGR+2}
              v_add_f32 {up}, v{FGR+1}, v{FGR+3}''')
        swapred('v_add_f32', ga, t2, 16)
        swapred('v_add_f32', up, t3, 16)
        bf16r(ga, ga)
        bf16r(up, up)
        e(f'''v_mul_f32 {t2}, {LOG2E ^ 0x80000000}, {ga}
              v_exp_f32 {t2}, {t2}
              v_and_b32 {t4}, 3, {vL}
              v_add_f32 {t2}, 1.0, {t2}
              v_rcp_f32 {t2}, {t2}
              v_cmp_eq_u32 vcc, 0, {t4}
              v_mul_f32 {ga}, {ga}, {t2}
              v_cndmask_b32 {t4}, 0, -1, vcc''')
        bf16r(ga, ga)
        ha = FGR + 4
        e(f'''v_mul_f32 {ga}, {ga}, {up}
              v_mov_b32 v{ha}, 0
              v_mov_b32 {t2}, {ga}
              v_mov_b32 v{ha+1}, 0
              v_permlane32_swap_b32 {ga}, {t2}
              v_cvt_pk_bf16_f32 {ga}, {ga}, {t2}''')
        for gg in range(3):
            for p in range(2):
                e(f'v_and_b32_dpp v{ha+p}, {ga}, {t4} row_newbcast:{2*gg+p} row_mask:{hex(1 << gg)} bank_mask:0xf')
        for cc in range(8):
            e(f'v_mfma_f32_16x16x16_bf16 {rng("v", DY+4*cc, 4)}, v[{ha}:{ha+1}], v[{G2+2*cc}:{G2+2*cc+1}], 0')
        state['ffn'] = True
    def mlissue(tagger, p):
        e(f's_lshl_b32 {sT0}, {sBH}, 8\ns_add_u32 {sT0}, {sT0}, {WS_ML}\nv_lshl_add_u32 {vMG}, {i}, 4, {sT0}')
        if 'ml' in off: e(f'v_mov_b32 {vMG}, {OOB}')
        tagger(f'buffer_load_dwordx4 v[{S[0]}:{S[3]}], {vMG}, {SWS}, 0 offen {p}', 'ml')
    def mlcombine():
        checked('ml', S, 'AAFG', vTA, vTB, sM12, lambda: mlstore(plain, 'sc1'), lambda: mlissue(plain, 'sc1'))
        mi, li, mx = f'v{S[0]}', f'v{S[1]}', f'v{S[2]}'
        e(f'v_mov_b32 {mx}, {mi}')
        rowred('v_max_f32', mx)
        e(f'''v_sub_f32 {mi}, {mi}, {mx}
              v_sub_f32 {vF}, {vM}, {mx}
              v_mul_f32 {mi}, {LOG2E}, {mi}
              v_mul_f32 {vF}, {LOG2E}, {vF}
              v_exp_f32 {mi}, {mi}
              v_exp_f32 {vF}, {vF}
              v_mul_f32 {li}, {li}, {mi}''')
        rowred('v_add_f32', li)
        e(f'v_rcp_f32 {li}, {li}\nv_mul_f32 {vF}, {vF}, {li}')
        state['ml'] = True
    complete = lambda tag: tag in e.vm and e.vm.index(tag) < e.done
    def progress():
        if state['q'] and not state['soft']:
            c = 0
            while state['kproc'] < 64 and complete(f'K{state["kproc"]+1}') and c < state['budget']:
                kpair(state['kproc']); state['kproc'] += 2; c += 2
            state['budget'] = catch if c >= 2 or state['budget'] >= 2 * catch else state['budget'] + 1
            if state['kproc'] == 64:
                softmax()
        if state['soft']:
            while state['vproc'] < 64 and complete(f'V{state["vproc"]}'):
                vstep(state['vproc']); state['vproc'] += 1
            while state['wop'] < 32 and complete(f'wo{state["wop"]+1}'):
                if woa and not (state['vproc'] >= 2 + 3 * (state['wop'] // 2) and (state['wop'] < 24 or state['ffn'])):
                    break
                woperm(state['wop']); state['wop'] += 2
            if not state['ffn'] and complete('fg1') and complete('w23'):
                ffn_down()
            if not state['ml'] and complete('ml'):
                mlcombine()
    def window():
        d = D
        if Dend and f'V{nend}' in e.vm: d = Dend
        if Dk and 'V0' not in e.vm: d = Dk
        k = len(e.vm) - d
        if k >= e.done:
            e.wait(e.vm[k])
        progress()
    QG = 232
    def qissue(tagger, p):
        for k in range(4):
            if k == 2:
                e(f's_movk_i32 {sT0}, 0x1000')
            tagger(f'buffer_load_dwordx4 {rng("v", QG+4*k, 4)}, {vQG}, {SWS}, {sT0 if k >= 2 else 0} offen offset:{256*(k&1)} {p}', f'qg{k}')
    def qfinish():
        e(f'v_and_b32 {t4}, 7, {vTA}\nv_and_b32 {t5}, 7, {vTB}')
        e.wait('qg3')
        checked('q', list(range(QG, QG + 16)), 'AABB' * 4, t4, t5, sM3, lambda: republish(AQD, AQA), lambda: qissue(plain, 'sc1'))
        for k in range(0, 8, 2):
            pk('add', QG + k, QG + k, QG + 8 + k)
        for k in range(4):
            e(f'v_permlane32_swap_b32 v{QG+k}, v{QG+4+k}')
        for k in (0, 2):
            pk('add', QG + k, QG + k, QG + 4 + k)
        e(f'''v_permlane16_swap_b32 v{QG}, v{QG+2}
              v_permlane16_swap_b32 v{QG+1}, v{QG+3}
              v_pk_add_f32 v[{QG}:{QG+1}], v[{QG}:{QG+1}], v[{QG+2}:{QG+3}]
              v_cvt_pk_bf16_f32 v{Q[0]}, v{QG}, v{QG+1}
              v_cvt_pk_bf16_f32 v{Q[1]}, v{QG}, v{QG+1}
              v_permlane16_swap_b32 v{Q[0]}, v{Q[1]}
              v_mov_b32 v{Q[2]}, v{Q[0]}
              v_mov_b32 v{Q[3]}, v{Q[1]}
              v_permlane32_swap_b32 v{Q[0]}, v{Q[2]}
              v_permlane32_swap_b32 v{Q[1]}, v{Q[3]}''')
        state['q'] = True
        stamp()
    wosched = {}
    if woa:
        for k in range(32):
            wosched.setdefault(woa[0] + (k * (woa[1] - woa[0])) // 32, []).append(('wo', k))
    if w2a:
        for k in range(4):
            wosched.setdefault(w2a + 2 * k, []).append(('w2', k))
    def early(stepno):
        for kind, k in wosched.pop(stepno, []):
            window()
            if kind == 'wo':
                e(f's_mov_b32 {sT0}, {(k >> 3)*32768 + ((k >> 2) & 1)*4096}')
                e.vmem(f'buffer_load_dwordx4 {rng("a", AWO+4*k, 4)}, {vWO}, {SWO}, {sT0} offen offset:{1024*(k & 3)} {wpol}', f'wo{k}')
            else:
                e.vmem(f'buffer_load_dwordx4 {rng("a", AW2+4*k, 4)}, {vW2}, {SW2}, 0 offen offset:{1024*k} {wpol}', f'w2{k}')
    assert kn[0] <= n_q and all(k >= kn[0] for k in wosched)
    while kn[0] < 64:
        n = kn[0]
        if n == n_q:
            window(); qissue(e.vmem, gpol)
        if n == n_fg:
            window(); fgissue(e.vmem, gpol, acc=True)
        if n == n_q + gap:
            assert n <= (QG - KBASE) // 4
            qfinish()
        window()
        if n >= KRING:
            assert state['kproc'] > n - KRING, (n, state)
        kissue()
        early(n)
    extra = {}
    for k in range(4):
        if not w2a:
            extra.setdefault(ex0 + k, []).append(('w2', k))
    if n_fg is None:
        extra.setdefault(ex0 + 4, []).append(('fg', 0))
    extra.setdefault(ex0 + 5, []).append(('xres', 0))
    for k in range(0 if woa else 32):
        extra.setdefault(wo_start + (k * (wo_end - wo_start)) // 32, []).append(('wo', k))
    extra.setdefault(n_ml, []).append(('ml', 0))
    if tailpf is not None:
        extra.setdefault(tailpf, []).append(('tpf', 0))
    if ypf is not None:
        extra.setdefault(ypf, []).append(('ypf', 0))
    XR = 39
    nv, m = 0, None
    while nv < 64:
        window()
        assert nv < vring or state['vproc'] > nv - vring, (nv, state)
        e.vmem(f'buffer_load_dwordx4 {rng("a", vreg(nv), 4)}, {vKO}, {SV}, {sVoff} offen {pol}', f'V{nv}')
        if nv < 63:
            e(f's_addk_i32 {sVoff}, 0x1000\ns_and_b32 {sVoff}, {sVoff}, {sMask}')
        early(64 + nv)
        nv += 1
        if state['soft'] and m is None:
            m = 0
        if m is not None:
            for kind, k in extra.pop(m, []):
                window()
                if kind == 'w2':
                    e.vmem(f'buffer_load_dwordx4 {rng("v", W2S+4*k, 4)}, {vW2}, {SW2}, 0 offen offset:{1024*k} {wpol}', f'w2{k}')
                elif kind == 'fg':
                    fgissue(e.vmem, gpol)
                elif kind == 'xres':
                    e.vmem(f'buffer_load_ushort v{XR}, {vOUT}, {SX}, 0 offen {xpol}', 'xres')
                elif kind == 'ml':
                    mlissue(e.vmem, gpol)
                elif kind == 'ypf':
                    e(f's_cmp_lg_u32 {sCon}, 0\ns_cselect_b32 {sT0}, {OOB}, 0\nv_add_u32 {t3}, {sT0}, {vCON}')
                    for kk in range(cw // 8):
                        e.vmem(f'buffer_load_dwordx4 {rng("a", AWQ+4*kk, 4)}, {t3}, {SWS}, 0 offen offset:{(256 // cw) * 128 * kk} {ypfpol}', f'ypf{kk}')
                elif kind == 'tpf':
                    e(f's_lshl_b32 {sT0}, {sW}, 8\ns_add_u32 {sT0}, {sT0}, L_tail - L_pc\nv_lshl_add_u32 {t3}, {vL}, 2, {sT0}')
                    e.vmem(f'buffer_load_dword v{S[2]}, {t3}, {SCODE}, 0 offen', 'tpf')
                    assert state['ml']
                elif kind == 'wo':
                    assert k < 8 or state['wop'] > k - 8, (k, state)
                    assert k < 24 or state['ffn']
                    e(f's_mov_b32 {sT0}, {(k >> 3)*32768 + ((k >> 2) & 1)*4096}')
                    e.vmem(f'buffer_load_dwordx4 {rng("v", stg(k), 4)}, {vWO}, {SWO}, {sT0} offen offset:{1024*(k & 3)} {wpol}', f'wo{k}')
            m += 1
    assert not extra and not wosched, (extra, wosched)
    while state['vproc'] < 64:
        e.wait(f'V{state["vproc"]}')
        if state['vproc'] == 63:
            e('L_tail:')
            stamp('main,tail,head')
        progress()
    assert state['wop'] == 32 and state['ffn'] and state['ml'], state
    e(f'''v_mul_f32 v{ACC}, v{ACC}, {vF}
          v_mul_f32 v{ACC+1}, v{ACC+1}, {vF}
          v_mul_f32 v{ACC+2}, v{ACC+2}, {vF}
          v_mul_f32 v{ACC+3}, v{ACC+3}, {vF}
          v_cvt_pk_bf16_f32 v{ACC}, v{ACC}, v{ACC+1}
          v_cvt_pk_bf16_f32 v{ACC+1}, v{ACC+2}, v{ACC+3}
          ds_write_b64 {vOW}, v[{ACC}:{ACC+1}]''')
    stamp('tail')
    e('s_waitcnt lgkmcnt(0)\ns_barrier')
    stamp('tail')
    if stamps and stset == 'tail':
        e('s_waitcnt lgkmcnt(0)')
    AF = STG
    for t in range(4):
        e(f'ds_read_b128 {rng("v", AF+4*t, 4)}, {vOR} offset:{LDS_O+64*t}')
    Z = A[0]
    def tile_add(cc):
        pk('add', DY + 4 * cc, DY + 4 * cc, DY + 4 * cc + 2)
    def tile_fin(cc):
        d = DY + 4 * cc
        if cc < 4:
            e(f'v_add_f32 v{Z+cc}, v{d}, v{d+1}')
        else:
            e(f'v_add_f32_dpp v{Z+cc-4}, v{d}, v{d+1} quad_perm:[0,1,2,3] row_mask:0x2 bank_mask:0xf')
            e(f'v_bfi_b32 v{Z+cc-4}, {sM12}, {vTA}, v{Z+cc-4}')
    for cc in range(8):
        for t in range(4):
            if cc == 0:
                e(f's_waitcnt lgkmcnt({3-t})')
            e(f'v_mfma_f32_16x16x32_bf16 {rng("v", DY+4*cc, 4)}, {rng("v", AF+4*t, 4)}, {rng("v", F+32*t+4*cc, 4)}, {rng("v", DY+4*cc, 4)}')
            if cc >= 2 and t == 1:
                tile_add(cc - 2)
            if cc >= 2 and t == 3:
                tile_fin(cc - 2)
    tile_add(6)
    e('s_mov_b32 exec_hi, 0')
    tile_add(7)
    tile_fin(6)
    tile_fin(7)
    e(f'buffer_store_dwordx4 {rng("v", Z, 4)}, {vY}, {SWS}, 0 offen {ypol}')
    if wbl2 is not None:
        e(f's_lshl2_add_u32 {sT1}, s2, {sW}\ns_lshr_b32 {sT2}, {sT1}, 5\ns_and_b32 {sT1}, {sT1}, 3\ns_lshl2_add_u32 {sT1}, {sT2}, {sT1}\ns_cmp_lg_u32 {sT1}, {wbl2 * 4 + 1}\ns_cbranch_scc1 L_nowb\nbuffer_wbl2 sc1\nL_nowb:')
    if cw == 4:
        e(f's_cmp_lg_u32 {sW}, {stwave}\ns_cbranch_scc1 L_end')
        stamp('main,tail')
        if stamps and stset == 'tail':
            e('s_waitcnt vmcnt(0)')
            stamp('tail')
        C = STG
        mA, mB = 's[24:25]', 's[26:27]'
        e(f's_mov_b32 {sSpin}, {spin}\ns_movk_i32 {sT0}, 0x2000\ns_mov_b64 {mA}, -1\ns_mov_b64 {mB}, -1')
        if few:
            e(f's_lshr_b32 {sT1}, s2, 3\ns_and_b32 {sT1}, {sT1}, {few}\ns_cbranch_scc1 L_polled')
        e('L_poll:')
        e(f'''s_mov_b64 exec, {mA}
              buffer_load_dwordx4 {rng("v", C, 4)}, {vCON}, {SWS}, 0 offen sc1
              s_mov_b64 exec, {mB}
              buffer_load_dwordx4 {rng("v", C+4, 4)}, {vCON}, {SWS}, {sT0} offen sc1
              s_sub_u32 {sSpin}, {sSpin}, 1
              s_cbranch_scc1 L_polled
              s_mov_b64 exec, {mA}
              s_waitcnt vmcnt(0)''')
        untag(list(range(C, C + 4)), [vTA] * 4, sM12, dst=mA)
        e(f's_mov_b64 exec, {mB}')
        untag(list(range(C + 4, C + 8)), [vTA] * 4, sM12, dst=mB)
        e(f's_or_b64 vcc, {mA}, {mB}')
        if 'con' in off: e('s_branch L_polled')
        if asleep:
            thr, big = asleep
            e(f'''s_cbranch_scc0 L_polled
                  s_bcnt1_i32_b64 {sT1}, {mA}
                  s_bcnt1_i32_b64 {sT2}, {mB}
                  s_add_u32 {sT1}, {sT1}, {sT2}
                  s_cmp_le_u32 {sT1}, {thr}
                  s_cbranch_scc1 L_poll
                  s_sleep {big}
                  s_branch L_poll''')
        elif sleep:
            e(f's_cbranch_scc0 L_polled\ns_sleep {sleep}\ns_branch L_poll')
        else:
            e('s_cbranch_scc1 L_poll')
        e('L_polled:')
        e('s_mov_b64 exec, -1')
        stamp('main,tail')
        pk('add', C, C, C + 4); pk('add', C + 2, C + 2, C + 6)
        e(f'''v_lshlrev_b32 v{XR}, 16, v{XR}
              v_permlane32_swap_b32 v{C}, v{C+1}
              v_permlane32_swap_b32 v{C+2}, v{C+3}
              v_add_f32 v{C}, v{C}, v{C+1}
              v_add_f32 v{C+2}, v{C+2}, v{C+3}
              v_permlane16_swap_b32 v{C}, v{C+2}
              v_add_f32 v{C}, v{C}, v{C+2}''')
        rowred('v_add_f32', f'v{C}')
        e(f'''v_add_f32 v{C}, v{C}, v{XR}
              v_cvt_pk_bf16_f32 v{C}, v{C}, v{C}
              buffer_store_short v{C}, {vOUT}, {SOUT}, 0 offen''')
    else:
        LP = cw // 4
        NL = LP // 2
        step = (64 // LP) * 128
        C = STG
        mk = [f's[{68+2*k}:{69+2*k}]' for k in range(NL)]
        if stamps:
            e(f's_cmp_lg_u32 {sCon}, 0\ns_cselect_b32 {sT1}, {sW}, 0\ns_cmp_lg_u32 {sT1}, 0\ns_cbranch_scc1 L_end')
            stamp('main,tail,poll')
            if stset == 'poll':
                e('s_waitcnt lgkmcnt(0)\ns_mov_b64 s[6:7], s[4:5]\ns_mov_b64 s[8:9], s[4:5]\ns_mov_b64 s[10:11], s[4:5]\ns_mov_b64 s[12:13], s[4:5]')
            e(f's_mov_b32 {sSpin}, {spin}\ns_cmp_lg_u32 {sCon}, 0\ns_cbranch_scc1 L_nocon')
        else:
            e(f's_cmp_lg_u32 {sCon}, 0\ns_cbranch_scc1 L_end')
        e(f's_mov_b32 {sSpin}, {spin}')
        for k in range(NL):
            e(f's_mov_b64 {mk[k]}, -1')
        e('L_poll:')
        if stamps and stset == 'poll':
            e('s_memrealtime s[8:9]')
        for k in range(NL):
            e(f's_mov_b64 exec, {mk[k]}')
            e(f'buffer_load_dwordx4 {rng("v", C+4*k, 4)}, {vCON}, {SWS}, 0 offen offset:{step*k} {ppol}')
        e(f's_sub_u32 {sSpin}, {sSpin}, 1\ns_cbranch_scc1 L_polled')
        for k in range(NL):
            e(f's_mov_b64 exec, {mk[k]}')
            if k == 0:
                e('s_waitcnt vmcnt(0)')
                if stamps and stset == 'poll':
                    e(f's_cmp_lg_u32 {sSpin}, {spin-1}\ns_cbranch_scc1 L_nf\ns_memrealtime s[6:7]\nL_nf:')
                    nst[0] = 3
            untag(list(range(C + 4*k, C + 4*k + 4)), [vTA] * 4, sM12, dst=mk[k])
        if NL == 1:
            e(f's_or_b64 vcc, {mk[0]}, {mk[0]}')
        else:
            e(f's_or_b64 vcc, {mk[0]}, {mk[1]}')
            for k in range(2, NL):
                e(f's_or_b64 vcc, vcc, {mk[k]}')
        if pipe:
            thr, big, P, gapsl = pipe
            e(f'''s_cbranch_scc0 L_polled
                  s_bcnt1_i32_b64 {sT1}, vcc
                  s_cmp_le_u32 {sT1}, {thr}
                  s_cbranch_scc1 L_pp''')
            if big:
                e(f's_sleep {big}')
            e('s_branch L_poll\nL_pp:')
            def pissue(p):
                for k in range(NL):
                    e(f's_or_b64 exec, {mk[k]}, 1')
                    e(f'buffer_load_dwordx4 {rng("v", F+4*(NL*p+k), 4)}, {vCON}, {SWS}, 0 offen offset:{step*k} {ppol}')
            for p in range(P):
                pissue(p)
                if p < P - 1:
                    e(f's_sleep {gapsl + 1}')
            e('L_ppl:')
            for p in range(P):
                e(f's_waitcnt vmcnt({NL*(P-1)})')
                for k in range(NL):
                    e(f's_mov_b64 exec, {mk[k]}')
                    for r in range(4):
                        e(f'v_xor_b32 v{C+4*k+r}, {vTA}, v{F+4*(NL*p+k)+r}')
                    orred(list(range(C + 4*k, C + 4*k + 4)), sM12, mk[k])
                e(f's_or_b64 vcc, {mk[0]}, {mk[-1]}')
                for k in range(1, NL - 1):
                    e(f's_or_b64 vcc, vcc, {mk[k]}')
                e('s_cbranch_scc0 L_polled')
                pissue(p)
                if gapsl:
                    e(f's_sleep {gapsl}')
            e(f's_sub_u32 {sSpin}, {sSpin}, 1\ns_cbranch_scc0 L_ppl')
        elif asleep:
            thr, big = asleep
            e(f'''s_cbranch_scc0 L_polled
                  s_bcnt1_i32_b64 {sT1}, vcc
                  s_cmp_le_u32 {sT1}, {thr}
                  s_cbranch_scc1 L_poll
                  s_sleep {big}
                  s_branch L_poll''')
        elif sleep:
            e(f's_cbranch_scc0 L_polled\ns_sleep {sleep}\ns_branch L_poll')
        else:
            e('s_cbranch_scc1 L_poll')
        e('L_polled:')
        e('s_mov_b64 exec, -1')
        stamp('main,tail,poll')
        if NL == 4:
            pk('add', C, C, C + 4); pk('add', C + 8, C + 8, C + 12); pk('add', C + 2, C + 2, C + 6); pk('add', C + 10, C + 10, C + 14)
            pk('add', C, C, C + 8); pk('add', C + 2, C + 2, C + 10)
        elif NL == 2:
            pk('add', C, C, C + 4); pk('add', C + 2, C + 2, C + 6)
        e(f'''v_lshrrev_b32 {t2}, 2, {vKO}
              v_lshlrev_b32 {t3}, 2, {vL}
              v_permlane32_swap_b32 v{C}, v{C+1}
              v_permlane32_swap_b32 v{C+2}, v{C+3}
              v_add_f32 v{C}, v{C}, v{C+1}
              v_add_f32 v{C+2}, v{C+2}, v{C+3}
              v_lshlrev_b32 v{XR}, 16, v{XR}
              v_permlane16_swap_b32 v{C}, v{C+2}
              v_add_f32 v{C}, v{C}, v{C+2}''')
        for d in (8, 4, 2):
            if LP <= d:
                e(f'v_add_f32_dpp v{C}, v{C}, v{C} row_ror:{d} row_mask:0xf bank_mask:0xf')
        e(f'''ds_write_b32 {t2}, v{C}
              s_waitcnt lgkmcnt(0)
              s_barrier
              s_cmp_lg_u32 {sW}, {stwave}
              s_cbranch_scc1 L_end''')
        stamp('poll')
        e(f'''ds_read2st64_b32 v[{C}:{C+1}], {t3} offset0:0 offset1:1
              ds_read2st64_b32 v[{C+2}:{C+3}], {t3} offset0:2 offset1:3
              s_waitcnt lgkmcnt(0)''')
        pk('add', C, C, C + 2)
        e(f'''v_add_f32 v{C}, v{C}, v{C+1}
              v_add_f32 v{C}, v{C}, v{XR}
              v_cvt_pk_bf16_f32 v{C}, v{C}, v{C}
              buffer_store_short v{C}, {vOUT}, {SOUT}, 0 offen''')
    e(f'''s_cmp_eq_u32 s2, 0
          s_cselect_b32 {sT0}, {WS_EP}, {OOB}
          v_mov_b32 {t2}, {sEp}
          v_mov_b32 {t3}, {sT0}
          s_mov_b64 exec, 1
          buffer_store_dword {t2}, {t3}, {SWS}, 0 offen sc1''')
    if fixdur:
        e('s_cmp_lg_u32 s2, 0\ns_cbranch_scc1 L_end')
        if amp == -1:
            e(f's_waitcnt vmcnt(0)\ns_memrealtime s[24:25]\ns_waitcnt lgkmcnt(0)\ns_sub_u32 s1, s24, s100\ns_mul_i32 s1, s1, 10\ns_add_u32 s1, s1, {fixdur}')
        elif amp is not None:
            e(f's_waitcnt lgkmcnt(0)\ns_sub_u32 s1, s{stamp_regs[amp]}, s100\ns_mul_i32 s1, s1, 10\ns_add_u32 s1, s1, {fixdur}')
        else:
            e(f's_mov_b32 s1, {fixdur}')
        e('L_hold:\ns_memrealtime s[24:25]\ns_waitcnt lgkmcnt(0)\ns_sub_u32 s24, s24, s100\ns_cmp_lt_u32 s24, s1\ns_cbranch_scc1 L_hold\ns_endpgm')
    if stamps:
        if cw != 4:
            e(f's_branch L_st\nL_nocon:\ns_mov_b64 exec, 1\ns_waitcnt lgkmcnt(0)\ns_mov_b64 s[{stamp_regs[nst[0]-1]}:{stamp_regs[nst[0]-1]+1}], s[{stamp_regs[nst[0]-2]}:{stamp_regs[nst[0]-2]+1}]\nL_st:')
        stamp('tail')
        e('s_waitcnt vmcnt(0)')
        stamp('main,tail,head,poll')
        e(f's_waitcnt lgkmcnt(0)\ns_lshl_b32 s0, {sId}, 7\ns_add_u32 s0, s0, 0x20000000\nv_mov_b32 v0, 0')
        for k, r in enumerate([100] + stamp_regs[:nst[0]]):
            e(f'v_mov_b32 v2, s{r}\nv_mov_b32 v3, s{r+1}\nbuffer_store_dwordx2 v[2:3], v0, s[20:23], s0 offen offset:{8*k}')
        if clk:
            e(f's_memtime s[24:25]\ns_waitcnt lgkmcnt(0)\ns_sub_u32 s24, s24, s98\ns_sub_u32 {sSpin}, 400000, s24')
            e(f'v_mov_b32 v2, 0\nv_mov_b32 v3, {sSpin}\nbuffer_store_dwordx2 v[2:3], v0, s[20:23], s0 offen offset:120')
        if dbgcnt:
            e(f'v_mov_b32 v2, {sCnt}\nv_mov_b32 v3, {sSpin}\nbuffer_store_dwordx2 v[2:3], v0, s[20:23], s0 offen offset:120')
    e('L_end:\ns_endpgm')
    for f in slow:
        f()
    e('L_codeend:')
    e.raw('.section .rodata,"a"\n.p2align 6')
    e.raw(kernel_desc(K, 512, 102, accum=256))
    return e.text(), LDS, nst[0] + 1, e.nops

if __name__ == '__main__':
    cfgs = {}
    def add(name, **kw):
        cfgs[name] = kw
    exec(open(sys.argv[1]).read())
    BF = os.environ.get('BFLAGS', '-n 15 -c')
    os.makedirs('co', exist_ok=True)
    names = []
    for name, kw in cfgs.items():
        t, lds, ns, nops = gen(**kw)
        build(t, f'co/{name}')
        st = f'-t {ns}' if kw.get('stamps') else ''
        names.append(f'co/{name}.co')
        print(name, 'nops', nops, 'len', len(t))
    open('run.sh', 'w').write(f'#!/bin/bash\ntimeout 300 ./bench {BF} {st} {NAME}_kernel:256:256:{lds} ' + ' '.join(names) + '\n')
```

```python
import sys, os
from asmlib import NAME, kernel_desc, build
from emit import Emit

FU_STRIDE = 2176
WS_Y, WS_Q, WS_ML, WS_EP, WS_FU = 0, 0x80000, 0xC0000, 0xC4000, 0xC5000
WS_END = WS_FU + 256 * FU_STRIDE
OOB = 0x40000000
LOG2E = 0x3fb8aa3b
SCALE = 0x3db504f3

def bitrev4(n):
    return ((n & 1) << 3) | ((n & 2) << 1) | ((n & 4) >> 1) | ((n & 8) >> 3)

REF = 'cdna_kernels/' + NAME + '.s.ref'
HEADER = open(REF).read().split('; Override launch')[0] if os.path.exists(REF) else ''

NOTES = '''; Design: one launch, 256 workgroups (b, head, quarter of the 4096-key window) x 4 waves, one workgroup per CU.
;  - q projection and FFN-up are split over rows across workgroups and handed over through d_ws; FFN-down and
;    the output projection are applied per workgroup, and 4 output columns per workgroup are summed at the end.
;  - Every hand-off word carries this launch's tag (epoch word found in d_ws, + 1) in its low mantissa bits; a
;    reader that finds another tag (or a writer on another XCD) re-publishes write-through and polls.'''

def gen(D=9, k0=2, k1=2, ksp=(1, 1, 1, 1, 1), kpost=(1, 1, 1), n_q=24, gap=None, catch=3, wo_start=8, wo_end=50, n_ml=30,
        ex0=0, vring=16, rotmul=5, sleep=2, codepf=True, tailpf=None, pol='nt', wpol='nt', xpol='', gpol='', spin=400000,
        stamps=False, dbgcnt=False, off=(), permtest=False, fixdur=0, amp=None, stset='main', stwave=0, touch=(), Dend=None, nend=44, Dk=None, kw=False, ypol='sc1', asleep=(8, 6), n_fg=None, few=0, clk=False, cw=16, ypf=None, ypfpol='sc1', ppol='sc1', pipe=None, cpf0=True, wbl2=None, woa=None, w2a=None, al4=False, slowpen=0, opf=None, opol='', epol='', w2last=False, qpol=None, fpol=None, mpol=None):
    qpol, fpol, mpol = [gpol if p is None else p for p in (qpol, fpol, mpol)]
    gap = gap or D + 1
    e = Emit()
    K = NAME + '_kernel'
    LDS_O = 8192
    LDS = LDS_O + 2048
    sW = 's3'
    SK, SV, SWQ, SWO, SFU, SW2, SX, SWS, SOUT, SCODE = [f's[{b}:{b+3}]' for b in range(28, 68, 4)]
    sXc, sJ, sHH, sH, sB, sS, sS8, sBH, sC0, sNch, sT0, sT1, sT2, sKoff, sVoff, sMask, sPB, sU, sXcc, sId = [f's{n}' for n in range(68, 88)]
    sSelLo, sSelHi, sSpin, sM8, sM12, sM3 = [f's{n}' for n in range(88, 94)]
    sMC, sMA = 's[94:95]', 's[96:97]'
    sEp, sCon = 's0', 's1'
    sCnt = 's98'
    stamp_regs = [4, 6, 8, 10, 12, 14, 16, 18]
    nst = [0]
    def stamp(which='main'):
        if stamps and stset in which.split(','):
            r = stamp_regs[nst[0]]
            e(f's_memrealtime s[{r}:{r+1}]')
            nst[0] += 1
    vKO, M, Q, S, vY, vL = 'v1', [2, 3, 4, 5], [6, 7, 8, 9], [10, 11, 12, 13], 'v14', 'v15'
    A = [16, 20]
    ACC = 24
    g, i, t2, t3, t4, t5 = [f'v{k}' for k in range(28, 34)]
    vM, vLs = 'v34', 'v35'
    vXG, vWQ, vFU = 'v34', 'v35', 'v36'
    vMG, vML, vTB = 'v36', 'v37', 'v38'
    vQG, vWO, vW2, vFG, vOUT, vCON, vOW, vOR, vF = [f'v{k}' for k in range(39, 48)]
    vTA = 'v0'
    KBASE, KRING = 48, 52
    kreg = lambda n: KBASE + 4 * (n % KRING)
    vreg = lambda n: 4 * (n % vring)
    rng = lambda p, b, n: f'{p}[{b}:{b+n-1}]'
    AWQ, AFU = 192, 208
    AQD, AFD, AQA, AFA = 224, 228, 232, 233
    assert 4 * vring <= AWQ

    e.raw(HEADER.rstrip('\n'))
    e.raw(NOTES)
    e.raw(f'; @launch grid=(256,1,1) block=(256,1,1) lds={LDS}')
    e.raw('.amdgcn_target "amdgcn-amd-amdhsa--gfx950"\n.text')
    e.raw(f'.globl {K}\n.p2align 8\n.type {K},@function\n{K}:')
    e('s_load_dwordx16 s[4:19], s[0:1], 0\ns_load_dwordx8 s[20:27], s[0:1], 64')
    if stamps or fixdur:
        e('s_memrealtime s[100:101]')
    if clk:
        e('s_memtime s[98:99]')
    e('s_cmp_ge_u32 s2, 256\ns_cbranch_scc1 L_end')
    e(f's_mov_b32 {sId}, s2')
    if permtest:
        e(f's_lshr_b32 {sT0}, s2, 5\ns_and_b32 s2, s2, 31\ns_lshl_b32 s2, s2, 3\ns_or_b32 s2, s2, {sT0}')
    e(f'''s_and_b32 {sXc}, s2, 7
          s_lshr_b32 {sJ}, s2, 3
          s_lshr_b32 {sHH}, s2, 6
          s_lshl2_add_u32 {sH}, {sXc}, {sHH}
          s_bfe_u32 {sB}, s2, 0x10005
          s_and_b32 {sS}, {sJ}, 3
          s_lshl_b32 {sBH}, {sB}, 5
          s_add_u32 {sBH}, {sBH}, {sH}
          s_lshl4_add_u32 {sT0}, {sBH}, {sS}
          s_add_u32 {sT0}, {sT0}, 12
          s_lshl_b32 {sT0}, {sT0}, 18
          s_mul_i32 {sKoff}, s2, {rotmul << 12}
          s_mov_b32 {sMask}, 0x3ffff
          s_and_b32 {sKoff}, {sKoff}, {sMask}
          v_lshlrev_b32 {vKO}, 4, v0
          s_mov_b32 s30, 0x40000
          s_mov_b32 s31, 0x20000
          v_lshrrev_b32 v2, 6, v0
          v_and_b32 {vL}, 63, v0
          s_mov_b32 {sVoff}, {sKoff}
          v_readfirstlane_b32 {sW}, v2''')
    if codepf and cpf0:
        e(f'''s_getpc_b64 s[64:65]
              L_pc:
              s_mov_b32 s66, L_codeend - L_pc
              s_mov_b32 s67, 0x20000
              s_lshl_b32 {sT1}, {sJ}, 10
              v_lshl_add_u32 {t2}, v0, 2, {sT1}''')
        e.vmem(f'buffer_load_dword {vF}, {t2}, {SCODE}, 0 offen', 'cpf')
    e(f'''s_waitcnt lgkmcnt(0)
          s_add_u32 s28, s6, {sT0}
          s_addc_u32 s29, s7, 0''')
    if stamps and stset == 'head':
        e('s_memrealtime s[14:15]')
    kn = [0]
    def kissue():
        n = kn[0]
        e.vmem(f'buffer_load_dwordx4 {rng("v", kreg(n), 4)}, {vKO}, {SK}, {sKoff} offen {pol}', f'K{n}')
        e(f's_addk_i32 {sKoff}, 0x1000\ns_and_b32 {sKoff}, {sKoff}, {sMask}')
        kn[0] += 1
    def kspr():
        if kw:
            k = len(e.vm) - (Dk or D)
            if k >= e.done:
                e.wait(e.vm[k])
        kissue()
    for _ in range(k0):
        kissue()
    XL, XU, XG, DQ, DF = 208, 216, 232, 236, 240
    e(f'''s_load_dword {sEp}, s[26:27], {WS_EP}
          s_add_u32 s32, s8, {sT0}
          s_addc_u32 s33, s9, 0
          s_mov_b32 s52, s4
          s_mov_b32 s53, s5
          s_mov_b32 s54, 2048
          s_mov_b32 s55, 0x20000
          v_lshlrev_b32 {t2}, 5, {vL}''')
    e.vmem(f'buffer_load_dwordx4 {rng("v", XL, 4)}, {t2}, {SX}, 0 offen {xpol}', 'xl0')
    e.vmem(f'buffer_load_dwordx4 {rng("v", XL+4, 4)}, {t2}, {SX}, 0 offen offset:16 {xpol}', 'xl1')
    e(f'''s_and_b32 {sS8}, {sJ}, 7
          v_lshrrev_b32 {g}, 4, {vL}
          v_and_b32 {i}, 15, {vL}
          s_lshl_b32 {sT1}, {sS8}, 19
          s_lshl_b32 {sT2}, {sH}, 8
          s_add_u32 {sT1}, {sT1}, {sT2}
          s_add_u32 s36, s10, {sT1}
          s_addc_u32 s37, s11, 0
          s_mov_b32 s38, {63*8192+256}
          s_mov_b32 s39, 0x20000
          v_lshrrev_b32 {t3}, 4, v0
          v_and_b32 {t4}, 12, {t3}
          v_lshl_add_u32 {t3}, {t4}, 2, {g}
          v_lshlrev_b32 {t3}, 13, {t3}
          v_lshl_add_u32 {vWQ}, {i}, 4, {t3}''')
    if 'wq' in off: e(f'v_mov_b32 {vWQ}, {OOB}')
    for t in range(4):
        if t:
            e(f's_mov_b32 {sT2}, {32768*t}')
        e.vmem(f'buffer_load_dwordx4 {rng("a", AWQ+4*t, 4)}, {vWQ}, {SWQ}, {sT2 if t else 0} offen {wpol}', f'wq{t}')
    HB = 12 if al4 else 11
    if al4:
        e(f'''s_mul_i32 {sC0}, {sXc}, 43
              s_add_u32 {sNch}, {sC0}, 47
              s_add_u32 {sC0}, {sC0}, 4
              s_lshr_b32 {sC0}, {sC0}, 3
              s_lshr_b32 {sNch}, {sNch}, 3
              s_sub_u32 {sNch}, {sNch}, {sC0}
              s_lshl_b32 {sC0}, {sC0}, 2
              s_lshl_b32 {sNch}, {sNch}, 2''')
        assert [(43*x+47 >> 3) - (43*x+4 >> 3) for x in range(8)].count(6) == 3 and (43*8+4) >> 3 == 43
    else:
        e(f'''s_mul_i32 {sC0}, {sXc}, 43
              s_add_u32 {sC0}, {sC0}, 1
              s_lshr_b32 {sC0}, {sC0}, 1
              s_and_b32 {sT1}, {sXc}, 1
              s_sub_u32 {sNch}, 22, {sT1}''')
    e(f'''s_sub_u32 {sPB}, {sNch}, {HB}
          s_and_b32 {sT2}, {sJ}, 1
          s_cselect_b32 {sPB}, {sPB}, {HB}
          s_mul_i32 {sT2}, {sT2}, {HB}
          s_add_u32 {sT2}, {sT2}, {sC0}
          s_and_b32 {sT1}, {sW}, 1
          s_and_b32 {sT0}, {sJ}, 30
          s_add_u32 {sT1}, {sT1}, {sT0}
          s_lshl_b32 {sT1}, {sT1}, 4
          v_add_u32 {t3}, {sT1}, {g}
          v_mul_u32_u24 {t3}, 2752, {t3}
          v_cmp_gt_u32 vcc, {sPB}, {i}
          v_add_u32 {t4}, {sT2}, {i}
          v_lshl_add_u32 {t3}, {t4}, 4, {t3}
          v_mov_b32 {t5}, {OOB}
          v_cndmask_b32 {vFU}, {t5}, {t3}, vcc
          s_cmp_lt_u32 {sW}, 2
          s_cselect_b32 s44, s16, s18
          s_cselect_b32 s45, s17, s19
          s_mov_b32 s46, {512*2752}
          s_mov_b32 s47, 0x20000''')
    if 'fu' in off: e(f'v_mov_b32 {vFU}, {OOB}')
    for t in range(4):
        if t:
            e(f's_mov_b32 {sT2}, {11008*t}')
        e.vmem(f'buffer_load_dwordx4 {rng("a", AFU+4*t, 4)}, {vFU}, {SFU}, {sT2 if t else 0} offen {wpol}', f'fu{t}')
    e(f'''s_lshl2_add_u32 {sT0}, {sS8}, {sW}
          s_lshl_b32 {sT0}, {sT0}, 4
          v_and_b32 {t5}, 4, {vL}
          v_cmp_eq_u32 vcc, 0, {t5}
          v_mov_b32 {t4}, {sT0}
          v_mov_b32 {t5}, {sT1}
          v_and_b32 {t3}, 3, {vL}
          v_cndmask_b32 {t4}, {t5}, {t4}, vcc
          v_lshl_add_u32 {t3}, {t3}, 2, {g}
          v_bfe_u32 {t5}, {vL}, 3, 1
          v_add_u32 {t3}, {t3}, {t4}
          v_lshl_add_u32 {t3}, {t5}, 9, {t3}
          v_lshlrev_b32 {vXG}, 1, {t3}''')
    e.vmem(f'buffer_load_ushort v{XG}, {vXG}, {SX}, 0 offen {xpol}', 'xg')
    for _ in range(k1):
        kissue()
    e(f'''s_mov_b32 s34, 0x40000
          s_mov_b32 s35, 0x20000
          s_lshl_b32 {sT0}, {sH}, 17
          s_add_u32 s40, s12, {sT0}
          s_addc_u32 s41, s13, 0
          s_mov_b32 s42, 0x20000
          s_mov_b32 s43, 0x20000
          s_mov_b32 s48, s20
          s_mov_b32 s49, s21
          s_mov_b32 s50, {1376*1024}
          s_mov_b32 s51, 0x20000
          s_mov_b32 s56, s26
          s_mov_b32 s57, s27
          s_mov_b32 s58, {WS_END}
          s_mov_b32 s59, 0x20000
          s_mov_b32 s60, s22
          s_mov_b32 s61, s23
          s_mov_b32 s62, 2048
          s_mov_b32 s63, 0x20000''')
    if stamps:
        e('s_mov_b32 s20, s26\ns_mov_b32 s21, s27\ns_mov_b32 s22, 0x40000000\ns_mov_b32 s23, 0x20000')
    if (codepf or tailpf is not None) and not (codepf and cpf0):
        e('s_getpc_b64 s[64:65]\nL_pc:\ns_mov_b32 s66, L_codeend - L_pc\ns_mov_b32 s67, 0x20000')
    if touch:
        e(f'v_mov_b32 {t2}, 0')
        for k, nm in enumerate(touch):
            srd = dict(V=SV, wo=SWO, w2=SW2, ws=SWS, out=SOUT)[nm]
            e.vmem(f'buffer_load_dword {vF}, {t2}, {srd}, 0 offen nt', 'touch' + nm)
    if codepf and not cpf0:
        e(f'''s_lshl2_add_u32 {sT0}, {sJ}, {sW}
              s_lshl_b32 {sT0}, {sT0}, 8
              v_lshl_add_u32 {t2}, {vL}, 2, {sT0}''')
        e.vmem(f'buffer_load_dword {vF}, {t2}, {SCODE}, 0 offen', 'cpf')
    e(f'''v_and_b32 {t2}, 1, {vL}
          v_lshlrev_b32 {t2}, 4, {t2}
          v_mov_b32 {t3}, 0xffff
          v_lshlrev_b32 {t2}, {t2}, {t3}
          v_bfe_u32 {t3}, {vL}, 1, 2
          v_cmp_eq_u32 s[4:5], 0, {t3}
          v_cmp_eq_u32 s[6:7], 1, {t3}
          v_cmp_eq_u32 s[8:9], 2, {t3}
          v_cmp_eq_u32 s[10:11], 3, {t3}''')
    for r in range(4):
        e(f'v_cndmask_b32 v{M[r]}, 0, {t2}, s[{4+2*r}:{5+2*r}]')
    e(f'''s_mov_b32 s94, 0xcccccccc
          s_mov_b32 s95, 0xcccccccc
          s_mov_b32 s96, 0xaaaaaaaa
          s_mov_b32 s97, 0xaaaaaaaa
          s_mov_b32 {sSelLo}, 0x05040100
          s_mov_b32 {sSelHi}, 0x07060302
          s_movk_i32 {sM8}, 0xff
          s_movk_i32 {sM12}, 0xfff
          s_movk_i32 {sM3}, 7
          s_getreg_b32 {sXcc}, hwreg(HW_REG_XCC_ID, 0, 4)''')
    if dbgcnt:
        e(f's_mov_b32 {sCnt}, 0')

    def rowred(op, r):
        for c in ('row_ror:8', 'row_ror:4', 'row_ror:2', 'row_ror:1'):
            e(f'{op}_dpp {r}, {r}, {r} {c} row_mask:0xf bank_mask:0xf')
    def swapred(op, r, tmp, n):
        e(f'v_mov_b32 {tmp}, {r}\nv_permlane{n}_swap_b32 {r}, {tmp}\n{op} {r}, {r}, {tmp}')
    def bf16r(dst, src):
        e(f'v_cvt_pk_bf16_f32 {dst}, {src}, {src}\nv_and_b32 {dst}, 0xffff0000, {dst}')
    def pk(op, d, a, b):
        e(f'v_pk_{op}_f32 v[{d}:{d+1}], v[{a}:{a+1}], v[{b}:{b+1}]')

    if stamps and stset == 'head':
        e.wait('K0')
        e('s_waitcnt lgkmcnt(0)\ns_mov_b64 s[4:5], s[14:15]')
        nst[0] = 1
        stamp('head')
    e.wait('xl1')
    stamp('main,head')
    for k in range(8):
        e(f'v_lshlrev_b32 v{XU+2*k}, 16, v{XL+k}\nv_and_b32 v{XU+2*k+1}, 0xffff0000, v{XL+k}')
    for k in range(4):
        pk('add', XL + 2 * k, XU + 4 * k, XU + 4 * k + 2)
    pk('add', XL, XL, XL + 2); pk('add', XL + 4, XL + 4, XL + 6); pk('add', XL, XL, XL + 4)
    e(f'v_add_f32 {t2}, v{XL}, v{XL+1}')
    for _ in range(ksp[0]): kspr()
    rowred('v_add_f32', t2)
    swapred('v_add_f32', t2, t3, 16)
    e(f'v_mul_f32 {t2}, 0x3b000000, {t2}')
    for k in range(0, 16, 2):
        e(f'v_pk_add_f32 v[{XU+k}:{XU+k+1}], v[{XU+k}:{XU+k+1}], v[30:31] op_sel_hi:[1,0] neg_lo:[0,1] neg_hi:[0,1]')
    for _ in range(ksp[1]): kspr()
    pk('mul', XL, XU, XU); pk('mul', XL + 2, XU + 2, XU + 2)
    for k in range(4, 16, 4):
        e(f'v_pk_fma_f32 v[{XL}:{XL+1}], v[{XU+k}:{XU+k+1}], v[{XU+k}:{XU+k+1}], v[{XL}:{XL+1}]')
        e(f'v_pk_fma_f32 v[{XL+2}:{XL+3}], v[{XU+k+2}:{XU+k+3}], v[{XU+k+2}:{XU+k+3}], v[{XL+2}:{XL+3}]')
    pk('add', XL, XL, XL + 2)
    e(f'v_add_f32 {t4}, v{XL}, v{XL+1}')
    for _ in range(ksp[2]): kspr()
    rowred('v_add_f32', t4)
    swapred('v_add_f32', t4, t3, 16)
    e(f'v_mul_f32 {t4}, 0x3b000000, {t4}')
    bf16r(t2, t2)
    bf16r(t4, t4)
    e(f'v_add_f32 {t4}, 0x3727c5ac, {t4}')
    bf16r(t4, t4)
    e(f'v_sqrt_f32 {t4}, {t4}')
    bf16r(t4, t4)
    e(f'''v_mov_b32 {t3}, {t2}
          v_mov_b32 {t5}, {t4}
          v_and_b32 v{XL}, 8, {vL}
          v_permlane32_swap_b32 {t2}, {t3}
          v_permlane32_swap_b32 {t4}, {t5}
          v_cmp_eq_u32 vcc, 0, v{XL}
          v_cndmask_b32 {t2}, {t3}, {t2}, vcc
          v_cndmask_b32 {t4}, {t5}, {t4}, vcc''')
    e.wait('xg')
    XN = f'v{XG}'
    e(f'v_lshlrev_b32 {XN}, 16, {XN}\nv_sub_f32 {XN}, {XN}, {t2}\nv_rcp_f32 {t5}, {t4}')
    bf16r(XN, XN)
    e(f'''v_mul_f32 {t2}, {XN}, {t5}
          v_fma_f32 {t3}, -{t2}, {t4}, {XN}
          v_fmac_f32 {t2}, {t3}, {t5}
          v_cvt_pk_bf16_f32 {XN}, {t2}, {t2}''')
    for _ in range(ksp[3]): kspr()
    for t in range(8):
        a = A[t & 1]
        for r in range(4):
            e(f'v_and_b32_dpp v{a+r}, {XN}, v{M[r]} row_newbcast:{t} row_mask:0xf bank_mask:0x3')
        for r in range(4):
            e(f'v_and_b32_dpp v{a+r}, {XN}, v{M[r]} row_newbcast:{t+8} row_mask:0xf bank_mask:0xc')
        if t < 4:
            e(f'v_mfma_f32_16x16x32_bf16 {rng("v", DQ, 4)}, {rng("v", a, 4)}, {rng("a", AWQ+4*t, 4)}, {rng("v", DQ, 4) if t else 0}')
        else:
            e(f'v_mfma_f32_16x16x32_bf16 {rng("v", DF, 4)}, {rng("v", a, 4)}, {rng("a", AFU+4*(t-4), 4)}, {rng("v", DF, 4) if t > 4 else 0}')
        if t == 3:
            for _ in range(ksp[4]): kspr()
    e(f'ds_write_b128 {vKO}, {rng("v", DQ, 4)}')
    vRF, vRQ, vSF, vSQ = 'v208', 'v209', 'v210', 'v211'
    e(f'''s_lshr_b32 {sT0}, {sW}, 1
          s_lshl_b32 {sT0}, {sT0}, 9
          s_and_b32 {sT1}, {sW}, 1
          s_lshl3_add_u32 {sT0}, {sT1}, {sT0}
          v_and_b32 {t3}, 31, {vL}
          v_lshl_add_u32 {vRF}, {t3}, 4, {sT0}
          s_lshl_b32 {sT0}, {sW}, 8
          v_lshl_add_u32 {vRQ}, {i}, 4, {sT0}
          ds_write_b128 {vKO}, {rng("v", DF, 4)} offset:4096
          s_lshl_b32 {sT1}, {sXc}, 5
          s_add_u32 {sT1}, {sT1}, {sJ}
          s_mul_i32 {sT1}, {sT1}, {FU_STRIDE}
          s_lshl1_add_u32 {sT1}, {sT0}, {sT1}
          s_add_u32 {sT1}, {sT1}, {WS_FU}
          v_and_b32 {t3}, 47, {vL}
          v_cmp_gt_u32 vcc, {sPB}, {t3}
          v_lshl_add_u32 {t3}, {i}, 1, {g}
          v_lshl_add_u32 {t3}, {t3}, 4, {sT1}
          v_mov_b32 {t5}, {OOB}
          v_cndmask_b32 {vSF}, {t5}, {t3}, vcc
          s_lshl3_add_u32 {sT1}, {sH}, {sS8}
          s_lshl_b32 {sT1}, {sT1}, 10
          s_add_u32 {sT1}, {sT1}, {WS_Q}
          v_add_u32 {t3}, {sT1}, {vRQ}
          v_cmp_gt_u32 vcc, 16, {vL}
          v_cndmask_b32 {vSQ}, {t5}, {t3}, vcc''')
    if 'pub' in off: e(f'v_mov_b32 {vSF}, {OOB}\nv_mov_b32 {vSQ}, {OOB}')
    stamp('head')
    e('s_waitcnt lgkmcnt(0)\ns_barrier')
    stamp('main,head')
    R0, R1 = 216, 232
    for k in range(4):
        e(f'ds_read_b128 {rng("v", R0+4*k, 4)}, {vRQ} offset:{1024*k}')
    for k in range(4):
        e(f'ds_read_b64 v[{R1+2*k}:{R1+2*k+1}], {vRF} offset:{4096+1024*k}')
    e(f'''s_add_u32 {sEp}, {sEp}, 1
          s_and_b32 {sT1}, {sEp}, {sM12}
          v_mov_b32 {vTA}, {sT1}
          v_xor_b32 {vTB}, {sXcc}, {vTA}
          s_xor_b32 {sXcc}, {sXcc}, {sEp}
          v_accvgpr_write_b32 a{AQA}, {vSQ}
          v_accvgpr_write_b32 a{AFA}, {vSF}
          s_waitcnt lgkmcnt(4)''')
    def tag(r, vts, m):
        for k, vt in enumerate(vts):
            e(f'v_bfi_b32 v{r+k}, {m}, {vt}, v{r+k}')
    pk('add', R0, R0, R0 + 4); pk('add', R0 + 2, R0 + 2, R0 + 6); pk('add', R0 + 8, R0 + 8, R0 + 12); pk('add', R0 + 10, R0 + 10, R0 + 14)
    pk('add', R0, R0, R0 + 8); pk('add', R0 + 2, R0 + 2, R0 + 10)
    tag(R0, [vTA, vTA, vTB, vTB], sM3)
    e.vmem(f'buffer_store_dwordx4 {rng("v", R0, 4)}, {vSQ}, {SWS}, 0 offen', 'pubq')
    e(f'''s_waitcnt lgkmcnt(0)
          v_add_f32 v{R1+8}, v{R1}, v{R1+2}
          v_add_f32 v{R1+9}, v{R1+4}, v{R1+6}
          v_add_f32 v{R1+10}, v{R1+1}, v{R1+3}
          v_add_f32 v{R1+11}, v{R1+5}, v{R1+7}''')
    tag(R1 + 8, [vTA, vTA, vTA, vTB], sM8)
    e.vmem(f'buffer_store_dwordx4 {rng("v", R1+8, 4)}, {vSF}, {SWS}, 0 offen', 'pubf')
    for k in range(4):
        e(f'v_accvgpr_write_b32 a{AQD+k}, v{R0+k}\nv_accvgpr_write_b32 a{AFD+k}, v{R1+8+k}')
    for _ in range(kpost[0]): kspr()

    e(f'''s_lshl2_add_u32 {sPB}, {sH}, {sS}
          s_lshl2_add_u32 {sT0}, {sB}, {sW}
          s_lshl_b32 {sT0}, {sT0}, 9
          s_add_u32 {sT0}, {sT0}, {sPB}
          s_lshl_b32 {sT0}, {sT0}, 7
          v_lshrrev_b32 {t2}, 2, {i}
          v_lshlrev_b32 {t2}, 14, {t2}
          v_and_b32 {t3}, 3, {vL}
          v_lshl_add_u32 {t2}, {t3}, 5, {t2}
          v_lshl_add_u32 {t2}, {g}, 4, {t2}
          v_add_u32 {vY}, {sT0}, {t2}
          s_lshl2_add_u32 {sT1}, {sBH}, {sS}
          s_lshl2_add_u32 {sT1}, {sT1}, {sW}
          s_lshl4_add_u32 {sT1}, {sT1}, {WS_ML}
          v_mov_b32 {t4}, {sT1}
          v_cmp_eq_u32 vcc, 0, {vL}
          v_mul_u32_u24 {t3}, 320, {t3}
          v_cndmask_b32 {vML}, {t5}, {t4}, vcc
          v_lshl_add_u32 {vOR}, {g}, 4, {t3}
          s_mul_i32 {sT0}, {sW}, 320
          s_add_u32 {sT0}, {sT0}, {LDS_O}
          v_and_b32 {t2}, 1, {g}
          v_lshlrev_b32 {t3}, 3, {t2}
          v_lshl_add_u32 {t3}, {i}, 4, {t3}
          v_add_u32 {vOW}, {sT0}, {t3}''')
    if cw == 4:
        e(f'''s_lshl2_add_u32 {sU}, {sHH}, {sS}
              s_lshr_b32 {sT1}, {sU}, 3
              s_lshl1_add_u32 {sT1}, {sXc}, {sT1}
              s_lshl4_add_u32 {sT1}, {sB}, {sT1}
              s_and_b32 {sT0}, {sU}, 7
              s_lshl_b32 {sT2}, {sT1}, 14
              s_lshl4_add_u32 {sT2}, {sT0}, {sT2}
              v_lshl_add_u32 {vCON}, {vL}, 7, {sT2}
              s_lshl3_add_u32 {sT1}, {sT1}, {sT0}
              s_lshl_b32 {sT1}, {sT1}, 3
              v_lshrrev_b32 {t3}, 1, {g}
              v_lshl_add_u32 {t2}, {t2}, 1, {t3}
              v_lshl_add_u32 {t2}, {t2}, 1, {sT1}
              v_cmp_eq_u32 vcc, 0, {i}
              v_cndmask_b32 {vOUT}, {t5}, {t2}, vcc''')
    else:
        LP = cw // 4
        lg = LP.bit_length() - 1
        e(f'''s_lshl2_add_u32 {sU}, {sHH}, {sS}
              s_lshr_b32 {sT1}, {sU}, 3
              s_lshl1_add_u32 {sT1}, {sXc}, {sT1}
              s_lshl4_add_u32 {sT1}, {sB}, {sT1}
              s_and_b32 {sT0}, {sU}, 7
              s_and_b32 {sCon}, {sU}, {LP-1}
              s_lshl_b32 {sT2}, {sT1}, 14
              s_lshl4_add_u32 {sT2}, {sT0}, {sT2}
              s_lshl_b32 {sS8}, {sW}, 12
              s_add_u32 {sT2}, {sT2}, {sS8}
              v_lshrrev_b32 {t3}, {lg}, {vL}
              v_lshl_add_u32 {t3}, {t3}, 7, {sT2}
              v_and_b32 {t4}, {LP-1}, {vL}
              v_lshl_add_u32 {vCON}, {t4}, 4, {t3}
              s_lshl3_add_u32 {sT1}, {sT1}, {sT0}
              s_lshl_b32 {sT1}, {sT1}, 3
              v_lshrrev_b32 {t3}, 1, {g}
              v_lshl_add_u32 {t2}, {t2}, 1, {t3}
              v_lshl_add_u32 {t2}, {i}, 2, {t2}
              v_lshl_add_u32 {t2}, {t2}, 1, {sT1}
              v_cmp_gt_u32 vcc, {LP}, {i}
              v_cndmask_b32 {vOUT}, {t5}, {t2}, vcc''')
    for _ in range(kpost[1]): kspr()
    e(f'''s_lshl_b32 {sT0}, {sH}, 13
          s_lshl_b32 {sT1}, {sB}, 9
          s_add_u32 {sT0}, {sT0}, {sT1}
          s_add_u32 {sT0}, {sT0}, {WS_Q}
          v_lshlrev_b32 {t2}, 10, {g}
          v_lshl_add_u32 {t2}, {i}, 4, {t2}
          v_add_u32 {vQG}, {sT0}, {t2}
          s_lshl_b32 {sT0}, {sW}, 8
          v_lshl_add_u32 {t2}, {i}, 4, {sT0}
          v_lshl_add_u32 {vWO}, {g}, 13, {t2}
          s_mul_i32 {sU}, {sU}, 12
          s_lshl_b32 {sNch}, {sNch}, 3
          s_lshl3_add_u32 {sT0}, {sC0}, {sU}
          s_lshl_b32 {sT0}, {sT0}, 10
          s_cmp_lt_u32 {sU}, {sNch}
          s_cselect_b32 {sT0}, {sT0}, {OOB}
          s_cselect_b32 {sU}, {sU}, 0
          v_lshl_add_u32 {t2}, {g}, 12, {t2}
          v_add_u32 {t2}, {sT0}, {t2}
          v_cmp_gt_u32 vcc, 3, {g}
          v_cndmask_b32 {vW2}, {t5}, {t2}, vcc''')
    for _ in range(kpost[2]): kspr()
    e(f'''v_and_b32 {t2}, 7, {vL}
          v_cmp_gt_u32 s[24:25], 6, {t2}
          v_lshl_add_u32 {t2}, {t2}, 1, {sU}
          s_movk_i32 {sT1}, {8*HB}
          s_cmp_ge_u32 {sU}, {sT1}
          s_cselect_b32 {sT0}, 0, {sT1}
          v_mov_b32 {t3}, {sT0}
          v_cndmask_b32 {t2}, {t3}, {t2}, s[24:25]
          v_cmp_le_u32 s[24:25], {sT1}, {t2}
          v_cmp_gt_u32 vcc, {sNch}, {t2}
          v_lshrrev_b32 {t4}, 3, {vL}
          v_cndmask_b32 {t3}, 0, 1, s[24:25]
          v_lshl_add_u32 {t4}, {t4}, 1, {t3}
          v_mul_u32_u24 {t4}, {FU_STRIDE}, {t4}
          v_mul_u32_u24 {t3}, {8*HB}, {t3}
          v_sub_u32 {t2}, {t2}, {t3}
          v_bfe_u32 {t3}, {t2}, 1, 1
          v_lshl_add_u32 {t4}, {t3}, 9, {t4}
          v_lshrrev_b32 {t2}, 2, {t2}
          v_lshl_add_u32 {t2}, {t2}, 4, {t4}
          s_mul_i32 {sT0}, {sXc}, {32*FU_STRIDE}
          s_lshl_b32 {sT1}, {sB}, 10
          s_add_u32 {sT0}, {sT0}, {sT1}
          s_add_u32 {sT0}, {sT0}, {WS_FU}
          v_add_u32 {t2}, {sT0}, {t2}
          v_cndmask_b32 {vFG}, {t5}, {t2}, vcc''')
    for nm, r in (('qg', vQG), ('w2', vW2), ('fg', vFG), ('mlpub', vML), ('wo', vWO), ('y', vY), ('con', vCON)):
        if nm in off: e(f'v_mov_b32 {r}, {OOB}')

    slow = []
    def orred(regsl, m, dst, full=()):
        rs = list(regsl)
        if len(rs) == 1:
            e(f'v_and_b32 {t2}, {m}, v{rs[0]}')
        else:
            if len(rs) == 2:
                e(f'v_or_b32 {t2}, v{rs[0]}, v{rs[1]}')
            else:
                e(f'v_or3_b32 {t2}, v{rs[0]}, v{rs[1]}, v{rs[2]}')
                rs = rs[3:]
                while rs:
                    if len(rs) == 1:
                        e(f'v_or_b32 {t2}, {t2}, v{rs[0]}'); rs = []
                    else:
                        e(f'v_or3_b32 {t2}, {t2}, v{rs[0]}, v{rs[1]}'); rs = rs[2:]
            e(f'v_and_b32 {t2}, {m}, {t2}')
        for r in full:
            e(f'v_or_b32 {t2}, {t2}, v{r}')
        e(f'v_cmp_ne_u32 {dst}, 0, {t2}')
    def untag(regsl, vts, m, dst='vcc'):
        for r, vt in zip(regsl, vts):
            e(f'v_xor_b32 v{r}, {vt}, v{r}')
        orred(regsl, m, dst)
    def checked(name, regsl, kinds, ta, tb, m, republish, reissue):
        if 'check' in off:
            return
        def test(sel):
            for r, k in zip(regsl, kinds):
                if k in sel:
                    e(f'v_xor_b32 v{r}, {dict(A=ta, B=tb, F=sEp, G=sXcc)[k]}, v{r}')
            orred([r for r, k in zip(regsl, kinds) if k in sel and k in 'AB'], m, 'vcc',
                  [r for r, k in zip(regsl, kinds) if k in sel and k in 'FG'])
        test('ABFG')
        e(f's_cbranch_vccnz L_slow_{name}\nL_ok_{name}:')
        def emit_slow():
            e(f'L_slow_{name}:')
            republish()
            if slowpen:
                e(f's_mov_b32 {sSpin}, {slowpen}\nL_pen_{name}:\ns_sleep 127\ns_sub_u32 {sSpin}, {sSpin}, 1\ns_cbranch_scc0 L_pen_{name}')
            e(f's_mov_b32 {sSpin}, {spin}')
            e(f'L_miss_{name}:')
            e(f's_mov_b32 {sT1}, 0\ns_sleep 1')
            e(f'L_retry_{name}:')
            if dbgcnt:
                e(f's_add_u32 {sCnt}, {sCnt}, {1 << (8 * ["flag", "q", "fu", "ml"].index(name))}')
            e(f's_sub_u32 {sSpin}, {sSpin}, 1\ns_cbranch_scc1 L_ok_{name}')
            reissue()
            e('s_waitcnt vmcnt(0)')
            test('AF')
            for r, k in zip(regsl, kinds):
                if k == 'B':
                    e(f'v_bfi_b32 v{r}, {m}, 0, v{r}')
            e(f's_cbranch_vccnz L_miss_{name}')
            e(f's_xor_b32 {sT1}, {sT1}, 1\ns_cbranch_scc1 L_retry_{name}\ns_branch L_ok_{name}')
        slow.append(emit_slow)

    state = dict(q=False, kproc=0, soft=False, vproc=0, wop=0, ffn=False, ml=False, budget=catch)
    KT = [26, 27, 24, 25, 20, 21, 22, 23]
    def kpair(n):
        a, b = f'v{KT[0]}', f'v{KT[1]}'
        for k in range(4):
            for r, m in ((a, n), (b, n + 1)):
                e(f'v_dot2_f32_bf16 {r}, v{kreg(m)+k}, v{Q[k]}, {r if k else 0}')
        d1 = f'v{KT[2 + ((n >> 1) & 1)]}'
        e(f'v_add_f32_dpp {d1}, {a}, {a} row_ror:8 row_mask:0xf bank_mask:0x3')
        e(f'v_add_f32_dpp {d1}, {b}, {b} row_ror:8 row_mask:0xf bank_mask:0xc')
        if not (n >> 1) & 1:
            return
        x, y = f'v{KT[2]}', f'v{KT[3]}'
        d2 = f'v{KT[4 + ((n >> 2) & 1)]}'
        e(f'v_add_f32_dpp {d2}, {x}, {x} row_shl:4 row_mask:0xf bank_mask:0x5')
        e(f'v_add_f32_dpp {d2}, {y}, {y} row_shr:4 row_mask:0xf bank_mask:0xa')
        if not (n >> 2) & 1:
            return
        x, y = f'v{KT[4]}', f'v{KT[5]}'
        d3 = f'v{KT[6 + ((n >> 3) & 1)]}'
        e(f'v_add_f32_dpp {x}, {x}, {x} quad_perm:[2,3,0,1] row_mask:0xf bank_mask:0xf')
        e(f'v_add_f32_dpp {y}, {y}, {y} quad_perm:[2,3,0,1] row_mask:0xf bank_mask:0xf')
        e(f'v_cndmask_b32 {d3}, {x}, {y}, {sMC}')
        if not (n >> 3) & 1:
            return
        x, y = f'v{KT[6]}', f'v{KT[7]}'
        s = f'v{S[n >> 4]}'
        e(f'v_add_f32_dpp {x}, {x}, {x} quad_perm:[1,0,3,2] row_mask:0xf bank_mask:0xf')
        e(f'v_add_f32_dpp {y}, {y}, {y} quad_perm:[1,0,3,2] row_mask:0xf bank_mask:0xf')
        e(f'v_cndmask_b32 {s}, {x}, {y}, {sMA}')
        bf16r(s, s)
        e(f'v_mul_f32 {s}, {SCALE}, {s}')
        bf16r(s, s)
    def mlstore(tagger, p):
        e(f'v_bfi_b32 {t2}, {sM12}, {vTA}, {vM}\nv_bfi_b32 {t3}, {sM12}, {vTA}, {vLs}\nv_mov_b32 {t4}, {sEp}\nv_mov_b32 {t5}, {sXcc}')
        tagger(f'buffer_store_dwordx4 v[30:33], {vML}, {SWS}, 0 offen {p}', 'mlpub')
    def softmax():
        stamp()
        e(f'v_max3_f32 {vM}, v{S[0]}, v{S[1]}, v{S[2]}\nv_max_f32 {vM}, {vM}, v{S[3]}')
        rowred('v_max_f32', vM)
        swapred('v_max_f32', vM, t2, 16)
        swapred('v_max_f32', vM, t2, 32)
        for k in range(4):
            e(f'v_sub_f32 v{S[k]}, v{S[k]}, {vM}')
        for k in range(4):
            e(f'v_mul_f32 v{S[k]}, {LOG2E}, v{S[k]}')
        for k in range(4):
            e(f'v_exp_f32 v{S[k]}, v{S[k]}')
        for k in range(4):
            e(f'v_cvt_pk_bf16_f32 v{Q[k]}, v{S[k]}, v{S[k]}')
        e(f'v_add_f32 {vLs}, v{S[0]}, v{S[1]}\nv_add_f32 {t2}, v{S[2]}, v{S[3]}\nv_add_f32 {vLs}, {vLs}, {t2}')
        abuild(0)
        rowred('v_add_f32', vLs)
        swapred('v_add_f32', vLs, t2, 16)
        swapred('v_add_f32', vLs, t2, 32)
        mlstore(e.vmem, '')
        state['soft'] = True
    def abuild(n):
        a = A[n & 1]
        for r in range(4):
            e(f'v_and_b32_dpp v{a+r}, v{Q[n >> 4]}, v{M[r]} row_newbcast:{bitrev4(n & 15)} row_mask:0xf bank_mask:0xf')
    def vstep(n):
        c = rng('v', ACC, 4) if n else '0'
        e(f'v_mfma_f32_16x16x32_bf16 {rng("v", ACC, 4)}, {rng("v", A[n & 1], 4)}, {rng("a", vreg(n), 4)}, {c}')
        if n < 63:
            abuild(n + 1)
    F, DY, STG, G2, W2S, FGR = 128, 96, 64, 48, 224, 240
    stg = lambda k: STG + 4 * (k % 8)
    def woperm(k):
        t, ee = k >> 3, k & 7
        if woa:
            for kk in (k, k + 1):
                for m in range(4):
                    e(f'v_accvgpr_read_b32 v{stg(kk)+m}, a{AWO+4*kk+m}')
        for m in range(4):
            for hi in range(2):
                e(f'v_perm_b32 v{F + 32*t + 4*(2*m+hi) + ee//2}, v{stg(k+1)+m}, v{stg(k)+m}, {sSelHi if hi else sSelLo}')
    plain = lambda s, t: e(s)
    AFG, AWO, AW2, AH = 236, 64, 192, 244
    W2L = 80
    assert 4 * vring <= (AWO if woa else 192)
    def fgissue(tagger, p, acc=False):
        for m in range(2):
            if m:
                e(f's_mov_b32 {sT0}, {16*FU_STRIDE*m}')
            tagger(f'buffer_load_dwordx4 {rng("a", AFG+4*m, 4) if acc else rng("v", FGR+4*m, 4)}, {vFG}, {SWS}, {sT0 if m else 0} offen {p}', f'fg{m}')
    def republish(ad, aa):
        e(f'v_accvgpr_read_b32 {t2}, a{aa}\nbuffer_store_dwordx4 {rng("a", ad, 4)}, {t2}, {SWS}, 0 offen sc1')
    def ffn_down():
        if w2a:
            for k in range(16):
                e(f'v_accvgpr_read_b32 v{W2S+k}, a{AW2+k}')
        if n_fg is not None:
            for k in range(8):
                e(f'v_accvgpr_read_b32 v{FGR+k}, a{AFG+k}')
        e(f'''v_cmp_gt_u32 vcc, s58, {vFG}
              v_and_b32 {t4}, {sM8}, {vTA}
              v_and_b32 {t5}, {sM8}, {vTB}
              v_cndmask_b32 {t4}, 0, {t4}, vcc
              v_cndmask_b32 {t5}, 0, {t5}, vcc''')
        checked('fu', list(range(FGR, FGR + 8)), 'AAAB' * 2, t4, t5, sM8, lambda: republish(AFD, AFA), lambda: fgissue(plain, 'sc1'))
        for k in (0, 2):
            pk('add', FGR + k, FGR + k, FGR + 4 + k)
        for p in range(0 if w2last else 2):
            for m in range(4):
                for hi in range(2):
                    e(f'v_perm_b32 v{G2 + 2*(2*m+hi) + p}, v{W2S+8*p+4+m}, v{W2S+8*p+m}, {sSelHi if hi else sSelLo}')
        for k in range(4):
            e(f'v_add_f32_dpp v{FGR+k}, v{FGR+k}, v{FGR+k} row_ror:8 row_mask:0xf bank_mask:0xf')
        ga, up = f'v{FGR}', f'v{FGR+1}'
        e(f'''v_permlane32_swap_b32 v{FGR}, v{FGR+2}
              v_permlane32_swap_b32 v{FGR+1}, v{FGR+3}
              v_add_f32 {ga}, v{FGR}, v{FGR+2}
              v_add_f32 {up}, v{FGR+1}, v{FGR+3}''')
        swapred('v_add_f32', ga, t2, 16)
        swapred('v_add_f32', up, t3, 16)
        bf16r(ga, ga)
        bf16r(up, up)
        e(f'''v_mul_f32 {t2}, {LOG2E ^ 0x80000000}, {ga}
              v_exp_f32 {t2}, {t2}
              v_and_b32 {t4}, 3, {vL}
              v_add_f32 {t2}, 1.0, {t2}
              v_rcp_f32 {t2}, {t2}
              v_cmp_eq_u32 vcc, 0, {t4}
              v_mul_f32 {ga}, {ga}, {t2}
              v_cndmask_b32 {t4}, 0, -1, vcc''')
        bf16r(ga, ga)
        ha = FGR + 4
        e(f'''v_mul_f32 {ga}, {ga}, {up}
              v_mov_b32 v{ha}, 0
              v_mov_b32 {t2}, {ga}
              v_mov_b32 v{ha+1}, 0
              v_permlane32_swap_b32 {ga}, {t2}
              v_cvt_pk_bf16_f32 {ga}, {ga}, {t2}''')
        for gg in range(3):
            for p in range(2):
                e(f'v_and_b32_dpp v{ha+p}, {ga}, {t4} row_newbcast:{2*gg+p} row_mask:{hex(1 << gg)} bank_mask:0xf')
        if w2last:
            e(f'v_accvgpr_write_b32 a{AH}, v{ha}\nv_accvgpr_write_b32 a{AH+1}, v{ha+1}')
        for cc in range(0 if w2last else 8):
            e(f'v_mfma_f32_16x16x16_bf16 {rng("v", DY+4*cc, 4)}, v[{ha}:{ha+1}], v[{G2+2*cc}:{G2+2*cc+1}], 0')
        state['ffn'] = True
    def mlissue(tagger, p):
        e(f's_lshl_b32 {sT0}, {sBH}, 8\ns_add_u32 {sT0}, {sT0}, {WS_ML}\nv_lshl_add_u32 {vMG}, {i}, 4, {sT0}')
        if 'ml' in off: e(f'v_mov_b32 {vMG}, {OOB}')
        tagger(f'buffer_load_dwordx4 v[{S[0]}:{S[3]}], {vMG}, {SWS}, 0 offen {p}', 'ml')
    def mlcombine():
        checked('ml', S, 'AAFG', vTA, vTB, sM12, lambda: mlstore(plain, 'sc1'), lambda: mlissue(plain, 'sc1'))
        mi, li, mx = f'v{S[0]}', f'v{S[1]}', f'v{S[2]}'
        e(f'v_mov_b32 {mx}, {mi}')
        rowred('v_max_f32', mx)
        e(f'''v_sub_f32 {mi}, {mi}, {mx}
              v_sub_f32 {vF}, {vM}, {mx}
              v_mul_f32 {mi}, {LOG2E}, {mi}
              v_mul_f32 {vF}, {LOG2E}, {vF}
              v_exp_f32 {mi}, {mi}
              v_exp_f32 {vF}, {vF}
              v_mul_f32 {li}, {li}, {mi}''')
        rowred('v_add_f32', li)
        e(f'v_rcp_f32 {li}, {li}\nv_mul_f32 {vF}, {vF}, {li}')
        state['ml'] = True
    complete = lambda tag: tag in e.vm and e.vm.index(tag) < e.done
    def progress():
        if state['q'] and not state['soft']:
            c = 0
            while state['kproc'] < 64 and complete(f'K{state["kproc"]+1}') and c < state['budget']:
                kpair(state['kproc']); state['kproc'] += 2; c += 2
            state['budget'] = catch if c >= 2 or state['budget'] >= 2 * catch else state['budget'] + 1
            if state['kproc'] == 64:
                softmax()
        if state['soft']:
            while state['vproc'] < 64 and complete(f'V{state["vproc"]}'):
                vstep(state['vproc']); state['vproc'] += 1
            while state['wop'] < 32 and complete(f'wo{state["wop"]+1}'):
                if woa and not (state['vproc'] >= 2 + 3 * (state['wop'] // 2) and (state['wop'] < 24 or state['ffn'])):
                    break
                woperm(state['wop']); state['wop'] += 2
            if not state['ffn'] and complete('fg1') and (w2last or complete('w23')):
                ffn_down()
            if not state['ml'] and complete('ml'):
                mlcombine()
    def window():
        d = D
        if Dend and f'V{nend}' in e.vm: d = Dend
        if Dk and 'V0' not in e.vm: d = Dk
        k = len(e.vm) - d
        if k >= e.done:
            e.wait(e.vm[k])
        progress()
    QG = 232
    def qissue(tagger, p):
        for k in range(4):
            if k == 2:
                e(f's_movk_i32 {sT0}, 0x1000')
            tagger(f'buffer_load_dwordx4 {rng("v", QG+4*k, 4)}, {vQG}, {SWS}, {sT0 if k >= 2 else 0} offen offset:{256*(k&1)} {p}', f'qg{k}')
    def qfinish():
        e(f'v_and_b32 {t4}, 7, {vTA}\nv_and_b32 {t5}, 7, {vTB}')
        e.wait('qg3')
        checked('q', list(range(QG, QG + 16)), 'AABB' * 4, t4, t5, sM3, lambda: republish(AQD, AQA), lambda: qissue(plain, 'sc1'))
        for k in range(0, 8, 2):
            pk('add', QG + k, QG + k, QG + 8 + k)
        for k in range(4):
            e(f'v_permlane32_swap_b32 v{QG+k}, v{QG+4+k}')
        for k in (0, 2):
            pk('add', QG + k, QG + k, QG + 4 + k)
        e(f'''v_permlane16_swap_b32 v{QG}, v{QG+2}
              v_permlane16_swap_b32 v{QG+1}, v{QG+3}
              v_pk_add_f32 v[{QG}:{QG+1}], v[{QG}:{QG+1}], v[{QG+2}:{QG+3}]
              v_cvt_pk_bf16_f32 v{Q[0]}, v{QG}, v{QG+1}
              v_cvt_pk_bf16_f32 v{Q[1]}, v{QG}, v{QG+1}
              v_permlane16_swap_b32 v{Q[0]}, v{Q[1]}
              v_mov_b32 v{Q[2]}, v{Q[0]}
              v_mov_b32 v{Q[3]}, v{Q[1]}
              v_permlane32_swap_b32 v{Q[0]}, v{Q[2]}
              v_permlane32_swap_b32 v{Q[1]}, v{Q[3]}''')
        state['q'] = True
        stamp()
    wosched = {}
    if woa:
        for k in range(32):
            wosched.setdefault(woa[0] + (k * (woa[1] - woa[0])) // 32, []).append(('wo', k))
    if w2a:
        for k in range(4):
            wosched.setdefault(w2a + 2 * k, []).append(('w2', k))
    def early(stepno):
        for kind, k in wosched.pop(stepno, []):
            window()
            if kind == 'wo':
                e(f's_mov_b32 {sT0}, {(k >> 3)*32768 + ((k >> 2) & 1)*4096}')
                e.vmem(f'buffer_load_dwordx4 {rng("a", AWO+4*k, 4)}, {vWO}, {SWO}, {sT0} offen offset:{1024*(k & 3)} {wpol}', f'wo{k}')
            else:
                e.vmem(f'buffer_load_dwordx4 {rng("a", AW2+4*k, 4)}, {vW2}, {SW2}, 0 offen offset:{1024*k} {wpol}', f'w2{k}')
    assert kn[0] <= n_q and all(k >= kn[0] for k in wosched)
    while kn[0] < 64:
        n = kn[0]
        if n == n_q:
            window(); qissue(e.vmem, qpol)
        if n == n_fg:
            window(); fgissue(e.vmem, fpol, acc=True)
        if n == n_q + gap:
            assert n <= (QG - KBASE) // 4
            qfinish()
        window()
        if n >= KRING:
            assert state['kproc'] > n - KRING, (n, state)
        kissue()
        early(n)
    extra = {}
    for k in range(4):
        if not w2a and not w2last:
            extra.setdefault(ex0 + k, []).append(('w2', k))
    if n_fg is None:
        extra.setdefault(ex0 + 4, []).append(('fg', 0))
    extra.setdefault(ex0 + 5, []).append(('xres', 0))
    for k in range(0 if woa else 32):
        extra.setdefault(wo_start + (k * (wo_end - wo_start)) // 32, []).append(('wo', k))
    extra.setdefault(n_ml, []).append(('ml', 0))
    if tailpf is not None:
        extra.setdefault(tailpf, []).append(('tpf', 0))
    if opf is not None:
        extra.setdefault(opf, []).append(('opf', 0))
    if ypf is not None:
        extra.setdefault(ypf, []).append(('ypf', 0))
    XR = 39
    nv, m = 0, None
    while nv < 64:
        window()
        assert nv < vring or state['vproc'] > nv - vring, (nv, state)
        e.vmem(f'buffer_load_dwordx4 {rng("a", vreg(nv), 4)}, {vKO}, {SV}, {sVoff} offen {pol}', f'V{nv}')
        if nv < 63:
            e(f's_addk_i32 {sVoff}, 0x1000\ns_and_b32 {sVoff}, {sVoff}, {sMask}')
        early(64 + nv)
        nv += 1
        if state['soft'] and m is None:
            m = 0
        if m is not None:
            for kind, k in extra.pop(m, []):
                window()
                if kind == 'w2':
                    e.vmem(f'buffer_load_dwordx4 {rng("v", W2S+4*k, 4)}, {vW2}, {SW2}, 0 offen offset:{1024*k} {wpol}', f'w2{k}')
                elif kind == 'fg':
                    fgissue(e.vmem, fpol)
                elif kind == 'xres':
                    e.vmem(f'buffer_load_ushort v{XR}, {vOUT}, {SX}, 0 offen {xpol}', 'xres')
                elif kind == 'ml':
                    mlissue(e.vmem, mpol)
                elif kind == 'opf':
                    e.vmem(f'buffer_load_ushort a{AWQ+8}, {vOUT}, {SOUT}, 0 offen', 'opf')
                elif kind == 'ypf':
                    e(f's_cmp_lg_u32 {sCon}, 0\ns_cselect_b32 {sT0}, {OOB}, 0\nv_add_u32 {t3}, {sT0}, {vCON}')
                    for kk in range(cw // 8):
                        e.vmem(f'buffer_load_dwordx4 {rng("a", AWQ+4*kk, 4)}, {t3}, {SWS}, 0 offen offset:{(256 // cw) * 128 * kk} {ypfpol}', f'ypf{kk}')
                elif kind == 'tpf':
                    e(f's_lshl_b32 {sT0}, {sW}, 8\ns_add_u32 {sT0}, {sT0}, L_tail - L_pc\nv_lshl_add_u32 {t3}, {vL}, 2, {sT0}')
                    e.vmem(f'buffer_load_dword v{S[2]}, {t3}, {SCODE}, 0 offen', 'tpf')
                    assert state['ml']
                elif kind == 'wo':
                    assert k < 8 or state['wop'] > k - 8, (k, state)
                    assert k < 24 or state['ffn']
                    e(f's_mov_b32 {sT0}, {(k >> 3)*32768 + ((k >> 2) & 1)*4096}')
                    e.vmem(f'buffer_load_dwordx4 {rng("v", stg(k), 4)}, {vWO}, {SWO}, {sT0} offen offset:{1024*(k & 3)} {wpol}', f'wo{k}')
            m += 1
    assert not extra and not wosched, (extra, wosched)
    if w2last:
        for k in range(4):
            window()
            assert state['wop'] == 32, state
            e.vmem(f'buffer_load_dwordx4 {rng("v", W2L+4*k, 4)}, {vW2}, {SW2}, 0 offen offset:{1024*k} {wpol}', f'w2{k}')
    while state['vproc'] < 64:
        e.wait(f'V{state["vproc"]}')
        if state['vproc'] == 63:
            e('L_tail:')
            stamp('main,tail,head')
        progress()
    assert state['wop'] == 32 and state['ffn'] and state['ml'], state
    e(f'''v_mul_f32 v{ACC}, v{ACC}, {vF}
          v_mul_f32 v{ACC+1}, v{ACC+1}, {vF}
          v_mul_f32 v{ACC+2}, v{ACC+2}, {vF}
          v_mul_f32 v{ACC+3}, v{ACC+3}, {vF}
          v_cvt_pk_bf16_f32 v{ACC}, v{ACC}, v{ACC+1}
          v_cvt_pk_bf16_f32 v{ACC+1}, v{ACC+2}, v{ACC+3}
          ds_write_b64 {vOW}, v[{ACC}:{ACC+1}]''')
    stamp('tail')
    e('s_waitcnt lgkmcnt(0)\ns_barrier')
    stamp('tail')
    if stamps and stset == 'tail':
        e('s_waitcnt lgkmcnt(0)')
    AF = STG
    for t in range(4):
        e(f'ds_read_b128 {rng("v", AF+4*t, 4)}, {vOR} offset:{LDS_O+64*t}')
    Z = A[0]
    def tile_add(cc):
        pk('add', DY + 4 * cc, DY + 4 * cc, DY + 4 * cc + 2)
    def tile_fin(cc):
        d = DY + 4 * cc
        if cc < 4:
            e(f'v_add_f32 v{Z+cc}, v{d}, v{d+1}')
        else:
            e(f'v_add_f32_dpp v{Z+cc-4}, v{d}, v{d+1} quad_perm:[0,1,2,3] row_mask:0x2 bank_mask:0xf')
            if not w2last:
                e(f'v_bfi_b32 v{Z+cc-4}, {sM12}, {vTA}, v{Z+cc-4}')
    for cc in range(8):
        for t in range(4):
            if cc == 0:
                e(f's_waitcnt lgkmcnt({3-t})')
            e(f'v_mfma_f32_16x16x32_bf16 {rng("v", DY+4*cc, 4)}, {rng("v", AF+4*t, 4)}, {rng("v", F+32*t+4*cc, 4)}, {0 if w2last and t == 0 else rng("v", DY+4*cc, 4)}')
            if cc >= 2 and t == 1:
                tile_add(cc - 2)
            if cc >= 2 and t == 3:
                tile_fin(cc - 2)
    if w2last:
        def fperm(cc):
            for p in range(2):
                e(f'v_perm_b32 v{G2+2*cc+p}, v{W2L+8*p+4+cc//2}, v{W2L+8*p+cc//2}, {sSelHi if cc & 1 else sSelLo}')
        def fadd(cc):
            e(f'v_add_f32_dpp v{Z+(cc&3)}, v{DY+4*cc}, v{Z+(cc&3)} quad_perm:[0,1,2,3] row_mask:{hex(1 << (cc >> 2))} bank_mask:0xf')
            if cc >= 4:
                e(f'v_bfi_b32 v{Z+cc-4}, {sM12}, {vTA}, v{Z+cc-4}')
        tile_add(6)
        e.wait('w23')
        fperm(0)
        for cc in range(8):
            if cc < 7:
                fperm(cc + 1)
            if cc == 1:
                tile_add(7); tile_fin(6)
            if cc == 2:
                tile_fin(7)
            e(f'v_mfma_f32_16x16x16_bf16 {rng("v", DY+4*cc, 4)}, a[{AH}:{AH+1}], v[{G2+2*cc}:{G2+2*cc+1}], 0')
            if cc >= 3:
                fadd(cc - 3)
        e('s_mov_b32 exec_hi, 0')
        for cc in (5, 6, 7):
            fadd(cc)
    else:
        tile_add(6)
        e('s_mov_b32 exec_hi, 0')
        tile_add(7)
        tile_fin(6)
        tile_fin(7)
    e(f'buffer_store_dwordx4 {rng("v", Z, 4)}, {vY}, {SWS}, 0 offen {ypol}')
    if wbl2 is not None:
        e(f's_lshl2_add_u32 {sT1}, s2, {sW}\ns_lshr_b32 {sT2}, {sT1}, 5\ns_and_b32 {sT1}, {sT1}, 3\ns_lshl2_add_u32 {sT1}, {sT2}, {sT1}\ns_cmp_lg_u32 {sT1}, {wbl2 * 4 + 1}\ns_cbranch_scc1 L_nowb\nbuffer_wbl2 sc1\nL_nowb:')
    if cw == 4:
        e(f's_cmp_lg_u32 {sW}, {stwave}\ns_cbranch_scc1 L_end')
        stamp('main,tail')
        if stamps and stset == 'tail':
            e('s_waitcnt vmcnt(0)')
            stamp('tail')
        C = STG
        mA, mB = 's[24:25]', 's[26:27]'
        e(f's_mov_b32 {sSpin}, {spin}\ns_movk_i32 {sT0}, 0x2000\ns_mov_b64 {mA}, -1\ns_mov_b64 {mB}, -1')
        if few:
            e(f's_lshr_b32 {sT1}, s2, 3\ns_and_b32 {sT1}, {sT1}, {few}\ns_cbranch_scc1 L_polled')
        e('L_poll:')
        e(f'''s_mov_b64 exec, {mA}
              buffer_load_dwordx4 {rng("v", C, 4)}, {vCON}, {SWS}, 0 offen sc1
              s_mov_b64 exec, {mB}
              buffer_load_dwordx4 {rng("v", C+4, 4)}, {vCON}, {SWS}, {sT0} offen sc1
              s_sub_u32 {sSpin}, {sSpin}, 1
              s_cbranch_scc1 L_polled
              s_mov_b64 exec, {mA}
              s_waitcnt vmcnt(0)''')
        untag(list(range(C, C + 4)), [vTA] * 4, sM12, dst=mA)
        e(f's_mov_b64 exec, {mB}')
        untag(list(range(C + 4, C + 8)), [vTA] * 4, sM12, dst=mB)
        e(f's_or_b64 vcc, {mA}, {mB}')
        if 'con' in off: e('s_branch L_polled')
        if asleep:
            thr, big = asleep
            e(f'''s_cbranch_scc0 L_polled
                  s_bcnt1_i32_b64 {sT1}, {mA}
                  s_bcnt1_i32_b64 {sT2}, {mB}
                  s_add_u32 {sT1}, {sT1}, {sT2}
                  s_cmp_le_u32 {sT1}, {thr}
                  s_cbranch_scc1 L_poll
                  s_sleep {big}
                  s_branch L_poll''')
        elif sleep:
            e(f's_cbranch_scc0 L_polled\ns_sleep {sleep}\ns_branch L_poll')
        else:
            e('s_cbranch_scc1 L_poll')
        e('L_polled:')
        e('s_mov_b64 exec, -1')
        stamp('main,tail')
        pk('add', C, C, C + 4); pk('add', C + 2, C + 2, C + 6)
        e(f'''v_lshlrev_b32 v{XR}, 16, v{XR}
              v_permlane32_swap_b32 v{C}, v{C+1}
              v_permlane32_swap_b32 v{C+2}, v{C+3}
              v_add_f32 v{C}, v{C}, v{C+1}
              v_add_f32 v{C+2}, v{C+2}, v{C+3}
              v_permlane16_swap_b32 v{C}, v{C+2}
              v_add_f32 v{C}, v{C}, v{C+2}''')
        rowred('v_add_f32', f'v{C}')
        e(f'''v_add_f32 v{C}, v{C}, v{XR}
              v_cvt_pk_bf16_f32 v{C}, v{C}, v{C}
              buffer_store_short v{C}, {vOUT}, {SOUT}, 0 offen''')
    else:
        LP = cw // 4
        NL = LP // 2
        step = (64 // LP) * 128
        C = STG
        mk = [f's[{68+2*k}:{69+2*k}]' for k in range(NL)]
        if stamps:
            e(f's_cmp_lg_u32 {sCon}, 0\ns_cselect_b32 {sT1}, {sW}, 0\ns_cmp_lg_u32 {sT1}, 0\ns_cbranch_scc1 L_end')
            stamp('main,tail,poll')
            if stset == 'poll':
                e('s_waitcnt lgkmcnt(0)\ns_mov_b64 s[6:7], s[4:5]\ns_mov_b64 s[8:9], s[4:5]\ns_mov_b64 s[10:11], s[4:5]\ns_mov_b64 s[12:13], s[4:5]')
            e(f's_mov_b32 {sSpin}, {spin}\ns_cmp_lg_u32 {sCon}, 0\ns_cbranch_scc1 L_nocon')
        else:
            e(f's_cmp_lg_u32 {sCon}, 0\ns_cbranch_scc1 L_end')
        e(f's_mov_b32 {sSpin}, {spin}')
        for k in range(NL):
            e(f's_mov_b64 {mk[k]}, -1')
        e('L_poll:')
        if stamps and stset == 'poll':
            e('s_memrealtime s[8:9]')
        for k in range(NL):
            e(f's_mov_b64 exec, {mk[k]}')
            e(f'buffer_load_dwordx4 {rng("v", C+4*k, 4)}, {vCON}, {SWS}, 0 offen offset:{step*k} {ppol}')
        e(f's_sub_u32 {sSpin}, {sSpin}, 1\ns_cbranch_scc1 L_polled')
        for k in range(NL):
            e(f's_mov_b64 exec, {mk[k]}')
            if k == 0:
                e('s_waitcnt vmcnt(0)')
                if stamps and stset == 'poll':
                    e(f's_cmp_lg_u32 {sSpin}, {spin-1}\ns_cbranch_scc1 L_nf\ns_memrealtime s[6:7]\nL_nf:')
                    nst[0] = 3
            untag(list(range(C + 4*k, C + 4*k + 4)), [vTA] * 4, sM12, dst=mk[k])
        if NL == 1:
            e(f's_or_b64 vcc, {mk[0]}, {mk[0]}')
        else:
            e(f's_or_b64 vcc, {mk[0]}, {mk[1]}')
            for k in range(2, NL):
                e(f's_or_b64 vcc, vcc, {mk[k]}')
        if pipe:
            thr, big, P, gapsl = pipe
            e(f'''s_cbranch_scc0 L_polled
                  s_bcnt1_i32_b64 {sT1}, vcc
                  s_cmp_le_u32 {sT1}, {thr}
                  s_cbranch_scc1 L_pp''')
            if big:
                e(f's_sleep {big}')
            e('s_branch L_poll\nL_pp:')
            def pissue(p):
                for k in range(NL):
                    e(f's_or_b64 exec, {mk[k]}, 1')
                    e(f'buffer_load_dwordx4 {rng("v", F+4*(NL*p+k), 4)}, {vCON}, {SWS}, 0 offen offset:{step*k} {ppol}')
            for p in range(P):
                pissue(p)
                if p < P - 1:
                    e(f's_sleep {gapsl + 1}')
            e('L_ppl:')
            for p in range(P):
                e(f's_waitcnt vmcnt({NL*(P-1)})')
                for k in range(NL):
                    e(f's_mov_b64 exec, {mk[k]}')
                    for r in range(4):
                        e(f'v_xor_b32 v{C+4*k+r}, {vTA}, v{F+4*(NL*p+k)+r}')
                    orred(list(range(C + 4*k, C + 4*k + 4)), sM12, mk[k])
                e(f's_or_b64 vcc, {mk[0]}, {mk[-1]}')
                for k in range(1, NL - 1):
                    e(f's_or_b64 vcc, vcc, {mk[k]}')
                e('s_cbranch_scc0 L_polled')
                pissue(p)
                if gapsl:
                    e(f's_sleep {gapsl}')
            e(f's_sub_u32 {sSpin}, {sSpin}, 1\ns_cbranch_scc0 L_ppl')
        elif asleep:
            thr, big = asleep
            e(f'''s_cbranch_scc0 L_polled
                  s_bcnt1_i32_b64 {sT1}, vcc
                  s_cmp_le_u32 {sT1}, {thr}
                  s_cbranch_scc1 L_poll
                  s_sleep {big}
                  s_branch L_poll''')
        elif sleep:
            e(f's_cbranch_scc0 L_polled\ns_sleep {sleep}\ns_branch L_poll')
        else:
            e('s_cbranch_scc1 L_poll')
        e('L_polled:')
        e('s_mov_b64 exec, -1')
        stamp('main,tail,poll')
        if NL == 4:
            pk('add', C, C, C + 4); pk('add', C + 8, C + 8, C + 12); pk('add', C + 2, C + 2, C + 6); pk('add', C + 10, C + 10, C + 14)
            pk('add', C, C, C + 8); pk('add', C + 2, C + 2, C + 10)
        elif NL == 2:
            pk('add', C, C, C + 4); pk('add', C + 2, C + 2, C + 6)
        e(f'''v_lshrrev_b32 {t2}, 2, {vKO}
              v_lshlrev_b32 {t3}, 2, {vL}
              v_permlane32_swap_b32 v{C}, v{C+1}
              v_permlane32_swap_b32 v{C+2}, v{C+3}
              v_add_f32 v{C}, v{C}, v{C+1}
              v_add_f32 v{C+2}, v{C+2}, v{C+3}
              v_lshlrev_b32 v{XR}, 16, v{XR}
              v_permlane16_swap_b32 v{C}, v{C+2}
              v_add_f32 v{C}, v{C}, v{C+2}''')
        for d in (8, 4, 2):
            if LP <= d:
                e(f'v_add_f32_dpp v{C}, v{C}, v{C} row_ror:{d} row_mask:0xf bank_mask:0xf')
        e(f'''ds_write_b32 {t2}, v{C}
              s_waitcnt lgkmcnt(0)
              s_barrier
              s_cmp_lg_u32 {sW}, {stwave}
              s_cbranch_scc1 L_end''')
        stamp('poll')
        e(f'''ds_read2st64_b32 v[{C}:{C+1}], {t3} offset0:0 offset1:1
              ds_read2st64_b32 v[{C+2}:{C+3}], {t3} offset0:2 offset1:3
              s_waitcnt lgkmcnt(0)''')
        pk('add', C, C, C + 2)
        e(f'''v_add_f32 v{C}, v{C}, v{C+1}
              v_add_f32 v{C}, v{C}, v{XR}
              v_cvt_pk_bf16_f32 v{C}, v{C}, v{C}
              buffer_store_short v{C}, {vOUT}, {SOUT}, 0 offen {opol}''')
    e(f'''s_cmp_eq_u32 s2, 0
          s_cselect_b32 {sT0}, {WS_EP}, {OOB}
          v_mov_b32 {t2}, {sEp}
          v_mov_b32 {t3}, {sT0}
          s_mov_b64 exec, 1
          buffer_store_dword {t2}, {t3}, {SWS}, 0 offen {epol}''')
    if fixdur:
        e('s_cmp_lg_u32 s2, 0\ns_cbranch_scc1 L_end')
        if amp == -1:
            e(f's_waitcnt vmcnt(0)\ns_memrealtime s[24:25]\ns_waitcnt lgkmcnt(0)\ns_sub_u32 s1, s24, s100\ns_mul_i32 s1, s1, 10\ns_add_u32 s1, s1, {fixdur}')
        elif amp is not None:
            e(f's_waitcnt lgkmcnt(0)\ns_sub_u32 s1, s{stamp_regs[amp]}, s100\ns_mul_i32 s1, s1, 10\ns_add_u32 s1, s1, {fixdur}')
        else:
            e(f's_mov_b32 s1, {fixdur}')
        e('L_hold:\ns_memrealtime s[24:25]\ns_waitcnt lgkmcnt(0)\ns_sub_u32 s24, s24, s100\ns_cmp_lt_u32 s24, s1\ns_cbranch_scc1 L_hold\ns_endpgm')
    if stamps:
        if cw != 4:
            e(f's_branch L_st\nL_nocon:\ns_mov_b64 exec, 1\ns_waitcnt lgkmcnt(0)\ns_mov_b64 s[{stamp_regs[nst[0]-1]}:{stamp_regs[nst[0]-1]+1}], s[{stamp_regs[nst[0]-2]}:{stamp_regs[nst[0]-2]+1}]\nL_st:')
        stamp('tail')
        e('s_waitcnt vmcnt(0)')
        stamp('main,tail,head,poll')
        e(f's_waitcnt lgkmcnt(0)\ns_lshl_b32 s0, {sId}, 7\ns_add_u32 s0, s0, 0x20000000\nv_mov_b32 v0, 0')
        for k, r in enumerate([100] + stamp_regs[:nst[0]]):
            e(f'v_mov_b32 v2, s{r}\nv_mov_b32 v3, s{r+1}\nbuffer_store_dwordx2 v[2:3], v0, s[20:23], s0 offen offset:{8*k}')
        if clk:
            e(f's_memtime s[24:25]\ns_waitcnt lgkmcnt(0)\ns_sub_u32 s24, s24, s98\ns_sub_u32 {sSpin}, 400000, s24')
            e(f'v_mov_b32 v2, 0\nv_mov_b32 v3, {sSpin}\nbuffer_store_dwordx2 v[2:3], v0, s[20:23], s0 offen offset:120')
        if dbgcnt:
            e(f'v_mov_b32 v2, {sCnt}\nv_mov_b32 v3, {sSpin}\nbuffer_store_dwordx2 v[2:3], v0, s[20:23], s0 offen offset:120')
    e('L_end:\ns_endpgm')
    for f in slow:
        f()
    e('L_codeend:')
    e.raw('.section .rodata,"a"\n.p2align 6')
    e.raw(kernel_desc(K, 512, 102, accum=256))
    return e.text(), LDS, nst[0] + 1, e.nops

if __name__ == '__main__':
    cfgs = {}
    def add(name, **kw):
        cfgs[name] = kw
    exec(open(sys.argv[1]).read())
    BF = os.environ.get('BFLAGS', '-n 15 -c')
    os.makedirs('co', exist_ok=True)
    names = []
    for name, kw in cfgs.items():
        t, lds, ns, nops = gen(**kw)
        build(t, f'co/{name}')
        st = f'-t {ns}' if kw.get('stamps') else ''
        names.append(f'co/{name}.co')
        print(name, 'nops', nops, 'len', len(t))
    open('run.sh', 'w').write(f'#!/bin/bash\ntimeout 300 ./bench {BF} {st} {NAME}_kernel:256:256:{lds} ' + ' '.join(names) + '\n')
```

```python
import sys, os
from asmlib import NAME, kernel_desc, build
from emit import Emit

FU_STRIDE = 2176
WS_Y, WS_Q, WS_ML, WS_EP, WS_FU = 0, 0x80000, 0xC0000, 0xC4000, 0xC5000
WS_END = WS_FU + 256 * FU_STRIDE
OOB = 0x40000000
LOG2E = 0x3fb8aa3b
SCALE = 0x3db504f3

def bitrev4(n):
    return ((n & 1) << 3) | ((n & 2) << 1) | ((n & 4) >> 1) | ((n & 8) >> 3)

REF = 'cdna_kernels/' + NAME + '.s.ref'
HEADER = open(REF).read().split('; Override launch')[0] if os.path.exists(REF) else ''

NOTES = '''; Design: one launch, 256 workgroups (b, head, quarter of the 4096-key window) x 4 waves, one workgroup per CU.
;  - q projection and FFN-up are split over rows across workgroups and handed over through d_ws; FFN-down and
;    the output projection are applied per workgroup, and 4 output columns per workgroup are summed at the end.
;  - Every hand-off word carries this launch's tag (epoch word found in d_ws, + 1) in its low mantissa bits; a
;    reader that finds another tag (or a writer on another XCD) re-publishes write-through and polls.'''

def gen(D=9, k0=2, k1=2, ksp=(1, 1, 1, 1, 1), kpost=(1, 1, 1), n_q=24, gap=None, catch=3, wo_start=8, wo_end=50, n_ml=30,
        ex0=0, vring=16, rotmul=5, sleep=2, codepf=True, tailpf=None, pol='nt', wpol='nt', xpol='', gpol='', spin=400000,
        stamps=False, dbgcnt=False, off=(), permtest=False, fixdur=0, amp=None, stset='main', stwave=0, touch=(), Dend=None, nend=44, Dk=None, kw=False, ypol='sc1', asleep=(8, 6), n_fg=None, few=0, clk=False, cw=16, ypf=None, ypfpol='sc1', ppol='sc1', pipe=None, cpf0=True, wbl2=None, woa=None, w2a=None, al4=False, slowpen=0, opf=None, opol='', epol='', w2last=False, qpol=None, fpol=None, mpol=None, pre=None, mlpre=None):
    qpol, fpol, mpol = [gpol if p is None else p for p in (qpol, fpol, mpol)]
    gap = gap or D + 1
    e = Emit()
    K = NAME + '_kernel'
    LDS_O = 8192
    LDS = LDS_O + 2048
    sW = 's3'
    SK, SV, SWQ, SWO, SFU, SW2, SX, SWS, SOUT, SCODE = [f's[{b}:{b+3}]' for b in range(28, 68, 4)]
    sXc, sJ, sHH, sH, sB, sS, sS8, sBH, sC0, sNch, sT0, sT1, sT2, sKoff, sVoff, sMask, sPB, sU, sXcc, sId = [f's{n}' for n in range(68, 88)]
    sSelLo, sSelHi, sSpin, sM8, sM12, sM3 = [f's{n}' for n in range(88, 94)]
    sMC, sMA = 's[94:95]', 's[96:97]'
    sEp, sCon = 's0', 's1'
    sCnt = 's98'
    stamp_regs = [4, 6, 8, 10, 12, 14, 16, 18]
    nst = [0]
    def stamp(which='main'):
        if stamps and stset in which.split(','):
            r = stamp_regs[nst[0]]
            e(f's_memrealtime s[{r}:{r+1}]')
            nst[0] += 1
    vKO, M, Q, S, vY, vL = 'v1', [2, 3, 4, 5], [6, 7, 8, 9], [10, 11, 12, 13], 'v14', 'v15'
    A = [16, 20]
    ACC = 24
    g, i, t2, t3, t4, t5 = [f'v{k}' for k in range(28, 34)]
    vM, vLs = 'v34', 'v35'
    vXG, vWQ, vFU = 'v34', 'v35', 'v36'
    vMG, vML, vTB = 'v36', 'v37', 'v38'
    vQG, vWO, vW2, vFG, vOUT, vCON, vOW, vOR, vF = [f'v{k}' for k in range(39, 48)]
    vTA = 'v0'
    KBASE, KRING = 48, 52
    kreg = lambda n: KBASE + 4 * (n % KRING)
    vreg = lambda n: 4 * (n % vring)
    rng = lambda p, b, n: f'{p}[{b}:{b+n-1}]'
    AWQ, AFU = 192, 208
    AH = 244
    AQD, AFD, AQA, AFA = 224, 228, 232, 233
    assert 4 * vring <= AWQ

    e.raw(HEADER.rstrip('\n'))
    e.raw(NOTES)
    e.raw(f'; @launch grid=(256,1,1) block=(256,1,1) lds={LDS}')
    e.raw('.amdgcn_target "amdgcn-amd-amdhsa--gfx950"\n.text')
    e.raw(f'.globl {K}\n.p2align 8\n.type {K},@function\n{K}:')
    e('s_load_dwordx16 s[4:19], s[0:1], 0\ns_load_dwordx8 s[20:27], s[0:1], 64')
    if stamps or fixdur:
        e('s_memrealtime s[100:101]')
    if clk:
        e('s_memtime s[98:99]')
    e('s_cmp_ge_u32 s2, 256\ns_cbranch_scc1 L_end')
    e(f's_mov_b32 {sId}, s2')
    if permtest:
        e(f's_lshr_b32 {sT0}, s2, 5\ns_and_b32 s2, s2, 31\ns_lshl_b32 s2, s2, 3\ns_or_b32 s2, s2, {sT0}')
    e(f'''s_and_b32 {sXc}, s2, 7
          s_lshr_b32 {sJ}, s2, 3
          s_lshr_b32 {sHH}, s2, 6
          s_lshl2_add_u32 {sH}, {sXc}, {sHH}
          s_bfe_u32 {sB}, s2, 0x10005
          s_and_b32 {sS}, {sJ}, 3
          s_lshl_b32 {sBH}, {sB}, 5
          s_add_u32 {sBH}, {sBH}, {sH}
          s_lshl4_add_u32 {sT0}, {sBH}, {sS}
          s_add_u32 {sT0}, {sT0}, 12
          s_lshl_b32 {sT0}, {sT0}, 18
          s_mul_i32 {sKoff}, s2, {rotmul << 12}
          s_mov_b32 {sMask}, 0x3ffff
          s_and_b32 {sKoff}, {sKoff}, {sMask}
          v_lshlrev_b32 {vKO}, 4, v0
          s_mov_b32 s30, 0x40000
          s_mov_b32 s31, 0x20000
          v_lshrrev_b32 v2, 6, v0
          v_and_b32 {vL}, 63, v0
          s_mov_b32 {sVoff}, {sKoff}
          v_readfirstlane_b32 {sW}, v2''')
    if codepf and cpf0:
        e(f'''s_getpc_b64 s[64:65]
              L_pc:
              s_mov_b32 s66, L_codeend - L_pc
              s_mov_b32 s67, 0x20000
              s_lshl_b32 {sT1}, {sJ}, 10
              v_lshl_add_u32 {t2}, v0, 2, {sT1}''')
        e.vmem(f'buffer_load_dword {vF}, {t2}, {SCODE}, 0 offen', 'cpf')
    e(f'''s_waitcnt lgkmcnt(0)
          s_add_u32 s28, s6, {sT0}
          s_addc_u32 s29, s7, 0''')
    if stamps and stset == 'head':
        e('s_memrealtime s[14:15]')
    kn = [0]
    def kissue():
        n = kn[0]
        e.vmem(f'buffer_load_dwordx4 {rng("v", kreg(n), 4)}, {vKO}, {SK}, {sKoff} offen {pol}', f'K{n}')
        e(f's_addk_i32 {sKoff}, 0x1000\ns_and_b32 {sKoff}, {sKoff}, {sMask}')
        kn[0] += 1
    def kspr():
        if kw:
            k = len(e.vm) - (Dk or D)
            if k >= e.done:
                e.wait(e.vm[k])
        kissue()
    for _ in range(k0):
        kissue()
    XL, XU, XG, DQ, DF = 208, 216, 232, 236, 240
    e(f'''s_load_dword {sEp}, s[26:27], {WS_EP}
          s_add_u32 s32, s8, {sT0}
          s_addc_u32 s33, s9, 0
          s_mov_b32 s52, s4
          s_mov_b32 s53, s5
          s_mov_b32 s54, 2048
          s_mov_b32 s55, 0x20000
          v_lshlrev_b32 {t2}, 5, {vL}''')
    e.vmem(f'buffer_load_dwordx4 {rng("v", XL, 4)}, {t2}, {SX}, 0 offen {xpol}', 'xl0')
    e.vmem(f'buffer_load_dwordx4 {rng("v", XL+4, 4)}, {t2}, {SX}, 0 offen offset:16 {xpol}', 'xl1')
    e(f'''s_and_b32 {sS8}, {sJ}, 7
          v_lshrrev_b32 {g}, 4, {vL}
          v_and_b32 {i}, 15, {vL}
          s_lshl_b32 {sT1}, {sS8}, 19
          s_lshl_b32 {sT2}, {sH}, 8
          s_add_u32 {sT1}, {sT1}, {sT2}
          s_add_u32 s36, s10, {sT1}
          s_addc_u32 s37, s11, 0
          s_mov_b32 s38, {63*8192+256}
          s_mov_b32 s39, 0x20000
          v_lshrrev_b32 {t3}, 4, v0
          v_and_b32 {t4}, 12, {t3}
          v_lshl_add_u32 {t3}, {t4}, 2, {g}
          v_lshlrev_b32 {t3}, 13, {t3}
          v_lshl_add_u32 {vWQ}, {i}, 4, {t3}''')
    if 'wq' in off: e(f'v_mov_b32 {vWQ}, {OOB}')
    for t in range(4):
        if t:
            e(f's_mov_b32 {sT2}, {32768*t}')
        e.vmem(f'buffer_load_dwordx4 {rng("a", AWQ+4*t, 4)}, {vWQ}, {SWQ}, {sT2 if t else 0} offen {wpol}', f'wq{t}')
    HB = 12 if al4 else 11
    if al4:
        e(f'''s_mul_i32 {sC0}, {sXc}, 43
              s_add_u32 {sNch}, {sC0}, 47
              s_add_u32 {sC0}, {sC0}, 4
              s_lshr_b32 {sC0}, {sC0}, 3
              s_lshr_b32 {sNch}, {sNch}, 3
              s_sub_u32 {sNch}, {sNch}, {sC0}
              s_lshl_b32 {sC0}, {sC0}, 2
              s_lshl_b32 {sNch}, {sNch}, 2''')
        assert [(43*x+47 >> 3) - (43*x+4 >> 3) for x in range(8)].count(6) == 3 and (43*8+4) >> 3 == 43
    else:
        e(f'''s_mul_i32 {sC0}, {sXc}, 43
              s_add_u32 {sC0}, {sC0}, 1
              s_lshr_b32 {sC0}, {sC0}, 1
              s_and_b32 {sT1}, {sXc}, 1
              s_sub_u32 {sNch}, 22, {sT1}''')
    e(f'''s_sub_u32 {sPB}, {sNch}, {HB}
          s_and_b32 {sT2}, {sJ}, 1
          s_cselect_b32 {sPB}, {sPB}, {HB}
          s_mul_i32 {sT2}, {sT2}, {HB}
          s_add_u32 {sT2}, {sT2}, {sC0}
          s_and_b32 {sT1}, {sW}, 1
          s_and_b32 {sT0}, {sJ}, 30
          s_add_u32 {sT1}, {sT1}, {sT0}
          s_lshl_b32 {sT1}, {sT1}, 4
          v_add_u32 {t3}, {sT1}, {g}
          v_mul_u32_u24 {t3}, 2752, {t3}
          v_cmp_gt_u32 vcc, {sPB}, {i}
          v_add_u32 {t4}, {sT2}, {i}
          v_lshl_add_u32 {t3}, {t4}, 4, {t3}
          v_mov_b32 {t5}, {OOB}
          v_cndmask_b32 {vFU}, {t5}, {t3}, vcc
          s_cmp_lt_u32 {sW}, 2
          s_cselect_b32 s44, s16, s18
          s_cselect_b32 s45, s17, s19
          s_mov_b32 s46, {512*2752}
          s_mov_b32 s47, 0x20000''')
    if 'fu' in off: e(f'v_mov_b32 {vFU}, {OOB}')
    for t in range(4):
        if t:
            e(f's_mov_b32 {sT2}, {11008*t}')
        e.vmem(f'buffer_load_dwordx4 {rng("a", AFU+4*t, 4)}, {vFU}, {SFU}, {sT2 if t else 0} offen {wpol}', f'fu{t}')
    e(f'''s_lshl2_add_u32 {sT0}, {sS8}, {sW}
          s_lshl_b32 {sT0}, {sT0}, 4
          v_and_b32 {t5}, 4, {vL}
          v_cmp_eq_u32 vcc, 0, {t5}
          v_mov_b32 {t4}, {sT0}
          v_mov_b32 {t5}, {sT1}
          v_and_b32 {t3}, 3, {vL}
          v_cndmask_b32 {t4}, {t5}, {t4}, vcc
          v_lshl_add_u32 {t3}, {t3}, 2, {g}
          v_bfe_u32 {t5}, {vL}, 3, 1
          v_add_u32 {t3}, {t3}, {t4}
          v_lshl_add_u32 {t3}, {t5}, 9, {t3}
          v_lshlrev_b32 {vXG}, 1, {t3}''')
    e.vmem(f'buffer_load_ushort v{XG}, {vXG}, {SX}, 0 offen {xpol}', 'xg')
    for _ in range(k1):
        kissue()
    e(f'''s_mov_b32 s34, 0x40000
          s_mov_b32 s35, 0x20000
          s_lshl_b32 {sT0}, {sH}, 17
          s_add_u32 s40, s12, {sT0}
          s_addc_u32 s41, s13, 0
          s_mov_b32 s42, 0x20000
          s_mov_b32 s43, 0x20000
          s_mov_b32 s48, s20
          s_mov_b32 s49, s21
          s_mov_b32 s50, {1376*1024}
          s_mov_b32 s51, 0x20000
          s_mov_b32 s56, s26
          s_mov_b32 s57, s27
          s_mov_b32 s58, {WS_END}
          s_mov_b32 s59, 0x20000
          s_mov_b32 s60, s22
          s_mov_b32 s61, s23
          s_mov_b32 s62, 2048
          s_mov_b32 s63, 0x20000''')
    if stamps:
        e('s_mov_b32 s20, s26\ns_mov_b32 s21, s27\ns_mov_b32 s22, 0x40000000\ns_mov_b32 s23, 0x20000')
    if (codepf or tailpf is not None) and not (codepf and cpf0):
        e('s_getpc_b64 s[64:65]\nL_pc:\ns_mov_b32 s66, L_codeend - L_pc\ns_mov_b32 s67, 0x20000')
    if touch:
        e(f'v_mov_b32 {t2}, 0')
        for k, nm in enumerate(touch):
            srd = dict(V=SV, wo=SWO, w2=SW2, ws=SWS, out=SOUT)[nm]
            e.vmem(f'buffer_load_dword {vF}, {t2}, {srd}, 0 offen nt', 'touch' + nm)
    if codepf and not cpf0:
        e(f'''s_lshl2_add_u32 {sT0}, {sJ}, {sW}
              s_lshl_b32 {sT0}, {sT0}, 8
              v_lshl_add_u32 {t2}, {vL}, 2, {sT0}''')
        e.vmem(f'buffer_load_dword {vF}, {t2}, {SCODE}, 0 offen', 'cpf')
    if pre is not None:
        e(f'''s_lshl3_add_u32 {sT0}, {sH}, {sS8}
              s_lshl2_add_u32 {sT0}, {sT0}, {sW}
              s_lshl_b32 {sT0}, {sT0}, 8
              s_add_u32 {sT0}, {sT0}, {WS_Q}
              s_lshl_b32 {sT1}, {sXc}, 5
              s_add_u32 {sT1}, {sT1}, {sJ}
              s_mul_i32 {sT1}, {sT1}, {FU_STRIDE}
              s_lshl_b32 {sT2}, {sW}, 9
              s_add_u32 {sT1}, {sT1}, {sT2}
              s_add_u32 {sT1}, {sT1}, {WS_FU - 256}
              v_mov_b32 {t2}, {sT0}
              v_mov_b32 {t3}, {sT1}
              v_cmp_gt_u32 vcc, 2, {vL}
              v_mov_b32 {t4}, {OOB}
              v_cndmask_b32 {t2}, {t3}, {t2}, vcc
              v_cmp_gt_u32 vcc, 5, {vL}
              v_lshl_add_u32 {t2}, {vL}, 7, {t2}
              v_cndmask_b32 {t2}, {t4}, {t2}, vcc''')
        e.vmem(f'buffer_load_dword a{AH+2}, {t2}, {SWS}, 0 offen {pre}', 'pre')
    e(f'''v_and_b32 {t2}, 1, {vL}
          v_lshlrev_b32 {t2}, 4, {t2}
          v_mov_b32 {t3}, 0xffff
          v_lshlrev_b32 {t2}, {t2}, {t3}
          v_bfe_u32 {t3}, {vL}, 1, 2
          v_cmp_eq_u32 s[4:5], 0, {t3}
          v_cmp_eq_u32 s[6:7], 1, {t3}
          v_cmp_eq_u32 s[8:9], 2, {t3}
          v_cmp_eq_u32 s[10:11], 3, {t3}''')
    for r in range(4):
        e(f'v_cndmask_b32 v{M[r]}, 0, {t2}, s[{4+2*r}:{5+2*r}]')
    e(f'''s_mov_b32 s94, 0xcccccccc
          s_mov_b32 s95, 0xcccccccc
          s_mov_b32 s96, 0xaaaaaaaa
          s_mov_b32 s97, 0xaaaaaaaa
          s_mov_b32 {sSelLo}, 0x05040100
          s_mov_b32 {sSelHi}, 0x07060302
          s_movk_i32 {sM8}, 0xff
          s_movk_i32 {sM12}, 0xfff
          s_movk_i32 {sM3}, 7
          s_getreg_b32 {sXcc}, hwreg(HW_REG_XCC_ID, 0, 4)''')
    if dbgcnt:
        e(f's_mov_b32 {sCnt}, 0')

    def rowred(op, r):
        for c in ('row_ror:8', 'row_ror:4', 'row_ror:2', 'row_ror:1'):
            e(f'{op}_dpp {r}, {r}, {r} {c} row_mask:0xf bank_mask:0xf')
    def swapred(op, r, tmp, n):
        e(f'v_mov_b32 {tmp}, {r}\nv_permlane{n}_swap_b32 {r}, {tmp}\n{op} {r}, {r}, {tmp}')
    def bf16r(dst, src):
        e(f'v_cvt_pk_bf16_f32 {dst}, {src}, {src}\nv_and_b32 {dst}, 0xffff0000, {dst}')
    def pk(op, d, a, b):
        e(f'v_pk_{op}_f32 v[{d}:{d+1}], v[{a}:{a+1}], v[{b}:{b+1}]')

    if stamps and stset == 'head':
        e.wait('K0')
        e('s_waitcnt lgkmcnt(0)\ns_mov_b64 s[4:5], s[14:15]')
        nst[0] = 1
        stamp('head')
    e.wait('xl1')
    stamp('main,head')
    for k in range(8):
        e(f'v_lshlrev_b32 v{XU+2*k}, 16, v{XL+k}\nv_and_b32 v{XU+2*k+1}, 0xffff0000, v{XL+k}')
    for k in range(4):
        pk('add', XL + 2 * k, XU + 4 * k, XU + 4 * k + 2)
    pk('add', XL, XL, XL + 2); pk('add', XL + 4, XL + 4, XL + 6); pk('add', XL, XL, XL + 4)
    e(f'v_add_f32 {t2}, v{XL}, v{XL+1}')
    for _ in range(ksp[0]): kspr()
    rowred('v_add_f32', t2)
    swapred('v_add_f32', t2, t3, 16)
    e(f'v_mul_f32 {t2}, 0x3b000000, {t2}')
    for k in range(0, 16, 2):
        e(f'v_pk_add_f32 v[{XU+k}:{XU+k+1}], v[{XU+k}:{XU+k+1}], v[30:31] op_sel_hi:[1,0] neg_lo:[0,1] neg_hi:[0,1]')
    for _ in range(ksp[1]): kspr()
    pk('mul', XL, XU, XU); pk('mul', XL + 2, XU + 2, XU + 2)
    for k in range(4, 16, 4):
        e(f'v_pk_fma_f32 v[{XL}:{XL+1}], v[{XU+k}:{XU+k+1}], v[{XU+k}:{XU+k+1}], v[{XL}:{XL+1}]')
        e(f'v_pk_fma_f32 v[{XL+2}:{XL+3}], v[{XU+k+2}:{XU+k+3}], v[{XU+k+2}:{XU+k+3}], v[{XL+2}:{XL+3}]')
    pk('add', XL, XL, XL + 2)
    e(f'v_add_f32 {t4}, v{XL}, v{XL+1}')
    for _ in range(ksp[2]): kspr()
    rowred('v_add_f32', t4)
    swapred('v_add_f32', t4, t3, 16)
    e(f'v_mul_f32 {t4}, 0x3b000000, {t4}')
    bf16r(t2, t2)
    bf16r(t4, t4)
    e(f'v_add_f32 {t4}, 0x3727c5ac, {t4}')
    bf16r(t4, t4)
    e(f'v_sqrt_f32 {t4}, {t4}')
    bf16r(t4, t4)
    e(f'''v_mov_b32 {t3}, {t2}
          v_mov_b32 {t5}, {t4}
          v_and_b32 v{XL}, 8, {vL}
          v_permlane32_swap_b32 {t2}, {t3}
          v_permlane32_swap_b32 {t4}, {t5}
          v_cmp_eq_u32 vcc, 0, v{XL}
          v_cndmask_b32 {t2}, {t3}, {t2}, vcc
          v_cndmask_b32 {t4}, {t5}, {t4}, vcc''')
    e.wait('xg')
    XN = f'v{XG}'
    e(f'v_lshlrev_b32 {XN}, 16, {XN}\nv_sub_f32 {XN}, {XN}, {t2}\nv_rcp_f32 {t5}, {t4}')
    bf16r(XN, XN)
    e(f'''v_mul_f32 {t2}, {XN}, {t5}
          v_fma_f32 {t3}, -{t2}, {t4}, {XN}
          v_fmac_f32 {t2}, {t3}, {t5}
          v_cvt_pk_bf16_f32 {XN}, {t2}, {t2}''')
    for _ in range(ksp[3]): kspr()
    for t in range(8):
        a = A[t & 1]
        for r in range(4):
            e(f'v_and_b32_dpp v{a+r}, {XN}, v{M[r]} row_newbcast:{t} row_mask:0xf bank_mask:0x3')
        for r in range(4):
            e(f'v_and_b32_dpp v{a+r}, {XN}, v{M[r]} row_newbcast:{t+8} row_mask:0xf bank_mask:0xc')
        if t < 4:
            e(f'v_mfma_f32_16x16x32_bf16 {rng("v", DQ, 4)}, {rng("v", a, 4)}, {rng("a", AWQ+4*t, 4)}, {rng("v", DQ, 4) if t else 0}')
        else:
            e(f'v_mfma_f32_16x16x32_bf16 {rng("v", DF, 4)}, {rng("v", a, 4)}, {rng("a", AFU+4*(t-4), 4)}, {rng("v", DF, 4) if t > 4 else 0}')
        if t == 3:
            for _ in range(ksp[4]): kspr()
    e(f'ds_write_b128 {vKO}, {rng("v", DQ, 4)}')
    vRF, vRQ, vSF, vSQ = 'v208', 'v209', 'v210', 'v211'
    e(f'''s_lshr_b32 {sT0}, {sW}, 1
          s_lshl_b32 {sT0}, {sT0}, 9
          s_and_b32 {sT1}, {sW}, 1
          s_lshl3_add_u32 {sT0}, {sT1}, {sT0}
          v_and_b32 {t3}, 31, {vL}
          v_lshl_add_u32 {vRF}, {t3}, 4, {sT0}
          s_lshl_b32 {sT0}, {sW}, 8
          v_lshl_add_u32 {vRQ}, {i}, 4, {sT0}
          ds_write_b128 {vKO}, {rng("v", DF, 4)} offset:4096
          s_lshl_b32 {sT1}, {sXc}, 5
          s_add_u32 {sT1}, {sT1}, {sJ}
          s_mul_i32 {sT1}, {sT1}, {FU_STRIDE}
          s_lshl1_add_u32 {sT1}, {sT0}, {sT1}
          s_add_u32 {sT1}, {sT1}, {WS_FU}
          v_and_b32 {t3}, 47, {vL}
          v_cmp_gt_u32 vcc, {sPB}, {t3}
          v_lshl_add_u32 {t3}, {i}, 1, {g}
          v_lshl_add_u32 {t3}, {t3}, 4, {sT1}
          v_mov_b32 {t5}, {OOB}
          v_cndmask_b32 {vSF}, {t5}, {t3}, vcc
          s_lshl3_add_u32 {sT1}, {sH}, {sS8}
          s_lshl_b32 {sT1}, {sT1}, 10
          s_add_u32 {sT1}, {sT1}, {WS_Q}
          v_add_u32 {t3}, {sT1}, {vRQ}
          v_cmp_gt_u32 vcc, 16, {vL}
          v_cndmask_b32 {vSQ}, {t5}, {t3}, vcc''')
    if 'pub' in off: e(f'v_mov_b32 {vSF}, {OOB}\nv_mov_b32 {vSQ}, {OOB}')
    stamp('head')
    e('s_waitcnt lgkmcnt(0)\ns_barrier')
    stamp('main,head')
    R0, R1 = 216, 232
    for k in range(4):
        e(f'ds_read_b128 {rng("v", R0+4*k, 4)}, {vRQ} offset:{1024*k}')
    for k in range(4):
        e(f'ds_read_b64 v[{R1+2*k}:{R1+2*k+1}], {vRF} offset:{4096+1024*k}')
    e(f'''s_add_u32 {sEp}, {sEp}, 1
          s_and_b32 {sT1}, {sEp}, {sM12}
          v_mov_b32 {vTA}, {sT1}
          v_xor_b32 {vTB}, {sXcc}, {vTA}
          s_xor_b32 {sXcc}, {sXcc}, {sEp}
          v_accvgpr_write_b32 a{AQA}, {vSQ}
          v_accvgpr_write_b32 a{AFA}, {vSF}
          s_waitcnt lgkmcnt(4)''')
    def tag(r, vts, m):
        for k, vt in enumerate(vts):
            e(f'v_bfi_b32 v{r+k}, {m}, {vt}, v{r+k}')
    pk('add', R0, R0, R0 + 4); pk('add', R0 + 2, R0 + 2, R0 + 6); pk('add', R0 + 8, R0 + 8, R0 + 12); pk('add', R0 + 10, R0 + 10, R0 + 14)
    pk('add', R0, R0, R0 + 8); pk('add', R0 + 2, R0 + 2, R0 + 10)
    tag(R0, [vTA, vTA, vTB, vTB], sM3)
    e.vmem(f'buffer_store_dwordx4 {rng("v", R0, 4)}, {vSQ}, {SWS}, 0 offen', 'pubq')
    e(f'''s_waitcnt lgkmcnt(0)
          v_add_f32 v{R1+8}, v{R1}, v{R1+2}
          v_add_f32 v{R1+9}, v{R1+4}, v{R1+6}
          v_add_f32 v{R1+10}, v{R1+1}, v{R1+3}
          v_add_f32 v{R1+11}, v{R1+5}, v{R1+7}''')
    tag(R1 + 8, [vTA, vTA, vTA, vTB], sM8)
    e.vmem(f'buffer_store_dwordx4 {rng("v", R1+8, 4)}, {vSF}, {SWS}, 0 offen', 'pubf')
    for k in range(4):
        e(f'v_accvgpr_write_b32 a{AQD+k}, v{R0+k}\nv_accvgpr_write_b32 a{AFD+k}, v{R1+8+k}')
    for _ in range(kpost[0]): kspr()

    e(f'''s_lshl2_add_u32 {sPB}, {sH}, {sS}
          s_lshl2_add_u32 {sT0}, {sB}, {sW}
          s_lshl_b32 {sT0}, {sT0}, 9
          s_add_u32 {sT0}, {sT0}, {sPB}
          s_lshl_b32 {sT0}, {sT0}, 7
          v_lshrrev_b32 {t2}, 2, {i}
          v_lshlrev_b32 {t2}, 14, {t2}
          v_and_b32 {t3}, 3, {vL}
          v_lshl_add_u32 {t2}, {t3}, 5, {t2}
          v_lshl_add_u32 {t2}, {g}, 4, {t2}
          v_add_u32 {vY}, {sT0}, {t2}
          s_lshl2_add_u32 {sT1}, {sBH}, {sS}
          s_lshl2_add_u32 {sT1}, {sT1}, {sW}
          s_lshl4_add_u32 {sT1}, {sT1}, {WS_ML}
          v_mov_b32 {t4}, {sT1}
          v_cmp_eq_u32 vcc, 0, {vL}
          v_mul_u32_u24 {t3}, 320, {t3}
          v_cndmask_b32 {vML}, {t5}, {t4}, vcc
          v_lshl_add_u32 {vOR}, {g}, 4, {t3}
          s_mul_i32 {sT0}, {sW}, 320
          s_add_u32 {sT0}, {sT0}, {LDS_O}
          v_and_b32 {t2}, 1, {g}
          v_lshlrev_b32 {t3}, 3, {t2}
          v_lshl_add_u32 {t3}, {i}, 4, {t3}
          v_add_u32 {vOW}, {sT0}, {t3}''')
    if cw == 4:
        e(f'''s_lshl2_add_u32 {sU}, {sHH}, {sS}
              s_lshr_b32 {sT1}, {sU}, 3
              s_lshl1_add_u32 {sT1}, {sXc}, {sT1}
              s_lshl4_add_u32 {sT1}, {sB}, {sT1}
              s_and_b32 {sT0}, {sU}, 7
              s_lshl_b32 {sT2}, {sT1}, 14
              s_lshl4_add_u32 {sT2}, {sT0}, {sT2}
              v_lshl_add_u32 {vCON}, {vL}, 7, {sT2}
              s_lshl3_add_u32 {sT1}, {sT1}, {sT0}
              s_lshl_b32 {sT1}, {sT1}, 3
              v_lshrrev_b32 {t3}, 1, {g}
              v_lshl_add_u32 {t2}, {t2}, 1, {t3}
              v_lshl_add_u32 {t2}, {t2}, 1, {sT1}
              v_cmp_eq_u32 vcc, 0, {i}
              v_cndmask_b32 {vOUT}, {t5}, {t2}, vcc''')
    else:
        LP = cw // 4
        lg = LP.bit_length() - 1
        e(f'''s_lshl2_add_u32 {sU}, {sHH}, {sS}
              s_lshr_b32 {sT1}, {sU}, 3
              s_lshl1_add_u32 {sT1}, {sXc}, {sT1}
              s_lshl4_add_u32 {sT1}, {sB}, {sT1}
              s_and_b32 {sT0}, {sU}, 7
              s_and_b32 {sCon}, {sU}, {LP-1}
              s_lshl_b32 {sT2}, {sT1}, 14
              s_lshl4_add_u32 {sT2}, {sT0}, {sT2}
              s_lshl_b32 {sS8}, {sW}, 12
              s_add_u32 {sT2}, {sT2}, {sS8}
              v_lshrrev_b32 {t3}, {lg}, {vL}
              v_lshl_add_u32 {t3}, {t3}, 7, {sT2}
              v_and_b32 {t4}, {LP-1}, {vL}
              v_lshl_add_u32 {vCON}, {t4}, 4, {t3}
              s_lshl3_add_u32 {sT1}, {sT1}, {sT0}
              s_lshl_b32 {sT1}, {sT1}, 3
              v_lshrrev_b32 {t3}, 1, {g}
              v_lshl_add_u32 {t2}, {t2}, 1, {t3}
              v_lshl_add_u32 {t2}, {i}, 2, {t2}
              v_lshl_add_u32 {t2}, {t2}, 1, {sT1}
              v_cmp_gt_u32 vcc, {LP}, {i}
              v_cndmask_b32 {vOUT}, {t5}, {t2}, vcc''')
    for _ in range(kpost[1]): kspr()
    e(f'''s_lshl_b32 {sT0}, {sH}, 13
          s_lshl_b32 {sT1}, {sB}, 9
          s_add_u32 {sT0}, {sT0}, {sT1}
          s_add_u32 {sT0}, {sT0}, {WS_Q}
          v_lshlrev_b32 {t2}, 10, {g}
          v_lshl_add_u32 {t2}, {i}, 4, {t2}
          v_add_u32 {vQG}, {sT0}, {t2}
          s_lshl_b32 {sT0}, {sW}, 8
          v_lshl_add_u32 {t2}, {i}, 4, {sT0}
          v_lshl_add_u32 {vWO}, {g}, 13, {t2}
          s_mul_i32 {sU}, {sU}, 12
          s_lshl_b32 {sNch}, {sNch}, 3
          s_lshl3_add_u32 {sT0}, {sC0}, {sU}
          s_lshl_b32 {sT0}, {sT0}, 10
          s_cmp_lt_u32 {sU}, {sNch}
          s_cselect_b32 {sT0}, {sT0}, {OOB}
          s_cselect_b32 {sU}, {sU}, 0
          v_lshl_add_u32 {t2}, {g}, 12, {t2}
          v_add_u32 {t2}, {sT0}, {t2}
          v_cmp_gt_u32 vcc, 3, {g}
          v_cndmask_b32 {vW2}, {t5}, {t2}, vcc''')
    for _ in range(kpost[2]): kspr()
    e(f'''v_and_b32 {t2}, 7, {vL}
          v_cmp_gt_u32 s[24:25], 6, {t2}
          v_lshl_add_u32 {t2}, {t2}, 1, {sU}
          s_movk_i32 {sT1}, {8*HB}
          s_cmp_ge_u32 {sU}, {sT1}
          s_cselect_b32 {sT0}, 0, {sT1}
          v_mov_b32 {t3}, {sT0}
          v_cndmask_b32 {t2}, {t3}, {t2}, s[24:25]
          v_cmp_le_u32 s[24:25], {sT1}, {t2}
          v_cmp_gt_u32 vcc, {sNch}, {t2}
          v_lshrrev_b32 {t4}, 3, {vL}
          v_cndmask_b32 {t3}, 0, 1, s[24:25]
          v_lshl_add_u32 {t4}, {t4}, 1, {t3}
          v_mul_u32_u24 {t4}, {FU_STRIDE}, {t4}
          v_mul_u32_u24 {t3}, {8*HB}, {t3}
          v_sub_u32 {t2}, {t2}, {t3}
          v_bfe_u32 {t3}, {t2}, 1, 1
          v_lshl_add_u32 {t4}, {t3}, 9, {t4}
          v_lshrrev_b32 {t2}, 2, {t2}
          v_lshl_add_u32 {t2}, {t2}, 4, {t4}
          s_mul_i32 {sT0}, {sXc}, {32*FU_STRIDE}
          s_lshl_b32 {sT1}, {sB}, 10
          s_add_u32 {sT0}, {sT0}, {sT1}
          s_add_u32 {sT0}, {sT0}, {WS_FU}
          v_add_u32 {t2}, {sT0}, {t2}
          v_cndmask_b32 {vFG}, {t5}, {t2}, vcc''')
    for nm, r in (('qg', vQG), ('w2', vW2), ('fg', vFG), ('mlpub', vML), ('wo', vWO), ('y', vY), ('con', vCON)):
        if nm in off: e(f'v_mov_b32 {r}, {OOB}')

    slow = []
    def orred(regsl, m, dst, full=()):
        rs = list(regsl)
        if len(rs) == 1:
            e(f'v_and_b32 {t2}, {m}, v{rs[0]}')
        else:
            if len(rs) == 2:
                e(f'v_or_b32 {t2}, v{rs[0]}, v{rs[1]}')
            else:
                e(f'v_or3_b32 {t2}, v{rs[0]}, v{rs[1]}, v{rs[2]}')
                rs = rs[3:]
                while rs:
                    if len(rs) == 1:
                        e(f'v_or_b32 {t2}, {t2}, v{rs[0]}'); rs = []
                    else:
                        e(f'v_or3_b32 {t2}, {t2}, v{rs[0]}, v{rs[1]}'); rs = rs[2:]
            e(f'v_and_b32 {t2}, {m}, {t2}')
        for r in full:
            e(f'v_or_b32 {t2}, {t2}, v{r}')
        e(f'v_cmp_ne_u32 {dst}, 0, {t2}')
    def untag(regsl, vts, m, dst='vcc'):
        for r, vt in zip(regsl, vts):
            e(f'v_xor_b32 v{r}, {vt}, v{r}')
        orred(regsl, m, dst)
    def checked(name, regsl, kinds, ta, tb, m, republish, reissue):
        if 'check' in off:
            return
        def test(sel):
            for r, k in zip(regsl, kinds):
                if k in sel:
                    e(f'v_xor_b32 v{r}, {dict(A=ta, B=tb, F=sEp, G=sXcc)[k]}, v{r}')
            orred([r for r, k in zip(regsl, kinds) if k in sel and k in 'AB'], m, 'vcc',
                  [r for r, k in zip(regsl, kinds) if k in sel and k in 'FG'])
        test('ABFG')
        e(f's_cbranch_vccnz L_slow_{name}\nL_ok_{name}:')
        def emit_slow():
            e(f'L_slow_{name}:')
            republish()
            if slowpen:
                e(f's_mov_b32 {sSpin}, {slowpen}\nL_pen_{name}:\ns_sleep 127\ns_sub_u32 {sSpin}, {sSpin}, 1\ns_cbranch_scc0 L_pen_{name}')
            e(f's_mov_b32 {sSpin}, {spin}')
            e(f'L_miss_{name}:')
            e(f's_mov_b32 {sT1}, 0\ns_sleep 1')
            e(f'L_retry_{name}:')
            if dbgcnt:
                e(f's_add_u32 {sCnt}, {sCnt}, {1 << (8 * ["flag", "q", "fu", "ml"].index(name))}')
            e(f's_sub_u32 {sSpin}, {sSpin}, 1\ns_cbranch_scc1 L_ok_{name}')
            reissue()
            e('s_waitcnt vmcnt(0)')
            test('AF')
            for r, k in zip(regsl, kinds):
                if k == 'B':
                    e(f'v_bfi_b32 v{r}, {m}, 0, v{r}')
            e(f's_cbranch_vccnz L_miss_{name}')
            e(f's_xor_b32 {sT1}, {sT1}, 1\ns_cbranch_scc1 L_retry_{name}\ns_branch L_ok_{name}')
        slow.append(emit_slow)

    state = dict(q=False, kproc=0, soft=False, vproc=0, wop=0, ffn=False, ml=False, budget=catch)
    KT = [26, 27, 24, 25, 20, 21, 22, 23]
    def kpair(n):
        a, b = f'v{KT[0]}', f'v{KT[1]}'
        for k in range(4):
            for r, m in ((a, n), (b, n + 1)):
                e(f'v_dot2_f32_bf16 {r}, v{kreg(m)+k}, v{Q[k]}, {r if k else 0}')
        d1 = f'v{KT[2 + ((n >> 1) & 1)]}'
        e(f'v_add_f32_dpp {d1}, {a}, {a} row_ror:8 row_mask:0xf bank_mask:0x3')
        e(f'v_add_f32_dpp {d1}, {b}, {b} row_ror:8 row_mask:0xf bank_mask:0xc')
        if not (n >> 1) & 1:
            return
        x, y = f'v{KT[2]}', f'v{KT[3]}'
        d2 = f'v{KT[4 + ((n >> 2) & 1)]}'
        e(f'v_add_f32_dpp {d2}, {x}, {x} row_shl:4 row_mask:0xf bank_mask:0x5')
        e(f'v_add_f32_dpp {d2}, {y}, {y} row_shr:4 row_mask:0xf bank_mask:0xa')
        if not (n >> 2) & 1:
            return
        x, y = f'v{KT[4]}', f'v{KT[5]}'
        d3 = f'v{KT[6 + ((n >> 3) & 1)]}'
        e(f'v_add_f32_dpp {x}, {x}, {x} quad_perm:[2,3,0,1] row_mask:0xf bank_mask:0xf')
        e(f'v_add_f32_dpp {y}, {y}, {y} quad_perm:[2,3,0,1] row_mask:0xf bank_mask:0xf')
        e(f'v_cndmask_b32 {d3}, {x}, {y}, {sMC}')
        if not (n >> 3) & 1:
            return
        x, y = f'v{KT[6]}', f'v{KT[7]}'
        s = f'v{S[n >> 4]}'
        e(f'v_add_f32_dpp {x}, {x}, {x} quad_perm:[1,0,3,2] row_mask:0xf bank_mask:0xf')
        e(f'v_add_f32_dpp {y}, {y}, {y} quad_perm:[1,0,3,2] row_mask:0xf bank_mask:0xf')
        e(f'v_cndmask_b32 {s}, {x}, {y}, {sMA}')
        bf16r(s, s)
        e(f'v_mul_f32 {s}, {SCALE}, {s}')
        bf16r(s, s)
    def mlstore(tagger, p):
        e(f'v_bfi_b32 {t2}, {sM12}, {vTA}, {vM}\nv_bfi_b32 {t3}, {sM12}, {vTA}, {vLs}\nv_mov_b32 {t4}, {sEp}\nv_mov_b32 {t5}, {sXcc}')
        tagger(f'buffer_store_dwordx4 v[30:33], {vML}, {SWS}, 0 offen {p}', 'mlpub')
    def softmax():
        stamp()
        e(f'v_max3_f32 {vM}, v{S[0]}, v{S[1]}, v{S[2]}\nv_max_f32 {vM}, {vM}, v{S[3]}')
        rowred('v_max_f32', vM)
        swapred('v_max_f32', vM, t2, 16)
        swapred('v_max_f32', vM, t2, 32)
        for k in range(4):
            e(f'v_sub_f32 v{S[k]}, v{S[k]}, {vM}')
        for k in range(4):
            e(f'v_mul_f32 v{S[k]}, {LOG2E}, v{S[k]}')
        for k in range(4):
            e(f'v_exp_f32 v{S[k]}, v{S[k]}')
        for k in range(4):
            e(f'v_cvt_pk_bf16_f32 v{Q[k]}, v{S[k]}, v{S[k]}')
        e(f'v_add_f32 {vLs}, v{S[0]}, v{S[1]}\nv_add_f32 {t2}, v{S[2]}, v{S[3]}\nv_add_f32 {vLs}, {vLs}, {t2}')
        abuild(0)
        rowred('v_add_f32', vLs)
        swapred('v_add_f32', vLs, t2, 16)
        swapred('v_add_f32', vLs, t2, 32)
        mlstore(e.vmem, '')
        state['soft'] = True
    def abuild(n):
        a = A[n & 1]
        for r in range(4):
            e(f'v_and_b32_dpp v{a+r}, v{Q[n >> 4]}, v{M[r]} row_newbcast:{bitrev4(n & 15)} row_mask:0xf bank_mask:0xf')
    def vstep(n):
        c = rng('v', ACC, 4) if n else '0'
        e(f'v_mfma_f32_16x16x32_bf16 {rng("v", ACC, 4)}, {rng("v", A[n & 1], 4)}, {rng("a", vreg(n), 4)}, {c}')
        if n < 63:
            abuild(n + 1)
    F, DY, STG, G2, W2S, FGR = 128, 96, 64, 48, 224, 240
    stg = lambda k: STG + 4 * (k % 8)
    def woperm(k):
        t, ee = k >> 3, k & 7
        if woa:
            for kk in (k, k + 1):
                for m in range(4):
                    e(f'v_accvgpr_read_b32 v{stg(kk)+m}, a{AWO+4*kk+m}')
        for m in range(4):
            for hi in range(2):
                e(f'v_perm_b32 v{F + 32*t + 4*(2*m+hi) + ee//2}, v{stg(k+1)+m}, v{stg(k)+m}, {sSelHi if hi else sSelLo}')
    plain = lambda s, t: e(s)
    AFG, AWO, AW2, AH = 236, 64, 192, 244
    W2L = 80
    assert 4 * vring <= (AWO if woa else 192)
    def fgissue(tagger, p, acc=False):
        for m in range(2):
            if m:
                e(f's_mov_b32 {sT0}, {16*FU_STRIDE*m}')
            tagger(f'buffer_load_dwordx4 {rng("a", AFG+4*m, 4) if acc else rng("v", FGR+4*m, 4)}, {vFG}, {SWS}, {sT0 if m else 0} offen {p}', f'fg{m}')
    def republish(ad, aa):
        e(f'v_accvgpr_read_b32 {t2}, a{aa}\nbuffer_store_dwordx4 {rng("a", ad, 4)}, {t2}, {SWS}, 0 offen sc1')
    def ffn_down():
        if w2a:
            for k in range(16):
                e(f'v_accvgpr_read_b32 v{W2S+k}, a{AW2+k}')
        if n_fg is not None:
            for k in range(8):
                e(f'v_accvgpr_read_b32 v{FGR+k}, a{AFG+k}')
        e(f'''v_cmp_gt_u32 vcc, s58, {vFG}
              v_and_b32 {t4}, {sM8}, {vTA}
              v_and_b32 {t5}, {sM8}, {vTB}
              v_cndmask_b32 {t4}, 0, {t4}, vcc
              v_cndmask_b32 {t5}, 0, {t5}, vcc''')
        checked('fu', list(range(FGR, FGR + 8)), 'AAAB' * 2, t4, t5, sM8, lambda: republish(AFD, AFA), lambda: fgissue(plain, 'sc1'))
        for k in (0, 2):
            pk('add', FGR + k, FGR + k, FGR + 4 + k)
        for p in range(0 if w2last else 2):
            for m in range(4):
                for hi in range(2):
                    e(f'v_perm_b32 v{G2 + 2*(2*m+hi) + p}, v{W2S+8*p+4+m}, v{W2S+8*p+m}, {sSelHi if hi else sSelLo}')
        for k in range(4):
            e(f'v_add_f32_dpp v{FGR+k}, v{FGR+k}, v{FGR+k} row_ror:8 row_mask:0xf bank_mask:0xf')
        ga, up = f'v{FGR}', f'v{FGR+1}'
        e(f'''v_permlane32_swap_b32 v{FGR}, v{FGR+2}
              v_permlane32_swap_b32 v{FGR+1}, v{FGR+3}
              v_add_f32 {ga}, v{FGR}, v{FGR+2}
              v_add_f32 {up}, v{FGR+1}, v{FGR+3}''')
        swapred('v_add_f32', ga, t2, 16)
        swapred('v_add_f32', up, t3, 16)
        bf16r(ga, ga)
        bf16r(up, up)
        e(f'''v_mul_f32 {t2}, {LOG2E ^ 0x80000000}, {ga}
              v_exp_f32 {t2}, {t2}
              v_and_b32 {t4}, 3, {vL}
              v_add_f32 {t2}, 1.0, {t2}
              v_rcp_f32 {t2}, {t2}
              v_cmp_eq_u32 vcc, 0, {t4}
              v_mul_f32 {ga}, {ga}, {t2}
              v_cndmask_b32 {t4}, 0, -1, vcc''')
        bf16r(ga, ga)
        ha = FGR + 4
        e(f'''v_mul_f32 {ga}, {ga}, {up}
              v_mov_b32 v{ha}, 0
              v_mov_b32 {t2}, {ga}
              v_mov_b32 v{ha+1}, 0
              v_permlane32_swap_b32 {ga}, {t2}
              v_cvt_pk_bf16_f32 {ga}, {ga}, {t2}''')
        for gg in range(3):
            for p in range(2):
                e(f'v_and_b32_dpp v{ha+p}, {ga}, {t4} row_newbcast:{2*gg+p} row_mask:{hex(1 << gg)} bank_mask:0xf')
        if w2last:
            e(f'v_accvgpr_write_b32 a{AH}, v{ha}\nv_accvgpr_write_b32 a{AH+1}, v{ha+1}')
        for cc in range(0 if w2last else 8):
            e(f'v_mfma_f32_16x16x16_bf16 {rng("v", DY+4*cc, 4)}, v[{ha}:{ha+1}], v[{G2+2*cc}:{G2+2*cc+1}], 0')
        state['ffn'] = True
    def mlissue(tagger, p):
        e(f's_lshl_b32 {sT0}, {sBH}, 8\ns_add_u32 {sT0}, {sT0}, {WS_ML}\nv_lshl_add_u32 {vMG}, {i}, 4, {sT0}')
        if 'ml' in off: e(f'v_mov_b32 {vMG}, {OOB}')
        tagger(f'buffer_load_dwordx4 v[{S[0]}:{S[3]}], {vMG}, {SWS}, 0 offen {p}', 'ml')
    def mlcombine():
        checked('ml', S, 'AAFG', vTA, vTB, sM12, lambda: mlstore(plain, 'sc1'), lambda: mlissue(plain, 'sc1'))
        mi, li, mx = f'v{S[0]}', f'v{S[1]}', f'v{S[2]}'
        e(f'v_mov_b32 {mx}, {mi}')
        rowred('v_max_f32', mx)
        e(f'''v_sub_f32 {mi}, {mi}, {mx}
              v_sub_f32 {vF}, {vM}, {mx}
              v_mul_f32 {mi}, {LOG2E}, {mi}
              v_mul_f32 {vF}, {LOG2E}, {vF}
              v_exp_f32 {mi}, {mi}
              v_exp_f32 {vF}, {vF}
              v_mul_f32 {li}, {li}, {mi}''')
        rowred('v_add_f32', li)
        e(f'v_rcp_f32 {li}, {li}\nv_mul_f32 {vF}, {vF}, {li}')
        state['ml'] = True
    complete = lambda tag: tag in e.vm and e.vm.index(tag) < e.done
    def progress():
        if state['q'] and not state['soft']:
            c = 0
            while state['kproc'] < 64 and complete(f'K{state["kproc"]+1}') and c < state['budget']:
                kpair(state['kproc']); state['kproc'] += 2; c += 2
            state['budget'] = catch if c >= 2 or state['budget'] >= 2 * catch else state['budget'] + 1
            if state['kproc'] == 64:
                softmax()
        if state['soft']:
            while state['vproc'] < 64 and complete(f'V{state["vproc"]}'):
                vstep(state['vproc']); state['vproc'] += 1
            while state['wop'] < 32 and complete(f'wo{state["wop"]+1}'):
                if woa and not (state['vproc'] >= 2 + 3 * (state['wop'] // 2) and (state['wop'] < 24 or state['ffn'])):
                    break
                woperm(state['wop']); state['wop'] += 2
            if not state['ffn'] and complete('fg1') and (w2last or complete('w23')):
                ffn_down()
            if not state['ml'] and complete('ml'):
                mlcombine()
    def window():
        d = D
        if Dend and f'V{nend}' in e.vm: d = Dend
        if Dk and 'V0' not in e.vm: d = Dk
        k = len(e.vm) - d
        if k >= e.done:
            e.wait(e.vm[k])
        progress()
    QG = 232
    def qissue(tagger, p):
        for k in range(4):
            if k == 2:
                e(f's_movk_i32 {sT0}, 0x1000')
            tagger(f'buffer_load_dwordx4 {rng("v", QG+4*k, 4)}, {vQG}, {SWS}, {sT0 if k >= 2 else 0} offen offset:{256*(k&1)} {p}', f'qg{k}')
    def qfinish():
        e(f'v_and_b32 {t4}, 7, {vTA}\nv_and_b32 {t5}, 7, {vTB}')
        e.wait('qg3')
        checked('q', list(range(QG, QG + 16)), 'AABB' * 4, t4, t5, sM3, lambda: republish(AQD, AQA), lambda: qissue(plain, 'sc1'))
        for k in range(0, 8, 2):
            pk('add', QG + k, QG + k, QG + 8 + k)
        for k in range(4):
            e(f'v_permlane32_swap_b32 v{QG+k}, v{QG+4+k}')
        for k in (0, 2):
            pk('add', QG + k, QG + k, QG + 4 + k)
        e(f'''v_permlane16_swap_b32 v{QG}, v{QG+2}
              v_permlane16_swap_b32 v{QG+1}, v{QG+3}
              v_pk_add_f32 v[{QG}:{QG+1}], v[{QG}:{QG+1}], v[{QG+2}:{QG+3}]
              v_cvt_pk_bf16_f32 v{Q[0]}, v{QG}, v{QG+1}
              v_cvt_pk_bf16_f32 v{Q[1]}, v{QG}, v{QG+1}
              v_permlane16_swap_b32 v{Q[0]}, v{Q[1]}
              v_mov_b32 v{Q[2]}, v{Q[0]}
              v_mov_b32 v{Q[3]}, v{Q[1]}
              v_permlane32_swap_b32 v{Q[0]}, v{Q[2]}
              v_permlane32_swap_b32 v{Q[1]}, v{Q[3]}''')
        state['q'] = True
        stamp()
    wosched = {}
    if woa:
        for k in range(32):
            wosched.setdefault(woa[0] + (k * (woa[1] - woa[0])) // 32, []).append(('wo', k))
    if w2a:
        for k in range(4):
            wosched.setdefault(w2a + 2 * k, []).append(('w2', k))
    def early(stepno):
        for kind, k in wosched.pop(stepno, []):
            window()
            if kind == 'wo':
                e(f's_mov_b32 {sT0}, {(k >> 3)*32768 + ((k >> 2) & 1)*4096}')
                e.vmem(f'buffer_load_dwordx4 {rng("a", AWO+4*k, 4)}, {vWO}, {SWO}, {sT0} offen offset:{1024*(k & 3)} {wpol}', f'wo{k}')
            else:
                e.vmem(f'buffer_load_dwordx4 {rng("a", AW2+4*k, 4)}, {vW2}, {SW2}, 0 offen offset:{1024*k} {wpol}', f'w2{k}')
    assert kn[0] <= n_q and all(k >= kn[0] for k in wosched)
    while kn[0] < 64:
        n = kn[0]
        if n == n_q:
            window(); qissue(e.vmem, qpol)
        if mlpre is not None and n == mlpre[0]:
            window(); e.vmem(f'buffer_load_dword a{AH+3}, {vML}, {SWS}, 0 offen {mlpre[1]}', 'mlpre')
        if n == n_fg:
            window(); fgissue(e.vmem, fpol, acc=True)
        if n == n_q + gap:
            assert n <= (QG - KBASE) // 4
            qfinish()
        window()
        if n >= KRING:
            assert state['kproc'] > n - KRING, (n, state)
        kissue()
        early(n)
    extra = {}
    for k in range(4):
        if not w2a and not w2last:
            extra.setdefault(ex0 + k, []).append(('w2', k))
    if n_fg is None:
        extra.setdefault(ex0 + 4, []).append(('fg', 0))
    extra.setdefault(ex0 + 5, []).append(('xres', 0))
    for k in range(0 if woa else 32):
        extra.setdefault(wo_start + (k * (wo_end - wo_start)) // 32, []).append(('wo', k))
    extra.setdefault(n_ml, []).append(('ml', 0))
    if tailpf is not None:
        extra.setdefault(tailpf, []).append(('tpf', 0))
    if opf is not None:
        extra.setdefault(opf, []).append(('opf', 0))
    if ypf is not None:
        extra.setdefault(ypf, []).append(('ypf', 0))
    XR = 39
    nv, m = 0, None
    while nv < 64:
        window()
        assert nv < vring or state['vproc'] > nv - vring, (nv, state)
        e.vmem(f'buffer_load_dwordx4 {rng("a", vreg(nv), 4)}, {vKO}, {SV}, {sVoff} offen {pol}', f'V{nv}')
        if nv < 63:
            e(f's_addk_i32 {sVoff}, 0x1000\ns_and_b32 {sVoff}, {sVoff}, {sMask}')
        early(64 + nv)
        nv += 1
        if state['soft'] and m is None:
            m = 0
        if m is not None:
            for kind, k in extra.pop(m, []):
                window()
                if kind == 'w2':
                    e.vmem(f'buffer_load_dwordx4 {rng("v", W2S+4*k, 4)}, {vW2}, {SW2}, 0 offen offset:{1024*k} {wpol}', f'w2{k}')
                elif kind == 'fg':
                    fgissue(e.vmem, fpol)
                elif kind == 'xres':
                    e.vmem(f'buffer_load_ushort v{XR}, {vOUT}, {SX}, 0 offen {xpol}', 'xres')
                elif kind == 'ml':
                    mlissue(e.vmem, mpol)
                elif kind == 'opf':
                    e.vmem(f'buffer_load_ushort a{AWQ+8}, {vOUT}, {SOUT}, 0 offen', 'opf')
                elif kind == 'ypf':
                    e(f's_cmp_lg_u32 {sCon}, 0\ns_cselect_b32 {sT0}, {OOB}, 0\nv_add_u32 {t3}, {sT0}, {vCON}')
                    for kk in range(cw // 8):
                        e.vmem(f'buffer_load_dwordx4 {rng("a", AWQ+4*kk, 4)}, {t3}, {SWS}, 0 offen offset:{(256 // cw) * 128 * kk} {ypfpol}', f'ypf{kk}')
                elif kind == 'tpf':
                    e(f's_lshl_b32 {sT0}, {sW}, 8\ns_add_u32 {sT0}, {sT0}, L_tail - L_pc\nv_lshl_add_u32 {t3}, {vL}, 2, {sT0}')
                    e.vmem(f'buffer_load_dword v{S[2]}, {t3}, {SCODE}, 0 offen', 'tpf')
                    assert state['ml']
                elif kind == 'wo':
                    assert k < 8 or state['wop'] > k - 8, (k, state)
                    assert k < 24 or state['ffn']
                    e(f's_mov_b32 {sT0}, {(k >> 3)*32768 + ((k >> 2) & 1)*4096}')
                    e.vmem(f'buffer_load_dwordx4 {rng("v", stg(k), 4)}, {vWO}, {SWO}, {sT0} offen offset:{1024*(k & 3)} {wpol}', f'wo{k}')
            m += 1
    assert not extra and not wosched, (extra, wosched)
    if w2last:
        for k in range(4):
            window()
            assert state['wop'] == 32, state
            e.vmem(f'buffer_load_dwordx4 {rng("v", W2L+4*k, 4)}, {vW2}, {SW2}, 0 offen offset:{1024*k} {wpol}', f'w2{k}')
    while state['vproc'] < 64:
        e.wait(f'V{state["vproc"]}')
        if state['vproc'] == 63:
            e('L_tail:')
            stamp('main,tail,head')
        progress()
    assert state['wop'] == 32 and state['ffn'] and state['ml'], state
    e(f'''v_mul_f32 v{ACC}, v{ACC}, {vF}
          v_mul_f32 v{ACC+1}, v{ACC+1}, {vF}
          v_mul_f32 v{ACC+2}, v{ACC+2}, {vF}
          v_mul_f32 v{ACC+3}, v{ACC+3}, {vF}
          v_cvt_pk_bf16_f32 v{ACC}, v{ACC}, v{ACC+1}
          v_cvt_pk_bf16_f32 v{ACC+1}, v{ACC+2}, v{ACC+3}
          ds_write_b64 {vOW}, v[{ACC}:{ACC+1}]''')
    stamp('tail')
    e('s_waitcnt lgkmcnt(0)\ns_barrier')
    stamp('tail')
    if stamps and stset == 'tail':
        e('s_waitcnt lgkmcnt(0)')
    AF = STG
    for t in range(4):
        e(f'ds_read_b128 {rng("v", AF+4*t, 4)}, {vOR} offset:{LDS_O+64*t}')
    Z = A[0]
    def tile_add(cc):
        pk('add', DY + 4 * cc, DY + 4 * cc, DY + 4 * cc + 2)
    def tile_fin(cc):
        d = DY + 4 * cc
        if cc < 4:
            e(f'v_add_f32 v{Z+cc}, v{d}, v{d+1}')
        else:
            e(f'v_add_f32_dpp v{Z+cc-4}, v{d}, v{d+1} quad_perm:[0,1,2,3] row_mask:0x2 bank_mask:0xf')
            if not w2last:
                e(f'v_bfi_b32 v{Z+cc-4}, {sM12}, {vTA}, v{Z+cc-4}')
    for cc in range(8):
        for t in range(4):
            if cc == 0:
                e(f's_waitcnt lgkmcnt({3-t})')
            e(f'v_mfma_f32_16x16x32_bf16 {rng("v", DY+4*cc, 4)}, {rng("v", AF+4*t, 4)}, {rng("v", F+32*t+4*cc, 4)}, {0 if w2last and t == 0 else rng("v", DY+4*cc, 4)}')
            if cc >= 2 and t == 1:
                tile_add(cc - 2)
            if cc >= 2 and t == 3:
                tile_fin(cc - 2)
    if w2last:
        def fperm(cc):
            for p in range(2):
                e(f'v_perm_b32 v{G2+2*cc+p}, v{W2L+8*p+4+cc//2}, v{W2L+8*p+cc//2}, {sSelHi if cc & 1 else sSelLo}')
        def fadd(cc):
            e(f'v_add_f32_dpp v{Z+(cc&3)}, v{DY+4*cc}, v{Z+(cc&3)} quad_perm:[0,1,2,3] row_mask:{hex(1 << (cc >> 2))} bank_mask:0xf')
            if cc >= 4:
                e(f'v_bfi_b32 v{Z+cc-4}, {sM12}, {vTA}, v{Z+cc-4}')
        tile_add(6)
        e.wait('w23')
        fperm(0)
        for cc in range(8):
            if cc < 7:
                fperm(cc + 1)
            if cc == 1:
                tile_add(7); tile_fin(6)
            if cc == 2:
                tile_fin(7)
            e(f'v_mfma_f32_16x16x16_bf16 {rng("v", DY+4*cc, 4)}, a[{AH}:{AH+1}], v[{G2+2*cc}:{G2+2*cc+1}], 0')
            if cc >= 3:
                fadd(cc - 3)
        e('s_mov_b32 exec_hi, 0')
        for cc in (5, 6, 7):
            fadd(cc)
    else:
        tile_add(6)
        e('s_mov_b32 exec_hi, 0')
        tile_add(7)
        tile_fin(6)
        tile_fin(7)
    e(f'buffer_store_dwordx4 {rng("v", Z, 4)}, {vY}, {SWS}, 0 offen {ypol}')
    if wbl2 is not None:
        e(f's_lshl2_add_u32 {sT1}, s2, {sW}\ns_lshr_b32 {sT2}, {sT1}, 5\ns_and_b32 {sT1}, {sT1}, 3\ns_lshl2_add_u32 {sT1}, {sT2}, {sT1}\ns_cmp_lg_u32 {sT1}, {wbl2 * 4 + 1}\ns_cbranch_scc1 L_nowb\nbuffer_wbl2 sc1\nL_nowb:')
    if cw == 4:
        e(f's_cmp_lg_u32 {sW}, {stwave}\ns_cbranch_scc1 L_end')
        stamp('main,tail')
        if stamps and stset == 'tail':
            e('s_waitcnt vmcnt(0)')
            stamp('tail')
        C = STG
        mA, mB = 's[24:25]', 's[26:27]'
        e(f's_mov_b32 {sSpin}, {spin}\ns_movk_i32 {sT0}, 0x2000\ns_mov_b64 {mA}, -1\ns_mov_b64 {mB}, -1')
        if few:
            e(f's_lshr_b32 {sT1}, s2, 3\ns_and_b32 {sT1}, {sT1}, {few}\ns_cbranch_scc1 L_polled')
        e('L_poll:')
        e(f'''s_mov_b64 exec, {mA}
              buffer_load_dwordx4 {rng("v", C, 4)}, {vCON}, {SWS}, 0 offen sc1
              s_mov_b64 exec, {mB}
              buffer_load_dwordx4 {rng("v", C+4, 4)}, {vCON}, {SWS}, {sT0} offen sc1
              s_sub_u32 {sSpin}, {sSpin}, 1
              s_cbranch_scc1 L_polled
              s_mov_b64 exec, {mA}
              s_waitcnt vmcnt(0)''')
        untag(list(range(C, C + 4)), [vTA] * 4, sM12, dst=mA)
        e(f's_mov_b64 exec, {mB}')
        untag(list(range(C + 4, C + 8)), [vTA] * 4, sM12, dst=mB)
        e(f's_or_b64 vcc, {mA}, {mB}')
        if 'con' in off: e('s_branch L_polled')
        if asleep:
            thr, big = asleep
            e(f'''s_cbranch_scc0 L_polled
                  s_bcnt1_i32_b64 {sT1}, {mA}
                  s_bcnt1_i32_b64 {sT2}, {mB}
                  s_add_u32 {sT1}, {sT1}, {sT2}
                  s_cmp_le_u32 {sT1}, {thr}
                  s_cbranch_scc1 L_poll
                  s_sleep {big}
                  s_branch L_poll''')
        elif sleep:
            e(f's_cbranch_scc0 L_polled\ns_sleep {sleep}\ns_branch L_poll')
        else:
            e('s_cbranch_scc1 L_poll')
        e('L_polled:')
        e('s_mov_b64 exec, -1')
        stamp('main,tail')
        pk('add', C, C, C + 4); pk('add', C + 2, C + 2, C + 6)
        e(f'''v_lshlrev_b32 v{XR}, 16, v{XR}
              v_permlane32_swap_b32 v{C}, v{C+1}
              v_permlane32_swap_b32 v{C+2}, v{C+3}
              v_add_f32 v{C}, v{C}, v{C+1}
              v_add_f32 v{C+2}, v{C+2}, v{C+3}
              v_permlane16_swap_b32 v{C}, v{C+2}
              v_add_f32 v{C}, v{C}, v{C+2}''')
        rowred('v_add_f32', f'v{C}')
        e(f'''v_add_f32 v{C}, v{C}, v{XR}
              v_cvt_pk_bf16_f32 v{C}, v{C}, v{C}
              buffer_store_short v{C}, {vOUT}, {SOUT}, 0 offen''')
    else:
        LP = cw // 4
        NL = LP // 2
        step = (64 // LP) * 128
        C = STG
        mk = [f's[{68+2*k}:{69+2*k}]' for k in range(NL)]
        if stamps:
            e(f's_cmp_lg_u32 {sCon}, 0\ns_cselect_b32 {sT1}, {sW}, 0\ns_cmp_lg_u32 {sT1}, 0\ns_cbranch_scc1 L_end')
            stamp('main,tail,poll')
            if stset == 'poll':
                e('s_waitcnt lgkmcnt(0)\ns_mov_b64 s[6:7], s[4:5]\ns_mov_b64 s[8:9], s[4:5]\ns_mov_b64 s[10:11], s[4:5]\ns_mov_b64 s[12:13], s[4:5]')
            e(f's_mov_b32 {sSpin}, {spin}\ns_cmp_lg_u32 {sCon}, 0\ns_cbranch_scc1 L_nocon')
        else:
            e(f's_cmp_lg_u32 {sCon}, 0\ns_cbranch_scc1 L_end')
        e(f's_mov_b32 {sSpin}, {spin}')
        for k in range(NL):
            e(f's_mov_b64 {mk[k]}, -1')
        e('L_poll:')
        if stamps and stset == 'poll':
            e('s_memrealtime s[8:9]')
        for k in range(NL):
            e(f's_mov_b64 exec, {mk[k]}')
            e(f'buffer_load_dwordx4 {rng("v", C+4*k, 4)}, {vCON}, {SWS}, 0 offen offset:{step*k} {ppol}')
        e(f's_sub_u32 {sSpin}, {sSpin}, 1\ns_cbranch_scc1 L_polled')
        for k in range(NL):
            e(f's_mov_b64 exec, {mk[k]}')
            if k == 0:
                e('s_waitcnt vmcnt(0)')
                if stamps and stset == 'poll':
                    e(f's_cmp_lg_u32 {sSpin}, {spin-1}\ns_cbranch_scc1 L_nf\ns_memrealtime s[6:7]\nL_nf:')
                    nst[0] = 3
            untag(list(range(C + 4*k, C + 4*k + 4)), [vTA] * 4, sM12, dst=mk[k])
        if NL == 1:
            e(f's_or_b64 vcc, {mk[0]}, {mk[0]}')
        else:
            e(f's_or_b64 vcc, {mk[0]}, {mk[1]}')
            for k in range(2, NL):
                e(f's_or_b64 vcc, vcc, {mk[k]}')
        if pipe:
            thr, big, P, gapsl = pipe
            e(f'''s_cbranch_scc0 L_polled
                  s_bcnt1_i32_b64 {sT1}, vcc
                  s_cmp_le_u32 {sT1}, {thr}
                  s_cbranch_scc1 L_pp''')
            if big:
                e(f's_sleep {big}')
            e('s_branch L_poll\nL_pp:')
            def pissue(p):
                for k in range(NL):
                    e(f's_or_b64 exec, {mk[k]}, 1')
                    e(f'buffer_load_dwordx4 {rng("v", F+4*(NL*p+k), 4)}, {vCON}, {SWS}, 0 offen offset:{step*k} {ppol}')
            for p in range(P):
                pissue(p)
                if p < P - 1:
                    e(f's_sleep {gapsl + 1}')
            e('L_ppl:')
            for p in range(P):
                e(f's_waitcnt vmcnt({NL*(P-1)})')
                for k in range(NL):
                    e(f's_mov_b64 exec, {mk[k]}')
                    for r in range(4):
                        e(f'v_xor_b32 v{C+4*k+r}, {vTA}, v{F+4*(NL*p+k)+r}')
                    orred(list(range(C + 4*k, C + 4*k + 4)), sM12, mk[k])
                e(f's_or_b64 vcc, {mk[0]}, {mk[-1]}')
                for k in range(1, NL - 1):
                    e(f's_or_b64 vcc, vcc, {mk[k]}')
                e('s_cbranch_scc0 L_polled')
                pissue(p)
                if gapsl:
                    e(f's_sleep {gapsl}')
            e(f's_sub_u32 {sSpin}, {sSpin}, 1\ns_cbranch_scc0 L_ppl')
        elif asleep:
            thr, big = asleep
            e(f'''s_cbranch_scc0 L_polled
                  s_bcnt1_i32_b64 {sT1}, vcc
                  s_cmp_le_u32 {sT1}, {thr}
                  s_cbranch_scc1 L_poll
                  s_sleep {big}
                  s_branch L_poll''')
        elif sleep:
            e(f's_cbranch_scc0 L_polled\ns_sleep {sleep}\ns_branch L_poll')
        else:
            e('s_cbranch_scc1 L_poll')
        e('L_polled:')
        e('s_mov_b64 exec, -1')
        stamp('main,tail,poll')
        if NL == 4:
            pk('add', C, C, C + 4); pk('add', C + 8, C + 8, C + 12); pk('add', C + 2, C + 2, C + 6); pk('add', C + 10, C + 10, C + 14)
            pk('add', C, C, C + 8); pk('add', C + 2, C + 2, C + 10)
        elif NL == 2:
            pk('add', C, C, C + 4); pk('add', C + 2, C + 2, C + 6)
        e(f'''v_lshrrev_b32 {t2}, 2, {vKO}
              v_lshlrev_b32 {t3}, 2, {vL}
              v_permlane32_swap_b32 v{C}, v{C+1}
              v_permlane32_swap_b32 v{C+2}, v{C+3}
              v_add_f32 v{C}, v{C}, v{C+1}
              v_add_f32 v{C+2}, v{C+2}, v{C+3}
              v_lshlrev_b32 v{XR}, 16, v{XR}
              v_permlane16_swap_b32 v{C}, v{C+2}
              v_add_f32 v{C}, v{C}, v{C+2}''')
        for d in (8, 4, 2):
            if LP <= d:
                e(f'v_add_f32_dpp v{C}, v{C}, v{C} row_ror:{d} row_mask:0xf bank_mask:0xf')
        e(f'''ds_write_b32 {t2}, v{C}
              s_waitcnt lgkmcnt(0)
              s_barrier
              s_cmp_lg_u32 {sW}, {stwave}
              s_cbranch_scc1 L_end''')
        stamp('poll')
        e(f'''ds_read2st64_b32 v[{C}:{C+1}], {t3} offset0:0 offset1:1
              ds_read2st64_b32 v[{C+2}:{C+3}], {t3} offset0:2 offset1:3
              s_waitcnt lgkmcnt(0)''')
        pk('add', C, C, C + 2)
        e(f'''v_add_f32 v{C}, v{C}, v{C+1}
              v_add_f32 v{C}, v{C}, v{XR}
              v_cvt_pk_bf16_f32 v{C}, v{C}, v{C}
              buffer_store_short v{C}, {vOUT}, {SOUT}, 0 offen {opol}''')
    e(f'''s_cmp_eq_u32 s2, 0
          s_cselect_b32 {sT0}, {WS_EP}, {OOB}
          v_mov_b32 {t2}, {sEp}
          v_mov_b32 {t3}, {sT0}
          s_mov_b64 exec, 1
          buffer_store_dword {t2}, {t3}, {SWS}, 0 offen {epol}''')
    if fixdur:
        e('s_cmp_lg_u32 s2, 0\ns_cbranch_scc1 L_end')
        if amp == -1:
            e(f's_waitcnt vmcnt(0)\ns_memrealtime s[24:25]\ns_waitcnt lgkmcnt(0)\ns_sub_u32 s1, s24, s100\ns_mul_i32 s1, s1, 10\ns_add_u32 s1, s1, {fixdur}')
        elif amp is not None:
            e(f's_waitcnt lgkmcnt(0)\ns_sub_u32 s1, s{stamp_regs[amp]}, s100\ns_mul_i32 s1, s1, 10\ns_add_u32 s1, s1, {fixdur}')
        else:
            e(f's_mov_b32 s1, {fixdur}')
        e('L_hold:\ns_memrealtime s[24:25]\ns_waitcnt lgkmcnt(0)\ns_sub_u32 s24, s24, s100\ns_cmp_lt_u32 s24, s1\ns_cbranch_scc1 L_hold\ns_endpgm')
    if stamps:
        if cw != 4:
            e(f's_branch L_st\nL_nocon:\ns_mov_b64 exec, 1\ns_waitcnt lgkmcnt(0)\ns_mov_b64 s[{stamp_regs[nst[0]-1]}:{stamp_regs[nst[0]-1]+1}], s[{stamp_regs[nst[0]-2]}:{stamp_regs[nst[0]-2]+1}]\nL_st:')
        stamp('tail')
        e('s_waitcnt vmcnt(0)')
        stamp('main,tail,head,poll')
        e(f's_waitcnt lgkmcnt(0)\ns_lshl_b32 s0, {sId}, 7\ns_add_u32 s0, s0, 0x20000000\nv_mov_b32 v0, 0')
        for k, r in enumerate([100] + stamp_regs[:nst[0]]):
            e(f'v_mov_b32 v2, s{r}\nv_mov_b32 v3, s{r+1}\nbuffer_store_dwordx2 v[2:3], v0, s[20:23], s0 offen offset:{8*k}')
        if clk:
            e(f's_memtime s[24:25]\ns_waitcnt lgkmcnt(0)\ns_sub_u32 s24, s24, s98\ns_sub_u32 {sSpin}, 400000, s24')
            e(f'v_mov_b32 v2, 0\nv_mov_b32 v3, {sSpin}\nbuffer_store_dwordx2 v[2:3], v0, s[20:23], s0 offen offset:120')
        if dbgcnt:
            e(f'v_mov_b32 v2, {sCnt}\nv_mov_b32 v3, {sSpin}\nbuffer_store_dwordx2 v[2:3], v0, s[20:23], s0 offen offset:120')
    e('L_end:\ns_endpgm')
    for f in slow:
        f()
    e('L_codeend:')
    e.raw('.section .rodata,"a"\n.p2align 6')
    e.raw(kernel_desc(K, 512, 102, accum=256))
    return e.text(), LDS, nst[0] + 1, e.nops

if __name__ == '__main__':
    cfgs = {}
    def add(name, **kw):
        cfgs[name] = kw
    exec(open(sys.argv[1]).read())
    BF = os.environ.get('BFLAGS', '-n 15 -c')
    os.makedirs('co', exist_ok=True)
    names = []
    for name, kw in cfgs.items():
        t, lds, ns, nops = gen(**kw)
        build(t, f'co/{name}')
        st = f'-t {ns}' if kw.get('stamps') else ''
        names.append(f'co/{name}.co')
        print(name, 'nops', nops, 'len', len(t))
    open('run.sh', 'w').write(f'#!/bin/bash\ntimeout 300 ./bench {BF} {st} {NAME}_kernel:256:256:{lds} ' + ' '.join(names) + '\n')
```

```python
import sys, os
from asmlib import NAME, kernel_desc, build
from emit import Emit

FU_STRIDE = 2176
WS_Y, WS_Q, WS_ML, WS_EP, WS_FU = 0, 0x80000, 0xC0000, 0xC4000, 0xC5000
WS_END = WS_FU + 256 * FU_STRIDE
OOB = 0x40000000
LOG2E = 0x3fb8aa3b
SCALE = 0x3db504f3

def bitrev4(n):
    return ((n & 1) << 3) | ((n & 2) << 1) | ((n & 4) >> 1) | ((n & 8) >> 3)

REF = 'cdna_kernels/' + NAME + '.s.ref'
HEADER = open(REF).read().split('; Override launch')[0] if os.path.exists(REF) else ''

NOTES = '''; Design: one launch, 256 workgroups = (batch, head, quarter of the 4096-key window) x 4 waves, one per CU.
;  - The q projection and FFN-up are split by rows over workgroups and handed over through d_ws; every wave
;    exchanges its softmax (max, sum); each workgroup applies wo and 12 rows of w2 to its share and publishes a
;    512-column partial; 64 workgroups sum 16 output columns each.
;  - Every hand-off word carries this launch's tag (the epoch word found in d_ws, + 1) in its low mantissa bits
;    finds another launch's tag or another XCD re-publishes its own words write-through and polls (bounded).'''

def gen(D=9, k0=2, k1=2, ksp=(1, 1, 1, 1, 1), kpost=(1, 1, 1), n_q=24, gap=None, catch=3, wo_start=8, wo_end=50, n_ml=30,
        ex0=0, vring=16, rotmul=5, sleep=2, codepf=True, tailpf=None, pol='nt', wpol='nt', xpol='', gpol='', spin=400000,
        stamps=False, dbgcnt=False, off=(), permtest=False, fixdur=0, amp=None, stset='main', stwave=0, touch=(), Dend=None, nend=44, Dk=None, kw=False, ypol='sc1', asleep=(8, 6), n_fg=None, few=0, clk=False, cw=16, ypf=None, ypfpol='sc1', ppol='sc1', pipe=None, cpf0=True, wbl2=None, woa=None, w2a=None, al4=False, slowpen=0, opf=None, opol='', epol='', w2last=False, qpol=None, fpol=None, mpol=None, pre=None, mlpre=None, quads=None):
    qpol, fpol, mpol = [gpol if p is None else p for p in (qpol, fpol, mpol)]
    gap = gap or D + 1
    e = Emit()
    K = NAME + '_kernel'
    LDS_O = 8192
    LDS = LDS_O + 2048
    sW = 's3'
    SK, SV, SWQ, SWO, SFU, SW2, SX, SWS, SOUT, SCODE = [f's[{b}:{b+3}]' for b in range(28, 68, 4)]
    sXc, sJ, sHH, sH, sB, sS, sS8, sBH, sC0, sNch, sT0, sT1, sT2, sKoff, sVoff, sMask, sPB, sU, sXcc, sId = [f's{n}' for n in range(68, 88)]
    sSelLo, sSelHi, sSpin, sM8, sM12, sM3 = [f's{n}' for n in range(88, 94)]
    sMC, sMA = 's[94:95]', 's[96:97]'
    sEp, sCon = 's0', 's1'
    sCnt = 's98'
    stamp_regs = [4, 6, 8, 10, 12, 14, 16, 18]
    nst = [0]
    def stamp(which='main'):
        if stamps and stset in which.split(','):
            r = stamp_regs[nst[0]]
            e(f's_memrealtime s[{r}:{r+1}]')
            nst[0] += 1
    vKO, M, Q, S, vY, vL = 'v1', [2, 3, 4, 5], [6, 7, 8, 9], [10, 11, 12, 13], 'v14', 'v15'
    A = [16, 20]
    ACC = 24
    g, i, t2, t3, t4, t5 = [f'v{k}' for k in range(28, 34)]
    vM, vLs = 'v34', 'v35'
    vXG, vWQ, vFU = 'v34', 'v35', 'v36'
    vMG, vML, vTB = 'v36', 'v37', 'v38'
    vQG, vWO, vW2, vFG, vOUT, vCON, vOW, vOR, vF = [f'v{k}' for k in range(39, 48)]
    vTA = 'v0'
    KBASE, KRING = 48, 52
    kreg = lambda n: KBASE + 4 * (n % KRING)
    vreg = lambda n: 4 * (n % vring)
    rng = lambda p, b, n: f'{p}[{b}:{b+n-1}]'
    AWQ, AFU = 192, 208
    AH = 244
    AQD, AFD, AQA, AFA = 224, 228, 232, 233
    assert 4 * vring <= AWQ

    e.raw(HEADER.rstrip('\n'))
    e.raw(NOTES)
    e.raw(f'; @launch grid=(256,1,1) block=(256,1,1) lds={LDS}')
    e.raw('.amdgcn_target "amdgcn-amd-amdhsa--gfx950"\n.text')
    e.raw(f'.globl {K}\n.p2align 8\n.type {K},@function\n{K}:')
    e('s_load_dwordx16 s[4:19], s[0:1], 0\ns_load_dwordx8 s[20:27], s[0:1], 64')
    if stamps or fixdur:
        e('s_memrealtime s[100:101]')
    if clk:
        e('s_memtime s[98:99]')
    e('s_cmp_ge_u32 s2, 256\ns_cbranch_scc1 L_end')
    if stamps:
        e(f's_mov_b32 {sId}, s2')
    if permtest:
        e(f's_lshr_b32 {sT0}, s2, 5\ns_and_b32 s2, s2, 31\ns_lshl_b32 s2, s2, 3\ns_or_b32 s2, s2, {sT0}')
    e(f'''s_and_b32 {sXc}, s2, 7
          s_lshr_b32 {sJ}, s2, 3
          s_lshr_b32 {sHH}, s2, 6
          s_lshl2_add_u32 {sH}, {sXc}, {sHH}
          s_bfe_u32 {sB}, s2, 0x10005
          s_and_b32 {sS}, {sJ}, 3
          s_lshl_b32 {sBH}, {sB}, 5
          s_add_u32 {sBH}, {sBH}, {sH}
          s_lshl4_add_u32 {sT0}, {sBH}, {sS}
          s_add_u32 {sT0}, {sT0}, 12
          s_lshl_b32 {sT0}, {sT0}, 18
          s_mul_i32 {sKoff}, s2, {rotmul << 12}
          s_mov_b32 {sMask}, 0x3ffff
          s_and_b32 {sKoff}, {sKoff}, {sMask}
          v_lshlrev_b32 {vKO}, 4, v0
          s_mov_b32 s30, 0x40000
          s_mov_b32 s31, 0x20000
          v_lshrrev_b32 v2, 6, v0
          v_and_b32 {vL}, 63, v0
          s_mov_b32 {sVoff}, {sKoff}
          v_readfirstlane_b32 {sW}, v2''')
    if codepf and cpf0:
        e(f'''s_getpc_b64 s[64:65]
              L_pc:
              s_mov_b32 s66, L_codeend - L_pc
              s_mov_b32 s67, 0x20000
              s_lshl_b32 {sT1}, {sJ}, 10
              v_lshl_add_u32 {t2}, v0, 2, {sT1}''')
        e.vmem(f'buffer_load_dword {vF}, {t2}, {SCODE}, 0 offen', 'cpf')
    e(f'''s_waitcnt lgkmcnt(0)
          s_add_u32 s28, s6, {sT0}
          s_addc_u32 s29, s7, 0''')
    if stamps and stset == 'head':
        e('s_memrealtime s[14:15]')
    kn = [0]
    def kissue():
        n = kn[0]
        e.vmem(f'buffer_load_dwordx4 {rng("v", kreg(n), 4)}, {vKO}, {SK}, {sKoff} offen {pol}', f'K{n}')
        e(f's_addk_i32 {sKoff}, 0x1000\ns_and_b32 {sKoff}, {sKoff}, {sMask}')
        kn[0] += 1
    def kspr():
        if kw:
            k = len(e.vm) - (Dk or D)
            if k >= e.done:
                e.wait(e.vm[k])
        kissue()
    for _ in range(k0):
        kissue()
    XL, XU, XG, DQ, DF = 208, 216, 232, 236, 240
    e(f'''s_load_dword {sEp}, s[26:27], {WS_EP}
          s_add_u32 s32, s8, {sT0}
          s_addc_u32 s33, s9, 0
          s_mov_b32 s52, s4
          s_mov_b32 s53, s5
          s_mov_b32 s54, 2048
          s_mov_b32 s55, 0x20000
          v_lshlrev_b32 {t2}, 5, {vL}''')
    e.vmem(f'buffer_load_dwordx4 {rng("v", XL, 4)}, {t2}, {SX}, 0 offen {xpol}', 'xl0')
    e.vmem(f'buffer_load_dwordx4 {rng("v", XL+4, 4)}, {t2}, {SX}, 0 offen offset:16 {xpol}', 'xl1')
    e(f'''s_and_b32 {sS8}, {sJ}, 7
          v_lshrrev_b32 {g}, 4, {vL}
          v_and_b32 {i}, 15, {vL}
          s_lshl_b32 {sT1}, {sS8}, 19
          s_lshl_b32 {sT2}, {sH}, 8
          s_add_u32 {sT1}, {sT1}, {sT2}
          s_add_u32 s36, s10, {sT1}
          s_addc_u32 s37, s11, 0
          s_mov_b32 s38, {63*8192+256}
          s_mov_b32 s39, 0x20000
          v_lshrrev_b32 {t3}, 4, v0
          v_and_b32 {t4}, 12, {t3}
          v_lshl_add_u32 {t3}, {t4}, 2, {g}
          v_lshlrev_b32 {t3}, 13, {t3}
          v_lshl_add_u32 {vWQ}, {i}, 4, {t3}''')
    if 'wq' in off: e(f'v_mov_b32 {vWQ}, {OOB}')
    for t in range(4):
        if t:
            e(f's_mov_b32 {sT2}, {32768*t}')
        e.vmem(f'buffer_load_dwordx4 {rng("a", AWQ+4*t, 4)}, {vWQ}, {SWQ}, {sT2 if t else 0} offen {wpol}', f'wq{t}')
    HB = 12 if al4 else 11
    if quads:
        assert sum(quads) == 43 and max(quads) <= 6
        pref = [sum(quads[:k]) for k in range(8)]
        lo = sum(p << (8 * k) for k, p in enumerate(pref[:4])); hi = sum(p << (8 * k) for k, p in enumerate(pref[4:]))
        cnt = sum(q << (4 * k) for k, q in enumerate(quads))
        e(f'''s_mov_b32 {sT1}, {hex(lo)}
              s_mov_b32 {sT2}, {hex(hi)}
              s_cmp_lt_u32 {sXc}, 4
              s_cselect_b32 {sT1}, {sT1}, {sT2}
              s_lshl_b32 {sT2}, {sXc}, 3
              s_lshr_b32 {sT1}, {sT1}, {sT2}
              s_and_b32 {sC0}, {sT1}, 0xff
              s_lshl_b32 {sC0}, {sC0}, 2
              s_lshl_b32 {sT2}, {sXc}, 2
              s_lshr_b32 {sT1}, {hex(cnt)}, {sT2}
              s_and_b32 {sNch}, {sT1}, 15
              s_lshl_b32 {sNch}, {sNch}, 2''')
    elif al4:
        e(f'''s_mul_i32 {sC0}, {sXc}, 43
              s_add_u32 {sNch}, {sC0}, 47
              s_add_u32 {sC0}, {sC0}, 4
              s_lshr_b32 {sC0}, {sC0}, 3
              s_lshr_b32 {sNch}, {sNch}, 3
              s_sub_u32 {sNch}, {sNch}, {sC0}
              s_lshl_b32 {sC0}, {sC0}, 2
              s_lshl_b32 {sNch}, {sNch}, 2''')
        assert [(43*x+47 >> 3) - (43*x+4 >> 3) for x in range(8)].count(6) == 3 and (43*8+4) >> 3 == 43
    else:
        e(f'''s_mul_i32 {sC0}, {sXc}, 43
              s_add_u32 {sC0}, {sC0}, 1
              s_lshr_b32 {sC0}, {sC0}, 1
              s_and_b32 {sT1}, {sXc}, 1
              s_sub_u32 {sNch}, 22, {sT1}''')
    e(f'''s_sub_u32 {sPB}, {sNch}, {HB}
          s_and_b32 {sT2}, {sJ}, 1
          s_cselect_b32 {sPB}, {sPB}, {HB}
          s_mul_i32 {sT2}, {sT2}, {HB}
          s_add_u32 {sT2}, {sT2}, {sC0}
          s_and_b32 {sT1}, {sW}, 1
          s_and_b32 {sT0}, {sJ}, 30
          s_add_u32 {sT1}, {sT1}, {sT0}
          s_lshl_b32 {sT1}, {sT1}, 4
          v_add_u32 {t3}, {sT1}, {g}
          v_mul_u32_u24 {t3}, 2752, {t3}
          v_cmp_gt_u32 vcc, {sPB}, {i}
          v_add_u32 {t4}, {sT2}, {i}
          v_lshl_add_u32 {t3}, {t4}, 4, {t3}
          v_mov_b32 {t5}, {OOB}
          v_cndmask_b32 {vFU}, {t5}, {t3}, vcc
          s_cmp_lt_u32 {sW}, 2
          s_cselect_b32 s44, s16, s18
          s_cselect_b32 s45, s17, s19
          s_mov_b32 s46, {512*2752}
          s_mov_b32 s47, 0x20000''')
    if 'fu' in off: e(f'v_mov_b32 {vFU}, {OOB}')
    for t in range(4):
        if t:
            e(f's_mov_b32 {sT2}, {11008*t}')
        e.vmem(f'buffer_load_dwordx4 {rng("a", AFU+4*t, 4)}, {vFU}, {SFU}, {sT2 if t else 0} offen {wpol}', f'fu{t}')
    e(f'''s_lshl2_add_u32 {sT0}, {sS8}, {sW}
          s_lshl_b32 {sT0}, {sT0}, 4
          v_and_b32 {t5}, 4, {vL}
          v_cmp_eq_u32 vcc, 0, {t5}
          v_mov_b32 {t4}, {sT0}
          v_mov_b32 {t5}, {sT1}
          v_and_b32 {t3}, 3, {vL}
          v_cndmask_b32 {t4}, {t5}, {t4}, vcc
          v_lshl_add_u32 {t3}, {t3}, 2, {g}
          v_bfe_u32 {t5}, {vL}, 3, 1
          v_add_u32 {t3}, {t3}, {t4}
          v_lshl_add_u32 {t3}, {t5}, 9, {t3}
          v_lshlrev_b32 {vXG}, 1, {t3}''')
    e.vmem(f'buffer_load_ushort v{XG}, {vXG}, {SX}, 0 offen {xpol}', 'xg')
    for _ in range(k1):
        kissue()
    e(f'''s_mov_b32 s34, 0x40000
          s_mov_b32 s35, 0x20000
          s_lshl_b32 {sT0}, {sH}, 17
          s_add_u32 s40, s12, {sT0}
          s_addc_u32 s41, s13, 0
          s_mov_b32 s42, 0x20000
          s_mov_b32 s43, 0x20000
          s_mov_b32 s48, s20
          s_mov_b32 s49, s21
          s_mov_b32 s50, {1376*1024}
          s_mov_b32 s51, 0x20000
          s_mov_b32 s56, s26
          s_mov_b32 s57, s27
          s_mov_b32 s58, {WS_END}
          s_mov_b32 s59, 0x20000
          s_mov_b32 s60, s22
          s_mov_b32 s61, s23
          s_mov_b32 s62, 2048
          s_mov_b32 s63, 0x20000''')
    if stamps:
        e('s_mov_b32 s20, s26\ns_mov_b32 s21, s27\ns_mov_b32 s22, 0x40000000\ns_mov_b32 s23, 0x20000')
    if (codepf or tailpf is not None) and not (codepf and cpf0):
        e('s_getpc_b64 s[64:65]\nL_pc:\ns_mov_b32 s66, L_codeend - L_pc\ns_mov_b32 s67, 0x20000')
    if touch:
        e(f'v_mov_b32 {t2}, 0')
        for k, nm in enumerate(touch):
            srd = dict(V=SV, wo=SWO, w2=SW2, ws=SWS, out=SOUT)[nm]
            e.vmem(f'buffer_load_dword {vF}, {t2}, {srd}, 0 offen nt', 'touch' + nm)
    if codepf and not cpf0:
        e(f'''s_lshl2_add_u32 {sT0}, {sJ}, {sW}
              s_lshl_b32 {sT0}, {sT0}, 8
              v_lshl_add_u32 {t2}, {vL}, 2, {sT0}''')
        e.vmem(f'buffer_load_dword {vF}, {t2}, {SCODE}, 0 offen', 'cpf')
    if pre is not None:
        e(f'''s_lshl3_add_u32 {sT0}, {sH}, {sS8}
              s_lshl2_add_u32 {sT0}, {sT0}, {sW}
              s_lshl_b32 {sT0}, {sT0}, 8
              s_add_u32 {sT0}, {sT0}, {WS_Q}
              s_lshl_b32 {sT1}, {sXc}, 5
              s_add_u32 {sT1}, {sT1}, {sJ}
              s_mul_i32 {sT1}, {sT1}, {FU_STRIDE}
              s_lshl_b32 {sT2}, {sW}, 9
              s_add_u32 {sT1}, {sT1}, {sT2}
              s_add_u32 {sT1}, {sT1}, {WS_FU - 256}
              v_mov_b32 {t2}, {sT0}
              v_mov_b32 {t3}, {sT1}
              v_cmp_gt_u32 vcc, 2, {vL}
              v_mov_b32 {t4}, {OOB}
              v_cndmask_b32 {t2}, {t3}, {t2}, vcc
              v_cmp_gt_u32 vcc, 5, {vL}
              v_lshl_add_u32 {t2}, {vL}, 7, {t2}
              v_cndmask_b32 {t2}, {t4}, {t2}, vcc''')
        e.vmem(f'buffer_load_dword a{AH+2}, {t2}, {SWS}, 0 offen {pre}', 'pre')
    e(f'''v_and_b32 {t2}, 1, {vL}
          v_lshlrev_b32 {t2}, 4, {t2}
          v_mov_b32 {t3}, 0xffff
          v_lshlrev_b32 {t2}, {t2}, {t3}
          v_bfe_u32 {t3}, {vL}, 1, 2
          v_cmp_eq_u32 s[4:5], 0, {t3}
          v_cmp_eq_u32 s[6:7], 1, {t3}
          v_cmp_eq_u32 s[8:9], 2, {t3}
          v_cmp_eq_u32 s[10:11], 3, {t3}''')
    for r in range(4):
        e(f'v_cndmask_b32 v{M[r]}, 0, {t2}, s[{4+2*r}:{5+2*r}]')
    e(f'''s_mov_b32 s94, 0xcccccccc
          s_mov_b32 s95, 0xcccccccc
          s_mov_b32 s96, 0xaaaaaaaa
          s_mov_b32 s97, 0xaaaaaaaa
          s_mov_b32 {sSelLo}, 0x05040100
          s_mov_b32 {sSelHi}, 0x07060302
          s_movk_i32 {sM8}, 0xff
          s_movk_i32 {sM12}, 0xfff
          s_movk_i32 {sM3}, 7
          s_getreg_b32 {sXcc}, hwreg(HW_REG_XCC_ID, 0, 4)''')
    if dbgcnt:
        e(f's_mov_b32 {sCnt}, 0')

    def rowred(op, r):
        for c in ('row_ror:8', 'row_ror:4', 'row_ror:2', 'row_ror:1'):
            e(f'{op}_dpp {r}, {r}, {r} {c} row_mask:0xf bank_mask:0xf')
    def swapred(op, r, tmp, n):
        e(f'v_mov_b32 {tmp}, {r}\nv_permlane{n}_swap_b32 {r}, {tmp}\n{op} {r}, {r}, {tmp}')
    def bf16r(dst, src):
        e(f'v_cvt_pk_bf16_f32 {dst}, {src}, {src}\nv_and_b32 {dst}, 0xffff0000, {dst}')
    def pk(op, d, a, b):
        e(f'v_pk_{op}_f32 v[{d}:{d+1}], v[{a}:{a+1}], v[{b}:{b+1}]')

    if stamps and stset == 'head':
        e.wait('K0')
        e('s_waitcnt lgkmcnt(0)\ns_mov_b64 s[4:5], s[14:15]')
        nst[0] = 1
        stamp('head')
    e.wait('xl1')
    stamp('main,head')
    for k in range(8):
        e(f'v_lshlrev_b32 v{XU+2*k}, 16, v{XL+k}\nv_and_b32 v{XU+2*k+1}, 0xffff0000, v{XL+k}')
    for k in range(4):
        pk('add', XL + 2 * k, XU + 4 * k, XU + 4 * k + 2)
    pk('add', XL, XL, XL + 2); pk('add', XL + 4, XL + 4, XL + 6); pk('add', XL, XL, XL + 4)
    e(f'v_add_f32 {t2}, v{XL}, v{XL+1}')
    for _ in range(ksp[0]): kspr()
    rowred('v_add_f32', t2)
    swapred('v_add_f32', t2, t3, 16)
    e(f'v_mul_f32 {t2}, 0x3b000000, {t2}')
    for k in range(0, 16, 2):
        e(f'v_pk_add_f32 v[{XU+k}:{XU+k+1}], v[{XU+k}:{XU+k+1}], v[30:31] op_sel_hi:[1,0] neg_lo:[0,1] neg_hi:[0,1]')
    for _ in range(ksp[1]): kspr()
    pk('mul', XL, XU, XU); pk('mul', XL + 2, XU + 2, XU + 2)
    for k in range(4, 16, 4):
        e(f'v_pk_fma_f32 v[{XL}:{XL+1}], v[{XU+k}:{XU+k+1}], v[{XU+k}:{XU+k+1}], v[{XL}:{XL+1}]')
        e(f'v_pk_fma_f32 v[{XL+2}:{XL+3}], v[{XU+k+2}:{XU+k+3}], v[{XU+k+2}:{XU+k+3}], v[{XL+2}:{XL+3}]')
    pk('add', XL, XL, XL + 2)
    e(f'v_add_f32 {t4}, v{XL}, v{XL+1}')
    for _ in range(ksp[2]): kspr()
    rowred('v_add_f32', t4)
    swapred('v_add_f32', t4, t3, 16)
    e(f'v_mul_f32 {t4}, 0x3b000000, {t4}')
    bf16r(t2, t2)
    bf16r(t4, t4)
    e(f'v_add_f32 {t4}, 0x3727c5ac, {t4}')
    bf16r(t4, t4)
    e(f'v_sqrt_f32 {t4}, {t4}')
    bf16r(t4, t4)
    e(f'''v_mov_b32 {t3}, {t2}
          v_mov_b32 {t5}, {t4}
          v_and_b32 v{XL}, 8, {vL}
          v_permlane32_swap_b32 {t2}, {t3}
          v_permlane32_swap_b32 {t4}, {t5}
          v_cmp_eq_u32 vcc, 0, v{XL}
          v_cndmask_b32 {t2}, {t3}, {t2}, vcc
          v_cndmask_b32 {t4}, {t5}, {t4}, vcc''')
    e.wait('xg')
    XN = f'v{XG}'
    e(f'v_lshlrev_b32 {XN}, 16, {XN}\nv_sub_f32 {XN}, {XN}, {t2}\nv_rcp_f32 {t5}, {t4}')
    bf16r(XN, XN)
    e(f'''v_mul_f32 {t2}, {XN}, {t5}
          v_fma_f32 {t3}, -{t2}, {t4}, {XN}
          v_fmac_f32 {t2}, {t3}, {t5}
          v_cvt_pk_bf16_f32 {XN}, {t2}, {t2}''')
    for _ in range(ksp[3]): kspr()
    for t in range(8):
        a = A[t & 1]
        for r in range(4):
            e(f'v_and_b32_dpp v{a+r}, {XN}, v{M[r]} row_newbcast:{t} row_mask:0xf bank_mask:0x3')
        for r in range(4):
            e(f'v_and_b32_dpp v{a+r}, {XN}, v{M[r]} row_newbcast:{t+8} row_mask:0xf bank_mask:0xc')
        if t < 4:
            e(f'v_mfma_f32_16x16x32_bf16 {rng("v", DQ, 4)}, {rng("v", a, 4)}, {rng("a", AWQ+4*t, 4)}, {rng("v", DQ, 4) if t else 0}')
        else:
            e(f'v_mfma_f32_16x16x32_bf16 {rng("v", DF, 4)}, {rng("v", a, 4)}, {rng("a", AFU+4*(t-4), 4)}, {rng("v", DF, 4) if t > 4 else 0}')
        if t == 3:
            for _ in range(ksp[4]): kspr()
    e(f'ds_write_b128 {vKO}, {rng("v", DQ, 4)}')
    vRF, vRQ, vSF, vSQ = 'v208', 'v209', 'v210', 'v211'
    e(f'''s_lshr_b32 {sT0}, {sW}, 1
          s_lshl_b32 {sT0}, {sT0}, 9
          s_and_b32 {sT1}, {sW}, 1
          s_lshl3_add_u32 {sT0}, {sT1}, {sT0}
          v_and_b32 {t3}, 31, {vL}
          v_lshl_add_u32 {vRF}, {t3}, 4, {sT0}
          s_lshl_b32 {sT0}, {sW}, 8
          v_lshl_add_u32 {vRQ}, {i}, 4, {sT0}
          ds_write_b128 {vKO}, {rng("v", DF, 4)} offset:4096
          s_lshl_b32 {sT1}, {sXc}, 5
          s_add_u32 {sT1}, {sT1}, {sJ}
          s_mul_i32 {sT1}, {sT1}, {FU_STRIDE}
          s_lshl1_add_u32 {sT1}, {sT0}, {sT1}
          s_add_u32 {sT1}, {sT1}, {WS_FU}
          v_and_b32 {t3}, 47, {vL}
          v_cmp_gt_u32 vcc, {sPB}, {t3}
          v_lshl_add_u32 {t3}, {i}, 1, {g}
          v_lshl_add_u32 {t3}, {t3}, 4, {sT1}
          v_mov_b32 {t5}, {OOB}
          v_cndmask_b32 {vSF}, {t5}, {t3}, vcc
          s_lshl3_add_u32 {sT1}, {sH}, {sS8}
          s_lshl_b32 {sT1}, {sT1}, 10
          s_add_u32 {sT1}, {sT1}, {WS_Q}
          v_add_u32 {t3}, {sT1}, {vRQ}
          v_cmp_gt_u32 vcc, 16, {vL}
          v_cndmask_b32 {vSQ}, {t5}, {t3}, vcc''')
    if 'pub' in off: e(f'v_mov_b32 {vSF}, {OOB}\nv_mov_b32 {vSQ}, {OOB}')
    stamp('head')
    e('s_waitcnt lgkmcnt(0)\ns_barrier')
    stamp('main,head')
    R0, R1 = 216, 232
    for k in range(4):
        e(f'ds_read_b128 {rng("v", R0+4*k, 4)}, {vRQ} offset:{1024*k}')
    for k in range(4):
        e(f'ds_read_b64 v[{R1+2*k}:{R1+2*k+1}], {vRF} offset:{4096+1024*k}')
    e(f'''s_add_u32 {sEp}, {sEp}, 1
          s_and_b32 {sT1}, {sEp}, {sM12}
          v_mov_b32 {vTA}, {sT1}
          v_xor_b32 {vTB}, {sXcc}, {vTA}
          s_xor_b32 {sXcc}, {sXcc}, {sEp}
          v_accvgpr_write_b32 a{AQA}, {vSQ}
          v_accvgpr_write_b32 a{AFA}, {vSF}
          s_waitcnt lgkmcnt(4)''')
    def tag(r, vts, m):
        for k, vt in enumerate(vts):
            e(f'v_bfi_b32 v{r+k}, {m}, {vt}, v{r+k}')
    pk('add', R0, R0, R0 + 4); pk('add', R0 + 2, R0 + 2, R0 + 6); pk('add', R0 + 8, R0 + 8, R0 + 12); pk('add', R0 + 10, R0 + 10, R0 + 14)
    pk('add', R0, R0, R0 + 8); pk('add', R0 + 2, R0 + 2, R0 + 10)
    tag(R0, [vTA, vTA, vTB, vTB], sM3)
    e.vmem(f'buffer_store_dwordx4 {rng("v", R0, 4)}, {vSQ}, {SWS}, 0 offen', 'pubq')
    e(f'''s_waitcnt lgkmcnt(0)
          v_add_f32 v{R1+8}, v{R1}, v{R1+2}
          v_add_f32 v{R1+9}, v{R1+4}, v{R1+6}
          v_add_f32 v{R1+10}, v{R1+1}, v{R1+3}
          v_add_f32 v{R1+11}, v{R1+5}, v{R1+7}''')
    tag(R1 + 8, [vTA, vTA, vTA, vTB], sM8)
    e.vmem(f'buffer_store_dwordx4 {rng("v", R1+8, 4)}, {vSF}, {SWS}, 0 offen', 'pubf')
    for k in range(4):
        e(f'v_accvgpr_write_b32 a{AQD+k}, v{R0+k}\nv_accvgpr_write_b32 a{AFD+k}, v{R1+8+k}')
    for _ in range(kpost[0]): kspr()

    e(f'''s_lshl2_add_u32 {sPB}, {sH}, {sS}
          s_lshl2_add_u32 {sT0}, {sB}, {sW}
          s_lshl_b32 {sT0}, {sT0}, 9
          s_add_u32 {sT0}, {sT0}, {sPB}
          s_lshl_b32 {sT0}, {sT0}, 7
          v_lshrrev_b32 {t2}, 2, {i}
          v_lshlrev_b32 {t2}, 14, {t2}
          v_and_b32 {t3}, 3, {vL}
          v_lshl_add_u32 {t2}, {t3}, 5, {t2}
          v_lshl_add_u32 {t2}, {g}, 4, {t2}
          v_add_u32 {vY}, {sT0}, {t2}
          s_lshl2_add_u32 {sT1}, {sBH}, {sS}
          s_lshl2_add_u32 {sT1}, {sT1}, {sW}
          s_lshl4_add_u32 {sT1}, {sT1}, {WS_ML}
          v_mov_b32 {t4}, {sT1}
          v_cmp_eq_u32 vcc, 0, {vL}
          v_mul_u32_u24 {t3}, 320, {t3}
          v_cndmask_b32 {vML}, {t5}, {t4}, vcc
          v_lshl_add_u32 {vOR}, {g}, 4, {t3}
          s_mul_i32 {sT0}, {sW}, 320
          s_add_u32 {sT0}, {sT0}, {LDS_O}
          v_and_b32 {t2}, 1, {g}
          v_lshlrev_b32 {t3}, 3, {t2}
          v_lshl_add_u32 {t3}, {i}, 4, {t3}
          v_add_u32 {vOW}, {sT0}, {t3}''')
    if cw == 4:
        e(f'''s_lshl2_add_u32 {sU}, {sHH}, {sS}
              s_lshr_b32 {sT1}, {sU}, 3
              s_lshl1_add_u32 {sT1}, {sXc}, {sT1}
              s_lshl4_add_u32 {sT1}, {sB}, {sT1}
              s_and_b32 {sT0}, {sU}, 7
              s_lshl_b32 {sT2}, {sT1}, 14
              s_lshl4_add_u32 {sT2}, {sT0}, {sT2}
              v_lshl_add_u32 {vCON}, {vL}, 7, {sT2}
              s_lshl3_add_u32 {sT1}, {sT1}, {sT0}
              s_lshl_b32 {sT1}, {sT1}, 3
              v_lshrrev_b32 {t3}, 1, {g}
              v_lshl_add_u32 {t2}, {t2}, 1, {t3}
              v_lshl_add_u32 {t2}, {t2}, 1, {sT1}
              v_cmp_eq_u32 vcc, 0, {i}
              v_cndmask_b32 {vOUT}, {t5}, {t2}, vcc''')
    else:
        LP = cw // 4
        lg = LP.bit_length() - 1
        e(f'''s_lshl2_add_u32 {sU}, {sHH}, {sS}
              s_lshr_b32 {sT1}, {sU}, 3
              s_lshl1_add_u32 {sT1}, {sXc}, {sT1}
              s_lshl4_add_u32 {sT1}, {sB}, {sT1}
              s_and_b32 {sT0}, {sU}, 7
              s_and_b32 {sCon}, {sU}, {LP-1}
              s_lshl_b32 {sT2}, {sT1}, 14
              s_lshl4_add_u32 {sT2}, {sT0}, {sT2}
              s_lshl_b32 {sS8}, {sW}, 12
              s_add_u32 {sT2}, {sT2}, {sS8}
              v_lshrrev_b32 {t3}, {lg}, {vL}
              v_lshl_add_u32 {t3}, {t3}, 7, {sT2}
              v_and_b32 {t4}, {LP-1}, {vL}
              v_lshl_add_u32 {vCON}, {t4}, 4, {t3}
              s_lshl3_add_u32 {sT1}, {sT1}, {sT0}
              s_lshl_b32 {sT1}, {sT1}, 3
              v_lshrrev_b32 {t3}, 1, {g}
              v_lshl_add_u32 {t2}, {t2}, 1, {t3}
              v_lshl_add_u32 {t2}, {i}, 2, {t2}
              v_lshl_add_u32 {t2}, {t2}, 1, {sT1}
              v_cmp_gt_u32 vcc, {LP}, {i}
              v_cndmask_b32 {vOUT}, {t5}, {t2}, vcc''')
    for _ in range(kpost[1]): kspr()
    e(f'''s_lshl_b32 {sT0}, {sH}, 13
          s_lshl_b32 {sT1}, {sB}, 9
          s_add_u32 {sT0}, {sT0}, {sT1}
          s_add_u32 {sT0}, {sT0}, {WS_Q}
          v_lshlrev_b32 {t2}, 10, {g}
          v_lshl_add_u32 {t2}, {i}, 4, {t2}
          v_add_u32 {vQG}, {sT0}, {t2}
          s_lshl_b32 {sT0}, {sW}, 8
          v_lshl_add_u32 {t2}, {i}, 4, {sT0}
          v_lshl_add_u32 {vWO}, {g}, 13, {t2}
          s_mul_i32 {sU}, {sU}, 12
          s_lshl_b32 {sNch}, {sNch}, 3
          s_lshl3_add_u32 {sT0}, {sC0}, {sU}
          s_lshl_b32 {sT0}, {sT0}, 10
          s_cmp_lt_u32 {sU}, {sNch}
          s_cselect_b32 {sT0}, {sT0}, {OOB}
          s_cselect_b32 {sU}, {sU}, 0
          v_lshl_add_u32 {t2}, {g}, 12, {t2}
          v_add_u32 {t2}, {sT0}, {t2}
          v_cmp_gt_u32 vcc, 3, {g}
          v_cndmask_b32 {vW2}, {t5}, {t2}, vcc''')
    for _ in range(kpost[2]): kspr()
    e(f'''v_and_b32 {t2}, 7, {vL}
          v_cmp_gt_u32 s[24:25], 6, {t2}
          v_lshl_add_u32 {t2}, {t2}, 1, {sU}
          s_movk_i32 {sT1}, {8*HB}
          s_cmp_ge_u32 {sU}, {sT1}
          s_cselect_b32 {sT0}, 0, {sT1}
          v_mov_b32 {t3}, {sT0}
          v_cndmask_b32 {t2}, {t3}, {t2}, s[24:25]
          v_cmp_le_u32 s[24:25], {sT1}, {t2}
          v_cmp_gt_u32 vcc, {sNch}, {t2}
          v_lshrrev_b32 {t4}, 3, {vL}
          v_cndmask_b32 {t3}, 0, 1, s[24:25]
          v_lshl_add_u32 {t4}, {t4}, 1, {t3}
          v_mul_u32_u24 {t4}, {FU_STRIDE}, {t4}
          v_mul_u32_u24 {t3}, {8*HB}, {t3}
          v_sub_u32 {t2}, {t2}, {t3}
          v_bfe_u32 {t3}, {t2}, 1, 1
          v_lshl_add_u32 {t4}, {t3}, 9, {t4}
          v_lshrrev_b32 {t2}, 2, {t2}
          v_lshl_add_u32 {t2}, {t2}, 4, {t4}
          s_mul_i32 {sT0}, {sXc}, {32*FU_STRIDE}
          s_lshl_b32 {sT1}, {sB}, 10
          s_add_u32 {sT0}, {sT0}, {sT1}
          s_add_u32 {sT0}, {sT0}, {WS_FU}
          v_add_u32 {t2}, {sT0}, {t2}
          v_cndmask_b32 {vFG}, {t5}, {t2}, vcc''')
    for nm, r in (('qg', vQG), ('w2', vW2), ('fg', vFG), ('mlpub', vML), ('wo', vWO), ('y', vY), ('con', vCON)):
        if nm in off: e(f'v_mov_b32 {r}, {OOB}')

    slow = []
    def orred(regsl, m, dst, full=()):
        rs = list(regsl)
        if len(rs) == 1:
            e(f'v_and_b32 {t2}, {m}, v{rs[0]}')
        else:
            if len(rs) == 2:
                e(f'v_or_b32 {t2}, v{rs[0]}, v{rs[1]}')
            else:
                e(f'v_or3_b32 {t2}, v{rs[0]}, v{rs[1]}, v{rs[2]}')
                rs = rs[3:]
                while rs:
                    if len(rs) == 1:
                        e(f'v_or_b32 {t2}, {t2}, v{rs[0]}'); rs = []
                    else:
                        e(f'v_or3_b32 {t2}, {t2}, v{rs[0]}, v{rs[1]}'); rs = rs[2:]
            e(f'v_and_b32 {t2}, {m}, {t2}')
        for r in full:
            e(f'v_or_b32 {t2}, {t2}, v{r}')
        e(f'v_cmp_ne_u32 {dst}, 0, {t2}')
    def untag(regsl, vts, m, dst='vcc'):
        for r, vt in zip(regsl, vts):
            e(f'v_xor_b32 v{r}, {vt}, v{r}')
        orred(regsl, m, dst)
    def checked(name, regsl, kinds, ta, tb, m, republish, reissue):
        if 'check' in off:
            return
        def test(sel):
            for r, k in zip(regsl, kinds):
                if k in sel:
                    e(f'v_xor_b32 v{r}, {dict(A=ta, B=tb, F=sEp, G=sXcc)[k]}, v{r}')
            orred([r for r, k in zip(regsl, kinds) if k in sel and k in 'AB'], m, 'vcc',
                  [r for r, k in zip(regsl, kinds) if k in sel and k in 'FG'])
        test('ABFG')
        e(f's_cbranch_vccnz L_slow_{name}\nL_ok_{name}:')
        def emit_slow():
            e(f'L_slow_{name}:')
            republish()
            if slowpen:
                e(f's_mov_b32 {sSpin}, {slowpen}\nL_pen_{name}:\ns_sleep 127\ns_sub_u32 {sSpin}, {sSpin}, 1\ns_cbranch_scc0 L_pen_{name}')
            e(f's_mov_b32 {sSpin}, {spin}')
            e(f'L_miss_{name}:')
            e(f's_mov_b32 {sT1}, 0\ns_sleep 1')
            e(f'L_retry_{name}:')
            if dbgcnt:
                e(f's_add_u32 {sCnt}, {sCnt}, {1 << (8 * ["flag", "q", "fu", "ml"].index(name))}')
            e(f's_sub_u32 {sSpin}, {sSpin}, 1\ns_cbranch_scc1 L_ok_{name}')
            reissue()
            e('s_waitcnt vmcnt(0)')
            test('AF')
            for r, k in zip(regsl, kinds):
                if k == 'B':
                    e(f'v_bfi_b32 v{r}, {m}, 0, v{r}')
            e(f's_cbranch_vccnz L_miss_{name}')
            e(f's_xor_b32 {sT1}, {sT1}, 1\ns_cbranch_scc1 L_retry_{name}\ns_branch L_ok_{name}')
        slow.append(emit_slow)

    state = dict(q=False, kproc=0, soft=False, vproc=0, wop=0, ffn=False, ml=False, budget=catch)
    KT = [26, 27, 24, 25, 20, 21, 22, 23]
    def kpair(n):
        a, b = f'v{KT[0]}', f'v{KT[1]}'
        for k in range(4):
            for r, m in ((a, n), (b, n + 1)):
                e(f'v_dot2_f32_bf16 {r}, v{kreg(m)+k}, v{Q[k]}, {r if k else 0}')
        d1 = f'v{KT[2 + ((n >> 1) & 1)]}'
        e(f'v_add_f32_dpp {d1}, {a}, {a} row_ror:8 row_mask:0xf bank_mask:0x3')
        e(f'v_add_f32_dpp {d1}, {b}, {b} row_ror:8 row_mask:0xf bank_mask:0xc')
        if not (n >> 1) & 1:
            return
        x, y = f'v{KT[2]}', f'v{KT[3]}'
        d2 = f'v{KT[4 + ((n >> 2) & 1)]}'
        e(f'v_add_f32_dpp {d2}, {x}, {x} row_shl:4 row_mask:0xf bank_mask:0x5')
        e(f'v_add_f32_dpp {d2}, {y}, {y} row_shr:4 row_mask:0xf bank_mask:0xa')
        if not (n >> 2) & 1:
            return
        x, y = f'v{KT[4]}', f'v{KT[5]}'
        d3 = f'v{KT[6 + ((n >> 3) & 1)]}'
        e(f'v_add_f32_dpp {x}, {x}, {x} quad_perm:[2,3,0,1] row_mask:0xf bank_mask:0xf')
        e(f'v_add_f32_dpp {y}, {y}, {y} quad_perm:[2,3,0,1] row_mask:0xf bank_mask:0xf')
        e(f'v_cndmask_b32 {d3}, {x}, {y}, {sMC}')
        if not (n >> 3) & 1:
            return
        x, y = f'v{KT[6]}', f'v{KT[7]}'
        s = f'v{S[n >> 4]}'
        e(f'v_add_f32_dpp {x}, {x}, {x} quad_perm:[1,0,3,2] row_mask:0xf bank_mask:0xf')
        e(f'v_add_f32_dpp {y}, {y}, {y} quad_perm:[1,0,3,2] row_mask:0xf bank_mask:0xf')
        e(f'v_cndmask_b32 {s}, {x}, {y}, {sMA}')
        bf16r(s, s)
        e(f'v_mul_f32 {s}, {SCALE}, {s}')
        bf16r(s, s)
    def mlstore(tagger, p):
        e(f'v_bfi_b32 {t2}, {sM12}, {vTA}, {vM}\nv_bfi_b32 {t3}, {sM12}, {vTA}, {vLs}\nv_mov_b32 {t4}, {sEp}\nv_mov_b32 {t5}, {sXcc}')
        tagger(f'buffer_store_dwordx4 v[30:33], {vML}, {SWS}, 0 offen {p}', 'mlpub')
    def softmax():
        stamp()
        e(f'v_max3_f32 {vM}, v{S[0]}, v{S[1]}, v{S[2]}\nv_max_f32 {vM}, {vM}, v{S[3]}')
        rowred('v_max_f32', vM)
        swapred('v_max_f32', vM, t2, 16)
        swapred('v_max_f32', vM, t2, 32)
        for k in range(4):
            e(f'v_sub_f32 v{S[k]}, v{S[k]}, {vM}')
        for k in range(4):
            e(f'v_mul_f32 v{S[k]}, {LOG2E}, v{S[k]}')
        for k in range(4):
            e(f'v_exp_f32 v{S[k]}, v{S[k]}')
        for k in range(4):
            e(f'v_cvt_pk_bf16_f32 v{Q[k]}, v{S[k]}, v{S[k]}')
        e(f'v_add_f32 {vLs}, v{S[0]}, v{S[1]}\nv_add_f32 {t2}, v{S[2]}, v{S[3]}\nv_add_f32 {vLs}, {vLs}, {t2}')
        abuild(0)
        rowred('v_add_f32', vLs)
        swapred('v_add_f32', vLs, t2, 16)
        swapred('v_add_f32', vLs, t2, 32)
        mlstore(e.vmem, '')
        state['soft'] = True
    def abuild(n):
        a = A[n & 1]
        for r in range(4):
            e(f'v_and_b32_dpp v{a+r}, v{Q[n >> 4]}, v{M[r]} row_newbcast:{bitrev4(n & 15)} row_mask:0xf bank_mask:0xf')
    def vstep(n):
        c = rng('v', ACC, 4) if n else '0'
        e(f'v_mfma_f32_16x16x32_bf16 {rng("v", ACC, 4)}, {rng("v", A[n & 1], 4)}, {rng("a", vreg(n), 4)}, {c}')
        if n < 63:
            abuild(n + 1)
    F, DY, STG, G2, W2S, FGR = 128, 96, 64, 48, 224, 240
    stg = lambda k: STG + 4 * (k % 8)
    def woperm(k):
        t, ee = k >> 3, k & 7
        if woa:
            for kk in (k, k + 1):
                for m in range(4):
                    e(f'v_accvgpr_read_b32 v{stg(kk)+m}, a{AWO+4*kk+m}')
        for m in range(4):
            for hi in range(2):
                e(f'v_perm_b32 v{F + 32*t + 4*(2*m+hi) + ee//2}, v{stg(k+1)+m}, v{stg(k)+m}, {sSelHi if hi else sSelLo}')
    plain = lambda s, t: e(s)
    AFG, AWO, AW2, AH = 236, 64, 192, 244
    W2L = 80
    assert 4 * vring <= (AWO if woa else 192)
    def fgissue(tagger, p, acc=False):
        for m in range(2):
            if m:
                e(f's_mov_b32 {sT0}, {16*FU_STRIDE*m}')
            tagger(f'buffer_load_dwordx4 {rng("a", AFG+4*m, 4) if acc else rng("v", FGR+4*m, 4)}, {vFG}, {SWS}, {sT0 if m else 0} offen {p}', f'fg{m}')
    def republish(ad, aa):
        e(f'v_accvgpr_read_b32 {t2}, a{aa}\nbuffer_store_dwordx4 {rng("a", ad, 4)}, {t2}, {SWS}, 0 offen sc1')
    def ffn_down():
        if w2a:
            for k in range(16):
                e(f'v_accvgpr_read_b32 v{W2S+k}, a{AW2+k}')
        if n_fg is not None:
            for k in range(8):
                e(f'v_accvgpr_read_b32 v{FGR+k}, a{AFG+k}')
        e(f'''v_cmp_gt_u32 vcc, s58, {vFG}
              v_and_b32 {t4}, {sM8}, {vTA}
              v_and_b32 {t5}, {sM8}, {vTB}
              v_cndmask_b32 {t4}, 0, {t4}, vcc
              v_cndmask_b32 {t5}, 0, {t5}, vcc''')
        checked('fu', list(range(FGR, FGR + 8)), 'AAAB' * 2, t4, t5, sM8, lambda: republish(AFD, AFA), lambda: fgissue(plain, 'sc1'))
        for k in (0, 2):
            pk('add', FGR + k, FGR + k, FGR + 4 + k)
        for p in range(0 if w2last else 2):
            for m in range(4):
                for hi in range(2):
                    e(f'v_perm_b32 v{G2 + 2*(2*m+hi) + p}, v{W2S+8*p+4+m}, v{W2S+8*p+m}, {sSelHi if hi else sSelLo}')
        for k in range(4):
            e(f'v_add_f32_dpp v{FGR+k}, v{FGR+k}, v{FGR+k} row_ror:8 row_mask:0xf bank_mask:0xf')
        ga, up = f'v{FGR}', f'v{FGR+1}'
        e(f'''v_permlane32_swap_b32 v{FGR}, v{FGR+2}
              v_permlane32_swap_b32 v{FGR+1}, v{FGR+3}
              v_add_f32 {ga}, v{FGR}, v{FGR+2}
              v_add_f32 {up}, v{FGR+1}, v{FGR+3}''')
        swapred('v_add_f32', ga, t2, 16)
        swapred('v_add_f32', up, t3, 16)
        bf16r(ga, ga)
        bf16r(up, up)
        e(f'''v_mul_f32 {t2}, {LOG2E ^ 0x80000000}, {ga}
              v_exp_f32 {t2}, {t2}
              v_and_b32 {t4}, 3, {vL}
              v_add_f32 {t2}, 1.0, {t2}
              v_rcp_f32 {t2}, {t2}
              v_cmp_eq_u32 vcc, 0, {t4}
              v_mul_f32 {ga}, {ga}, {t2}
              v_cndmask_b32 {t4}, 0, -1, vcc''')
        bf16r(ga, ga)
        ha = FGR + 4
        e(f'''v_mul_f32 {ga}, {ga}, {up}
              v_mov_b32 v{ha}, 0
              v_mov_b32 {t2}, {ga}
              v_mov_b32 v{ha+1}, 0
              v_permlane32_swap_b32 {ga}, {t2}
              v_cvt_pk_bf16_f32 {ga}, {ga}, {t2}''')
        for gg in range(3):
            for p in range(2):
                e(f'v_and_b32_dpp v{ha+p}, {ga}, {t4} row_newbcast:{2*gg+p} row_mask:{hex(1 << gg)} bank_mask:0xf')
        if w2last:
            e(f'v_accvgpr_write_b32 a{AH}, v{ha}\nv_accvgpr_write_b32 a{AH+1}, v{ha+1}')
        for cc in range(0 if w2last else 8):
            e(f'v_mfma_f32_16x16x16_bf16 {rng("v", DY+4*cc, 4)}, v[{ha}:{ha+1}], v[{G2+2*cc}:{G2+2*cc+1}], 0')
        state['ffn'] = True
    def mlissue(tagger, p):
        e(f's_lshl_b32 {sT0}, {sBH}, 8\ns_add_u32 {sT0}, {sT0}, {WS_ML}\nv_lshl_add_u32 {vMG}, {i}, 4, {sT0}')
        if 'ml' in off: e(f'v_mov_b32 {vMG}, {OOB}')
        tagger(f'buffer_load_dwordx4 v[{S[0]}:{S[3]}], {vMG}, {SWS}, 0 offen {p}', 'ml')
    def mlcombine():
        checked('ml', S, 'AAFG', vTA, vTB, sM12, lambda: mlstore(plain, 'sc1'), lambda: mlissue(plain, 'sc1'))
        mi, li, mx = f'v{S[0]}', f'v{S[1]}', f'v{S[2]}'
        e(f'v_mov_b32 {mx}, {mi}')
        rowred('v_max_f32', mx)
        e(f'''v_sub_f32 {mi}, {mi}, {mx}
              v_sub_f32 {vF}, {vM}, {mx}
              v_mul_f32 {mi}, {LOG2E}, {mi}
              v_mul_f32 {vF}, {LOG2E}, {vF}
              v_exp_f32 {mi}, {mi}
              v_exp_f32 {vF}, {vF}
              v_mul_f32 {li}, {li}, {mi}''')
        rowred('v_add_f32', li)
        e(f'v_rcp_f32 {li}, {li}\nv_mul_f32 {vF}, {vF}, {li}')
        state['ml'] = True
    complete = lambda tag: tag in e.vm and e.vm.index(tag) < e.done
    def progress():
        if state['q'] and not state['soft']:
            c = 0
            while state['kproc'] < 64 and complete(f'K{state["kproc"]+1}') and c < state['budget']:
                kpair(state['kproc']); state['kproc'] += 2; c += 2
            state['budget'] = catch if c >= 2 or state['budget'] >= 2 * catch else state['budget'] + 1
            if state['kproc'] == 64:
                softmax()
        if state['soft']:
            while state['vproc'] < 64 and complete(f'V{state["vproc"]}'):
                vstep(state['vproc']); state['vproc'] += 1
            while state['wop'] < 32 and complete(f'wo{state["wop"]+1}'):
                if woa and not (state['vproc'] >= 2 + 3 * (state['wop'] // 2) and (state['wop'] < 24 or state['ffn'])):
                    break
                woperm(state['wop']); state['wop'] += 2
            if not state['ffn'] and complete('fg1') and (w2last or complete('w23')):
                ffn_down()
            if not state['ml'] and complete('ml'):
                mlcombine()
    def window():
        d = D
        if Dend and f'V{nend}' in e.vm: d = Dend
        if Dk and 'V0' not in e.vm: d = Dk
        k = len(e.vm) - d
        if k >= e.done:
            e.wait(e.vm[k])
        progress()
    QG = 232
    def qissue(tagger, p):
        for k in range(4):
            if k == 2:
                e(f's_movk_i32 {sT0}, 0x1000')
            tagger(f'buffer_load_dwordx4 {rng("v", QG+4*k, 4)}, {vQG}, {SWS}, {sT0 if k >= 2 else 0} offen offset:{256*(k&1)} {p}', f'qg{k}')
    def qfinish():
        e(f'v_and_b32 {t4}, 7, {vTA}\nv_and_b32 {t5}, 7, {vTB}')
        e.wait('qg3')
        checked('q', list(range(QG, QG + 16)), 'AABB' * 4, t4, t5, sM3, lambda: republish(AQD, AQA), lambda: qissue(plain, 'sc1'))
        for k in range(0, 8, 2):
            pk('add', QG + k, QG + k, QG + 8 + k)
        for k in range(4):
            e(f'v_permlane32_swap_b32 v{QG+k}, v{QG+4+k}')
        for k in (0, 2):
            pk('add', QG + k, QG + k, QG + 4 + k)
        e(f'''v_permlane16_swap_b32 v{QG}, v{QG+2}
              v_permlane16_swap_b32 v{QG+1}, v{QG+3}
              v_pk_add_f32 v[{QG}:{QG+1}], v[{QG}:{QG+1}], v[{QG+2}:{QG+3}]
              v_cvt_pk_bf16_f32 v{Q[0]}, v{QG}, v{QG+1}
              v_cvt_pk_bf16_f32 v{Q[1]}, v{QG}, v{QG+1}
              v_permlane16_swap_b32 v{Q[0]}, v{Q[1]}
              v_mov_b32 v{Q[2]}, v{Q[0]}
              v_mov_b32 v{Q[3]}, v{Q[1]}
              v_permlane32_swap_b32 v{Q[0]}, v{Q[2]}
              v_permlane32_swap_b32 v{Q[1]}, v{Q[3]}''')
        state['q'] = True
        stamp()
    wosched = {}
    if woa:
        for k in range(32):
            wosched.setdefault(woa[0] + (k * (woa[1] - woa[0])) // 32, []).append(('wo', k))
    if w2a:
        for k in range(4):
            wosched.setdefault(w2a + 2 * k, []).append(('w2', k))
    def early(stepno):
        for kind, k in wosched.pop(stepno, []):
            window()
            if kind == 'wo':
                e(f's_mov_b32 {sT0}, {(k >> 3)*32768 + ((k >> 2) & 1)*4096}')
                e.vmem(f'buffer_load_dwordx4 {rng("a", AWO+4*k, 4)}, {vWO}, {SWO}, {sT0} offen offset:{1024*(k & 3)} {wpol}', f'wo{k}')
            else:
                e.vmem(f'buffer_load_dwordx4 {rng("a", AW2+4*k, 4)}, {vW2}, {SW2}, 0 offen offset:{1024*k} {wpol}', f'w2{k}')
    assert kn[0] <= n_q and all(k >= kn[0] for k in wosched)
    while kn[0] < 64:
        n = kn[0]
        if n == n_q:
            window(); qissue(e.vmem, qpol)
        if mlpre is not None and n == mlpre[0]:
            window(); e.vmem(f'buffer_load_dword a{AH+3}, {vML}, {SWS}, 0 offen {mlpre[1]}', 'mlpre')
        if n == n_fg:
            window(); fgissue(e.vmem, fpol, acc=True)
        if n == n_q + gap:
            assert n <= (QG - KBASE) // 4
            qfinish()
        window()
        if n >= KRING:
            assert state['kproc'] > n - KRING, (n, state)
        kissue()
        early(n)
    extra = {}
    for k in range(4):
        if not w2a and not w2last:
            extra.setdefault(ex0 + k, []).append(('w2', k))
    if n_fg is None:
        extra.setdefault(ex0 + 4, []).append(('fg', 0))
    extra.setdefault(ex0 + 5, []).append(('xres', 0))
    for k in range(0 if woa else 32):
        extra.setdefault(wo_start + (k * (wo_end - wo_start)) // 32, []).append(('wo', k))
    extra.setdefault(n_ml, []).append(('ml', 0))
    if tailpf is not None:
        extra.setdefault(tailpf, []).append(('tpf', 0))
    if opf is not None:
        extra.setdefault(opf, []).append(('opf', 0))
    if ypf is not None:
        extra.setdefault(ypf, []).append(('ypf', 0))
    XR = 39
    nv, m = 0, None
    while nv < 64:
        window()
        assert nv < vring or state['vproc'] > nv - vring, (nv, state)
        e.vmem(f'buffer_load_dwordx4 {rng("a", vreg(nv), 4)}, {vKO}, {SV}, {sVoff} offen {pol}', f'V{nv}')
        if nv < 63:
            e(f's_addk_i32 {sVoff}, 0x1000\ns_and_b32 {sVoff}, {sVoff}, {sMask}')
        early(64 + nv)
        nv += 1
        if state['soft'] and m is None:
            m = 0
        if m is not None:
            for kind, k in extra.pop(m, []):
                window()
                if kind == 'w2':
                    e.vmem(f'buffer_load_dwordx4 {rng("v", W2S+4*k, 4)}, {vW2}, {SW2}, 0 offen offset:{1024*k} {wpol}', f'w2{k}')
                elif kind == 'fg':
                    fgissue(e.vmem, fpol)
                elif kind == 'xres':
                    e.vmem(f'buffer_load_ushort v{XR}, {vOUT}, {SX}, 0 offen {xpol}', 'xres')
                elif kind == 'ml':
                    mlissue(e.vmem, mpol)
                elif kind == 'opf':
                    e.vmem(f'buffer_load_ushort a{AWQ+8}, {vOUT}, {SOUT}, 0 offen', 'opf')
                elif kind == 'ypf':
                    e(f's_cmp_lg_u32 {sCon}, 0\ns_cselect_b32 {sT0}, {OOB}, 0\nv_add_u32 {t3}, {sT0}, {vCON}')
                    for kk in range(cw // 8):
                        e.vmem(f'buffer_load_dwordx4 {rng("a", AWQ+4*kk, 4)}, {t3}, {SWS}, 0 offen offset:{(256 // cw) * 128 * kk} {ypfpol}', f'ypf{kk}')
                elif kind == 'tpf':
                    e(f's_lshl_b32 {sT0}, {sW}, 8\ns_add_u32 {sT0}, {sT0}, L_tail - L_pc\nv_lshl_add_u32 {t3}, {vL}, 2, {sT0}')
                    e.vmem(f'buffer_load_dword v{S[2]}, {t3}, {SCODE}, 0 offen', 'tpf')
                    assert state['ml']
                elif kind == 'wo':
                    assert k < 8 or state['wop'] > k - 8, (k, state)
                    assert k < 24 or state['ffn']
                    e(f's_mov_b32 {sT0}, {(k >> 3)*32768 + ((k >> 2) & 1)*4096}')
                    e.vmem(f'buffer_load_dwordx4 {rng("v", stg(k), 4)}, {vWO}, {SWO}, {sT0} offen offset:{1024*(k & 3)} {wpol}', f'wo{k}')
            m += 1
    assert not extra and not wosched, (extra, wosched)
    if w2last:
        for k in range(4):
            window()
            assert state['wop'] == 32, state
            e.vmem(f'buffer_load_dwordx4 {rng("v", W2L+4*k, 4)}, {vW2}, {SW2}, 0 offen offset:{1024*k} {wpol}', f'w2{k}')
    while state['vproc'] < 64:
        e.wait(f'V{state["vproc"]}')
        if state['vproc'] == 63:
            e('L_tail:')
            stamp('main,tail,head')
        progress()
    assert state['wop'] == 32 and state['ffn'] and state['ml'], state
    e(f'''v_mul_f32 v{ACC}, v{ACC}, {vF}
          v_mul_f32 v{ACC+1}, v{ACC+1}, {vF}
          v_mul_f32 v{ACC+2}, v{ACC+2}, {vF}
          v_mul_f32 v{ACC+3}, v{ACC+3}, {vF}
          v_cvt_pk_bf16_f32 v{ACC}, v{ACC}, v{ACC+1}
          v_cvt_pk_bf16_f32 v{ACC+1}, v{ACC+2}, v{ACC+3}
          ds_write_b64 {vOW}, v[{ACC}:{ACC+1}]''')
    stamp('tail')
    e('s_waitcnt lgkmcnt(0)\ns_barrier')
    stamp('tail')
    if stamps and stset == 'tail':
        e('s_waitcnt lgkmcnt(0)')
    AF = STG
    for t in range(4):
        e(f'ds_read_b128 {rng("v", AF+4*t, 4)}, {vOR} offset:{LDS_O+64*t}')
    Z = A[0]
    def tile_add(cc):
        pk('add', DY + 4 * cc, DY + 4 * cc, DY + 4 * cc + 2)
    def tile_fin(cc):
        d = DY + 4 * cc
        if cc < 4:
            e(f'v_add_f32 v{Z+cc}, v{d}, v{d+1}')
        else:
            e(f'v_add_f32_dpp v{Z+cc-4}, v{d}, v{d+1} quad_perm:[0,1,2,3] row_mask:0x2 bank_mask:0xf')
            if not w2last:
                e(f'v_bfi_b32 v{Z+cc-4}, {sM12}, {vTA}, v{Z+cc-4}')
    for cc in range(8):
        for t in range(4):
            if cc == 0:
                e(f's_waitcnt lgkmcnt({3-t})')
            e(f'v_mfma_f32_16x16x32_bf16 {rng("v", DY+4*cc, 4)}, {rng("v", AF+4*t, 4)}, {rng("v", F+32*t+4*cc, 4)}, {0 if w2last and t == 0 else rng("v", DY+4*cc, 4)}')
            if cc >= 2 and t == 1:
                tile_add(cc - 2)
            if cc >= 2 and t == 3:
                tile_fin(cc - 2)
    if w2last:
        def fperm(cc):
            for p in range(2):
                e(f'v_perm_b32 v{G2+2*cc+p}, v{W2L+8*p+4+cc//2}, v{W2L+8*p+cc//2}, {sSelHi if cc & 1 else sSelLo}')
        def fadd(cc):
            e(f'v_add_f32_dpp v{Z+(cc&3)}, v{DY+4*cc}, v{Z+(cc&3)} quad_perm:[0,1,2,3] row_mask:{hex(1 << (cc >> 2))} bank_mask:0xf')
            if cc >= 4:
                e(f'v_bfi_b32 v{Z+cc-4}, {sM12}, {vTA}, v{Z+cc-4}')
        tile_add(6)
        e.wait('w23')
        fperm(0)
        for cc in range(8):
            if cc < 7:
                fperm(cc + 1)
            if cc == 1:
                tile_add(7); tile_fin(6)
            if cc == 2:
                tile_fin(7)
            e(f'v_mfma_f32_16x16x16_bf16 {rng("v", DY+4*cc, 4)}, a[{AH}:{AH+1}], v[{G2+2*cc}:{G2+2*cc+1}], 0')
            if cc >= 3:
                fadd(cc - 3)
        e('s_mov_b32 exec_hi, 0')
        for cc in (5, 6, 7):
            fadd(cc)
    else:
        tile_add(6)
        e('s_mov_b32 exec_hi, 0')
        tile_add(7)
        tile_fin(6)
        tile_fin(7)
    e(f'buffer_store_dwordx4 {rng("v", Z, 4)}, {vY}, {SWS}, 0 offen {ypol}')
    if wbl2 is not None:
        e(f's_lshl2_add_u32 {sT1}, s2, {sW}\ns_lshr_b32 {sT2}, {sT1}, 5\ns_and_b32 {sT1}, {sT1}, 3\ns_lshl2_add_u32 {sT1}, {sT2}, {sT1}\ns_cmp_lg_u32 {sT1}, {wbl2 * 4 + 1}\ns_cbranch_scc1 L_nowb\nbuffer_wbl2 sc1\nL_nowb:')
    if cw == 4:
        e(f's_cmp_lg_u32 {sW}, {stwave}\ns_cbranch_scc1 L_end')
        stamp('main,tail')
        if stamps and stset == 'tail':
            e('s_waitcnt vmcnt(0)')
            stamp('tail')
        C = STG
        mA, mB = 's[24:25]', 's[26:27]'
        e(f's_mov_b32 {sSpin}, {spin}\ns_movk_i32 {sT0}, 0x2000\ns_mov_b64 {mA}, -1\ns_mov_b64 {mB}, -1')
        if few:
            e(f's_lshr_b32 {sT1}, s2, 3\ns_and_b32 {sT1}, {sT1}, {few}\ns_cbranch_scc1 L_polled')
        e('L_poll:')
        e(f'''s_mov_b64 exec, {mA}
              buffer_load_dwordx4 {rng("v", C, 4)}, {vCON}, {SWS}, 0 offen sc1
              s_mov_b64 exec, {mB}
              buffer_load_dwordx4 {rng("v", C+4, 4)}, {vCON}, {SWS}, {sT0} offen sc1
              s_sub_u32 {sSpin}, {sSpin}, 1
              s_cbranch_scc1 L_polled
              s_mov_b64 exec, {mA}
              s_waitcnt vmcnt(0)''')
        untag(list(range(C, C + 4)), [vTA] * 4, sM12, dst=mA)
        e(f's_mov_b64 exec, {mB}')
        untag(list(range(C + 4, C + 8)), [vTA] * 4, sM12, dst=mB)
        e(f's_or_b64 vcc, {mA}, {mB}')
        if 'con' in off: e('s_branch L_polled')
        if asleep:
            thr, big = asleep
            e(f'''s_cbranch_scc0 L_polled
                  s_bcnt1_i32_b64 {sT1}, {mA}
                  s_bcnt1_i32_b64 {sT2}, {mB}
                  s_add_u32 {sT1}, {sT1}, {sT2}
                  s_cmp_le_u32 {sT1}, {thr}
                  s_cbranch_scc1 L_poll
                  s_sleep {big}
                  s_branch L_poll''')
        elif sleep:
            e(f's_cbranch_scc0 L_polled\ns_sleep {sleep}\ns_branch L_poll')
        else:
            e('s_cbranch_scc1 L_poll')
        e('L_polled:')
        e('s_mov_b64 exec, -1')
        stamp('main,tail')
        pk('add', C, C, C + 4); pk('add', C + 2, C + 2, C + 6)
        e(f'''v_lshlrev_b32 v{XR}, 16, v{XR}
              v_permlane32_swap_b32 v{C}, v{C+1}
              v_permlane32_swap_b32 v{C+2}, v{C+3}
              v_add_f32 v{C}, v{C}, v{C+1}
              v_add_f32 v{C+2}, v{C+2}, v{C+3}
              v_permlane16_swap_b32 v{C}, v{C+2}
              v_add_f32 v{C}, v{C}, v{C+2}''')
        rowred('v_add_f32', f'v{C}')
        e(f'''v_add_f32 v{C}, v{C}, v{XR}
              v_cvt_pk_bf16_f32 v{C}, v{C}, v{C}
              buffer_store_short v{C}, {vOUT}, {SOUT}, 0 offen''')
    else:
        LP = cw // 4
        NL = LP // 2
        step = (64 // LP) * 128
        C = STG
        mk = [f's[{68+2*k}:{69+2*k}]' for k in range(NL)]
        if stamps:
            e(f's_cmp_lg_u32 {sCon}, 0\ns_cselect_b32 {sT1}, {sW}, 0\ns_cmp_lg_u32 {sT1}, 0\ns_cbranch_scc1 L_end')
            stamp('main,tail,poll')
            if stset == 'poll':
                e('s_waitcnt lgkmcnt(0)\ns_mov_b64 s[6:7], s[4:5]\ns_mov_b64 s[8:9], s[4:5]\ns_mov_b64 s[10:11], s[4:5]\ns_mov_b64 s[12:13], s[4:5]')
            e(f's_mov_b32 {sSpin}, {spin}\ns_cmp_lg_u32 {sCon}, 0\ns_cbranch_scc1 L_nocon')
        else:
            e(f's_cmp_lg_u32 {sCon}, 0\ns_cbranch_scc1 L_end')
        e(f's_mov_b32 {sSpin}, {spin}')
        for k in range(NL):
            e(f's_mov_b64 {mk[k]}, -1')
        e('L_poll:')
        if stamps and stset == 'poll':
            e('s_memrealtime s[8:9]')
        for k in range(NL):
            e(f's_mov_b64 exec, {mk[k]}')
            e(f'buffer_load_dwordx4 {rng("v", C+4*k, 4)}, {vCON}, {SWS}, 0 offen offset:{step*k} {ppol}')
        e(f's_sub_u32 {sSpin}, {sSpin}, 1\ns_cbranch_scc1 L_polled')
        for k in range(NL):
            e(f's_mov_b64 exec, {mk[k]}')
            if k == 0:
                e('s_waitcnt vmcnt(0)')
                if stamps and stset == 'poll':
                    e(f's_cmp_lg_u32 {sSpin}, {spin-1}\ns_cbranch_scc1 L_nf\ns_memrealtime s[6:7]\nL_nf:')
                    nst[0] = 3
            untag(list(range(C + 4*k, C + 4*k + 4)), [vTA] * 4, sM12, dst=mk[k])
        if NL == 1:
            e(f's_or_b64 vcc, {mk[0]}, {mk[0]}')
        else:
            e(f's_or_b64 vcc, {mk[0]}, {mk[1]}')
            for k in range(2, NL):
                e(f's_or_b64 vcc, vcc, {mk[k]}')
        if pipe:
            thr, big, P, gapsl = pipe
            e(f'''s_cbranch_scc0 L_polled
                  s_bcnt1_i32_b64 {sT1}, vcc
                  s_cmp_le_u32 {sT1}, {thr}
                  s_cbranch_scc1 L_pp''')
            if big:
                e(f's_sleep {big}')
            e('s_branch L_poll\nL_pp:')
            def pissue(p):
                for k in range(NL):
                    e(f's_or_b64 exec, {mk[k]}, 1')
                    e(f'buffer_load_dwordx4 {rng("v", F+4*(NL*p+k), 4)}, {vCON}, {SWS}, 0 offen offset:{step*k} {ppol}')
            for p in range(P):
                pissue(p)
                if p < P - 1:
                    e(f's_sleep {gapsl + 1}')
            e('L_ppl:')
            for p in range(P):
                e(f's_waitcnt vmcnt({NL*(P-1)})')
                for k in range(NL):
                    e(f's_mov_b64 exec, {mk[k]}')
                    for r in range(4):
                        e(f'v_xor_b32 v{C+4*k+r}, {vTA}, v{F+4*(NL*p+k)+r}')
                    orred(list(range(C + 4*k, C + 4*k + 4)), sM12, mk[k])
                e(f's_or_b64 vcc, {mk[0]}, {mk[-1]}')
                for k in range(1, NL - 1):
                    e(f's_or_b64 vcc, vcc, {mk[k]}')
                e('s_cbranch_scc0 L_polled')
                pissue(p)
                if gapsl:
                    e(f's_sleep {gapsl}')
            e(f's_sub_u32 {sSpin}, {sSpin}, 1\ns_cbranch_scc0 L_ppl')
        elif asleep:
            thr, big = asleep
            e(f'''s_cbranch_scc0 L_polled
                  s_bcnt1_i32_b64 {sT1}, vcc
                  s_cmp_le_u32 {sT1}, {thr}
                  s_cbranch_scc1 L_poll
                  s_sleep {big}
                  s_branch L_poll''')
        elif sleep:
            e(f's_cbranch_scc0 L_polled\ns_sleep {sleep}\ns_branch L_poll')
        else:
            e('s_cbranch_scc1 L_poll')
        e('L_polled:')
        e('s_mov_b64 exec, -1')
        stamp('main,tail,poll')
        if NL == 4:
            pk('add', C, C, C + 4); pk('add', C + 8, C + 8, C + 12); pk('add', C + 2, C + 2, C + 6); pk('add', C + 10, C + 10, C + 14)
            pk('add', C, C, C + 8); pk('add', C + 2, C + 2, C + 10)
        elif NL == 2:
            pk('add', C, C, C + 4); pk('add', C + 2, C + 2, C + 6)
        e(f'''v_lshrrev_b32 {t2}, 2, {vKO}
              v_lshlrev_b32 {t3}, 2, {vL}
              v_permlane32_swap_b32 v{C}, v{C+1}
              v_permlane32_swap_b32 v{C+2}, v{C+3}
              v_add_f32 v{C}, v{C}, v{C+1}
              v_add_f32 v{C+2}, v{C+2}, v{C+3}
              v_lshlrev_b32 v{XR}, 16, v{XR}
              v_permlane16_swap_b32 v{C}, v{C+2}
              v_add_f32 v{C}, v{C}, v{C+2}''')
        for d in (8, 4, 2):
            if LP <= d:
                e(f'v_add_f32_dpp v{C}, v{C}, v{C} row_ror:{d} row_mask:0xf bank_mask:0xf')
        e(f'''ds_write_b32 {t2}, v{C}
              s_waitcnt lgkmcnt(0)
              s_barrier
              s_cmp_lg_u32 {sW}, {stwave}
              s_cbranch_scc1 L_end''')
        stamp('poll')
        e(f'''ds_read2st64_b32 v[{C}:{C+1}], {t3} offset0:0 offset1:1
              ds_read2st64_b32 v[{C+2}:{C+3}], {t3} offset0:2 offset1:3
              s_waitcnt lgkmcnt(0)''')
        pk('add', C, C, C + 2)
        e(f'''v_add_f32 v{C}, v{C}, v{C+1}
              v_add_f32 v{C}, v{C}, v{XR}
              v_cvt_pk_bf16_f32 v{C}, v{C}, v{C}
              buffer_store_short v{C}, {vOUT}, {SOUT}, 0 offen {opol}''')
    e(f'''s_cmp_eq_u32 s2, 0
          s_cselect_b32 {sT0}, {WS_EP}, {OOB}
          v_mov_b32 {t2}, {sEp}
          v_mov_b32 {t3}, {sT0}
          s_mov_b64 exec, 1
          buffer_store_dword {t2}, {t3}, {SWS}, 0 offen {epol}''')
    if fixdur:
        e('s_cmp_lg_u32 s2, 0\ns_cbranch_scc1 L_end')
        if amp == -1:
            e(f's_waitcnt vmcnt(0)\ns_memrealtime s[24:25]\ns_waitcnt lgkmcnt(0)\ns_sub_u32 s1, s24, s100\ns_mul_i32 s1, s1, 10\ns_add_u32 s1, s1, {fixdur}')
        elif amp is not None:
            e(f's_waitcnt lgkmcnt(0)\ns_sub_u32 s1, s{stamp_regs[amp]}, s100\ns_mul_i32 s1, s1, 10\ns_add_u32 s1, s1, {fixdur}')
        else:
            e(f's_mov_b32 s1, {fixdur}')
        e('L_hold:\ns_memrealtime s[24:25]\ns_waitcnt lgkmcnt(0)\ns_sub_u32 s24, s24, s100\ns_cmp_lt_u32 s24, s1\ns_cbranch_scc1 L_hold\ns_endpgm')
    if stamps:
        if cw != 4:
            e(f's_branch L_st\nL_nocon:\ns_mov_b64 exec, 1\ns_waitcnt lgkmcnt(0)\ns_mov_b64 s[{stamp_regs[nst[0]-1]}:{stamp_regs[nst[0]-1]+1}], s[{stamp_regs[nst[0]-2]}:{stamp_regs[nst[0]-2]+1}]\nL_st:')
        stamp('tail')
        e('s_waitcnt vmcnt(0)')
        stamp('main,tail,head,poll')
        e(f's_waitcnt lgkmcnt(0)\ns_lshl_b32 s0, {sId}, 7\ns_add_u32 s0, s0, 0x20000000\nv_mov_b32 v0, 0')
        for k, r in enumerate([100] + stamp_regs[:nst[0]]):
            e(f'v_mov_b32 v2, s{r}\nv_mov_b32 v3, s{r+1}\nbuffer_store_dwordx2 v[2:3], v0, s[20:23], s0 offen offset:{8*k}')
        if clk:
            e(f's_memtime s[24:25]\ns_waitcnt lgkmcnt(0)\ns_sub_u32 s24, s24, s98\ns_sub_u32 {sSpin}, 400000, s24')
            e(f'v_mov_b32 v2, 0\nv_mov_b32 v3, {sSpin}\nbuffer_store_dwordx2 v[2:3], v0, s[20:23], s0 offen offset:120')
        if dbgcnt:
            e(f'v_mov_b32 v2, {sCnt}\nv_mov_b32 v3, {sSpin}\nbuffer_store_dwordx2 v[2:3], v0, s[20:23], s0 offen offset:120')
    e('L_end:\ns_endpgm')
    for f in slow:
        f()
    e('L_codeend:')
    e.raw('.section .rodata,"a"\n.p2align 6')
    e.raw(kernel_desc(K, 512, 102, accum=256))
    return e.text(), LDS, nst[0] + 1, e.nops

if __name__ == '__main__':
    cfgs = {}
    def add(name, **kw):
        cfgs[name] = kw
    exec(open(sys.argv[1]).read())
    BF = os.environ.get('BFLAGS', '-n 15 -c')
    os.makedirs('co', exist_ok=True)
    names = []
    for name, kw in cfgs.items():
        t, lds, ns, nops = gen(**kw)
        build(t, f'co/{name}')
        st = f'-t {ns}' if kw.get('stamps') else ''
        names.append(f'co/{name}.co')
        print(name, 'nops', nops, 'len', len(t))
    open('run.sh', 'w').write(f'#!/bin/bash\ntimeout 300 ./bench {BF} {st} {NAME}_kernel:256:256:{lds} ' + ' '.join(names) + '\n')
```

```python
import sys, os
from asmlib import NAME, kernel_desc, build
from emit import Emit

FU_STRIDE = 2176
WS_Y, WS_Q, WS_ML, WS_EP, WS_FU = 0, 0x80000, 0xC0000, 0xC4000, 0xC5000
WS_END = WS_FU + 256 * FU_STRIDE
OOB = 0x40000000
LOG2E = 0x3fb8aa3b
SCALE = 0x3db504f3

def bitrev4(n):
    return ((n & 1) << 3) | ((n & 2) << 1) | ((n & 4) >> 1) | ((n & 8) >> 3)

REF = 'cdna_kernels/' + NAME + '.s.ref'
HEADER = open(REF).read().split('; Override launch')[0] if os.path.exists(REF) else ''

NOTES = '''; Design: one launch, 256 workgroups = (batch, head, quarter of the 4096-key window) x 4 waves, one per CU.
;  - The q projection and FFN-up are split by rows over workgroups and handed over through d_ws; every wave
;    exchanges its softmax (max, sum); each workgroup applies wo and 12 rows of w2 to its share and publishes a
;    512-column partial; 64 workgroups sum 16 output columns each.
;  - Every hand-off word carries this launch's tag (the epoch word found in d_ws, + 1) in its low mantissa bits
;    finds another launch's tag or another XCD re-publishes its own words write-through and polls (bounded).'''

def gen(D=9, k0=2, k1=2, ksp=(1, 1, 1, 1, 1), kpost=(1, 1, 1), n_q=24, gap=None, catch=3, wo_start=8, wo_end=50, n_ml=30,
        ex0=0, vring=16, rotmul=5, sleep=2, codepf=True, tailpf=None, pol='nt', wpol='nt', xpol='', gpol='', spin=400000,
        stamps=False, dbgcnt=False, off=(), permtest=False, fixdur=0, amp=None, stset='main', stwave=0, touch=(), Dend=None, nend=44, Dk=None, kw=False, ypol='sc1', asleep=(8, 6), n_fg=None, few=0, clk=False, cw=16, ypf=None, ypfpol='sc1', ppol='sc1', pipe=None, cpf0=True, wbl2=None, woa=None, w2a=None, al4=False, slowpen=0, opf=None, opol='', epol='', w2last=False, qpol=None, fpol=None, mpol=None, pre=None, mlpre=None, quads=None, smf=False):
    qpol, fpol, mpol = [gpol if p is None else p for p in (qpol, fpol, mpol)]
    gap = gap or D + 1
    e = Emit()
    K = NAME + '_kernel'
    LDS_O = 8192
    LDS = LDS_O + 2048
    sW = 's3'
    SK, SV, SWQ, SWO, SFU, SW2, SX, SWS, SOUT, SCODE = [f's[{b}:{b+3}]' for b in range(28, 68, 4)]
    sXc, sJ, sHH, sH, sB, sS, sS8, sBH, sC0, sNch, sT0, sT1, sT2, sKoff, sVoff, sMask, sPB, sU, sXcc, sId = [f's{n}' for n in range(68, 88)]
    sSelLo, sSelHi, sSpin, sM8, sM12, sM3 = [f's{n}' for n in range(88, 94)]
    sMC, sMA = 's[94:95]', 's[96:97]'
    sEp, sCon = 's0', 's1'
    sCnt = 's98'
    stamp_regs = [4, 6, 8, 10, 12, 14, 16, 18]
    nst = [0]
    def stamp(which='main'):
        if stamps and stset in which.split(','):
            r = stamp_regs[nst[0]]
            e(f's_memrealtime s[{r}:{r+1}]')
            nst[0] += 1
    vKO, M, Q, S, vY, vL = 'v1', [2, 3, 4, 5], [6, 7, 8, 9], [10, 11, 12, 13], 'v14', 'v15'
    A = [16, 20]
    ACC = 24
    g, i, t2, t3, t4, t5 = [f'v{k}' for k in range(28, 34)]
    vM, vLs = 'v34', 'v35'
    vXG, vWQ, vFU = 'v34', 'v35', 'v36'
    vMG, vML, vTB = 'v36', 'v37', 'v38'
    vQG, vWO, vW2, vFG, vOUT, vCON, vOW, vOR, vF = [f'v{k}' for k in range(39, 48)]
    vTA = 'v0'
    vIdx = vFG
    KBASE, KRING = 48, 52
    kreg = lambda n: KBASE + 4 * (n % KRING)
    vreg = lambda n: 4 * (n % vring)
    rng = lambda p, b, n: f'{p}[{b}:{b+n-1}]'
    AWQ, AFU = 192, 208
    AH = 244
    AQD, AFD, AQA, AFA = 224, 228, 232, 233
    assert 4 * vring <= AWQ

    e.raw(HEADER.rstrip('\n'))
    e.raw(NOTES)
    e.raw(f'; @launch grid=(256,1,1) block=(256,1,1) lds={LDS}')
    e.raw('.amdgcn_target "amdgcn-amd-amdhsa--gfx950"\n.text')
    e.raw(f'.globl {K}\n.p2align 8\n.type {K},@function\n{K}:')
    e('s_load_dwordx16 s[4:19], s[0:1], 0\ns_load_dwordx8 s[20:27], s[0:1], 64')
    if stamps or fixdur:
        e('s_memrealtime s[100:101]')
    if clk:
        e('s_memtime s[98:99]')
    e('s_cmp_ge_u32 s2, 256\ns_cbranch_scc1 L_end')
    if stamps:
        e(f's_mov_b32 {sId}, s2')
    if permtest:
        e(f's_lshr_b32 {sT0}, s2, 5\ns_and_b32 s2, s2, 31\ns_lshl_b32 s2, s2, 3\ns_or_b32 s2, s2, {sT0}')
    e(f'''s_and_b32 {sXc}, s2, 7
          s_lshr_b32 {sJ}, s2, 3
          s_lshr_b32 {sHH}, s2, 6
          s_lshl2_add_u32 {sH}, {sXc}, {sHH}
          s_bfe_u32 {sB}, s2, 0x10005
          s_and_b32 {sS}, {sJ}, 3
          s_lshl_b32 {sBH}, {sB}, 5
          s_add_u32 {sBH}, {sBH}, {sH}
          s_lshl4_add_u32 {sT0}, {sBH}, {sS}
          s_add_u32 {sT0}, {sT0}, 12
          s_lshl_b32 {sT0}, {sT0}, 18
          s_mul_i32 {sKoff}, s2, {rotmul << 12}
          s_mov_b32 {sMask}, 0x3ffff
          s_and_b32 {sKoff}, {sKoff}, {sMask}
          v_lshlrev_b32 {vKO}, 4, v0
          s_mov_b32 s30, 0x40000
          s_mov_b32 s31, 0x20000
          v_lshrrev_b32 v2, 6, v0
          v_and_b32 {vL}, 63, v0
          s_mov_b32 {sVoff}, {sKoff}
          v_readfirstlane_b32 {sW}, v2''')
    if codepf and cpf0:
        e(f'''s_getpc_b64 s[64:65]
              L_pc:
              s_mov_b32 s66, L_codeend - L_pc
              s_mov_b32 s67, 0x20000
              s_lshl_b32 {sT1}, {sJ}, 10
              v_lshl_add_u32 {t2}, v0, 2, {sT1}''')
        e.vmem(f'buffer_load_dword {vF}, {t2}, {SCODE}, 0 offen', 'cpf')
    e(f'''s_waitcnt lgkmcnt(0)
          s_add_u32 s28, s6, {sT0}
          s_addc_u32 s29, s7, 0''')
    if stamps and stset == 'head':
        e('s_memrealtime s[14:15]')
    kn = [0]
    def kissue():
        n = kn[0]
        e.vmem(f'buffer_load_dwordx4 {rng("v", kreg(n), 4)}, {vKO}, {SK}, {sKoff} offen {pol}', f'K{n}')
        e(f's_addk_i32 {sKoff}, 0x1000\ns_and_b32 {sKoff}, {sKoff}, {sMask}')
        kn[0] += 1
    def kspr():
        if kw:
            k = len(e.vm) - (Dk or D)
            if k >= e.done:
                e.wait(e.vm[k])
        kissue()
    for _ in range(k0):
        kissue()
    XL, XU, XG, DQ, DF = 208, 216, 232, 236, 240
    e(f'''s_load_dword {sEp}, s[26:27], {WS_EP}
          s_add_u32 s32, s8, {sT0}
          s_addc_u32 s33, s9, 0
          s_mov_b32 s52, s4
          s_mov_b32 s53, s5
          s_mov_b32 s54, 2048
          s_mov_b32 s55, 0x20000
          v_lshlrev_b32 {t2}, 5, {vL}''')
    e.vmem(f'buffer_load_dwordx4 {rng("v", XL, 4)}, {t2}, {SX}, 0 offen {xpol}', 'xl0')
    e.vmem(f'buffer_load_dwordx4 {rng("v", XL+4, 4)}, {t2}, {SX}, 0 offen offset:16 {xpol}', 'xl1')
    e(f'''s_and_b32 {sS8}, {sJ}, 7
          v_lshrrev_b32 {g}, 4, {vL}
          v_and_b32 {i}, 15, {vL}
          s_lshl_b32 {sT1}, {sS8}, 19
          s_lshl_b32 {sT2}, {sH}, 8
          s_add_u32 {sT1}, {sT1}, {sT2}
          s_add_u32 s36, s10, {sT1}
          s_addc_u32 s37, s11, 0
          s_mov_b32 s38, {63*8192+256}
          s_mov_b32 s39, 0x20000
          v_lshrrev_b32 {t3}, 4, v0
          v_and_b32 {t4}, 12, {t3}
          v_lshl_add_u32 {t3}, {t4}, 2, {g}
          v_lshlrev_b32 {t3}, 13, {t3}
          v_lshl_add_u32 {vWQ}, {i}, 4, {t3}''')
    if 'wq' in off: e(f'v_mov_b32 {vWQ}, {OOB}')
    for t in range(4):
        if t:
            e(f's_mov_b32 {sT2}, {32768*t}')
        e.vmem(f'buffer_load_dwordx4 {rng("a", AWQ+4*t, 4)}, {vWQ}, {SWQ}, {sT2 if t else 0} offen {wpol}', f'wq{t}')
    HB = 12 if al4 else 11
    if quads:
        assert sum(quads) == 43 and max(quads) <= 6
        pref = [sum(quads[:k]) for k in range(8)]
        lo = sum(p << (8 * k) for k, p in enumerate(pref[:4])); hi = sum(p << (8 * k) for k, p in enumerate(pref[4:]))
        cnt = sum(q << (4 * k) for k, q in enumerate(quads))
        e(f'''s_mov_b32 {sT1}, {hex(lo)}
              s_mov_b32 {sT2}, {hex(hi)}
              s_cmp_lt_u32 {sXc}, 4
              s_cselect_b32 {sT1}, {sT1}, {sT2}
              s_lshl_b32 {sT2}, {sXc}, 3
              s_lshr_b32 {sT1}, {sT1}, {sT2}
              s_and_b32 {sC0}, {sT1}, 0xff
              s_lshl_b32 {sC0}, {sC0}, 2
              s_lshl_b32 {sT2}, {sXc}, 2
              s_lshr_b32 {sT1}, {hex(cnt)}, {sT2}
              s_and_b32 {sNch}, {sT1}, 15
              s_lshl_b32 {sNch}, {sNch}, 2''')
    elif al4:
        e(f'''s_mul_i32 {sC0}, {sXc}, 43
              s_add_u32 {sNch}, {sC0}, 47
              s_add_u32 {sC0}, {sC0}, 4
              s_lshr_b32 {sC0}, {sC0}, 3
              s_lshr_b32 {sNch}, {sNch}, 3
              s_sub_u32 {sNch}, {sNch}, {sC0}
              s_lshl_b32 {sC0}, {sC0}, 2
              s_lshl_b32 {sNch}, {sNch}, 2''')
        assert [(43*x+47 >> 3) - (43*x+4 >> 3) for x in range(8)].count(6) == 3 and (43*8+4) >> 3 == 43
    else:
        e(f'''s_mul_i32 {sC0}, {sXc}, 43
              s_add_u32 {sC0}, {sC0}, 1
              s_lshr_b32 {sC0}, {sC0}, 1
              s_and_b32 {sT1}, {sXc}, 1
              s_sub_u32 {sNch}, 22, {sT1}''')
    e(f'''s_sub_u32 {sPB}, {sNch}, {HB}
          s_and_b32 {sT2}, {sJ}, 1
          s_cselect_b32 {sPB}, {sPB}, {HB}
          s_mul_i32 {sT2}, {sT2}, {HB}
          s_add_u32 {sT2}, {sT2}, {sC0}
          s_and_b32 {sT1}, {sW}, 1
          s_and_b32 {sT0}, {sJ}, 30
          s_add_u32 {sT1}, {sT1}, {sT0}
          s_lshl_b32 {sT1}, {sT1}, 4
          v_add_u32 {t3}, {sT1}, {g}
          v_mul_u32_u24 {t3}, 2752, {t3}
          v_cmp_gt_u32 vcc, {sPB}, {i}
          v_add_u32 {t4}, {sT2}, {i}
          v_lshl_add_u32 {t3}, {t4}, 4, {t3}
          v_mov_b32 {t5}, {OOB}
          v_cndmask_b32 {vFU}, {t5}, {t3}, vcc
          s_cmp_lt_u32 {sW}, 2
          s_cselect_b32 s44, s16, s18
          s_cselect_b32 s45, s17, s19
          s_mov_b32 s46, {512*2752}
          s_mov_b32 s47, 0x20000''')
    if 'fu' in off: e(f'v_mov_b32 {vFU}, {OOB}')
    for t in range(4):
        if t:
            e(f's_mov_b32 {sT2}, {11008*t}')
        e.vmem(f'buffer_load_dwordx4 {rng("a", AFU+4*t, 4)}, {vFU}, {SFU}, {sT2 if t else 0} offen {wpol}', f'fu{t}')
    e(f'''s_lshl2_add_u32 {sT0}, {sS8}, {sW}
          s_lshl_b32 {sT0}, {sT0}, 4
          v_and_b32 {t5}, 4, {vL}
          v_cmp_eq_u32 vcc, 0, {t5}
          v_mov_b32 {t4}, {sT0}
          v_mov_b32 {t5}, {sT1}
          v_and_b32 {t3}, 3, {vL}
          v_cndmask_b32 {t4}, {t5}, {t4}, vcc
          v_lshl_add_u32 {t3}, {t3}, 2, {g}
          v_bfe_u32 {t5}, {vL}, 3, 1
          v_add_u32 {t3}, {t3}, {t4}
          v_lshl_add_u32 {t3}, {t5}, 9, {t3}
          v_lshlrev_b32 {vXG}, 1, {t3}''')
    e.vmem(f'buffer_load_ushort v{XG}, {vXG}, {SX}, 0 offen {xpol}', 'xg')
    for _ in range(k1):
        kissue()
    e(f'''s_mov_b32 s34, 0x40000
          s_mov_b32 s35, 0x20000
          s_lshl_b32 {sT0}, {sH}, 17
          s_add_u32 s40, s12, {sT0}
          s_addc_u32 s41, s13, 0
          s_mov_b32 s42, 0x20000
          s_mov_b32 s43, 0x20000
          s_mov_b32 s48, s20
          s_mov_b32 s49, s21
          s_mov_b32 s50, {1376*1024}
          s_mov_b32 s51, 0x20000
          s_mov_b32 s56, s26
          s_mov_b32 s57, s27
          s_mov_b32 s58, {WS_END}
          s_mov_b32 s59, 0x20000
          s_mov_b32 s60, s22
          s_mov_b32 s61, s23
          s_mov_b32 s62, 2048
          s_mov_b32 s63, 0x20000''')
    if stamps:
        e('s_mov_b32 s20, s26\ns_mov_b32 s21, s27\ns_mov_b32 s22, 0x40000000\ns_mov_b32 s23, 0x20000')
    if (codepf or tailpf is not None) and not (codepf and cpf0):
        e('s_getpc_b64 s[64:65]\nL_pc:\ns_mov_b32 s66, L_codeend - L_pc\ns_mov_b32 s67, 0x20000')
    if touch:
        e(f'v_mov_b32 {t2}, 0')
        for k, nm in enumerate(touch):
            srd = dict(V=SV, wo=SWO, w2=SW2, ws=SWS, out=SOUT)[nm]
            e.vmem(f'buffer_load_dword {vF}, {t2}, {srd}, 0 offen nt', 'touch' + nm)
    if codepf and not cpf0:
        e(f'''s_lshl2_add_u32 {sT0}, {sJ}, {sW}
              s_lshl_b32 {sT0}, {sT0}, 8
              v_lshl_add_u32 {t2}, {vL}, 2, {sT0}''')
        e.vmem(f'buffer_load_dword {vF}, {t2}, {SCODE}, 0 offen', 'cpf')
    if pre is not None:
        e(f'''s_lshl3_add_u32 {sT0}, {sH}, {sS8}
              s_lshl2_add_u32 {sT0}, {sT0}, {sW}
              s_lshl_b32 {sT0}, {sT0}, 8
              s_add_u32 {sT0}, {sT0}, {WS_Q}
              s_lshl_b32 {sT1}, {sXc}, 5
              s_add_u32 {sT1}, {sT1}, {sJ}
              s_mul_i32 {sT1}, {sT1}, {FU_STRIDE}
              s_lshl_b32 {sT2}, {sW}, 9
              s_add_u32 {sT1}, {sT1}, {sT2}
              s_add_u32 {sT1}, {sT1}, {WS_FU - 256}
              v_mov_b32 {t2}, {sT0}
              v_mov_b32 {t3}, {sT1}
              v_cmp_gt_u32 vcc, 2, {vL}
              v_mov_b32 {t4}, {OOB}
              v_cndmask_b32 {t2}, {t3}, {t2}, vcc
              v_cmp_gt_u32 vcc, 5, {vL}
              v_lshl_add_u32 {t2}, {vL}, 7, {t2}
              v_cndmask_b32 {t2}, {t4}, {t2}, vcc''')
        e.vmem(f'buffer_load_dword a{AH+2}, {t2}, {SWS}, 0 offen {pre}', 'pre')
    e(f'''v_and_b32 {t2}, 1, {vL}
          v_lshlrev_b32 {t2}, 4, {t2}
          v_mov_b32 {t3}, 0xffff
          v_lshlrev_b32 {t2}, {t2}, {t3}
          v_bfe_u32 {t3}, {vL}, 1, 2
          v_cmp_eq_u32 s[4:5], 0, {t3}
          v_cmp_eq_u32 s[6:7], 1, {t3}
          v_cmp_eq_u32 s[8:9], 2, {t3}
          v_cmp_eq_u32 s[10:11], 3, {t3}''')
    for r in range(4):
        e(f'v_cndmask_b32 v{M[r]}, 0, {t2}, s[{4+2*r}:{5+2*r}]')
    e(f'''s_mov_b32 s94, 0xcccccccc
          s_mov_b32 s95, 0xcccccccc
          s_mov_b32 s96, 0xaaaaaaaa
          s_mov_b32 s97, 0xaaaaaaaa
          s_mov_b32 {sSelLo}, 0x05040100
          s_mov_b32 {sSelHi}, 0x07060302
          s_movk_i32 {sM8}, 0xff
          s_movk_i32 {sM12}, 0xfff
          s_movk_i32 {sM3}, 7
          s_getreg_b32 {sXcc}, hwreg(HW_REG_XCC_ID, 0, 4)''')
    if dbgcnt:
        e(f's_mov_b32 {sCnt}, 0')

    def rowred(op, r):
        for c in ('row_ror:8', 'row_ror:4', 'row_ror:2', 'row_ror:1'):
            e(f'{op}_dpp {r}, {r}, {r} {c} row_mask:0xf bank_mask:0xf')
    def swapred(op, r, tmp, n):
        e(f'v_mov_b32 {tmp}, {r}\nv_permlane{n}_swap_b32 {r}, {tmp}\n{op} {r}, {r}, {tmp}')
    def bf16r(dst, src):
        e(f'v_cvt_pk_bf16_f32 {dst}, {src}, {src}\nv_and_b32 {dst}, 0xffff0000, {dst}')
    def pk(op, d, a, b):
        e(f'v_pk_{op}_f32 v[{d}:{d+1}], v[{a}:{a+1}], v[{b}:{b+1}]')

    if stamps and stset == 'head':
        e.wait('K0')
        e('s_waitcnt lgkmcnt(0)\ns_mov_b64 s[4:5], s[14:15]')
        nst[0] = 1
        stamp('head')
    e.wait('xl1')
    stamp('main,head')
    for k in range(8):
        e(f'v_lshlrev_b32 v{XU+2*k}, 16, v{XL+k}\nv_and_b32 v{XU+2*k+1}, 0xffff0000, v{XL+k}')
    for k in range(4):
        pk('add', XL + 2 * k, XU + 4 * k, XU + 4 * k + 2)
    pk('add', XL, XL, XL + 2); pk('add', XL + 4, XL + 4, XL + 6); pk('add', XL, XL, XL + 4)
    e(f'v_add_f32 {t2}, v{XL}, v{XL+1}')
    for _ in range(ksp[0]): kspr()
    rowred('v_add_f32', t2)
    swapred('v_add_f32', t2, t3, 16)
    e(f'v_mul_f32 {t2}, 0x3b000000, {t2}')
    for k in range(0, 16, 2):
        e(f'v_pk_add_f32 v[{XU+k}:{XU+k+1}], v[{XU+k}:{XU+k+1}], v[30:31] op_sel_hi:[1,0] neg_lo:[0,1] neg_hi:[0,1]')
    for _ in range(ksp[1]): kspr()
    pk('mul', XL, XU, XU); pk('mul', XL + 2, XU + 2, XU + 2)
    for k in range(4, 16, 4):
        e(f'v_pk_fma_f32 v[{XL}:{XL+1}], v[{XU+k}:{XU+k+1}], v[{XU+k}:{XU+k+1}], v[{XL}:{XL+1}]')
        e(f'v_pk_fma_f32 v[{XL+2}:{XL+3}], v[{XU+k+2}:{XU+k+3}], v[{XU+k+2}:{XU+k+3}], v[{XL+2}:{XL+3}]')
    pk('add', XL, XL, XL + 2)
    e(f'v_add_f32 {t4}, v{XL}, v{XL+1}')
    for _ in range(ksp[2]): kspr()
    rowred('v_add_f32', t4)
    swapred('v_add_f32', t4, t3, 16)
    e(f'v_mul_f32 {t4}, 0x3b000000, {t4}')
    bf16r(t2, t2)
    bf16r(t4, t4)
    e(f'v_add_f32 {t4}, 0x3727c5ac, {t4}')
    bf16r(t4, t4)
    e(f'v_sqrt_f32 {t4}, {t4}')
    bf16r(t4, t4)
    e(f'''v_mov_b32 {t3}, {t2}
          v_mov_b32 {t5}, {t4}
          v_and_b32 v{XL}, 8, {vL}
          v_permlane32_swap_b32 {t2}, {t3}
          v_permlane32_swap_b32 {t4}, {t5}
          v_cmp_eq_u32 vcc, 0, v{XL}
          v_cndmask_b32 {t2}, {t3}, {t2}, vcc
          v_cndmask_b32 {t4}, {t5}, {t4}, vcc''')
    e.wait('xg')
    XN = f'v{XG}'
    e(f'v_lshlrev_b32 {XN}, 16, {XN}\nv_sub_f32 {XN}, {XN}, {t2}\nv_rcp_f32 {t5}, {t4}')
    bf16r(XN, XN)
    e(f'''v_mul_f32 {t2}, {XN}, {t5}
          v_fma_f32 {t3}, -{t2}, {t4}, {XN}
          v_fmac_f32 {t2}, {t3}, {t5}
          v_cvt_pk_bf16_f32 {XN}, {t2}, {t2}''')
    for _ in range(ksp[3]): kspr()
    for t in range(8):
        a = A[t & 1]
        for r in range(4):
            e(f'v_and_b32_dpp v{a+r}, {XN}, v{M[r]} row_newbcast:{t} row_mask:0xf bank_mask:0x3')
        for r in range(4):
            e(f'v_and_b32_dpp v{a+r}, {XN}, v{M[r]} row_newbcast:{t+8} row_mask:0xf bank_mask:0xc')
        if t < 4:
            e(f'v_mfma_f32_16x16x32_bf16 {rng("v", DQ, 4)}, {rng("v", a, 4)}, {rng("a", AWQ+4*t, 4)}, {rng("v", DQ, 4) if t else 0}')
        else:
            e(f'v_mfma_f32_16x16x32_bf16 {rng("v", DF, 4)}, {rng("v", a, 4)}, {rng("a", AFU+4*(t-4), 4)}, {rng("v", DF, 4) if t > 4 else 0}')
        if t == 3:
            for _ in range(ksp[4]): kspr()
    e(f'ds_write_b128 {vKO}, {rng("v", DQ, 4)}')
    vRF, vRQ, vSF, vSQ = 'v208', 'v209', 'v210', 'v211'
    e(f'''s_lshr_b32 {sT0}, {sW}, 1
          s_lshl_b32 {sT0}, {sT0}, 9
          s_and_b32 {sT1}, {sW}, 1
          s_lshl3_add_u32 {sT0}, {sT1}, {sT0}
          v_and_b32 {t3}, 31, {vL}
          v_lshl_add_u32 {vRF}, {t3}, 4, {sT0}
          s_lshl_b32 {sT0}, {sW}, 8
          v_lshl_add_u32 {vRQ}, {i}, 4, {sT0}
          ds_write_b128 {vKO}, {rng("v", DF, 4)} offset:4096
          s_lshl_b32 {sT1}, {sXc}, 5
          s_add_u32 {sT1}, {sT1}, {sJ}
          s_mul_i32 {sT1}, {sT1}, {FU_STRIDE}
          s_lshl1_add_u32 {sT1}, {sT0}, {sT1}
          s_add_u32 {sT1}, {sT1}, {WS_FU}
          v_and_b32 {t3}, 47, {vL}
          v_cmp_gt_u32 vcc, {sPB}, {t3}
          v_lshl_add_u32 {t3}, {i}, 1, {g}
          v_lshl_add_u32 {t3}, {t3}, 4, {sT1}
          v_mov_b32 {t5}, {OOB}
          v_cndmask_b32 {vSF}, {t5}, {t3}, vcc
          s_lshl3_add_u32 {sT1}, {sH}, {sS8}
          s_lshl_b32 {sT1}, {sT1}, 10
          s_add_u32 {sT1}, {sT1}, {WS_Q}
          v_add_u32 {t3}, {sT1}, {vRQ}
          v_cmp_gt_u32 vcc, 16, {vL}
          v_cndmask_b32 {vSQ}, {t5}, {t3}, vcc''')
    if 'pub' in off: e(f'v_mov_b32 {vSF}, {OOB}\nv_mov_b32 {vSQ}, {OOB}')
    stamp('head')
    e('s_waitcnt lgkmcnt(0)\ns_barrier')
    stamp('main,head')
    R0, R1 = 216, 232
    for k in range(4):
        e(f'ds_read_b128 {rng("v", R0+4*k, 4)}, {vRQ} offset:{1024*k}')
    for k in range(4):
        e(f'ds_read_b64 v[{R1+2*k}:{R1+2*k+1}], {vRF} offset:{4096+1024*k}')
    e(f'''s_add_u32 {sEp}, {sEp}, 1
          s_and_b32 {sT1}, {sEp}, {sM12}
          v_mov_b32 {vTA}, {sT1}
          v_xor_b32 {vTB}, {sXcc}, {vTA}
          s_xor_b32 {sXcc}, {sXcc}, {sEp}
          v_accvgpr_write_b32 a{AQA}, {vSQ}
          v_accvgpr_write_b32 a{AFA}, {vSF}
          s_waitcnt lgkmcnt(4)''')
    def tag(r, vts, m):
        for k, vt in enumerate(vts):
            e(f'v_bfi_b32 v{r+k}, {m}, {vt}, v{r+k}')
    pk('add', R0, R0, R0 + 4); pk('add', R0 + 2, R0 + 2, R0 + 6); pk('add', R0 + 8, R0 + 8, R0 + 12); pk('add', R0 + 10, R0 + 10, R0 + 14)
    pk('add', R0, R0, R0 + 8); pk('add', R0 + 2, R0 + 2, R0 + 10)
    tag(R0, [vTA, vTA, vTB, vTB], sM3)
    e.vmem(f'buffer_store_dwordx4 {rng("v", R0, 4)}, {vSQ}, {SWS}, 0 offen', 'pubq')
    e(f'''s_waitcnt lgkmcnt(0)
          v_add_f32 v{R1+8}, v{R1}, v{R1+2}
          v_add_f32 v{R1+9}, v{R1+4}, v{R1+6}
          v_add_f32 v{R1+10}, v{R1+1}, v{R1+3}
          v_add_f32 v{R1+11}, v{R1+5}, v{R1+7}''')
    tag(R1 + 8, [vTA, vTA, vTA, vTB], sM8)
    e.vmem(f'buffer_store_dwordx4 {rng("v", R1+8, 4)}, {vSF}, {SWS}, 0 offen', 'pubf')
    for k in range(4):
        e(f'v_accvgpr_write_b32 a{AQD+k}, v{R0+k}\nv_accvgpr_write_b32 a{AFD+k}, v{R1+8+k}')
    for _ in range(kpost[0]): kspr()

    e(f'''s_lshl2_add_u32 {sPB}, {sH}, {sS}
          s_lshl2_add_u32 {sT0}, {sB}, {sW}
          s_lshl_b32 {sT0}, {sT0}, 9
          s_add_u32 {sT0}, {sT0}, {sPB}
          s_lshl_b32 {sT0}, {sT0}, 7
          v_lshrrev_b32 {t2}, 2, {i}
          v_lshlrev_b32 {t2}, 14, {t2}
          v_and_b32 {t3}, 3, {vL}
          v_lshl_add_u32 {t2}, {t3}, 5, {t2}
          v_lshl_add_u32 {t2}, {g}, 4, {t2}
          v_add_u32 {vY}, {sT0}, {t2}
          s_lshl2_add_u32 {sT1}, {sBH}, {sS}
          s_lshl2_add_u32 {sT1}, {sT1}, {sW}
          s_lshl4_add_u32 {sT1}, {sT1}, {WS_ML}
          v_mov_b32 {t4}, {sT1}
          v_cmp_eq_u32 vcc, 0, {vL}
          v_mul_u32_u24 {t3}, 320, {t3}
          v_cndmask_b32 {vML}, {t5}, {t4}, vcc
          v_lshl_add_u32 {vOR}, {g}, 4, {t3}
          s_mul_i32 {sT0}, {sW}, 320
          s_add_u32 {sT0}, {sT0}, {LDS_O}
          v_and_b32 {t2}, 1, {g}
          v_lshlrev_b32 {t3}, 3, {t2}
          v_lshl_add_u32 {t3}, {i}, 4, {t3}
          v_add_u32 {vOW}, {sT0}, {t3}''')
    if smf:
        e(f'''v_lshrrev_b32 {t3}, 1, {t3}
              v_add_u32 {vOW}, {sT0}, {t3}
              v_bfe_u32 {t3}, {vL}, 2, 1
              v_lshl_add_u32 {vOR}, {t3}, 7, {vOR}''')
    if cw == 4:
        e(f'''s_lshl2_add_u32 {sU}, {sHH}, {sS}
              s_lshr_b32 {sT1}, {sU}, 3
              s_lshl1_add_u32 {sT1}, {sXc}, {sT1}
              s_lshl4_add_u32 {sT1}, {sB}, {sT1}
              s_and_b32 {sT0}, {sU}, 7
              s_lshl_b32 {sT2}, {sT1}, 14
              s_lshl4_add_u32 {sT2}, {sT0}, {sT2}
              v_lshl_add_u32 {vCON}, {vL}, 7, {sT2}
              s_lshl3_add_u32 {sT1}, {sT1}, {sT0}
              s_lshl_b32 {sT1}, {sT1}, 3
              v_lshrrev_b32 {t3}, 1, {g}
              v_lshl_add_u32 {t2}, {t2}, 1, {t3}
              v_lshl_add_u32 {t2}, {t2}, 1, {sT1}
              v_cmp_eq_u32 vcc, 0, {i}
              v_cndmask_b32 {vOUT}, {t5}, {t2}, vcc''')
    else:
        LP = cw // 4
        lg = LP.bit_length() - 1
        e(f'''s_lshl2_add_u32 {sU}, {sHH}, {sS}
              s_lshr_b32 {sT1}, {sU}, 3
              s_lshl1_add_u32 {sT1}, {sXc}, {sT1}
              s_lshl4_add_u32 {sT1}, {sB}, {sT1}
              s_and_b32 {sT0}, {sU}, 7
              s_and_b32 {sCon}, {sU}, {LP-1}
              s_lshl_b32 {sT2}, {sT1}, 14
              s_lshl4_add_u32 {sT2}, {sT0}, {sT2}
              s_lshl_b32 {sS8}, {sW}, 12
              s_add_u32 {sT2}, {sT2}, {sS8}
              v_lshrrev_b32 {t3}, {lg}, {vL}
              v_lshl_add_u32 {t3}, {t3}, 7, {sT2}
              v_and_b32 {t4}, {LP-1}, {vL}
              v_lshl_add_u32 {vCON}, {t4}, 4, {t3}
              s_lshl3_add_u32 {sT1}, {sT1}, {sT0}
              s_lshl_b32 {sT1}, {sT1}, 3
              v_lshrrev_b32 {t3}, 1, {g}
              v_lshl_add_u32 {t2}, {t2}, 1, {t3}
              v_lshl_add_u32 {t2}, {i}, 2, {t2}
              v_lshl_add_u32 {t2}, {t2}, 1, {sT1}
              v_cmp_gt_u32 vcc, {LP}, {i}
              v_cndmask_b32 {vOUT}, {t5}, {t2}, vcc''')
    for _ in range(kpost[1]): kspr()
    e(f'''s_lshl_b32 {sT0}, {sH}, 13
          s_lshl_b32 {sT1}, {sB}, 9
          s_add_u32 {sT0}, {sT0}, {sT1}
          s_add_u32 {sT0}, {sT0}, {WS_Q}
          v_lshlrev_b32 {t2}, 10, {g}
          v_lshl_add_u32 {t2}, {i}, 4, {t2}
          v_add_u32 {vQG}, {sT0}, {t2}
          s_lshl_b32 {sT0}, {sW}, 8
          v_lshl_add_u32 {t2}, {i}, 4, {sT0}
          v_lshl_add_u32 {vWO}, {g}, 13, {t2}
          s_mul_i32 {sU}, {sU}, 12
          s_lshl_b32 {sNch}, {sNch}, 3
          s_lshl3_add_u32 {sT0}, {sC0}, {sU}
          s_lshl_b32 {sT0}, {sT0}, 10
          s_cmp_lt_u32 {sU}, {sNch}
          s_cselect_b32 {sT0}, {sT0}, {OOB}
          s_cselect_b32 {sU}, {sU}, 0
          v_lshl_add_u32 {t2}, {g}, 12, {t2}
          v_add_u32 {t2}, {sT0}, {t2}
          v_cmp_gt_u32 vcc, 3, {g}
          v_cndmask_b32 {vW2}, {t5}, {t2}, vcc''')
    for _ in range(kpost[2]): kspr()
    e(f'''v_and_b32 {t2}, 7, {vL}
          v_cmp_gt_u32 s[24:25], 6, {t2}
          v_lshl_add_u32 {t2}, {t2}, 1, {sU}
          s_movk_i32 {sT1}, {8*HB}
          s_cmp_ge_u32 {sU}, {sT1}
          s_cselect_b32 {sT0}, 0, {sT1}
          v_mov_b32 {t3}, {sT0}
          v_cndmask_b32 {t2}, {t3}, {t2}, s[24:25]
          v_cmp_le_u32 s[24:25], {sT1}, {t2}
          v_cmp_gt_u32 vcc, {sNch}, {t2}
          v_lshrrev_b32 {t4}, 3, {vL}
          v_cndmask_b32 {t3}, 0, 1, s[24:25]
          v_lshl_add_u32 {t4}, {t4}, 1, {t3}
          v_mul_u32_u24 {t4}, {FU_STRIDE}, {t4}
          v_mul_u32_u24 {t3}, {8*HB}, {t3}
          v_sub_u32 {t2}, {t2}, {t3}
          v_bfe_u32 {t3}, {t2}, 1, 1
          v_lshl_add_u32 {t4}, {t3}, 9, {t4}
          v_lshrrev_b32 {t2}, 2, {t2}
          v_lshl_add_u32 {t2}, {t2}, 4, {t4}
          s_mul_i32 {sT0}, {sXc}, {32*FU_STRIDE}
          s_lshl_b32 {sT1}, {sB}, 10
          s_add_u32 {sT0}, {sT0}, {sT1}
          s_add_u32 {sT0}, {sT0}, {WS_FU}
          v_add_u32 {t2}, {sT0}, {t2}
          v_cndmask_b32 {vFG}, {t5}, {t2}, vcc''')
    for nm, r in (('qg', vQG), ('w2', vW2), ('fg', vFG), ('mlpub', vML), ('wo', vWO), ('y', vY), ('con', vCON)):
        if nm in off: e(f'v_mov_b32 {r}, {OOB}')

    slow = []
    def orred(regsl, m, dst, full=()):
        rs = list(regsl)
        if len(rs) == 1:
            e(f'v_and_b32 {t2}, {m}, v{rs[0]}')
        else:
            if len(rs) == 2:
                e(f'v_or_b32 {t2}, v{rs[0]}, v{rs[1]}')
            else:
                e(f'v_or3_b32 {t2}, v{rs[0]}, v{rs[1]}, v{rs[2]}')
                rs = rs[3:]
                while rs:
                    if len(rs) == 1:
                        e(f'v_or_b32 {t2}, {t2}, v{rs[0]}'); rs = []
                    else:
                        e(f'v_or3_b32 {t2}, {t2}, v{rs[0]}, v{rs[1]}'); rs = rs[2:]
            e(f'v_and_b32 {t2}, {m}, {t2}')
        for r in full:
            e(f'v_or_b32 {t2}, {t2}, v{r}')
        e(f'v_cmp_ne_u32 {dst}, 0, {t2}')
    def untag(regsl, vts, m, dst='vcc'):
        for r, vt in zip(regsl, vts):
            e(f'v_xor_b32 v{r}, {vt}, v{r}')
        orred(regsl, m, dst)
    def checked(name, regsl, kinds, ta, tb, m, republish, reissue):
        if 'check' in off:
            return
        def test(sel):
            for r, k in zip(regsl, kinds):
                if k in sel:
                    e(f'v_xor_b32 v{r}, {dict(A=ta, B=tb, F=sEp, G=sXcc)[k]}, v{r}')
            orred([r for r, k in zip(regsl, kinds) if k in sel and k in 'AB'], m, 'vcc',
                  [r for r, k in zip(regsl, kinds) if k in sel and k in 'FG'])
        test('ABFG')
        e(f's_cbranch_vccnz L_slow_{name}\nL_ok_{name}:')
        def emit_slow():
            e(f'L_slow_{name}:')
            republish()
            if slowpen:
                e(f's_mov_b32 {sSpin}, {slowpen}\nL_pen_{name}:\ns_sleep 127\ns_sub_u32 {sSpin}, {sSpin}, 1\ns_cbranch_scc0 L_pen_{name}')
            e(f's_mov_b32 {sSpin}, {spin}')
            e(f'L_miss_{name}:')
            e(f's_mov_b32 {sT1}, 0\ns_sleep 1')
            e(f'L_retry_{name}:')
            if dbgcnt:
                e(f's_add_u32 {sCnt}, {sCnt}, {1 << (8 * ["flag", "q", "fu", "ml"].index(name))}')
            e(f's_sub_u32 {sSpin}, {sSpin}, 1\ns_cbranch_scc1 L_ok_{name}')
            reissue()
            e('s_waitcnt vmcnt(0)')
            test('AF')
            for r, k in zip(regsl, kinds):
                if k == 'B':
                    e(f'v_bfi_b32 v{r}, {m}, 0, v{r}')
            e(f's_cbranch_vccnz L_miss_{name}')
            e(f's_xor_b32 {sT1}, {sT1}, 1\ns_cbranch_scc1 L_retry_{name}\ns_branch L_ok_{name}')
        slow.append(emit_slow)

    state = dict(q=False, kproc=0, soft=False, vproc=0, wop=0, ffn=False, ml=False, budget=catch)
    KT = [26, 27, 24, 25, 20, 21, 22, 23]
    def kpair(n):
        a, b = f'v{KT[0]}', f'v{KT[1]}'
        for k in range(4):
            for r, m in ((a, n), (b, n + 1)):
                e(f'v_dot2_f32_bf16 {r}, v{kreg(m)+k}, v{Q[k]}, {r if k else 0}')
        d1 = f'v{KT[2 + ((n >> 1) & 1)]}'
        e(f'v_add_f32_dpp {d1}, {a}, {a} row_ror:8 row_mask:0xf bank_mask:0x3')
        e(f'v_add_f32_dpp {d1}, {b}, {b} row_ror:8 row_mask:0xf bank_mask:0xc')
        if not (n >> 1) & 1:
            return
        x, y = f'v{KT[2]}', f'v{KT[3]}'
        d2 = f'v{KT[4 + ((n >> 2) & 1)]}'
        e(f'v_add_f32_dpp {d2}, {x}, {x} row_shl:4 row_mask:0xf bank_mask:0x5')
        e(f'v_add_f32_dpp {d2}, {y}, {y} row_shr:4 row_mask:0xf bank_mask:0xa')
        if not (n >> 2) & 1:
            return
        x, y = f'v{KT[4]}', f'v{KT[5]}'
        d3 = f'v{KT[6 + ((n >> 3) & 1)]}'
        e(f'v_add_f32_dpp {x}, {x}, {x} quad_perm:[2,3,0,1] row_mask:0xf bank_mask:0xf')
        e(f'v_add_f32_dpp {y}, {y}, {y} quad_perm:[2,3,0,1] row_mask:0xf bank_mask:0xf')
        e(f'v_cndmask_b32 {d3}, {x}, {y}, {sMC}')
        if not (n >> 3) & 1:
            return
        x, y = f'v{KT[6]}', f'v{KT[7]}'
        s = f'v{S[n >> 4]}'
        e(f'v_add_f32_dpp {x}, {x}, {x} quad_perm:[1,0,3,2] row_mask:0xf bank_mask:0xf')
        e(f'v_add_f32_dpp {y}, {y}, {y} quad_perm:[1,0,3,2] row_mask:0xf bank_mask:0xf')
        e(f'v_cndmask_b32 {s}, {x}, {y}, {sMA}')
        bf16r(s, s)
        e(f'v_mul_f32 {s}, {SCALE}, {s}')
        bf16r(s, s)
    def mlstore(tagger, p):
        e(f'v_bfi_b32 {t2}, {sM12}, {vTA}, {vM}\nv_bfi_b32 {t3}, {sM12}, {vTA}, {vLs}\nv_mov_b32 {t4}, {sEp}\nv_mov_b32 {t5}, {sXcc}')
        tagger(f'buffer_store_dwordx4 v[30:33], {vML}, {SWS}, 0 offen {p}', 'mlpub')
    def softmax():
        stamp()
        e(f'v_max3_f32 {vM}, v{S[0]}, v{S[1]}, v{S[2]}\nv_max_f32 {vM}, {vM}, v{S[3]}')
        rowred('v_max_f32', vM)
        swapred('v_max_f32', vM, t2, 16)
        swapred('v_max_f32', vM, t2, 32)
        for k in range(4):
            e(f'v_sub_f32 v{S[k]}, v{S[k]}, {vM}')
        for k in range(4):
            e(f'v_mul_f32 v{S[k]}, {LOG2E}, v{S[k]}')
        for k in range(4):
            e(f'v_exp_f32 v{S[k]}, v{S[k]}')
        for k in range(4):
            e(f'v_cvt_pk_bf16_f32 v{Q[k]}, v{S[k]}, v{S[k]}')
        e(f'v_add_f32 {vLs}, v{S[0]}, v{S[1]}\nv_add_f32 {t2}, v{S[2]}, v{S[3]}\nv_add_f32 {vLs}, {vLs}, {t2}')
        abuild(0)
        rowred('v_add_f32', vLs)
        swapred('v_add_f32', vLs, t2, 16)
        swapred('v_add_f32', vLs, t2, 32)
        mlstore(e.vmem, '')
        state['soft'] = True
    def abuild(n):
        a = A[n & 1]
        for r in range(4):
            e(f'v_and_b32_dpp v{a+r}, v{Q[n >> 4]}, v{M[r]} row_newbcast:{bitrev4(n & 15)} row_mask:0xf bank_mask:0xf')
    def vstep(n):
        c = rng('v', ACC, 4) if n else '0'
        e(f'v_mfma_f32_16x16x32_bf16 {rng("v", ACC, 4)}, {rng("v", A[n & 1], 4)}, {rng("a", vreg(n), 4)}, {c}')
        if n < 63:
            abuild(n + 1)
    F, DY, STG, G2, W2S, FGR = 128, 96, 64, 48, 224, 240
    stg = lambda k: STG + 4 * (k % 8)
    freg = lambda t, cc: F + 32 * t + 4 * cc
    if smf:
        assert woa and not w2last
        W2S, FGR = 80, 72
        stg = lambda k: STG + 4 * (k % 2)
        freg = lambda t, cc: F + 16 * cc + 4 * t
    def woperm(k):
        t, ee = k >> 3, k & 7
        if woa:
            for kk in (k, k + 1):
                for m in range(4):
                    e(f'v_accvgpr_read_b32 v{stg(kk)+m}, a{AWO+4*kk+m}')
        for m in range(4):
            for hi in range(2):
                e(f'v_perm_b32 v{freg(t, 2*m+hi) + ee//2}, v{stg(k+1)+m}, v{stg(k)+m}, {sSelHi if hi else sSelLo}')
    plain = lambda s, t: e(s)
    AFG, AWO, AW2, AH = 236, 64, 192, 244
    W2L = 80
    assert 4 * vring <= (AWO if woa else 192)
    def fgissue(tagger, p, acc=False):
        for m in range(2):
            if m:
                e(f's_mov_b32 {sT0}, {16*FU_STRIDE*m}')
            tagger(f'buffer_load_dwordx4 {rng("a", AFG+4*m, 4) if acc else rng("v", FGR+4*m, 4)}, {vFG}, {SWS}, {sT0 if m else 0} offen {p}', f'fg{m}')
    def republish(ad, aa):
        e(f'v_accvgpr_read_b32 {t2}, a{aa}\nbuffer_store_dwordx4 {rng("a", ad, 4)}, {t2}, {SWS}, 0 offen sc1')
    def ffn_down():
        if w2a:
            for k in range(16):
                e(f'v_accvgpr_read_b32 v{W2S+k}, a{AW2+k}')
        if n_fg is not None:
            for k in range(8):
                e(f'v_accvgpr_read_b32 v{FGR+k}, a{AFG+k}')
        e(f'''v_cmp_gt_u32 vcc, s58, {vFG}
              v_and_b32 {t4}, {sM8}, {vTA}
              v_and_b32 {t5}, {sM8}, {vTB}
              v_cndmask_b32 {t4}, 0, {t4}, vcc
              v_cndmask_b32 {t5}, 0, {t5}, vcc''')
        checked('fu', list(range(FGR, FGR + 8)), 'AAAB' * 2, t4, t5, sM8, lambda: republish(AFD, AFA), lambda: fgissue(plain, 'sc1'))
        for k in (0, 2):
            pk('add', FGR + k, FGR + k, FGR + 4 + k)
        for p in range(0 if w2last else 2):
            for m in range(4):
                for hi in range(2):
                    e(f'v_perm_b32 v{G2 + 2*(2*m+hi) + p}, v{W2S+8*p+4+m}, v{W2S+8*p+m}, {sSelHi if hi else sSelLo}')
        for k in range(4):
            e(f'v_add_f32_dpp v{FGR+k}, v{FGR+k}, v{FGR+k} row_ror:8 row_mask:0xf bank_mask:0xf')
        ga, up = f'v{FGR}', f'v{FGR+1}'
        e(f'''v_permlane32_swap_b32 v{FGR}, v{FGR+2}
              v_permlane32_swap_b32 v{FGR+1}, v{FGR+3}
              v_add_f32 {ga}, v{FGR}, v{FGR+2}
              v_add_f32 {up}, v{FGR+1}, v{FGR+3}''')
        swapred('v_add_f32', ga, t2, 16)
        swapred('v_add_f32', up, t3, 16)
        bf16r(ga, ga)
        bf16r(up, up)
        e(f'''v_mul_f32 {t2}, {LOG2E ^ 0x80000000}, {ga}
              v_exp_f32 {t2}, {t2}
              v_and_b32 {t4}, {7 if smf else 3}, {vL}
              v_add_f32 {t2}, 1.0, {t2}
              v_rcp_f32 {t2}, {t2}
              v_cmp_eq_u32 vcc, 0, {t4}
              v_mul_f32 {ga}, {ga}, {t2}
              v_cndmask_b32 {t4}, 0, -1, vcc''')
        bf16r(ga, ga)
        ha = FGR + 4
        e(f'''v_mul_f32 {ga}, {ga}, {up}
              v_mov_b32 v{ha}, 0
              v_mov_b32 {t2}, {ga}
              v_mov_b32 v{ha+1}, 0
              v_permlane32_swap_b32 {ga}, {t2}
              v_cvt_pk_bf16_f32 {ga}, {ga}, {t2}''')
        for gg in range(3):
            for p in range(2):
                e(f'v_and_b32_dpp v{ha+p}, {ga}, {t4} row_newbcast:{2*gg+p} row_mask:{hex(1 << gg)} bank_mask:0xf')
        if w2last:
            e(f'v_accvgpr_write_b32 a{AH}, v{ha}\nv_accvgpr_write_b32 a{AH+1}, v{ha+1}')
        for cc in range(0 if w2last else 8):
            e(f'v_mfma_f32_16x16x16_bf16 {rng("v", DY+4*cc, 4)}, v[{ha}:{ha+1}], v[{G2+2*cc}:{G2+2*cc+1}], 0')
        state['ffn'] = True
    def mlissue(tagger, p):
        e(f's_lshl_b32 {sT0}, {sBH}, 8\ns_add_u32 {sT0}, {sT0}, {WS_ML}\nv_lshl_add_u32 {vMG}, {i}, 4, {sT0}')
        if 'ml' in off: e(f'v_mov_b32 {vMG}, {OOB}')
        tagger(f'buffer_load_dwordx4 v[{S[0]}:{S[3]}], {vMG}, {SWS}, 0 offen {p}', 'ml')
    def mlcombine():
        checked('ml', S, 'AAFG', vTA, vTB, sM12, lambda: mlstore(plain, 'sc1'), lambda: mlissue(plain, 'sc1'))
        mi, li, mx = f'v{S[0]}', f'v{S[1]}', f'v{S[2]}'
        e(f'v_mov_b32 {mx}, {mi}')
        rowred('v_max_f32', mx)
        e(f'''v_sub_f32 {mi}, {mi}, {mx}
              v_sub_f32 {vF}, {vM}, {mx}
              v_mul_f32 {mi}, {LOG2E}, {mi}
              v_mul_f32 {vF}, {LOG2E}, {vF}
              v_exp_f32 {mi}, {mi}
              v_exp_f32 {vF}, {vF}
              v_mul_f32 {li}, {li}, {mi}''')
        rowred('v_add_f32', li)
        e(f'v_rcp_f32 {li}, {li}\nv_mul_f32 {vF}, {vF}, {li}')
        if smf:
            assert state['ffn']
            e(f'v_bfe_u32 {t2}, {vL}, 2, 1\nv_mul_u32_u24 {t2}, 0xaaaa, {t2}\nv_add_u32 {vIdx}, 0x4444, {t2}')
        state['ml'] = True
    complete = lambda tag: tag in e.vm and e.vm.index(tag) < e.done
    def progress():
        if state['q'] and not state['soft']:
            c = 0
            while state['kproc'] < 64 and complete(f'K{state["kproc"]+1}') and c < state['budget']:
                kpair(state['kproc']); state['kproc'] += 2; c += 2
            state['budget'] = catch if c >= 2 or state['budget'] >= 2 * catch else state['budget'] + 1
            if state['kproc'] == 64:
                softmax()
        if state['soft']:
            while state['vproc'] < 64 and complete(f'V{state["vproc"]}'):
                vstep(state['vproc']); state['vproc'] += 1
            while state['wop'] < 32 and complete(f'wo{state["wop"]+1}'):
                if woa and not (state['vproc'] >= 2 + 3 * (state['wop'] // 2) and (smf or state['wop'] < 24 or state['ffn'])):
                    break
                woperm(state['wop']); state['wop'] += 2
            if not state['ffn'] and complete('fg1') and (w2last or complete('w23')):
                ffn_down()
            if not state['ml'] and complete('ml'):
                mlcombine()
    def window():
        d = D
        if Dend and f'V{nend}' in e.vm: d = Dend
        if Dk and 'V0' not in e.vm: d = Dk
        k = len(e.vm) - d
        if k >= e.done:
            e.wait(e.vm[k])
        progress()
    QG = 232
    def qissue(tagger, p):
        for k in range(4):
            if k == 2:
                e(f's_movk_i32 {sT0}, 0x1000')
            tagger(f'buffer_load_dwordx4 {rng("v", QG+4*k, 4)}, {vQG}, {SWS}, {sT0 if k >= 2 else 0} offen offset:{256*(k&1)} {p}', f'qg{k}')
    def qfinish():
        e(f'v_and_b32 {t4}, 7, {vTA}\nv_and_b32 {t5}, 7, {vTB}')
        e.wait('qg3')
        checked('q', list(range(QG, QG + 16)), 'AABB' * 4, t4, t5, sM3, lambda: republish(AQD, AQA), lambda: qissue(plain, 'sc1'))
        for k in range(0, 8, 2):
            pk('add', QG + k, QG + k, QG + 8 + k)
        for k in range(4):
            e(f'v_permlane32_swap_b32 v{QG+k}, v{QG+4+k}')
        for k in (0, 2):
            pk('add', QG + k, QG + k, QG + 4 + k)
        e(f'''v_permlane16_swap_b32 v{QG}, v{QG+2}
              v_permlane16_swap_b32 v{QG+1}, v{QG+3}
              v_pk_add_f32 v[{QG}:{QG+1}], v[{QG}:{QG+1}], v[{QG+2}:{QG+3}]
              v_cvt_pk_bf16_f32 v{Q[0]}, v{QG}, v{QG+1}
              v_cvt_pk_bf16_f32 v{Q[1]}, v{QG}, v{QG+1}
              v_permlane16_swap_b32 v{Q[0]}, v{Q[1]}
              v_mov_b32 v{Q[2]}, v{Q[0]}
              v_mov_b32 v{Q[3]}, v{Q[1]}
              v_permlane32_swap_b32 v{Q[0]}, v{Q[2]}
              v_permlane32_swap_b32 v{Q[1]}, v{Q[3]}''')
        state['q'] = True
        stamp()
    wosched = {}
    if woa:
        for k in range(32):
            wosched.setdefault(woa[0] + (k * (woa[1] - woa[0])) // 32, []).append(('wo', k))
    if w2a:
        for k in range(4):
            wosched.setdefault(w2a + 2 * k, []).append(('w2', k))
    def early(stepno):
        for kind, k in wosched.pop(stepno, []):
            window()
            if kind == 'wo':
                e(f's_mov_b32 {sT0}, {(k >> 3)*32768 + ((k >> 2) & 1)*4096}')
                e.vmem(f'buffer_load_dwordx4 {rng("a", AWO+4*k, 4)}, {vWO}, {SWO}, {sT0} offen offset:{1024*(k & 3)} {wpol}', f'wo{k}')
            else:
                e.vmem(f'buffer_load_dwordx4 {rng("a", AW2+4*k, 4)}, {vW2}, {SW2}, 0 offen offset:{1024*k} {wpol}', f'w2{k}')
    assert kn[0] <= n_q and all(k >= kn[0] for k in wosched)
    while kn[0] < 64:
        n = kn[0]
        if n == n_q:
            window(); qissue(e.vmem, qpol)
        if mlpre is not None and n == mlpre[0]:
            window(); e.vmem(f'buffer_load_dword a{AH+3}, {vML}, {SWS}, 0 offen {mlpre[1]}', 'mlpre')
        if n == n_fg:
            window(); fgissue(e.vmem, fpol, acc=True)
        if n == n_q + gap:
            assert n <= (QG - KBASE) // 4
            qfinish()
        window()
        if n >= KRING:
            assert state['kproc'] > n - KRING, (n, state)
        kissue()
        early(n)
    extra = {}
    for k in range(4):
        if not w2a and not w2last:
            extra.setdefault(ex0 + k, []).append(('w2', k))
    if n_fg is None:
        extra.setdefault(ex0 + 4, []).append(('fg', 0))
    extra.setdefault(ex0 + 5, []).append(('xres', 0))
    for k in range(0 if woa else 32):
        extra.setdefault(wo_start + (k * (wo_end - wo_start)) // 32, []).append(('wo', k))
    extra.setdefault(n_ml, []).append(('ml', 0))
    if tailpf is not None:
        extra.setdefault(tailpf, []).append(('tpf', 0))
    if opf is not None:
        extra.setdefault(opf, []).append(('opf', 0))
    if ypf is not None:
        extra.setdefault(ypf, []).append(('ypf', 0))
    XR = 39
    nv, m = 0, None
    while nv < 64:
        window()
        assert nv < vring or state['vproc'] > nv - vring, (nv, state)
        e.vmem(f'buffer_load_dwordx4 {rng("a", vreg(nv), 4)}, {vKO}, {SV}, {sVoff} offen {pol}', f'V{nv}')
        if nv < 63:
            e(f's_addk_i32 {sVoff}, 0x1000\ns_and_b32 {sVoff}, {sVoff}, {sMask}')
        early(64 + nv)
        nv += 1
        if state['soft'] and m is None:
            m = 0
        if m is not None:
            for kind, k in extra.pop(m, []):
                window()
                if kind == 'w2':
                    e.vmem(f'buffer_load_dwordx4 {rng("v", W2S+4*k, 4)}, {vW2}, {SW2}, 0 offen offset:{1024*k} {wpol}', f'w2{k}')
                elif kind == 'fg':
                    fgissue(e.vmem, fpol)
                elif kind == 'xres':
                    e.vmem(f'buffer_load_ushort v{XR}, {vOUT}, {SX}, 0 offen {xpol}', 'xres')
                elif kind == 'ml':
                    mlissue(e.vmem, mpol)
                elif kind == 'opf':
                    e.vmem(f'buffer_load_ushort a{AWQ+8}, {vOUT}, {SOUT}, 0 offen', 'opf')
                elif kind == 'ypf':
                    e(f's_cmp_lg_u32 {sCon}, 0\ns_cselect_b32 {sT0}, {OOB}, 0\nv_add_u32 {t3}, {sT0}, {vCON}')
                    for kk in range(cw // 8):
                        e.vmem(f'buffer_load_dwordx4 {rng("a", AWQ+4*kk, 4)}, {t3}, {SWS}, 0 offen offset:{(256 // cw) * 128 * kk} {ypfpol}', f'ypf{kk}')
                elif kind == 'tpf':
                    e(f's_lshl_b32 {sT0}, {sW}, 8\ns_add_u32 {sT0}, {sT0}, L_tail - L_pc\nv_lshl_add_u32 {t3}, {vL}, 2, {sT0}')
                    e.vmem(f'buffer_load_dword v{S[2]}, {t3}, {SCODE}, 0 offen', 'tpf')
                    assert state['ml']
                elif kind == 'wo':
                    assert k < 8 or state['wop'] > k - 8, (k, state)
                    assert k < 24 or state['ffn']
                    e(f's_mov_b32 {sT0}, {(k >> 3)*32768 + ((k >> 2) & 1)*4096}')
                    e.vmem(f'buffer_load_dwordx4 {rng("v", stg(k), 4)}, {vWO}, {SWO}, {sT0} offen offset:{1024*(k & 3)} {wpol}', f'wo{k}')
            m += 1
    assert not extra and not wosched, (extra, wosched)
    if w2last:
        for k in range(4):
            window()
            assert state['wop'] == 32, state
            e.vmem(f'buffer_load_dwordx4 {rng("v", W2L+4*k, 4)}, {vW2}, {SW2}, 0 offen offset:{1024*k} {wpol}', f'w2{k}')
    while state['vproc'] < 64:
        e.wait(f'V{state["vproc"]}')
        if state['vproc'] == 63:
            e('L_tail:')
            stamp('main,tail,head')
        progress()
    assert state['wop'] == 32 and state['ffn'] and state['ml'], state
    assert vF == 'v47'
    e(f'''v_pk_mul_f32 v[{ACC}:{ACC+1}], v[{ACC}:{ACC+1}], v[46:47] op_sel:[0,1] op_sel_hi:[1,1]
          v_pk_mul_f32 v[{ACC+2}:{ACC+3}], v[{ACC+2}:{ACC+3}], v[46:47] op_sel:[0,1] op_sel_hi:[1,1]
          v_cvt_pk_bf16_f32 v{ACC}, v{ACC}, v{ACC+1}
          v_cvt_pk_bf16_f32 v{ACC+1}, v{ACC+2}, v{ACC+3}
          ''' + (f'ds_write2_b32 {vOW}, v{ACC}, v{ACC+1} offset0:0 offset1:32' if smf else f'ds_write_b64 {vOW}, v[{ACC}:{ACC+1}]'))
    stamp('tail')
    e('s_waitcnt lgkmcnt(0)\ns_barrier')
    stamp('tail')
    if stamps and stset == 'tail':
        e('s_waitcnt lgkmcnt(0)')
    AF = STG
    for t in range(2 if smf else 4):
        e(f'ds_read_b128 {rng("v", AF+4*t, 4)}, {vOR} offset:{LDS_O+64*t}')
    Z = A[0]
    def tile_add(cc):
        pk('add', DY + 4 * cc, DY + 4 * cc, DY + 4 * cc + 2)
    def tile_fin(cc):
        d = DY + 4 * cc
        if cc < 4:
            e(f'v_add_f32 v{Z+cc}, v{d}, v{d+1}')
        else:
            e(f'v_add_f32_dpp v{Z+cc-4}, v{d}, v{d+1} quad_perm:[0,1,2,3] row_mask:0x2 bank_mask:0xf')
            if not w2last:
                e(f'v_bfi_b32 v{Z+cc-4}, {sM12}, {vTA}, v{Z+cc-4}')
    if smf:
        order = [0, 4, 1, 5, 2, 6, 3, 7]
        post = []
        for n, cc in enumerate(order):
            d = DY + 4 * cc
            post.append([f'v_pk_add_f32 v[{d}:{d+1}], v[{d}:{d+1}], v[{d+2}:{d+3}]', f'v_add_f32 v{d}, v{d}, v{d+1}'])
            if cc >= 4:
                d0 = DY + 4 * (cc - 4)
                post[-1] += [f'v_permlane16_swap_b32 v{d0}, v{d}', f'v_add_f32 v{Z+cc-4}, v{d0}, v{d}', f'v_bfi_b32 v{Z+cc-4}, {sM12}, {vTA}, v{Z+cc-4}']
        queue = []
        for n, cc in enumerate(order):
            if n >= 3:
                queue += post[n - 3]
            for T in range(2):
                if n == 0:
                    e(f's_waitcnt lgkmcnt({1-T})')
                e(f'v_smfmac_f32_16x16x64_bf16 {rng("v", DY+4*cc, 4)}, {rng("v", AF+4*T, 4)}, {rng("v", freg(2*T, cc), 8)}, {vIdx}')
                for _ in range(2):
                    if queue:
                        e(queue.pop(0))
        for n in (5, 6, 7):
            queue += post[n]
        for ins in queue:
            e(ins)
        e('s_mov_b32 exec_hi, 0')
    for cc in range(0 if smf else 8):
        for t in range(4):
            if cc == 0:
                e(f's_waitcnt lgkmcnt({3-t})')
            e(f'v_mfma_f32_16x16x32_bf16 {rng("v", DY+4*cc, 4)}, {rng("v", AF+4*t, 4)}, {rng("v", freg(t, cc), 4)}, {0 if w2last and t == 0 else rng("v", DY+4*cc, 4)}')
            if cc >= 2 and t == 1:
                tile_add(cc - 2)
            if cc >= 2 and t == 3:
                tile_fin(cc - 2)
    if w2last:
        def fperm(cc):
            for p in range(2):
                e(f'v_perm_b32 v{G2+2*cc+p}, v{W2L+8*p+4+cc//2}, v{W2L+8*p+cc//2}, {sSelHi if cc & 1 else sSelLo}')
        def fadd(cc):
            e(f'v_add_f32_dpp v{Z+(cc&3)}, v{DY+4*cc}, v{Z+(cc&3)} quad_perm:[0,1,2,3] row_mask:{hex(1 << (cc >> 2))} bank_mask:0xf')
            if cc >= 4:
                e(f'v_bfi_b32 v{Z+cc-4}, {sM12}, {vTA}, v{Z+cc-4}')
        tile_add(6)
        e.wait('w23')
        fperm(0)
        for cc in range(8):
            if cc < 7:
                fperm(cc + 1)
            if cc == 1:
                tile_add(7); tile_fin(6)
            if cc == 2:
                tile_fin(7)
            e(f'v_mfma_f32_16x16x16_bf16 {rng("v", DY+4*cc, 4)}, a[{AH}:{AH+1}], v[{G2+2*cc}:{G2+2*cc+1}], 0')
            if cc >= 3:
                fadd(cc - 3)
        e('s_mov_b32 exec_hi, 0')
        for cc in (5, 6, 7):
            fadd(cc)
    elif not smf:
        tile_add(6)
        e('s_mov_b32 exec_hi, 0')
        tile_add(7)
        tile_fin(6)
        tile_fin(7)
    e(f'buffer_store_dwordx4 {rng("v", Z, 4)}, {vY}, {SWS}, 0 offen {ypol}')
    if wbl2 is not None:
        e(f's_lshl2_add_u32 {sT1}, s2, {sW}\ns_lshr_b32 {sT2}, {sT1}, 5\ns_and_b32 {sT1}, {sT1}, 3\ns_lshl2_add_u32 {sT1}, {sT2}, {sT1}\ns_cmp_lg_u32 {sT1}, {wbl2 * 4 + 1}\ns_cbranch_scc1 L_nowb\nbuffer_wbl2 sc1\nL_nowb:')
    if cw == 4:
        e(f's_cmp_lg_u32 {sW}, {stwave}\ns_cbranch_scc1 L_end')
        stamp('main,tail')
        if stamps and stset == 'tail':
            e('s_waitcnt vmcnt(0)')
            stamp('tail')
        C = STG
        mA, mB = 's[24:25]', 's[26:27]'
        e(f's_mov_b32 {sSpin}, {spin}\ns_movk_i32 {sT0}, 0x2000\ns_mov_b64 {mA}, -1\ns_mov_b64 {mB}, -1')
        if few:
            e(f's_lshr_b32 {sT1}, s2, 3\ns_and_b32 {sT1}, {sT1}, {few}\ns_cbranch_scc1 L_polled')
        e('L_poll:')
        e(f'''s_mov_b64 exec, {mA}
              buffer_load_dwordx4 {rng("v", C, 4)}, {vCON}, {SWS}, 0 offen sc1
              s_mov_b64 exec, {mB}
              buffer_load_dwordx4 {rng("v", C+4, 4)}, {vCON}, {SWS}, {sT0} offen sc1
              s_sub_u32 {sSpin}, {sSpin}, 1
              s_cbranch_scc1 L_polled
              s_mov_b64 exec, {mA}
              s_waitcnt vmcnt(0)''')
        untag(list(range(C, C + 4)), [vTA] * 4, sM12, dst=mA)
        e(f's_mov_b64 exec, {mB}')
        untag(list(range(C + 4, C + 8)), [vTA] * 4, sM12, dst=mB)
        e(f's_or_b64 vcc, {mA}, {mB}')
        if 'con' in off: e('s_branch L_polled')
        if asleep:
            thr, big = asleep
            e(f'''s_cbranch_scc0 L_polled
                  s_bcnt1_i32_b64 {sT1}, {mA}
                  s_bcnt1_i32_b64 {sT2}, {mB}
                  s_add_u32 {sT1}, {sT1}, {sT2}
                  s_cmp_le_u32 {sT1}, {thr}
                  s_cbranch_scc1 L_poll
                  s_sleep {big}
                  s_branch L_poll''')
        elif sleep:
            e(f's_cbranch_scc0 L_polled\ns_sleep {sleep}\ns_branch L_poll')
        else:
            e('s_cbranch_scc1 L_poll')
        e('L_polled:')
        e('s_mov_b64 exec, -1')
        stamp('main,tail')
        pk('add', C, C, C + 4); pk('add', C + 2, C + 2, C + 6)
        e(f'''v_lshlrev_b32 v{XR}, 16, v{XR}
              v_permlane32_swap_b32 v{C}, v{C+1}
              v_permlane32_swap_b32 v{C+2}, v{C+3}
              v_add_f32 v{C}, v{C}, v{C+1}
              v_add_f32 v{C+2}, v{C+2}, v{C+3}
              v_permlane16_swap_b32 v{C}, v{C+2}
              v_add_f32 v{C}, v{C}, v{C+2}''')
        rowred('v_add_f32', f'v{C}')
        e(f'''v_add_f32 v{C}, v{C}, v{XR}
              v_cvt_pk_bf16_f32 v{C}, v{C}, v{C}
              buffer_store_short v{C}, {vOUT}, {SOUT}, 0 offen''')
    else:
        LP = cw // 4
        NL = LP // 2
        step = (64 // LP) * 128
        C = STG
        mk = [f's[{68+2*k}:{69+2*k}]' for k in range(NL)]
        if stamps:
            e(f's_cmp_lg_u32 {sCon}, 0\ns_cselect_b32 {sT1}, {sW}, 0\ns_cmp_lg_u32 {sT1}, 0\ns_cbranch_scc1 L_end')
            stamp('main,tail,poll')
            if stset == 'poll':
                e('s_waitcnt lgkmcnt(0)\ns_mov_b64 s[6:7], s[4:5]\ns_mov_b64 s[8:9], s[4:5]\ns_mov_b64 s[10:11], s[4:5]\ns_mov_b64 s[12:13], s[4:5]')
            e(f's_mov_b32 {sSpin}, {spin}\ns_cmp_lg_u32 {sCon}, 0\ns_cbranch_scc1 L_nocon')
        else:
            e(f's_cmp_lg_u32 {sCon}, 0\ns_cbranch_scc1 L_end')
        e(f'''s_mov_b32 {sSpin}, {spin}
              s_mov_b32 exec_hi, -1
              v_lshrrev_b32 {t4}, 2, {vKO}
              v_lshlrev_b32 {t3}, 2, {vL}
              v_lshlrev_b32 v{XR}, 16, v{XR}''')
        for k in range(NL):
            e(f's_mov_b64 {mk[k]}, -1')
        e('L_poll:')
        if stamps and stset == 'poll':
            e('s_memrealtime s[8:9]')
        for k in range(NL):
            e(f's_mov_b64 exec, {mk[k]}')
            e(f'buffer_load_dwordx4 {rng("v", C+4*k, 4)}, {vCON}, {SWS}, 0 offen offset:{step*k} {ppol}')
        e(f's_sub_u32 {sSpin}, {sSpin}, 1\ns_cbranch_scc1 L_polled')
        for k in range(NL):
            e(f's_mov_b64 exec, {mk[k]}')
            if k == 0:
                e('s_waitcnt vmcnt(0)')
                if stamps and stset == 'poll':
                    e(f's_cmp_lg_u32 {sSpin}, {spin-1}\ns_cbranch_scc1 L_nf\ns_memrealtime s[6:7]\nL_nf:')
                    nst[0] = 3
            untag(list(range(C + 4*k, C + 4*k + 4)), [vTA] * 4, sM12, dst=mk[k])
        if NL == 1:
            e(f's_or_b64 vcc, {mk[0]}, {mk[0]}')
        else:
            e(f's_or_b64 vcc, {mk[0]}, {mk[1]}')
            for k in range(2, NL):
                e(f's_or_b64 vcc, vcc, {mk[k]}')
        if pipe:
            thr, big, P, gapsl = pipe
            e(f'''s_cbranch_scc0 L_polled
                  s_bcnt1_i32_b64 {sT1}, vcc
                  s_cmp_le_u32 {sT1}, {thr}
                  s_cbranch_scc1 L_pp''')
            if big:
                e(f's_sleep {big}')
            e('s_branch L_poll\nL_pp:')
            def pissue(p):
                for k in range(NL):
                    e(f's_or_b64 exec, {mk[k]}, 1')
                    e(f'buffer_load_dwordx4 {rng("v", F+4*(NL*p+k), 4)}, {vCON}, {SWS}, 0 offen offset:{step*k} {ppol}')
            for p in range(P):
                pissue(p)
                if p < P - 1:
                    e(f's_sleep {gapsl + 1}')
            e('L_ppl:')
            for p in range(P):
                e(f's_waitcnt vmcnt({NL*(P-1)})')
                for k in range(NL):
                    e(f's_mov_b64 exec, {mk[k]}')
                    for r in range(4):
                        e(f'v_xor_b32 v{C+4*k+r}, {vTA}, v{F+4*(NL*p+k)+r}')
                    orred(list(range(C + 4*k, C + 4*k + 4)), sM12, mk[k])
                e(f's_or_b64 vcc, {mk[0]}, {mk[-1]}')
                for k in range(1, NL - 1):
                    e(f's_or_b64 vcc, vcc, {mk[k]}')
                e('s_cbranch_scc0 L_polled')
                pissue(p)
                if gapsl:
                    e(f's_sleep {gapsl}')
            e(f's_sub_u32 {sSpin}, {sSpin}, 1\ns_cbranch_scc0 L_ppl')
        elif asleep:
            thr, big = asleep
            e(f'''s_cbranch_scc0 L_polled
                  s_bcnt1_i32_b64 {sT1}, vcc
                  s_cmp_le_u32 {sT1}, {thr}
                  s_cbranch_scc1 L_poll
                  s_sleep {big}
                  s_branch L_poll''')
        elif sleep:
            e(f's_cbranch_scc0 L_polled\ns_sleep {sleep}\ns_branch L_poll')
        else:
            e('s_cbranch_scc1 L_poll')
        e('L_polled:')
        e('s_mov_b64 exec, -1')
        stamp('main,tail,poll')
        if NL == 4:
            pk('add', C, C, C + 4); pk('add', C + 8, C + 8, C + 12); pk('add', C + 2, C + 2, C + 6); pk('add', C + 10, C + 10, C + 14)
            pk('add', C, C, C + 8); pk('add', C + 2, C + 2, C + 10)
        elif NL == 2:
            pk('add', C, C, C + 4); pk('add', C + 2, C + 2, C + 6)
        e(f'''v_permlane32_swap_b32 v{C}, v{C+1}
              v_permlane32_swap_b32 v{C+2}, v{C+3}
              v_add_f32 v{C}, v{C}, v{C+1}
              v_add_f32 v{C+2}, v{C+2}, v{C+3}
              v_permlane16_swap_b32 v{C}, v{C+2}
              v_add_f32 v{C}, v{C}, v{C+2}''')
        for d in (8, 4, 2):
            if LP <= d:
                e(f'v_add_f32_dpp v{C}, v{C}, v{C} row_ror:{d} row_mask:0xf bank_mask:0xf')
        e(f'''ds_write_b32 {t4}, v{C}
              s_waitcnt lgkmcnt(0)
              s_barrier
              s_cmp_lg_u32 {sW}, {stwave}
              s_cbranch_scc1 L_end''')
        stamp('poll')
        e(f'''ds_read2st64_b32 v[{C}:{C+1}], {t3} offset0:0 offset1:1
              ds_read2st64_b32 v[{C+2}:{C+3}], {t3} offset0:2 offset1:3
              s_waitcnt lgkmcnt(0)''')
        pk('add', C, C, C + 2)
        e(f'''v_add_f32 v{C}, v{C}, v{C+1}
              v_add_f32 v{C}, v{C}, v{XR}
              v_cvt_pk_bf16_f32 v{C}, v{C}, v{C}
              buffer_store_short v{C}, {vOUT}, {SOUT}, 0 offen {opol}''')
    e(f'''s_cmp_eq_u32 s2, 0
          s_cselect_b32 {sT0}, {WS_EP}, {OOB}
          v_mov_b32 {t2}, {sEp}
          v_mov_b32 {t3}, {sT0}
          s_mov_b64 exec, 1
          buffer_store_dword {t2}, {t3}, {SWS}, 0 offen {epol}''')
    if fixdur:
        e('s_cmp_lg_u32 s2, 0\ns_cbranch_scc1 L_end')
        if amp == -1:
            e(f's_waitcnt vmcnt(0)\ns_memrealtime s[24:25]\ns_waitcnt lgkmcnt(0)\ns_sub_u32 s1, s24, s100\ns_mul_i32 s1, s1, 10\ns_add_u32 s1, s1, {fixdur}')
        elif amp is not None:
            e(f's_waitcnt lgkmcnt(0)\ns_sub_u32 s1, s{stamp_regs[amp]}, s100\ns_mul_i32 s1, s1, 10\ns_add_u32 s1, s1, {fixdur}')
        else:
            e(f's_mov_b32 s1, {fixdur}')
        e('L_hold:\ns_memrealtime s[24:25]\ns_waitcnt lgkmcnt(0)\ns_sub_u32 s24, s24, s100\ns_cmp_lt_u32 s24, s1\ns_cbranch_scc1 L_hold\ns_endpgm')
    if stamps:
        if cw != 4:
            e(f's_branch L_st\nL_nocon:\ns_mov_b64 exec, 1\ns_waitcnt lgkmcnt(0)\ns_mov_b64 s[{stamp_regs[nst[0]-1]}:{stamp_regs[nst[0]-1]+1}], s[{stamp_regs[nst[0]-2]}:{stamp_regs[nst[0]-2]+1}]\nL_st:')
        stamp('tail')
        e('s_waitcnt vmcnt(0)')
        stamp('main,tail,head,poll')
        e(f's_waitcnt lgkmcnt(0)\ns_lshl_b32 s0, {sId}, 7\ns_add_u32 s0, s0, 0x20000000\nv_mov_b32 v0, 0')
        for k, r in enumerate([100] + stamp_regs[:nst[0]]):
            e(f'v_mov_b32 v2, s{r}\nv_mov_b32 v3, s{r+1}\nbuffer_store_dwordx2 v[2:3], v0, s[20:23], s0 offen offset:{8*k}')
        if clk:
            e(f's_memtime s[24:25]\ns_waitcnt lgkmcnt(0)\ns_sub_u32 s24, s24, s98\ns_sub_u32 {sSpin}, 400000, s24')
            e(f'v_mov_b32 v2, 0\nv_mov_b32 v3, {sSpin}\nbuffer_store_dwordx2 v[2:3], v0, s[20:23], s0 offen offset:120')
        if dbgcnt:
            e(f'v_mov_b32 v2, {sCnt}\nv_mov_b32 v3, {sSpin}\nbuffer_store_dwordx2 v[2:3], v0, s[20:23], s0 offen offset:120')
    e('L_end:\ns_endpgm')
    for f in slow:
        f()
    e('L_codeend:')
    e.raw('.section .rodata,"a"\n.p2align 6')
    e.raw(kernel_desc(K, 512, 102, accum=256))
    return e.text(), LDS, nst[0] + 1, e.nops

if __name__ == '__main__':
    cfgs = {}
    def add(name, **kw):
        cfgs[name] = kw
    exec(open(sys.argv[1]).read())
    BF = os.environ.get('BFLAGS', '-n 15 -c')
    os.makedirs('co', exist_ok=True)
    names = []
    for name, kw in cfgs.items():
        t, lds, ns, nops = gen(**kw)
        build(t, f'co/{name}')
        st = f'-t {ns}' if kw.get('stamps') else ''
        names.append(f'co/{name}.co')
        print(name, 'nops', nops, 'len', len(t))
    open('run.sh', 'w').write(f'#!/bin/bash\ntimeout 300 ./bench {BF} {st} {NAME}_kernel:256:256:{lds} ' + ' '.join(names) + '\n')
```

```python
import sys, os
from asmlib import NAME, kernel_desc, build
from emit import Emit

FU_STRIDE = 2176
WS_Y, WS_Q, WS_ML, WS_EP, WS_FU = 0, 0x80000, 0xC0000, 0xC4000, 0xC5000
WS_END = WS_FU + 256 * FU_STRIDE
WS_Y2 = 0x180000
OOB = 0x40000000
LOG2E = 0x3fb8aa3b
SCALE = 0x3db504f3

def bitrev4(n):
    return ((n & 1) << 3) | ((n & 2) << 1) | ((n & 4) >> 1) | ((n & 8) >> 3)

REF = 'cdna_kernels/' + NAME + '.s.ref'
HEADER = open(REF).read().split('; Override launch')[0] if os.path.exists(REF) else ''

NOTES = '''; Design: one launch, 256 workgroups = (batch, head, quarter of the 4096-key window) x 4 waves, one per CU.
;  - The q projection and FFN-up are split by rows over workgroups and handed over through d_ws; every wave
;    exchanges its softmax (max, sum); each workgroup applies wo and 12 rows of w2 to its share and publishes a
;    512-column partial; 64 workgroups sum 16 output columns each.
;  - Every hand-off word carries this launch's tag (the epoch word found in d_ws, + 1) in its low mantissa bits
;    finds another launch's tag or another XCD re-publishes its own words write-through and polls (bounded).'''

def gen(D=9, k0=2, k1=2, ksp=(1, 1, 1, 1, 1), kpost=(1, 1, 1), n_q=24, gap=None, catch=3, wo_start=8, wo_end=50, n_ml=30,
        ex0=0, vring=16, rotmul=5, sleep=2, codepf=True, tailpf=None, pol='nt', wpol='nt', xpol='', gpol='', spin=400000,
        stamps=False, dbgcnt=False, off=(), permtest=False, fixdur=0, amp=None, stset='main', stwave=0, touch=(), Dend=None, nend=44, Dk=None, kw=False, ypol='sc1', asleep=(8, 6), n_fg=None, few=0, clk=False, cw=16, ypf=None, ypfpol='sc1', ppol='sc1', pipe=None, cpf0=True, wbl2=None, woa=None, w2a=None, al4=False, slowpen=0, opf=None, opol='', epol='', w2last=False, qpol=None, fpol=None, mpol=None, pre=None, mlpre=None, quads=None, smf=False, rotk=None, rotf=None, dual=False, ypar=None):
    qpol, fpol, mpol = [gpol if p is None else p for p in (qpol, fpol, mpol)]
    gap = gap or D + 1
    e = Emit()
    K = NAME + '_kernel'
    LDS_O = 8192
    LDS = LDS_O + 2048
    sW = 's3'
    SK, SV, SWQ, SWO, SFU, SW2, SX, SWS, SOUT, SCODE = [f's[{b}:{b+3}]' for b in range(28, 68, 4)]
    sXc, sJ, sHH, sH, sB, sS, sS8, sBH, sC0, sNch, sT0, sT1, sT2, sKoff, sVoff, sMask, sPB, sU, sXcc, sId = [f's{n}' for n in range(68, 88)]
    sSelLo, sSelHi, sSpin, sM8, sM12, sM3 = [f's{n}' for n in range(88, 94)]
    sMC, sMA = 's[94:95]', 's[96:97]'
    sEp, sCon = 's0', 's1'
    sCnt = 's98'
    stamp_regs = [4, 6, 8, 10, 12, 14, 16, 18]
    nst = [0]
    def stamp(which='main'):
        if stamps and stset in which.split(','):
            r = stamp_regs[nst[0]]
            e(f's_memrealtime s[{r}:{r+1}]')
            nst[0] += 1
    vKO, M, Q, S, vY, vL = 'v1', [2, 3, 4, 5], [6, 7, 8, 9], [10, 11, 12, 13], 'v14', 'v15'
    A = [16, 20]
    ACC = 24
    g, i, t2, t3, t4, t5 = [f'v{k}' for k in range(28, 34)]
    vM, vLs = 'v34', 'v35'
    vXG, vWQ, vFU = 'v34', 'v35', 'v36'
    vMG, vML, vTB = 'v36', 'v37', 'v38'
    vQG, vWO, vW2, vFG, vOUT, vCON, vOW, vOR, vF = [f'v{k}' for k in range(39, 48)]
    vTA = 'v0'
    vIdx = vFG
    vY2, vC2 = vM, vLs
    KBASE, KRING = 48, 52
    kreg = lambda n: KBASE + 4 * (n % KRING)
    vreg = lambda n: 4 * (n % vring)
    rng = lambda p, b, n: f'{p}[{b}:{b+n-1}]'
    AWQ, AFU = 192, 208
    AH = 244
    AQD, AFD, AQA, AFA = 224, 228, 232, 233
    assert 4 * vring <= AWQ

    e.raw(HEADER.rstrip('\n'))
    e.raw(NOTES)
    e.raw(f'; @launch grid=(256,1,1) block=(256,1,1) lds={LDS}')
    e.raw('.amdgcn_target "amdgcn-amd-amdhsa--gfx950"\n.text')
    e.raw(f'.globl {K}\n.p2align 8\n.type {K},@function\n{K}:')
    e('s_load_dwordx16 s[4:19], s[0:1], 0\ns_load_dwordx8 s[20:27], s[0:1], 64')
    if stamps or fixdur:
        e('s_memrealtime s[100:101]')
    if clk:
        e('s_memtime s[98:99]')
    e('s_cmp_ge_u32 s2, 256\ns_cbranch_scc1 L_end')
    if stamps:
        e(f's_mov_b32 {sId}, s2')
    if permtest:
        e(f's_lshr_b32 {sT0}, s2, 5\ns_and_b32 s2, s2, 31\ns_lshl_b32 s2, s2, 3\ns_or_b32 s2, s2, {sT0}')
    e(f'''s_and_b32 {sXc}, s2, 7
          s_lshr_b32 {sJ}, s2, 3
          s_lshr_b32 {sHH}, s2, 6
          s_lshl2_add_u32 {sH}, {sXc}, {sHH}
          s_bfe_u32 {sB}, s2, 0x10005
          s_and_b32 {sS}, {sJ}, 3
          s_lshl_b32 {sBH}, {sB}, 5
          s_add_u32 {sBH}, {sBH}, {sH}
          s_lshl4_add_u32 {sT0}, {sBH}, {sS}
          s_add_u32 {sT0}, {sT0}, 12
          s_lshl_b32 {sT0}, {sT0}, 18
          s_mul_i32 {sKoff}, s2, {rotmul << 12}
          s_mov_b32 {sMask}, 0x3ffff
          s_and_b32 {sKoff}, {sKoff}, {sMask}
          v_lshlrev_b32 {vKO}, 4, v0
          s_mov_b32 s30, 0x40000
          s_mov_b32 s31, 0x20000
          v_lshrrev_b32 v2, 6, v0
          v_and_b32 {vL}, 63, v0
          s_mov_b32 {sVoff}, {sKoff}
          v_readfirstlane_b32 {sW}, v2''')
    vKA = vKO
    if rotf:
        e(f'''s_mul_i32 {sKoff}, {sXc}, {rotf[0] << 12}
              s_mul_i32 {sT1}, {sS}, {rotf[1] << 12}
              s_add_u32 {sKoff}, {sKoff}, {sT1}
              s_mul_i32 {sT1}, {sB}, {rotf[2] << 12}
              s_add_u32 {sKoff}, {sKoff}, {sT1}
              s_mul_i32 {sT1}, {sHH}, {rotf[3] << 12}
              s_add_u32 {sKoff}, {sKoff}, {sT1}
              s_and_b32 {sKoff}, {sKoff}, {sMask}
              s_mov_b32 {sVoff}, {sKoff}''')
    if rotk:
        e(f'''v_lshlrev_b32 {vKA}, 4, {vL}
              s_mul_i32 {sKoff}, s2, {rotk}
              s_add_u32 {sKoff}, {sKoff}, {sW}
              s_lshl_b32 {sKoff}, {sKoff}, 10
              s_and_b32 {sKoff}, {sKoff}, {sMask}
              s_mov_b32 {sVoff}, {sKoff}''')
    if codepf and cpf0:
        e(f'''s_getpc_b64 s[64:65]
              L_pc:
              s_mov_b32 s66, L_codeend - L_pc
              s_mov_b32 s67, 0x20000
              s_lshl_b32 {sT1}, {sJ}, 10
              v_lshl_add_u32 {t2}, v0, 2, {sT1}''')
        e.vmem(f'buffer_load_dword {vF}, {t2}, {SCODE}, 0 offen', 'cpf')
    e(f'''s_waitcnt lgkmcnt(0)
          s_add_u32 s28, s6, {sT0}
          s_addc_u32 s29, s7, 0''')
    if stamps and stset == 'head':
        e('s_memrealtime s[14:15]')
    kn = [0]
    def kissue():
        n = kn[0]
        e.vmem(f'buffer_load_dwordx4 {rng("v", kreg(n), 4)}, {vKA}, {SK}, {sKoff} offen {pol}', f'K{n}')
        e(f's_addk_i32 {sKoff}, 0x1000\ns_and_b32 {sKoff}, {sKoff}, {sMask}')
        kn[0] += 1
    def kspr():
        if kw:
            k = len(e.vm) - (Dk or D)
            if k >= e.done:
                e.wait(e.vm[k])
        kissue()
    for _ in range(k0):
        kissue()
    XL, XU, XG, DQ, DF = 208, 216, 232, 236, 240
    e(f'''s_load_dword {sEp}, s[26:27], {WS_EP}
          s_add_u32 s32, s8, {sT0}
          s_addc_u32 s33, s9, 0
          s_mov_b32 s52, s4
          s_mov_b32 s53, s5
          s_mov_b32 s54, 2048
          s_mov_b32 s55, 0x20000
          v_lshlrev_b32 {t2}, 5, {vL}''')
    e.vmem(f'buffer_load_dwordx4 {rng("v", XL, 4)}, {t2}, {SX}, 0 offen {xpol}', 'xl0')
    e.vmem(f'buffer_load_dwordx4 {rng("v", XL+4, 4)}, {t2}, {SX}, 0 offen offset:16 {xpol}', 'xl1')
    e(f'''s_and_b32 {sS8}, {sJ}, 7
          v_lshrrev_b32 {g}, 4, {vL}
          v_and_b32 {i}, 15, {vL}
          s_lshl_b32 {sT1}, {sS8}, 19
          s_lshl_b32 {sT2}, {sH}, 8
          s_add_u32 {sT1}, {sT1}, {sT2}
          s_add_u32 s36, s10, {sT1}
          s_addc_u32 s37, s11, 0
          s_mov_b32 s38, {63*8192+256}
          s_mov_b32 s39, 0x20000
          v_lshrrev_b32 {t3}, 4, v0
          v_and_b32 {t4}, 12, {t3}
          v_lshl_add_u32 {t3}, {t4}, 2, {g}
          v_lshlrev_b32 {t3}, 13, {t3}
          v_lshl_add_u32 {vWQ}, {i}, 4, {t3}''')
    if 'wq' in off: e(f'v_mov_b32 {vWQ}, {OOB}')
    for t in range(4):
        if t:
            e(f's_mov_b32 {sT2}, {32768*t}')
        e.vmem(f'buffer_load_dwordx4 {rng("a", AWQ+4*t, 4)}, {vWQ}, {SWQ}, {sT2 if t else 0} offen {wpol}', f'wq{t}')
    HB = 12 if al4 else 11
    if quads:
        assert sum(quads) == 43 and max(quads) <= 6
        pref = [sum(quads[:k]) for k in range(8)]
        lo = sum(p << (8 * k) for k, p in enumerate(pref[:4])); hi = sum(p << (8 * k) for k, p in enumerate(pref[4:]))
        cnt = sum(q << (4 * k) for k, q in enumerate(quads))
        e(f'''s_mov_b32 {sT1}, {hex(lo)}
              s_mov_b32 {sT2}, {hex(hi)}
              s_cmp_lt_u32 {sXc}, 4
              s_cselect_b32 {sT1}, {sT1}, {sT2}
              s_lshl_b32 {sT2}, {sXc}, 3
              s_lshr_b32 {sT1}, {sT1}, {sT2}
              s_and_b32 {sC0}, {sT1}, 0xff
              s_lshl_b32 {sC0}, {sC0}, 2
              s_lshl_b32 {sT2}, {sXc}, 2
              s_lshr_b32 {sT1}, {hex(cnt)}, {sT2}
              s_and_b32 {sNch}, {sT1}, 15
              s_lshl_b32 {sNch}, {sNch}, 2''')
    elif al4:
        e(f'''s_mul_i32 {sC0}, {sXc}, 43
              s_add_u32 {sNch}, {sC0}, 47
              s_add_u32 {sC0}, {sC0}, 4
              s_lshr_b32 {sC0}, {sC0}, 3
              s_lshr_b32 {sNch}, {sNch}, 3
              s_sub_u32 {sNch}, {sNch}, {sC0}
              s_lshl_b32 {sC0}, {sC0}, 2
              s_lshl_b32 {sNch}, {sNch}, 2''')
        assert [(43*x+47 >> 3) - (43*x+4 >> 3) for x in range(8)].count(6) == 3 and (43*8+4) >> 3 == 43
    else:
        e(f'''s_mul_i32 {sC0}, {sXc}, 43
              s_add_u32 {sC0}, {sC0}, 1
              s_lshr_b32 {sC0}, {sC0}, 1
              s_and_b32 {sT1}, {sXc}, 1
              s_sub_u32 {sNch}, 22, {sT1}''')
    e(f'''s_sub_u32 {sPB}, {sNch}, {HB}
          s_and_b32 {sT2}, {sJ}, 1
          s_cselect_b32 {sPB}, {sPB}, {HB}
          s_mul_i32 {sT2}, {sT2}, {HB}
          s_add_u32 {sT2}, {sT2}, {sC0}
          s_and_b32 {sT1}, {sW}, 1
          s_and_b32 {sT0}, {sJ}, 30
          s_add_u32 {sT1}, {sT1}, {sT0}
          s_lshl_b32 {sT1}, {sT1}, 4
          v_add_u32 {t3}, {sT1}, {g}
          v_mul_u32_u24 {t3}, 2752, {t3}
          v_cmp_gt_u32 vcc, {sPB}, {i}
          v_add_u32 {t4}, {sT2}, {i}
          v_lshl_add_u32 {t3}, {t4}, 4, {t3}
          v_mov_b32 {t5}, {OOB}
          v_cndmask_b32 {vFU}, {t5}, {t3}, vcc
          s_cmp_lt_u32 {sW}, 2
          s_cselect_b32 s44, s16, s18
          s_cselect_b32 s45, s17, s19
          s_mov_b32 s46, {512*2752}
          s_mov_b32 s47, 0x20000''')
    if 'fu' in off: e(f'v_mov_b32 {vFU}, {OOB}')
    for t in range(4):
        if t:
            e(f's_mov_b32 {sT2}, {11008*t}')
        e.vmem(f'buffer_load_dwordx4 {rng("a", AFU+4*t, 4)}, {vFU}, {SFU}, {sT2 if t else 0} offen {wpol}', f'fu{t}')
    e(f'''s_lshl2_add_u32 {sT0}, {sS8}, {sW}
          s_lshl_b32 {sT0}, {sT0}, 4
          v_and_b32 {t5}, 4, {vL}
          v_cmp_eq_u32 vcc, 0, {t5}
          v_mov_b32 {t4}, {sT0}
          v_mov_b32 {t5}, {sT1}
          v_and_b32 {t3}, 3, {vL}
          v_cndmask_b32 {t4}, {t5}, {t4}, vcc
          v_lshl_add_u32 {t3}, {t3}, 2, {g}
          v_bfe_u32 {t5}, {vL}, 3, 1
          v_add_u32 {t3}, {t3}, {t4}
          v_lshl_add_u32 {t3}, {t5}, 9, {t3}
          v_lshlrev_b32 {vXG}, 1, {t3}''')
    e.vmem(f'buffer_load_ushort v{XG}, {vXG}, {SX}, 0 offen {xpol}', 'xg')
    for _ in range(k1):
        kissue()
    e(f'''s_mov_b32 s34, 0x40000
          s_mov_b32 s35, 0x20000
          s_lshl_b32 {sT0}, {sH}, 17
          s_add_u32 s40, s12, {sT0}
          s_addc_u32 s41, s13, 0
          s_mov_b32 s42, 0x20000
          s_mov_b32 s43, 0x20000
          s_mov_b32 s48, s20
          s_mov_b32 s49, s21
          s_mov_b32 s50, {1376*1024}
          s_mov_b32 s51, 0x20000
          s_mov_b32 s56, s26
          s_mov_b32 s57, s27
          s_mov_b32 s58, {0x200000 if dual else WS_END}
          s_mov_b32 s59, 0x20000
          s_mov_b32 s60, s22
          s_mov_b32 s61, s23
          s_mov_b32 s62, 2048
          s_mov_b32 s63, 0x20000''')
    if stamps:
        e('s_mov_b32 s20, s26\ns_mov_b32 s21, s27\ns_mov_b32 s22, 0x40000000\ns_mov_b32 s23, 0x20000')
    if (codepf or tailpf is not None) and not (codepf and cpf0):
        e('s_getpc_b64 s[64:65]\nL_pc:\ns_mov_b32 s66, L_codeend - L_pc\ns_mov_b32 s67, 0x20000')
    if touch:
        e(f'v_mov_b32 {t2}, 0')
        for k, nm in enumerate(touch):
            srd = dict(V=SV, wo=SWO, w2=SW2, ws=SWS, out=SOUT)[nm]
            e.vmem(f'buffer_load_dword {vF}, {t2}, {srd}, 0 offen nt', 'touch' + nm)
    if codepf and not cpf0:
        e(f'''s_lshl2_add_u32 {sT0}, {sJ}, {sW}
              s_lshl_b32 {sT0}, {sT0}, 8
              v_lshl_add_u32 {t2}, {vL}, 2, {sT0}''')
        e.vmem(f'buffer_load_dword {vF}, {t2}, {SCODE}, 0 offen', 'cpf')
    if pre is not None:
        e(f'''s_lshl3_add_u32 {sT0}, {sH}, {sS8}
              s_lshl2_add_u32 {sT0}, {sT0}, {sW}
              s_lshl_b32 {sT0}, {sT0}, 8
              s_add_u32 {sT0}, {sT0}, {WS_Q}
              s_lshl_b32 {sT1}, {sXc}, 5
              s_add_u32 {sT1}, {sT1}, {sJ}
              s_mul_i32 {sT1}, {sT1}, {FU_STRIDE}
              s_lshl_b32 {sT2}, {sW}, 9
              s_add_u32 {sT1}, {sT1}, {sT2}
              s_add_u32 {sT1}, {sT1}, {WS_FU - 256}
              v_mov_b32 {t2}, {sT0}
              v_mov_b32 {t3}, {sT1}
              v_cmp_gt_u32 vcc, 2, {vL}
              v_mov_b32 {t4}, {OOB}
              v_cndmask_b32 {t2}, {t3}, {t2}, vcc
              v_cmp_gt_u32 vcc, 5, {vL}
              v_lshl_add_u32 {t2}, {vL}, 7, {t2}
              v_cndmask_b32 {t2}, {t4}, {t2}, vcc''')
        e.vmem(f'buffer_load_dword a{AH+2}, {t2}, {SWS}, 0 offen {pre}', 'pre')
    e(f'''v_and_b32 {t2}, 1, {vL}
          v_lshlrev_b32 {t2}, 4, {t2}
          v_mov_b32 {t3}, 0xffff
          v_lshlrev_b32 {t2}, {t2}, {t3}
          v_bfe_u32 {t3}, {vL}, 1, 2
          v_cmp_eq_u32 s[4:5], 0, {t3}
          v_cmp_eq_u32 s[6:7], 1, {t3}
          v_cmp_eq_u32 s[8:9], 2, {t3}
          v_cmp_eq_u32 s[10:11], 3, {t3}''')
    for r in range(4):
        e(f'v_cndmask_b32 v{M[r]}, 0, {t2}, s[{4+2*r}:{5+2*r}]')
    e(f'''s_mov_b32 s94, 0xcccccccc
          s_mov_b32 s95, 0xcccccccc
          s_mov_b32 s96, 0xaaaaaaaa
          s_mov_b32 s97, 0xaaaaaaaa
          s_mov_b32 {sSelLo}, 0x05040100
          s_mov_b32 {sSelHi}, 0x07060302
          s_movk_i32 {sM8}, 0xff
          s_movk_i32 {sM12}, 0xfff
          s_movk_i32 {sM3}, 7
          s_getreg_b32 {sXcc}, hwreg(HW_REG_XCC_ID, 0, 4)''')
    if dbgcnt:
        e(f's_mov_b32 {sCnt}, 0')

    def rowred(op, r):
        for c in ('row_ror:8', 'row_ror:4', 'row_ror:2', 'row_ror:1'):
            e(f'{op}_dpp {r}, {r}, {r} {c} row_mask:0xf bank_mask:0xf')
    def swapred(op, r, tmp, n):
        e(f'v_mov_b32 {tmp}, {r}\nv_permlane{n}_swap_b32 {r}, {tmp}\n{op} {r}, {r}, {tmp}')
    def bf16r(dst, src):
        e(f'v_cvt_pk_bf16_f32 {dst}, {src}, {src}\nv_and_b32 {dst}, 0xffff0000, {dst}')
    def pk(op, d, a, b):
        e(f'v_pk_{op}_f32 v[{d}:{d+1}], v[{a}:{a+1}], v[{b}:{b+1}]')

    if stamps and stset == 'head':
        e.wait('K0')
        e('s_waitcnt lgkmcnt(0)\ns_mov_b64 s[4:5], s[14:15]')
        nst[0] = 1
        stamp('head')
    e.wait('xl1')
    stamp('main,head')
    for k in range(8):
        e(f'v_lshlrev_b32 v{XU+2*k}, 16, v{XL+k}\nv_and_b32 v{XU+2*k+1}, 0xffff0000, v{XL+k}')
    for k in range(4):
        pk('add', XL + 2 * k, XU + 4 * k, XU + 4 * k + 2)
    pk('add', XL, XL, XL + 2); pk('add', XL + 4, XL + 4, XL + 6); pk('add', XL, XL, XL + 4)
    e(f'v_add_f32 {t2}, v{XL}, v{XL+1}')
    for _ in range(ksp[0]): kspr()
    rowred('v_add_f32', t2)
    swapred('v_add_f32', t2, t3, 16)
    e(f'v_mul_f32 {t2}, 0x3b000000, {t2}')
    for k in range(0, 16, 2):
        e(f'v_pk_add_f32 v[{XU+k}:{XU+k+1}], v[{XU+k}:{XU+k+1}], v[30:31] op_sel_hi:[1,0] neg_lo:[0,1] neg_hi:[0,1]')
    for _ in range(ksp[1]): kspr()
    pk('mul', XL, XU, XU); pk('mul', XL + 2, XU + 2, XU + 2)
    for k in range(4, 16, 4):
        e(f'v_pk_fma_f32 v[{XL}:{XL+1}], v[{XU+k}:{XU+k+1}], v[{XU+k}:{XU+k+1}], v[{XL}:{XL+1}]')
        e(f'v_pk_fma_f32 v[{XL+2}:{XL+3}], v[{XU+k+2}:{XU+k+3}], v[{XU+k+2}:{XU+k+3}], v[{XL+2}:{XL+3}]')
    pk('add', XL, XL, XL + 2)
    e(f'v_add_f32 {t4}, v{XL}, v{XL+1}')
    for _ in range(ksp[2]): kspr()
    rowred('v_add_f32', t4)
    swapred('v_add_f32', t4, t3, 16)
    e(f'v_mul_f32 {t4}, 0x3b000000, {t4}')
    bf16r(t2, t2)
    bf16r(t4, t4)
    e(f'v_add_f32 {t4}, 0x3727c5ac, {t4}')
    bf16r(t4, t4)
    e(f'v_sqrt_f32 {t4}, {t4}')
    bf16r(t4, t4)
    e(f'''v_mov_b32 {t3}, {t2}
          v_mov_b32 {t5}, {t4}
          v_and_b32 v{XL}, 8, {vL}
          v_permlane32_swap_b32 {t2}, {t3}
          v_permlane32_swap_b32 {t4}, {t5}
          v_cmp_eq_u32 vcc, 0, v{XL}
          v_cndmask_b32 {t2}, {t3}, {t2}, vcc
          v_cndmask_b32 {t4}, {t5}, {t4}, vcc''')
    e.wait('xg')
    XN = f'v{XG}'
    e(f'v_lshlrev_b32 {XN}, 16, {XN}\nv_sub_f32 {XN}, {XN}, {t2}\nv_rcp_f32 {t5}, {t4}')
    bf16r(XN, XN)
    e(f'''v_mul_f32 {t2}, {XN}, {t5}
          v_fma_f32 {t3}, -{t2}, {t4}, {XN}
          v_fmac_f32 {t2}, {t3}, {t5}
          v_cvt_pk_bf16_f32 {XN}, {t2}, {t2}''')
    for _ in range(ksp[3]): kspr()
    for t in range(8):
        a = A[t & 1]
        for r in range(4):
            e(f'v_and_b32_dpp v{a+r}, {XN}, v{M[r]} row_newbcast:{t} row_mask:0xf bank_mask:0x3')
        for r in range(4):
            e(f'v_and_b32_dpp v{a+r}, {XN}, v{M[r]} row_newbcast:{t+8} row_mask:0xf bank_mask:0xc')
        if t < 4:
            e(f'v_mfma_f32_16x16x32_bf16 {rng("v", DQ, 4)}, {rng("v", a, 4)}, {rng("a", AWQ+4*t, 4)}, {rng("v", DQ, 4) if t else 0}')
        else:
            e(f'v_mfma_f32_16x16x32_bf16 {rng("v", DF, 4)}, {rng("v", a, 4)}, {rng("a", AFU+4*(t-4), 4)}, {rng("v", DF, 4) if t > 4 else 0}')
        if t == 3:
            for _ in range(ksp[4]): kspr()
    vLW = vKO
    if rotk:
        vLW = 'v212'
        e(f'v_lshlrev_b32 {vLW}, 4, v0')
    e(f'ds_write_b128 {vLW}, {rng("v", DQ, 4)}')
    vRF, vRQ, vSF, vSQ = 'v208', 'v209', 'v210', 'v211'
    e(f'''s_lshr_b32 {sT0}, {sW}, 1
          s_lshl_b32 {sT0}, {sT0}, 9
          s_and_b32 {sT1}, {sW}, 1
          s_lshl3_add_u32 {sT0}, {sT1}, {sT0}
          v_and_b32 {t3}, 31, {vL}
          v_lshl_add_u32 {vRF}, {t3}, 4, {sT0}
          s_lshl_b32 {sT0}, {sW}, 8
          v_lshl_add_u32 {vRQ}, {i}, 4, {sT0}
          ds_write_b128 {vLW}, {rng("v", DF, 4)} offset:4096
          s_lshl_b32 {sT1}, {sXc}, 5
          s_add_u32 {sT1}, {sT1}, {sJ}
          s_mul_i32 {sT1}, {sT1}, {FU_STRIDE}
          s_lshl1_add_u32 {sT1}, {sT0}, {sT1}
          s_add_u32 {sT1}, {sT1}, {WS_FU}
          v_and_b32 {t3}, 47, {vL}
          v_cmp_gt_u32 vcc, {sPB}, {t3}
          v_lshl_add_u32 {t3}, {i}, 1, {g}
          v_lshl_add_u32 {t3}, {t3}, 4, {sT1}
          v_mov_b32 {t5}, {OOB}
          v_cndmask_b32 {vSF}, {t5}, {t3}, vcc
          s_lshl3_add_u32 {sT1}, {sH}, {sS8}
          s_lshl_b32 {sT1}, {sT1}, 10
          s_add_u32 {sT1}, {sT1}, {WS_Q}
          v_add_u32 {t3}, {sT1}, {vRQ}
          v_cmp_gt_u32 vcc, 16, {vL}
          v_cndmask_b32 {vSQ}, {t5}, {t3}, vcc''')
    if 'pub' in off: e(f'v_mov_b32 {vSF}, {OOB}\nv_mov_b32 {vSQ}, {OOB}')
    stamp('head')
    e('s_waitcnt lgkmcnt(0)\ns_barrier')
    stamp('main,head')
    R0, R1 = 216, 232
    for k in range(4):
        e(f'ds_read_b128 {rng("v", R0+4*k, 4)}, {vRQ} offset:{1024*k}')
    for k in range(4):
        e(f'ds_read_b64 v[{R1+2*k}:{R1+2*k+1}], {vRF} offset:{4096+1024*k}')
    e(f'''s_add_u32 {sEp}, {sEp}, 1
          s_and_b32 {sT1}, {sEp}, {sM12}
          v_mov_b32 {vTA}, {sT1}
          v_xor_b32 {vTB}, {sXcc}, {vTA}
          s_xor_b32 {sXcc}, {sXcc}, {sEp}
          v_accvgpr_write_b32 a{AQA}, {vSQ}
          v_accvgpr_write_b32 a{AFA}, {vSF}
          s_waitcnt lgkmcnt(4)''')
    def tag(r, vts, m):
        for k, vt in enumerate(vts):
            e(f'v_bfi_b32 v{r+k}, {m}, {vt}, v{r+k}')
    pk('add', R0, R0, R0 + 4); pk('add', R0 + 2, R0 + 2, R0 + 6); pk('add', R0 + 8, R0 + 8, R0 + 12); pk('add', R0 + 10, R0 + 10, R0 + 14)
    pk('add', R0, R0, R0 + 8); pk('add', R0 + 2, R0 + 2, R0 + 10)
    tag(R0, [vTA, vTA, vTB, vTB], sM3)
    e.vmem(f'buffer_store_dwordx4 {rng("v", R0, 4)}, {vSQ}, {SWS}, 0 offen', 'pubq')
    e(f'''s_waitcnt lgkmcnt(0)
          v_add_f32 v{R1+8}, v{R1}, v{R1+2}
          v_add_f32 v{R1+9}, v{R1+4}, v{R1+6}
          v_add_f32 v{R1+10}, v{R1+1}, v{R1+3}
          v_add_f32 v{R1+11}, v{R1+5}, v{R1+7}''')
    tag(R1 + 8, [vTA, vTA, vTA, vTB], sM8)
    e.vmem(f'buffer_store_dwordx4 {rng("v", R1+8, 4)}, {vSF}, {SWS}, 0 offen', 'pubf')
    for k in range(4):
        e(f'v_accvgpr_write_b32 a{AQD+k}, v{R0+k}\nv_accvgpr_write_b32 a{AFD+k}, v{R1+8+k}')
    for _ in range(kpost[0]): kspr()

    e(f'''s_lshl2_add_u32 {sPB}, {sH}, {sS}
          s_lshl2_add_u32 {sT0}, {sB}, {sW}
          s_lshl_b32 {sT0}, {sT0}, 9
          s_add_u32 {sT0}, {sT0}, {sPB}
          s_lshl_b32 {sT0}, {sT0}, 7
          v_lshrrev_b32 {t2}, 2, {i}
          v_lshlrev_b32 {t2}, 14, {t2}
          v_and_b32 {t3}, 3, {vL}
          v_lshl_add_u32 {t2}, {t3}, 5, {t2}
          v_lshl_add_u32 {t2}, {g}, 4, {t2}
          v_add_u32 {vY}, {sT0}, {t2}''')
    def swap1317(v):
        e(f'''v_lshrrev_b32 {t4}, 4, {v}
              v_xor_b32 {t4}, {t4}, {v}
              v_and_b32 {t4}, 0x2000, {t4}
              v_lshl_or_b32 {t4}, {t4}, 4, {t4}
              v_xor_b32 {v}, {t4}, {v}''')
        if ypar:
            e(f'v_xor_b32 {v}, 0x2000, {v}')
    if ypar is not None:
        swap1317(vY)
    e(f'''
          s_lshl2_add_u32 {sT1}, {sBH}, {sS}
          s_lshl2_add_u32 {sT1}, {sT1}, {sW}
          s_lshl4_add_u32 {sT1}, {sT1}, {WS_ML}
          v_mov_b32 {t4}, {sT1}
          v_cmp_eq_u32 vcc, 0, {vL}
          v_mul_u32_u24 {t3}, 320, {t3}
          v_cndmask_b32 {vML}, {t5}, {t4}, vcc
          v_lshl_add_u32 {vOR}, {g}, 4, {t3}
          s_mul_i32 {sT0}, {sW}, 320
          s_add_u32 {sT0}, {sT0}, {LDS_O}
          v_and_b32 {t2}, 1, {g}
          v_lshlrev_b32 {t3}, 3, {t2}
          v_lshl_add_u32 {t3}, {i}, 4, {t3}
          v_add_u32 {vOW}, {sT0}, {t3}''')
    if smf:
        e(f'''v_lshrrev_b32 {t3}, 1, {t3}
              v_add_u32 {vOW}, {sT0}, {t3}
              v_bfe_u32 {t3}, {vL}, 2, 1
              v_lshl_add_u32 {vOR}, {t3}, 7, {vOR}''')
    if cw == 4:
        e(f'''s_lshl2_add_u32 {sU}, {sHH}, {sS}
              s_lshr_b32 {sT1}, {sU}, 3
              s_lshl1_add_u32 {sT1}, {sXc}, {sT1}
              s_lshl4_add_u32 {sT1}, {sB}, {sT1}
              s_and_b32 {sT0}, {sU}, 7
              s_lshl_b32 {sT2}, {sT1}, 14
              s_lshl4_add_u32 {sT2}, {sT0}, {sT2}
              v_lshl_add_u32 {vCON}, {vL}, 7, {sT2}
              s_lshl3_add_u32 {sT1}, {sT1}, {sT0}
              s_lshl_b32 {sT1}, {sT1}, 3
              v_lshrrev_b32 {t3}, 1, {g}
              v_lshl_add_u32 {t2}, {t2}, 1, {t3}
              v_lshl_add_u32 {t2}, {t2}, 1, {sT1}
              v_cmp_eq_u32 vcc, 0, {i}
              v_cndmask_b32 {vOUT}, {t5}, {t2}, vcc''')
    else:
        LP = cw // 4
        lg = LP.bit_length() - 1
        e(f'''s_lshl2_add_u32 {sU}, {sHH}, {sS}
              s_lshr_b32 {sT1}, {sU}, 3
              s_lshl1_add_u32 {sT1}, {sXc}, {sT1}
              s_lshl4_add_u32 {sT1}, {sB}, {sT1}
              s_and_b32 {sT0}, {sU}, 7
              s_and_b32 {sCon}, {sU}, {LP-1}
              s_lshl_b32 {sT2}, {sT1}, 14
              s_lshl4_add_u32 {sT2}, {sT0}, {sT2}
              s_lshl_b32 {sS8}, {sW}, 12
              s_add_u32 {sT2}, {sT2}, {sS8}
              v_lshrrev_b32 {t3}, {lg}, {vL}
              v_lshl_add_u32 {t3}, {t3}, 7, {sT2}
              v_and_b32 {t4}, {LP-1}, {vL}
              v_lshl_add_u32 {vCON}, {t4}, 4, {t3}''')
        if ypar is not None:
            swap1317(vCON)
        e(f'''
              s_lshl3_add_u32 {sT1}, {sT1}, {sT0}
              s_lshl_b32 {sT1}, {sT1}, 3
              v_lshrrev_b32 {t3}, 1, {g}
              v_lshl_add_u32 {t2}, {t2}, 1, {t3}
              v_lshl_add_u32 {t2}, {i}, 2, {t2}
              v_lshl_add_u32 {t2}, {t2}, 1, {sT1}
              v_cmp_gt_u32 vcc, {LP}, {i}
              v_cndmask_b32 {vOUT}, {t5}, {t2}, vcc''')
    for _ in range(kpost[1]): kspr()
    e(f'''s_lshl_b32 {sT0}, {sH}, 13
          s_lshl_b32 {sT1}, {sB}, 9
          s_add_u32 {sT0}, {sT0}, {sT1}
          s_add_u32 {sT0}, {sT0}, {WS_Q}
          v_lshlrev_b32 {t2}, 10, {g}
          v_lshl_add_u32 {t2}, {i}, 4, {t2}
          v_add_u32 {vQG}, {sT0}, {t2}
          s_lshl_b32 {sT0}, {sW}, 8
          v_lshl_add_u32 {t2}, {i}, 4, {sT0}
          v_lshl_add_u32 {vWO}, {g}, 13, {t2}
          s_mul_i32 {sU}, {sU}, 12
          s_lshl_b32 {sNch}, {sNch}, 3
          s_lshl3_add_u32 {sT0}, {sC0}, {sU}
          s_lshl_b32 {sT0}, {sT0}, 10
          s_cmp_lt_u32 {sU}, {sNch}
          s_cselect_b32 {sT0}, {sT0}, {OOB}
          s_cselect_b32 {sU}, {sU}, 0
          v_lshl_add_u32 {t2}, {g}, 12, {t2}
          v_add_u32 {t2}, {sT0}, {t2}
          v_cmp_gt_u32 vcc, 3, {g}
          v_cndmask_b32 {vW2}, {t5}, {t2}, vcc''')
    for _ in range(kpost[2]): kspr()
    e(f'''v_and_b32 {t2}, 7, {vL}
          v_cmp_gt_u32 s[24:25], 6, {t2}
          v_lshl_add_u32 {t2}, {t2}, 1, {sU}
          s_movk_i32 {sT1}, {8*HB}
          s_cmp_ge_u32 {sU}, {sT1}
          s_cselect_b32 {sT0}, 0, {sT1}
          v_mov_b32 {t3}, {sT0}
          v_cndmask_b32 {t2}, {t3}, {t2}, s[24:25]
          v_cmp_le_u32 s[24:25], {sT1}, {t2}
          v_cmp_gt_u32 vcc, {sNch}, {t2}
          v_lshrrev_b32 {t4}, 3, {vL}
          v_cndmask_b32 {t3}, 0, 1, s[24:25]
          v_lshl_add_u32 {t4}, {t4}, 1, {t3}
          v_mul_u32_u24 {t4}, {FU_STRIDE}, {t4}
          v_mul_u32_u24 {t3}, {8*HB}, {t3}
          v_sub_u32 {t2}, {t2}, {t3}
          v_bfe_u32 {t3}, {t2}, 1, 1
          v_lshl_add_u32 {t4}, {t3}, 9, {t4}
          v_lshrrev_b32 {t2}, 2, {t2}
          v_lshl_add_u32 {t2}, {t2}, 4, {t4}
          s_mul_i32 {sT0}, {sXc}, {32*FU_STRIDE}
          s_lshl_b32 {sT1}, {sB}, 10
          s_add_u32 {sT0}, {sT0}, {sT1}
          s_add_u32 {sT0}, {sT0}, {WS_FU}
          v_add_u32 {t2}, {sT0}, {t2}
          v_cndmask_b32 {vFG}, {t5}, {t2}, vcc''')
    for nm, r in (('qg', vQG), ('w2', vW2), ('fg', vFG), ('mlpub', vML), ('wo', vWO), ('y', vY), ('con', vCON)):
        if nm in off: e(f'v_mov_b32 {r}, {OOB}')

    slow = []
    def orred(regsl, m, dst, full=()):
        rs = list(regsl)
        if len(rs) == 1:
            e(f'v_and_b32 {t2}, {m}, v{rs[0]}')
        else:
            if len(rs) == 2:
                e(f'v_or_b32 {t2}, v{rs[0]}, v{rs[1]}')
            else:
                e(f'v_or3_b32 {t2}, v{rs[0]}, v{rs[1]}, v{rs[2]}')
                rs = rs[3:]
                while rs:
                    if len(rs) == 1:
                        e(f'v_or_b32 {t2}, {t2}, v{rs[0]}'); rs = []
                    else:
                        e(f'v_or3_b32 {t2}, {t2}, v{rs[0]}, v{rs[1]}'); rs = rs[2:]
            e(f'v_and_b32 {t2}, {m}, {t2}')
        for r in full:
            e(f'v_or_b32 {t2}, {t2}, v{r}')
        e(f'v_cmp_ne_u32 {dst}, 0, {t2}')
    def untag(regsl, vts, m, dst='vcc'):
        for r, vt in zip(regsl, vts):
            e(f'v_xor_b32 v{r}, {vt}, v{r}')
        orred(regsl, m, dst)
    def checked(name, regsl, kinds, ta, tb, m, republish, reissue):
        if 'check' in off:
            return
        def test(sel):
            for r, k in zip(regsl, kinds):
                if k in sel:
                    e(f'v_xor_b32 v{r}, {dict(A=ta, B=tb, F=sEp, G=sXcc)[k]}, v{r}')
            orred([r for r, k in zip(regsl, kinds) if k in sel and k in 'AB'], m, 'vcc',
                  [r for r, k in zip(regsl, kinds) if k in sel and k in 'FG'])
        test('ABFG')
        e(f's_cbranch_vccnz L_slow_{name}\nL_ok_{name}:')
        def emit_slow():
            e(f'L_slow_{name}:')
            republish()
            if slowpen:
                e(f's_mov_b32 {sSpin}, {slowpen}\nL_pen_{name}:\ns_sleep 127\ns_sub_u32 {sSpin}, {sSpin}, 1\ns_cbranch_scc0 L_pen_{name}')
            e(f's_mov_b32 {sSpin}, {spin}')
            e(f'L_miss_{name}:')
            e(f's_mov_b32 {sT1}, 0\ns_sleep 1')
            e(f'L_retry_{name}:')
            if dbgcnt:
                e(f's_add_u32 {sCnt}, {sCnt}, {1 << (8 * ["flag", "q", "fu", "ml"].index(name))}')
            e(f's_sub_u32 {sSpin}, {sSpin}, 1\ns_cbranch_scc1 L_ok_{name}')
            reissue()
            e('s_waitcnt vmcnt(0)')
            test('AF')
            for r, k in zip(regsl, kinds):
                if k == 'B':
                    e(f'v_bfi_b32 v{r}, {m}, 0, v{r}')
            e(f's_cbranch_vccnz L_miss_{name}')
            e(f's_xor_b32 {sT1}, {sT1}, 1\ns_cbranch_scc1 L_retry_{name}\ns_branch L_ok_{name}')
        slow.append(emit_slow)

    state = dict(q=False, kproc=0, soft=False, vproc=0, wop=0, ffn=False, ml=False, budget=catch)
    KT = [26, 27, 24, 25, 20, 21, 22, 23]
    def kpair(n):
        a, b = f'v{KT[0]}', f'v{KT[1]}'
        for k in range(4):
            for r, m in ((a, n), (b, n + 1)):
                e(f'v_dot2_f32_bf16 {r}, v{kreg(m)+k}, v{Q[k]}, {r if k else 0}')
        d1 = f'v{KT[2 + ((n >> 1) & 1)]}'
        e(f'v_add_f32_dpp {d1}, {a}, {a} row_ror:8 row_mask:0xf bank_mask:0x3')
        e(f'v_add_f32_dpp {d1}, {b}, {b} row_ror:8 row_mask:0xf bank_mask:0xc')
        if not (n >> 1) & 1:
            return
        x, y = f'v{KT[2]}', f'v{KT[3]}'
        d2 = f'v{KT[4 + ((n >> 2) & 1)]}'
        e(f'v_add_f32_dpp {d2}, {x}, {x} row_shl:4 row_mask:0xf bank_mask:0x5')
        e(f'v_add_f32_dpp {d2}, {y}, {y} row_shr:4 row_mask:0xf bank_mask:0xa')
        if not (n >> 2) & 1:
            return
        x, y = f'v{KT[4]}', f'v{KT[5]}'
        d3 = f'v{KT[6 + ((n >> 3) & 1)]}'
        e(f'v_add_f32_dpp {x}, {x}, {x} quad_perm:[2,3,0,1] row_mask:0xf bank_mask:0xf')
        e(f'v_add_f32_dpp {y}, {y}, {y} quad_perm:[2,3,0,1] row_mask:0xf bank_mask:0xf')
        e(f'v_cndmask_b32 {d3}, {x}, {y}, {sMC}')
        if not (n >> 3) & 1:
            return
        x, y = f'v{KT[6]}', f'v{KT[7]}'
        s = f'v{S[n >> 4]}'
        e(f'v_add_f32_dpp {x}, {x}, {x} quad_perm:[1,0,3,2] row_mask:0xf bank_mask:0xf')
        e(f'v_add_f32_dpp {y}, {y}, {y} quad_perm:[1,0,3,2] row_mask:0xf bank_mask:0xf')
        e(f'v_cndmask_b32 {s}, {x}, {y}, {sMA}')
        bf16r(s, s)
        e(f'v_mul_f32 {s}, {SCALE}, {s}')
        bf16r(s, s)
    def mlstore(tagger, p):
        e(f'v_bfi_b32 {t2}, {sM12}, {vTA}, {vM}\nv_bfi_b32 {t3}, {sM12}, {vTA}, {vLs}\nv_mov_b32 {t4}, {sEp}\nv_mov_b32 {t5}, {sXcc}')
        tagger(f'buffer_store_dwordx4 v[30:33], {vML}, {SWS}, 0 offen {p}', 'mlpub')
    def softmax():
        stamp()
        e(f'v_max3_f32 {vM}, v{S[0]}, v{S[1]}, v{S[2]}\nv_max_f32 {vM}, {vM}, v{S[3]}')
        rowred('v_max_f32', vM)
        swapred('v_max_f32', vM, t2, 16)
        swapred('v_max_f32', vM, t2, 32)
        for k in range(4):
            e(f'v_sub_f32 v{S[k]}, v{S[k]}, {vM}')
        for k in range(4):
            e(f'v_mul_f32 v{S[k]}, {LOG2E}, v{S[k]}')
        for k in range(4):
            e(f'v_exp_f32 v{S[k]}, v{S[k]}')
        for k in range(4):
            e(f'v_cvt_pk_bf16_f32 v{Q[k]}, v{S[k]}, v{S[k]}')
        e(f'v_add_f32 {vLs}, v{S[0]}, v{S[1]}\nv_add_f32 {t2}, v{S[2]}, v{S[3]}\nv_add_f32 {vLs}, {vLs}, {t2}')
        abuild(0)
        rowred('v_add_f32', vLs)
        swapred('v_add_f32', vLs, t2, 16)
        swapred('v_add_f32', vLs, t2, 32)
        mlstore(e.vmem, '')
        state['soft'] = True
    def abuild(n):
        a = A[n & 1]
        for r in range(4):
            e(f'v_and_b32_dpp v{a+r}, v{Q[n >> 4]}, v{M[r]} row_newbcast:{bitrev4(n & 15)} row_mask:0xf bank_mask:0xf')
    def vstep(n):
        c = rng('v', ACC, 4) if n else '0'
        e(f'v_mfma_f32_16x16x32_bf16 {rng("v", ACC, 4)}, {rng("v", A[n & 1], 4)}, {rng("a", vreg(n), 4)}, {c}')
        if n < 63:
            abuild(n + 1)
    F, DY, STG, G2, W2S, FGR = 128, 96, 64, 48, 224, 240
    stg = lambda k: STG + 4 * (k % 8)
    freg = lambda t, cc: F + 32 * t + 4 * cc
    if smf:
        assert woa and not w2last
        W2S, FGR = 80, 72
        stg = lambda k: STG + 4 * (k % 2)
        freg = lambda t, cc: F + 16 * cc + 4 * t
    def woperm(k):
        t, ee = k >> 3, k & 7
        if woa:
            for kk in (k, k + 1):
                for m in range(4):
                    e(f'v_accvgpr_read_b32 v{stg(kk)+m}, a{AWO+4*kk+m}')
        for m in range(4):
            for hi in range(2):
                e(f'v_perm_b32 v{freg(t, 2*m+hi) + ee//2}, v{stg(k+1)+m}, v{stg(k)+m}, {sSelHi if hi else sSelLo}')
    plain = lambda s, t: e(s)
    AFG, AWO, AW2, AH = 236, 64, 192, 244
    W2L = 80
    assert 4 * vring <= (AWO if woa else 192)
    def fgissue(tagger, p, acc=False):
        for m in range(2):
            if m:
                e(f's_mov_b32 {sT0}, {16*FU_STRIDE*m}')
            tagger(f'buffer_load_dwordx4 {rng("a", AFG+4*m, 4) if acc else rng("v", FGR+4*m, 4)}, {vFG}, {SWS}, {sT0 if m else 0} offen {p}', f'fg{m}')
    def republish(ad, aa):
        e(f'v_accvgpr_read_b32 {t2}, a{aa}\nbuffer_store_dwordx4 {rng("a", ad, 4)}, {t2}, {SWS}, 0 offen sc1')
    def ffn_down():
        if w2a:
            for k in range(16):
                e(f'v_accvgpr_read_b32 v{W2S+k}, a{AW2+k}')
        if n_fg is not None:
            for k in range(8):
                e(f'v_accvgpr_read_b32 v{FGR+k}, a{AFG+k}')
        e(f'''v_cmp_gt_u32 vcc, s58, {vFG}
              v_and_b32 {t4}, {sM8}, {vTA}
              v_and_b32 {t5}, {sM8}, {vTB}
              v_cndmask_b32 {t4}, 0, {t4}, vcc
              v_cndmask_b32 {t5}, 0, {t5}, vcc''')
        checked('fu', list(range(FGR, FGR + 8)), 'AAAB' * 2, t4, t5, sM8, lambda: republish(AFD, AFA), lambda: fgissue(plain, 'sc1'))
        for k in (0, 2):
            pk('add', FGR + k, FGR + k, FGR + 4 + k)
        for p in range(0 if w2last else 2):
            for m in range(4):
                for hi in range(2):
                    e(f'v_perm_b32 v{G2 + 2*(2*m+hi) + p}, v{W2S+8*p+4+m}, v{W2S+8*p+m}, {sSelHi if hi else sSelLo}')
        for k in range(4):
            e(f'v_add_f32_dpp v{FGR+k}, v{FGR+k}, v{FGR+k} row_ror:8 row_mask:0xf bank_mask:0xf')
        ga, up = f'v{FGR}', f'v{FGR+1}'
        e(f'''v_permlane32_swap_b32 v{FGR}, v{FGR+2}
              v_permlane32_swap_b32 v{FGR+1}, v{FGR+3}
              v_add_f32 {ga}, v{FGR}, v{FGR+2}
              v_add_f32 {up}, v{FGR+1}, v{FGR+3}''')
        swapred('v_add_f32', ga, t2, 16)
        swapred('v_add_f32', up, t3, 16)
        bf16r(ga, ga)
        bf16r(up, up)
        e(f'''v_mul_f32 {t2}, {LOG2E ^ 0x80000000}, {ga}
              v_exp_f32 {t2}, {t2}
              v_and_b32 {t4}, {7 if smf else 3}, {vL}
              v_add_f32 {t2}, 1.0, {t2}
              v_rcp_f32 {t2}, {t2}
              v_cmp_eq_u32 vcc, 0, {t4}
              v_mul_f32 {ga}, {ga}, {t2}
              v_cndmask_b32 {t4}, 0, -1, vcc''')
        bf16r(ga, ga)
        ha = FGR + 4
        e(f'''v_mul_f32 {ga}, {ga}, {up}
              v_mov_b32 v{ha}, 0
              v_mov_b32 {t2}, {ga}
              v_mov_b32 v{ha+1}, 0
              v_permlane32_swap_b32 {ga}, {t2}
              v_cvt_pk_bf16_f32 {ga}, {ga}, {t2}''')
        for gg in range(3):
            for p in range(2):
                e(f'v_and_b32_dpp v{ha+p}, {ga}, {t4} row_newbcast:{2*gg+p} row_mask:{hex(1 << gg)} bank_mask:0xf')
        if w2last:
            e(f'v_accvgpr_write_b32 a{AH}, v{ha}\nv_accvgpr_write_b32 a{AH+1}, v{ha+1}')
        for cc in range(0 if w2last else 8):
            e(f'v_mfma_f32_16x16x16_bf16 {rng("v", DY+4*cc, 4)}, v[{ha}:{ha+1}], v[{G2+2*cc}:{G2+2*cc+1}], 0')
        state['ffn'] = True
    def mlissue(tagger, p):
        e(f's_lshl_b32 {sT0}, {sBH}, 8\ns_add_u32 {sT0}, {sT0}, {WS_ML}\nv_lshl_add_u32 {vMG}, {i}, 4, {sT0}')
        if 'ml' in off: e(f'v_mov_b32 {vMG}, {OOB}')
        tagger(f'buffer_load_dwordx4 v[{S[0]}:{S[3]}], {vMG}, {SWS}, 0 offen {p}', 'ml')
    def mlcombine():
        checked('ml', S, 'AAFG', vTA, vTB, sM12, lambda: mlstore(plain, 'sc1'), lambda: mlissue(plain, 'sc1'))
        mi, li, mx = f'v{S[0]}', f'v{S[1]}', f'v{S[2]}'
        e(f'v_mov_b32 {mx}, {mi}')
        rowred('v_max_f32', mx)
        e(f'''v_sub_f32 {mi}, {mi}, {mx}
              v_sub_f32 {vF}, {vM}, {mx}
              v_mul_f32 {mi}, {LOG2E}, {mi}
              v_mul_f32 {vF}, {LOG2E}, {vF}
              v_exp_f32 {mi}, {mi}
              v_exp_f32 {vF}, {vF}
              v_mul_f32 {li}, {li}, {mi}''')
        rowred('v_add_f32', li)
        e(f'v_rcp_f32 {li}, {li}\nv_mul_f32 {vF}, {vF}, {li}')
        if dual:
            e(f'v_xor_b32 {vY2}, {WS_Y2 | 0x2000}, {vY}\nv_xor_b32 {vC2}, {WS_Y2 | 0x2000}, {vCON}')
        if smf:
            assert state['ffn']
            e(f'v_bfe_u32 {t2}, {vL}, 2, 1\nv_mul_u32_u24 {t2}, 0xaaaa, {t2}\nv_add_u32 {vIdx}, 0x4444, {t2}')
        state['ml'] = True
    complete = lambda tag: tag in e.vm and e.vm.index(tag) < e.done
    def progress():
        if state['q'] and not state['soft']:
            c = 0
            while state['kproc'] < 64 and complete(f'K{state["kproc"]+1}') and c < state['budget']:
                kpair(state['kproc']); state['kproc'] += 2; c += 2
            state['budget'] = catch if c >= 2 or state['budget'] >= 2 * catch else state['budget'] + 1
            if state['kproc'] == 64:
                softmax()
        if state['soft']:
            while state['vproc'] < 64 and complete(f'V{state["vproc"]}'):
                vstep(state['vproc']); state['vproc'] += 1
            while state['wop'] < 32 and complete(f'wo{state["wop"]+1}'):
                if woa and not (state['vproc'] >= 2 + 3 * (state['wop'] // 2) and (smf or state['wop'] < 24 or state['ffn'])):
                    break
                woperm(state['wop']); state['wop'] += 2
            if not state['ffn'] and complete('fg1') and (w2last or complete('w23')):
                ffn_down()
            if not state['ml'] and complete('ml'):
                mlcombine()
    def window():
        d = D
        if Dend and f'V{nend}' in e.vm: d = Dend
        if Dk and 'V0' not in e.vm: d = Dk
        k = len(e.vm) - d
        if k >= e.done:
            e.wait(e.vm[k])
        progress()
    QG = 232
    def qissue(tagger, p):
        for k in range(4):
            if k == 2:
                e(f's_movk_i32 {sT0}, 0x1000')
            tagger(f'buffer_load_dwordx4 {rng("v", QG+4*k, 4)}, {vQG}, {SWS}, {sT0 if k >= 2 else 0} offen offset:{256*(k&1)} {p}', f'qg{k}')
    def qfinish():
        e(f'v_and_b32 {t4}, 7, {vTA}\nv_and_b32 {t5}, 7, {vTB}')
        e.wait('qg3')
        checked('q', list(range(QG, QG + 16)), 'AABB' * 4, t4, t5, sM3, lambda: republish(AQD, AQA), lambda: qissue(plain, 'sc1'))
        for k in range(0, 8, 2):
            pk('add', QG + k, QG + k, QG + 8 + k)
        for k in range(4):
            e(f'v_permlane32_swap_b32 v{QG+k}, v{QG+4+k}')
        for k in (0, 2):
            pk('add', QG + k, QG + k, QG + 4 + k)
        e(f'''v_permlane16_swap_b32 v{QG}, v{QG+2}
              v_permlane16_swap_b32 v{QG+1}, v{QG+3}
              v_pk_add_f32 v[{QG}:{QG+1}], v[{QG}:{QG+1}], v[{QG+2}:{QG+3}]
              v_cvt_pk_bf16_f32 v{Q[0]}, v{QG}, v{QG+1}
              v_cvt_pk_bf16_f32 v{Q[1]}, v{QG}, v{QG+1}
              v_permlane16_swap_b32 v{Q[0]}, v{Q[1]}
              v_mov_b32 v{Q[2]}, v{Q[0]}
              v_mov_b32 v{Q[3]}, v{Q[1]}
              v_permlane32_swap_b32 v{Q[0]}, v{Q[2]}
              v_permlane32_swap_b32 v{Q[1]}, v{Q[3]}''')
        state['q'] = True
        stamp()
    wosched = {}
    if woa:
        for k in range(32):
            wosched.setdefault(woa[0] + (k * (woa[1] - woa[0])) // 32, []).append(('wo', k))
    if w2a:
        for k in range(4):
            wosched.setdefault(w2a + 2 * k, []).append(('w2', k))
    def early(stepno):
        for kind, k in wosched.pop(stepno, []):
            window()
            if kind == 'wo':
                e(f's_mov_b32 {sT0}, {(k >> 3)*32768 + ((k >> 2) & 1)*4096}')
                e.vmem(f'buffer_load_dwordx4 {rng("a", AWO+4*k, 4)}, {vWO}, {SWO}, {sT0} offen offset:{1024*(k & 3)} {wpol}', f'wo{k}')
            else:
                e.vmem(f'buffer_load_dwordx4 {rng("a", AW2+4*k, 4)}, {vW2}, {SW2}, 0 offen offset:{1024*k} {wpol}', f'w2{k}')
    assert kn[0] <= n_q and all(k >= kn[0] for k in wosched)
    while kn[0] < 64:
        n = kn[0]
        if n == n_q:
            window(); qissue(e.vmem, qpol)
        if mlpre is not None and n == mlpre[0]:
            window(); e.vmem(f'buffer_load_dword a{AH+3}, {vML}, {SWS}, 0 offen {mlpre[1]}', 'mlpre')
        if n == n_fg:
            window(); fgissue(e.vmem, fpol, acc=True)
        if n == n_q + gap:
            assert n <= (QG - KBASE) // 4
            qfinish()
        window()
        if n >= KRING:
            assert state['kproc'] > n - KRING, (n, state)
        kissue()
        early(n)
    extra = {}
    for k in range(4):
        if not w2a and not w2last:
            extra.setdefault(ex0 + k, []).append(('w2', k))
    if n_fg is None:
        extra.setdefault(ex0 + 4, []).append(('fg', 0))
    extra.setdefault(ex0 + 5, []).append(('xres', 0))
    for k in range(0 if woa else 32):
        extra.setdefault(wo_start + (k * (wo_end - wo_start)) // 32, []).append(('wo', k))
    extra.setdefault(n_ml, []).append(('ml', 0))
    if tailpf is not None:
        extra.setdefault(tailpf, []).append(('tpf', 0))
    if opf is not None:
        extra.setdefault(opf, []).append(('opf', 0))
    if ypf is not None:
        extra.setdefault(ypf, []).append(('ypf', 0))
    XR = 39
    nv, m = 0, None
    while nv < 64:
        window()
        assert nv < vring or state['vproc'] > nv - vring, (nv, state)
        e.vmem(f'buffer_load_dwordx4 {rng("a", vreg(nv), 4)}, {vKA}, {SV}, {sVoff} offen {pol}', f'V{nv}')
        if nv < 63:
            e(f's_addk_i32 {sVoff}, 0x1000\ns_and_b32 {sVoff}, {sVoff}, {sMask}')
        early(64 + nv)
        nv += 1
        if state['soft'] and m is None:
            m = 0
        if m is not None:
            for kind, k in extra.pop(m, []):
                window()
                if kind == 'w2':
                    e.vmem(f'buffer_load_dwordx4 {rng("v", W2S+4*k, 4)}, {vW2}, {SW2}, 0 offen offset:{1024*k} {wpol}', f'w2{k}')
                elif kind == 'fg':
                    fgissue(e.vmem, fpol)
                elif kind == 'xres':
                    e.vmem(f'buffer_load_ushort v{XR}, {vOUT}, {SX}, 0 offen {xpol}', 'xres')
                elif kind == 'ml':
                    mlissue(e.vmem, mpol)
                elif kind == 'opf':
                    e.vmem(f'buffer_load_ushort a{AWQ+8}, {vOUT}, {SOUT}, 0 offen', 'opf')
                elif kind == 'ypf':
                    e(f's_cmp_lg_u32 {sCon}, 0\ns_cselect_b32 {sT0}, {OOB}, 0\nv_add_u32 {t3}, {sT0}, {vCON}')
                    for kk in range(cw // 8):
                        e.vmem(f'buffer_load_dwordx4 {rng("a", AWQ+4*kk, 4)}, {t3}, {SWS}, 0 offen offset:{(256 // cw) * 128 * kk} {ypfpol}', f'ypf{kk}')
                elif kind == 'tpf':
                    e(f's_lshl_b32 {sT0}, {sW}, 8\ns_add_u32 {sT0}, {sT0}, L_tail - L_pc\nv_lshl_add_u32 {t3}, {vL}, 2, {sT0}')
                    e.vmem(f'buffer_load_dword v{S[2]}, {t3}, {SCODE}, 0 offen', 'tpf')
                    assert state['ml']
                elif kind == 'wo':
                    assert k < 8 or state['wop'] > k - 8, (k, state)
                    assert k < 24 or state['ffn']
                    e(f's_mov_b32 {sT0}, {(k >> 3)*32768 + ((k >> 2) & 1)*4096}')
                    e.vmem(f'buffer_load_dwordx4 {rng("v", stg(k), 4)}, {vWO}, {SWO}, {sT0} offen offset:{1024*(k & 3)} {wpol}', f'wo{k}')
            m += 1
    assert not extra and not wosched, (extra, wosched)
    if w2last:
        for k in range(4):
            window()
            assert state['wop'] == 32, state
            e.vmem(f'buffer_load_dwordx4 {rng("v", W2L+4*k, 4)}, {vW2}, {SW2}, 0 offen offset:{1024*k} {wpol}', f'w2{k}')
    while state['vproc'] < 64:
        e.wait(f'V{state["vproc"]}')
        if state['vproc'] == 63:
            e('L_tail:')
            stamp('main,tail,head')
        progress()
    assert state['wop'] == 32 and state['ffn'] and state['ml'], state
    assert vF == 'v47'
    e(f'''v_pk_mul_f32 v[{ACC}:{ACC+1}], v[{ACC}:{ACC+1}], v[46:47] op_sel:[0,1] op_sel_hi:[1,1]
          v_pk_mul_f32 v[{ACC+2}:{ACC+3}], v[{ACC+2}:{ACC+3}], v[46:47] op_sel:[0,1] op_sel_hi:[1,1]
          v_cvt_pk_bf16_f32 v{ACC}, v{ACC}, v{ACC+1}
          v_cvt_pk_bf16_f32 v{ACC+1}, v{ACC+2}, v{ACC+3}
          ''' + (f'ds_write2_b32 {vOW}, v{ACC}, v{ACC+1} offset0:0 offset1:32' if smf else f'ds_write_b64 {vOW}, v[{ACC}:{ACC+1}]'))
    stamp('tail')
    e('s_waitcnt lgkmcnt(0)\ns_barrier')
    stamp('tail')
    if stamps and stset == 'tail':
        e('s_waitcnt lgkmcnt(0)')
    AF = STG
    for t in range(2 if smf else 4):
        e(f'ds_read_b128 {rng("v", AF+4*t, 4)}, {vOR} offset:{LDS_O+64*t}')
    Z = A[0]
    def tile_add(cc):
        pk('add', DY + 4 * cc, DY + 4 * cc, DY + 4 * cc + 2)
    def tile_fin(cc):
        d = DY + 4 * cc
        if cc < 4:
            e(f'v_add_f32 v{Z+cc}, v{d}, v{d+1}')
        else:
            e(f'v_add_f32_dpp v{Z+cc-4}, v{d}, v{d+1} quad_perm:[0,1,2,3] row_mask:0x2 bank_mask:0xf')
            if not w2last:
                e(f'v_bfi_b32 v{Z+cc-4}, {sM12}, {vTA}, v{Z+cc-4}')
    if smf:
        order = [0, 4, 1, 5, 2, 6, 3, 7]
        post = []
        for n, cc in enumerate(order):
            d = DY + 4 * cc
            post.append([f'v_pk_add_f32 v[{d}:{d+1}], v[{d}:{d+1}], v[{d+2}:{d+3}]', f'v_add_f32 v{d}, v{d}, v{d+1}'])
            if cc >= 4:
                d0 = DY + 4 * (cc - 4)
                post[-1] += [f'v_permlane16_swap_b32 v{d0}, v{d}', f'v_add_f32 v{Z+cc-4}, v{d0}, v{d}', f'v_bfi_b32 v{Z+cc-4}, {sM12}, {vTA}, v{Z+cc-4}']
        queue = []
        for n, cc in enumerate(order):
            if n >= 3:
                queue += post[n - 3]
            for T in range(2):
                if n == 0:
                    e(f's_waitcnt lgkmcnt({1-T})')
                e(f'v_smfmac_f32_16x16x64_bf16 {rng("v", DY+4*cc, 4)}, {rng("v", AF+4*T, 4)}, {rng("v", freg(2*T, cc), 8)}, {vIdx}')
                for _ in range(2):
                    if queue:
                        e(queue.pop(0))
        for n in (5, 6, 7):
            queue += post[n]
        for ins in queue:
            e(ins)
        e('s_mov_b32 exec_hi, 0')
    for cc in range(0 if smf else 8):
        for t in range(4):
            if cc == 0:
                e(f's_waitcnt lgkmcnt({3-t})')
            e(f'v_mfma_f32_16x16x32_bf16 {rng("v", DY+4*cc, 4)}, {rng("v", AF+4*t, 4)}, {rng("v", freg(t, cc), 4)}, {0 if w2last and t == 0 else rng("v", DY+4*cc, 4)}')
            if cc >= 2 and t == 1:
                tile_add(cc - 2)
            if cc >= 2 and t == 3:
                tile_fin(cc - 2)
    if w2last:
        def fperm(cc):
            for p in range(2):
                e(f'v_perm_b32 v{G2+2*cc+p}, v{W2L+8*p+4+cc//2}, v{W2L+8*p+cc//2}, {sSelHi if cc & 1 else sSelLo}')
        def fadd(cc):
            e(f'v_add_f32_dpp v{Z+(cc&3)}, v{DY+4*cc}, v{Z+(cc&3)} quad_perm:[0,1,2,3] row_mask:{hex(1 << (cc >> 2))} bank_mask:0xf')
            if cc >= 4:
                e(f'v_bfi_b32 v{Z+cc-4}, {sM12}, {vTA}, v{Z+cc-4}')
        tile_add(6)
        e.wait('w23')
        fperm(0)
        for cc in range(8):
            if cc < 7:
                fperm(cc + 1)
            if cc == 1:
                tile_add(7); tile_fin(6)
            if cc == 2:
                tile_fin(7)
            e(f'v_mfma_f32_16x16x16_bf16 {rng("v", DY+4*cc, 4)}, a[{AH}:{AH+1}], v[{G2+2*cc}:{G2+2*cc+1}], 0')
            if cc >= 3:
                fadd(cc - 3)
        e('s_mov_b32 exec_hi, 0')
        for cc in (5, 6, 7):
            fadd(cc)
    elif not smf:
        tile_add(6)
        e('s_mov_b32 exec_hi, 0')
        tile_add(7)
        tile_fin(6)
        tile_fin(7)
    e(f'buffer_store_dwordx4 {rng("v", Z, 4)}, {vY}, {SWS}, 0 offen {ypol}')
    if dual:
        e(f'buffer_store_dwordx4 {rng("v", Z, 4)}, {vY2}, {SWS}, 0 offen {ypol}')
    if wbl2 is not None:
        e(f's_lshl2_add_u32 {sT1}, s2, {sW}\ns_lshr_b32 {sT2}, {sT1}, 5\ns_and_b32 {sT1}, {sT1}, 3\ns_lshl2_add_u32 {sT1}, {sT2}, {sT1}\ns_cmp_lg_u32 {sT1}, {wbl2 * 4 + 1}\ns_cbranch_scc1 L_nowb\nbuffer_wbl2 sc1\nL_nowb:')
    if cw == 4:
        e(f's_cmp_lg_u32 {sW}, {stwave}\ns_cbranch_scc1 L_end')
        stamp('main,tail')
        if stamps and stset == 'tail':
            e('s_waitcnt vmcnt(0)')
            stamp('tail')
        C = STG
        mA, mB = 's[24:25]', 's[26:27]'
        e(f's_mov_b32 {sSpin}, {spin}\ns_movk_i32 {sT0}, 0x2000\ns_mov_b64 {mA}, -1\ns_mov_b64 {mB}, -1')
        if few:
            e(f's_lshr_b32 {sT1}, s2, 3\ns_and_b32 {sT1}, {sT1}, {few}\ns_cbranch_scc1 L_polled')
        e('L_poll:')
        e(f'''s_mov_b64 exec, {mA}
              buffer_load_dwordx4 {rng("v", C, 4)}, {vCON}, {SWS}, 0 offen sc1
              s_mov_b64 exec, {mB}
              buffer_load_dwordx4 {rng("v", C+4, 4)}, {vCON}, {SWS}, {sT0} offen sc1
              s_sub_u32 {sSpin}, {sSpin}, 1
              s_cbranch_scc1 L_polled
              s_mov_b64 exec, {mA}
              s_waitcnt vmcnt(0)''')
        untag(list(range(C, C + 4)), [vTA] * 4, sM12, dst=mA)
        e(f's_mov_b64 exec, {mB}')
        untag(list(range(C + 4, C + 8)), [vTA] * 4, sM12, dst=mB)
        e(f's_or_b64 vcc, {mA}, {mB}')
        if 'con' in off: e('s_branch L_polled')
        if asleep:
            thr, big = asleep
            e(f'''s_cbranch_scc0 L_polled
                  s_bcnt1_i32_b64 {sT1}, {mA}
                  s_bcnt1_i32_b64 {sT2}, {mB}
                  s_add_u32 {sT1}, {sT1}, {sT2}
                  s_cmp_le_u32 {sT1}, {thr}
                  s_cbranch_scc1 L_poll
                  s_sleep {big}
                  s_branch L_poll''')
        elif sleep:
            e(f's_cbranch_scc0 L_polled\ns_sleep {sleep}\ns_branch L_poll')
        else:
            e('s_cbranch_scc1 L_poll')
        e('L_polled:')
        e('s_mov_b64 exec, -1')
        stamp('main,tail')
        pk('add', C, C, C + 4); pk('add', C + 2, C + 2, C + 6)
        e(f'''v_lshlrev_b32 v{XR}, 16, v{XR}
              v_permlane32_swap_b32 v{C}, v{C+1}
              v_permlane32_swap_b32 v{C+2}, v{C+3}
              v_add_f32 v{C}, v{C}, v{C+1}
              v_add_f32 v{C+2}, v{C+2}, v{C+3}
              v_permlane16_swap_b32 v{C}, v{C+2}
              v_add_f32 v{C}, v{C}, v{C+2}''')
        rowred('v_add_f32', f'v{C}')
        e(f'''v_add_f32 v{C}, v{C}, v{XR}
              v_cvt_pk_bf16_f32 v{C}, v{C}, v{C}
              buffer_store_short v{C}, {vOUT}, {SOUT}, 0 offen''')
    else:
        LP = cw // 4
        NL = LP // 2
        step = (64 // LP) * 128
        C = STG
        mk = [f's[{68+2*k}:{69+2*k}]' for k in range(NL)]
        if stamps:
            e(f's_cmp_lg_u32 {sCon}, 0\ns_cselect_b32 {sT1}, {sW}, 0\ns_cmp_lg_u32 {sT1}, 0\ns_cbranch_scc1 L_end')
            stamp('main,tail,poll')
            if stset == 'poll':
                e('s_waitcnt lgkmcnt(0)\ns_mov_b64 s[6:7], s[4:5]\ns_mov_b64 s[8:9], s[4:5]\ns_mov_b64 s[10:11], s[4:5]\ns_mov_b64 s[12:13], s[4:5]')
            e(f's_mov_b32 {sSpin}, {spin}\ns_cmp_lg_u32 {sCon}, 0\ns_cbranch_scc1 L_nocon')
        else:
            e(f's_cmp_lg_u32 {sCon}, 0\ns_cbranch_scc1 L_end')
        e(f'''s_mov_b32 {sSpin}, {spin}
              s_mov_b32 exec_hi, -1
              s_lshl_b32 {sT1}, {sW}, 8
              v_lshl_add_u32 {t4}, {vL}, 2, {sT1}
              v_lshlrev_b32 {t3}, 2, {vL}
              v_lshlrev_b32 v{XR}, 16, v{XR}''')
        for k in range(NL):
            e(f's_mov_b64 {mk[k]}, -1')
        e('L_poll:')
        if stamps and stset == 'poll':
            e('s_memrealtime s[8:9]')
        for k in range(NL):
            e(f's_mov_b64 exec, {mk[k]}')
            e(f'buffer_load_dwordx4 {rng("v", C+4*k, 4)}, {vCON}, {SWS}, 0 offen offset:{step*k} {ppol}')
        e(f's_sub_u32 {sSpin}, {sSpin}, 1\ns_cbranch_scc1 L_polled')
        for k in range(NL):
            e(f's_mov_b64 exec, {mk[k]}')
            if k == 0:
                e('s_waitcnt vmcnt(0)')
                if stamps and stset == 'poll':
                    e(f's_cmp_lg_u32 {sSpin}, {spin-1}\ns_cbranch_scc1 L_nf\ns_memrealtime s[6:7]\nL_nf:')
                    nst[0] = 3
            untag(list(range(C + 4*k, C + 4*k + 4)), [vTA] * 4, sM12, dst=mk[k])
        if NL == 1:
            e(f's_or_b64 vcc, {mk[0]}, {mk[0]}')
        else:
            e(f's_or_b64 vcc, {mk[0]}, {mk[1]}')
            for k in range(2, NL):
                e(f's_or_b64 vcc, vcc, {mk[k]}')
        if dual:
            thr, big = asleep
            def dcheck(src):
                for k in range(NL):
                    e(f's_mov_b64 exec, {mk[k]}')
                    for r in range(4):
                        e(f'v_xor_b32 v{C+4*k+r}, {vTA}, v{src+4*k+r}')
                    orred(list(range(C + 4*k, C + 4*k + 4)), sM12, mk[k])
                e(f's_or_b64 vcc, {mk[0]}, {mk[-1]}')
                for k in range(1, NL - 1):
                    e(f's_or_b64 vcc, vcc, {mk[k]}')
                e('s_cbranch_scc0 L_polled')
            e('s_cbranch_scc0 L_polled\nL_poll2:')
            e(f's_bcnt1_i32_b64 {sT1}, vcc\ns_cmp_gt_u32 {sT1}, {thr}\ns_cbranch_scc1 L_slp')
            for cp, va in ((0, vC2), (1, vCON)):
                for k in range(NL):
                    e(f's_or_b64 exec, {mk[k]}, 1')
                    e(f'buffer_load_dwordx4 {rng("v", F+4*(NL*cp+k), 4)}, {va}, {SWS}, 0 offen offset:{step*k} {ppol}')
            e(f's_sub_u32 {sSpin}, {sSpin}, 1\ns_cbranch_scc1 L_polled')
            e(f's_waitcnt vmcnt({NL})')
            dcheck(F)
            e('s_waitcnt vmcnt(0)')
            dcheck(F + 4 * NL)
            e(f's_branch L_poll2\nL_slp:\ns_sleep {big}\ns_branch L_poll')
        elif pipe:
            thr, big, P, gapsl = pipe
            e(f'''s_cbranch_scc0 L_polled
                  s_bcnt1_i32_b64 {sT1}, vcc
                  s_cmp_le_u32 {sT1}, {thr}
                  s_cbranch_scc1 L_pp''')
            if big:
                e(f's_sleep {big}')
            e('s_branch L_poll\nL_pp:')
            def pissue(p):
                for k in range(NL):
                    e(f's_or_b64 exec, {mk[k]}, 1')
                    e(f'buffer_load_dwordx4 {rng("v", F+4*(NL*p+k), 4)}, {vCON}, {SWS}, 0 offen offset:{step*k} {ppol}')
            for p in range(P):
                pissue(p)
                if p < P - 1:
                    e(f's_sleep {gapsl + 1}')
            e('L_ppl:')
            for p in range(P):
                e(f's_waitcnt vmcnt({NL*(P-1)})')
                for k in range(NL):
                    e(f's_mov_b64 exec, {mk[k]}')
                    for r in range(4):
                        e(f'v_xor_b32 v{C+4*k+r}, {vTA}, v{F+4*(NL*p+k)+r}')
                    orred(list(range(C + 4*k, C + 4*k + 4)), sM12, mk[k])
                e(f's_or_b64 vcc, {mk[0]}, {mk[-1]}')
                for k in range(1, NL - 1):
                    e(f's_or_b64 vcc, vcc, {mk[k]}')
                e('s_cbranch_scc0 L_polled')
                pissue(p)
                if gapsl:
                    e(f's_sleep {gapsl}')
            e(f's_sub_u32 {sSpin}, {sSpin}, 1\ns_cbranch_scc0 L_ppl')
        elif asleep:
            thr, big = asleep
            e(f'''s_cbranch_scc0 L_polled
                  s_bcnt1_i32_b64 {sT1}, vcc
                  s_cmp_le_u32 {sT1}, {thr}
                  s_cbranch_scc1 L_poll
                  s_sleep {big}
                  s_branch L_poll''')
        elif sleep:
            e(f's_cbranch_scc0 L_polled\ns_sleep {sleep}\ns_branch L_poll')
        else:
            e('s_cbranch_scc1 L_poll')
        e('L_polled:')
        e('s_mov_b64 exec, -1')
        stamp('main,tail,poll')
        if NL == 4:
            pk('add', C, C, C + 4); pk('add', C + 8, C + 8, C + 12); pk('add', C + 2, C + 2, C + 6); pk('add', C + 10, C + 10, C + 14)
            pk('add', C, C, C + 8); pk('add', C + 2, C + 2, C + 10)
        elif NL == 2:
            pk('add', C, C, C + 4); pk('add', C + 2, C + 2, C + 6)
        e(f'''v_permlane32_swap_b32 v{C}, v{C+1}
              v_permlane32_swap_b32 v{C+2}, v{C+3}
              v_add_f32 v{C}, v{C}, v{C+1}
              v_add_f32 v{C+2}, v{C+2}, v{C+3}
              v_permlane16_swap_b32 v{C}, v{C+2}
              v_add_f32 v{C}, v{C}, v{C+2}''')
        for d in (8, 4, 2):
            if LP <= d:
                e(f'v_add_f32_dpp v{C}, v{C}, v{C} row_ror:{d} row_mask:0xf bank_mask:0xf')
        e(f'''ds_write_b32 {t4}, v{C}
              s_waitcnt lgkmcnt(0)
              s_barrier
              s_cmp_lg_u32 {sW}, {stwave}
              s_cbranch_scc1 L_end''')
        stamp('poll')
        e(f'''ds_read2st64_b32 v[{C}:{C+1}], {t3} offset0:0 offset1:1
              ds_read2st64_b32 v[{C+2}:{C+3}], {t3} offset0:2 offset1:3
              s_waitcnt lgkmcnt(0)''')
        pk('add', C, C, C + 2)
        e(f'''v_add_f32 v{C}, v{C}, v{C+1}
              v_add_f32 v{C}, v{C}, v{XR}
              v_cvt_pk_bf16_f32 v{C}, v{C}, v{C}
              buffer_store_short v{C}, {vOUT}, {SOUT}, 0 offen {opol}''')
    e(f'''s_cmp_eq_u32 s2, 0
          s_cselect_b32 {sT0}, {WS_EP}, {OOB}
          v_mov_b32 {t2}, {sEp}
          v_mov_b32 {t3}, {sT0}
          s_mov_b64 exec, 1
          buffer_store_dword {t2}, {t3}, {SWS}, 0 offen {epol}''')
    if fixdur:
        e('s_cmp_lg_u32 s2, 0\ns_cbranch_scc1 L_end')
        if amp == -1:
            e(f's_waitcnt vmcnt(0)\ns_memrealtime s[24:25]\ns_waitcnt lgkmcnt(0)\ns_sub_u32 s1, s24, s100\ns_mul_i32 s1, s1, 10\ns_add_u32 s1, s1, {fixdur}')
        elif amp is not None:
            e(f's_waitcnt lgkmcnt(0)\ns_sub_u32 s1, s{stamp_regs[amp]}, s100\ns_mul_i32 s1, s1, 10\ns_add_u32 s1, s1, {fixdur}')
        else:
            e(f's_mov_b32 s1, {fixdur}')
        e('L_hold:\ns_memrealtime s[24:25]\ns_waitcnt lgkmcnt(0)\ns_sub_u32 s24, s24, s100\ns_cmp_lt_u32 s24, s1\ns_cbranch_scc1 L_hold\ns_endpgm')
    if stamps:
        if cw != 4:
            e(f's_branch L_st\nL_nocon:\ns_mov_b64 exec, 1\ns_waitcnt lgkmcnt(0)\ns_mov_b64 s[{stamp_regs[nst[0]-1]}:{stamp_regs[nst[0]-1]+1}], s[{stamp_regs[nst[0]-2]}:{stamp_regs[nst[0]-2]+1}]\nL_st:')
        stamp('tail')
        e('s_waitcnt vmcnt(0)')
        stamp('main,tail,head,poll')
        e(f's_waitcnt lgkmcnt(0)\ns_lshl_b32 s0, {sId}, 7\ns_add_u32 s0, s0, 0x20000000\nv_mov_b32 v0, 0')
        for k, r in enumerate([100] + stamp_regs[:nst[0]]):
            e(f'v_mov_b32 v2, s{r}\nv_mov_b32 v3, s{r+1}\nbuffer_store_dwordx2 v[2:3], v0, s[20:23], s0 offen offset:{8*k}')
        if clk:
            e(f's_memtime s[24:25]\ns_waitcnt lgkmcnt(0)\ns_sub_u32 s24, s24, s98\ns_sub_u32 {sSpin}, 400000, s24')
            e(f'v_mov_b32 v2, 0\nv_mov_b32 v3, {sSpin}\nbuffer_store_dwordx2 v[2:3], v0, s[20:23], s0 offen offset:120')
        if dbgcnt:
            e(f'v_mov_b32 v2, {sCnt}\nv_mov_b32 v3, {sSpin}\nbuffer_store_dwordx2 v[2:3], v0, s[20:23], s0 offen offset:120')
    e('L_end:\ns_endpgm')
    for f in slow:
        f()
    e('L_codeend:')
    e.raw('.section .rodata,"a"\n.p2align 6')
    e.raw(kernel_desc(K, 512, 102, accum=256))
    return e.text(), LDS, nst[0] + 1, e.nops

if __name__ == '__main__':
    cfgs = {}
    def add(name, **kw):
        cfgs[name] = kw
    exec(open(sys.argv[1]).read())
    BF = os.environ.get('BFLAGS', '-n 15 -c')
    os.makedirs('co', exist_ok=True)
    names = []
    for name, kw in cfgs.items():
        t, lds, ns, nops = gen(**kw)
        build(t, f'co/{name}')
        st = f'-t {ns}' if kw.get('stamps') else ''
        names.append(f'co/{name}.co')
        print(name, 'nops', nops, 'len', len(t))
    open('run.sh', 'w').write(f'#!/bin/bash\ntimeout 300 ./bench {BF} {st} {NAME}_kernel:256:256:{lds} ' + ' '.join(names) + '\n')
```

```python
import sys, os
from asmlib import NAME, kernel_desc, build
from emit import Emit

FU_STRIDE = 2176
WS_Y, WS_Q, WS_ML, WS_EP, WS_FU = 0, 0x80000, 0xC0000, 0xC4000, 0xC5000
WS_END = WS_FU + 256 * FU_STRIDE
WS_Y2 = 0x180000
OOB = 0x40000000
LOG2E = 0x3fb8aa3b
SCALE = 0x3db504f3

def bitrev4(n):
    return ((n & 1) << 3) | ((n & 2) << 1) | ((n & 4) >> 1) | ((n & 8) >> 3)

REF = 'cdna_kernels/' + NAME + '.s.ref'
HEADER = open(REF).read().split('; Override launch')[0] if os.path.exists(REF) else ''

NOTES = '''; Design: one launch, 256 workgroups = (batch, head, quarter of the 4096-key window) x 4 waves, one per CU.
;  - The q projection and FFN-up are split by rows over workgroups and handed over through d_ws; every wave
;    exchanges its softmax (max, sum); each workgroup applies wo and 12 rows of w2 to its share and publishes a
;    512-column partial; 64 workgroups sum 16 output columns each.
;  - Every hand-off word carries this launch's tag (the epoch word found in d_ws, + 1) in its low mantissa bits
;    finds another launch's tag or another XCD re-publishes its own words write-through and polls (bounded).'''

def gen(D=9, k0=2, k1=2, ksp=(1, 1, 1, 1, 1), kpost=(1, 1, 1), n_q=24, gap=None, catch=3, wo_start=8, wo_end=50, n_ml=30,
        ex0=0, vring=16, rotmul=5, sleep=2, codepf=True, tailpf=None, pol='nt', wpol='nt', xpol='', gpol='', spin=400000,
        stamps=False, dbgcnt=False, off=(), permtest=False, fixdur=0, amp=None, stset='main', stwave=0, touch=(), Dend=None, nend=44, Dk=None, kw=False, ypol='sc1', asleep=(8, 6), n_fg=None, few=0, clk=False, cw=16, ypf=None, ypfpol='sc1', ppol='sc1', pipe=None, cpf0=True, wbl2=None, woa=None, w2a=None, al4=False, slowpen=0, opf=None, opol='', epol='', w2last=False, qpol=None, fpol=None, mpol=None, pre=None, mlpre=None, quads=None, smf=False, rotk=None, rotf=None, dual=False, ypar=None):
    qpol, fpol, mpol = [gpol if p is None else p for p in (qpol, fpol, mpol)]
    gap = gap or D + 1
    e = Emit()
    K = NAME + '_kernel'
    LDS_O = 8192
    LDS = LDS_O + 2048
    sW = 's3'
    SK, SV, SWQ, SWO, SFU, SW2, SX, SWS, SOUT, SCODE = [f's[{b}:{b+3}]' for b in range(28, 68, 4)]
    sXc, sJ, sHH, sH, sB, sS, sS8, sBH, sC0, sNch, sT0, sT1, sT2, sKoff, sVoff, sMask, sPB, sU, sXcc, sId = [f's{n}' for n in range(68, 88)]
    sSelLo, sSelHi, sSpin, sM8, sM12, sM3 = [f's{n}' for n in range(88, 94)]
    sMC, sMA = 's[94:95]', 's[96:97]'
    sEp, sCon = 's0', 's1'
    sCnt = 's98'
    stamp_regs = [4, 6, 8, 10, 12, 14, 16, 18]
    nst = [0]
    def stamp(which='main'):
        if stamps and stset in which.split(','):
            r = stamp_regs[nst[0]]
            e(f's_memrealtime s[{r}:{r+1}]')
            nst[0] += 1
    vKO, M, Q, S, vY, vL = 'v1', [2, 3, 4, 5], [6, 7, 8, 9], [10, 11, 12, 13], 'v14', 'v15'
    A = [16, 20]
    ACC = 24
    g, i, t2, t3, t4, t5 = [f'v{k}' for k in range(28, 34)]
    vM, vLs = 'v34', 'v35'
    vXG, vWQ, vFU = 'v34', 'v35', 'v36'
    vMG, vML, vTB = 'v36', 'v37', 'v38'
    vQG, vWO, vW2, vFG, vOUT, vCON, vOW, vOR, vF = [f'v{k}' for k in range(39, 48)]
    vTA = 'v0'
    vIdx = vFG
    vY2, vC2 = vM, vLs
    KBASE, KRING = 48, 52
    kreg = lambda n: KBASE + 4 * (n % KRING)
    vreg = lambda n: 4 * (n % vring)
    rng = lambda p, b, n: f'{p}[{b}:{b+n-1}]'
    AWQ, AFU = 192, 208
    AH = 244
    AQD, AFD, AQA, AFA = 224, 228, 232, 233
    assert 4 * vring <= AWQ

    e.raw(HEADER.rstrip('\n'))
    e.raw(NOTES)
    e.raw(f'; @launch grid=(256,1,1) block=(256,1,1) lds={LDS}')
    e.raw('.amdgcn_target "amdgcn-amd-amdhsa--gfx950"\n.text')
    e.raw(f'.globl {K}\n.p2align 8\n.type {K},@function\n{K}:')
    e('s_load_dwordx16 s[4:19], s[0:1], 0\ns_load_dwordx8 s[20:27], s[0:1], 64')
    if stamps or fixdur:
        e('s_memrealtime s[100:101]')
    if clk:
        e('s_memtime s[98:99]')
    e('s_cmp_ge_u32 s2, 256\ns_cbranch_scc1 L_end')
    if stamps:
        e(f's_mov_b32 {sId}, s2')
    if permtest:
        e(f's_lshr_b32 {sT0}, s2, 5\ns_and_b32 s2, s2, 31\ns_lshl_b32 s2, s2, 3\ns_or_b32 s2, s2, {sT0}')
    e('; ---- workgroup id: x = id&7 (one XCD when dealt round-robin; speed only), j = id>>3; head 4x+(j>>3), batch, quarter')
    e(';      the K/V blocks are visited in an order rotated by 3*id so that workgroups do not march over the same channels')
    e(f'''s_and_b32 {sXc}, s2, 7
          s_lshr_b32 {sJ}, s2, 3
          s_lshr_b32 {sHH}, s2, 6
          s_lshl2_add_u32 {sH}, {sXc}, {sHH}
          s_bfe_u32 {sB}, s2, 0x10005
          s_and_b32 {sS}, {sJ}, 3
          s_lshl_b32 {sBH}, {sB}, 5
          s_add_u32 {sBH}, {sBH}, {sH}
          s_lshl4_add_u32 {sT0}, {sBH}, {sS}
          s_add_u32 {sT0}, {sT0}, 12
          s_lshl_b32 {sT0}, {sT0}, 18
          s_mul_i32 {sKoff}, s2, {rotmul << 12}
          s_mov_b32 {sMask}, 0x3ffff
          s_and_b32 {sKoff}, {sKoff}, {sMask}
          v_lshlrev_b32 {vKO}, 4, v0
          s_mov_b32 s30, 0x40000
          s_mov_b32 s31, 0x20000
          v_lshrrev_b32 v2, 6, v0
          v_and_b32 {vL}, 63, v0
          s_mov_b32 {sVoff}, {sKoff}
          v_readfirstlane_b32 {sW}, v2''')
    vKA = vKO
    if rotf:
        e(f'''s_mul_i32 {sKoff}, {sXc}, {rotf[0] << 12}
              s_mul_i32 {sT1}, {sS}, {rotf[1] << 12}
              s_add_u32 {sKoff}, {sKoff}, {sT1}
              s_mul_i32 {sT1}, {sB}, {rotf[2] << 12}
              s_add_u32 {sKoff}, {sKoff}, {sT1}
              s_mul_i32 {sT1}, {sHH}, {rotf[3] << 12}
              s_add_u32 {sKoff}, {sKoff}, {sT1}
              s_and_b32 {sKoff}, {sKoff}, {sMask}
              s_mov_b32 {sVoff}, {sKoff}''')
    if rotk:
        e(f'''v_lshlrev_b32 {vKA}, 4, {vL}
              s_mul_i32 {sKoff}, s2, {rotk}
              s_add_u32 {sKoff}, {sKoff}, {sW}
              s_lshl_b32 {sKoff}, {sKoff}, 10
              s_and_b32 {sKoff}, {sKoff}, {sMask}
              s_mov_b32 {sVoff}, {sKoff}''')
    if codepf and cpf0:
        e(f'''s_getpc_b64 s[64:65]
              L_pc:
              s_mov_b32 s66, L_codeend - L_pc
              s_mov_b32 s67, 0x20000
              s_lshl_b32 {sT1}, {sJ}, 10
              v_lshl_add_u32 {t2}, v0, 2, {sT1}''')
        e.vmem(f'buffer_load_dword {vF}, {t2}, {SCODE}, 0 offen', 'cpf')
    e(f'''s_waitcnt lgkmcnt(0)
          s_add_u32 s28, s6, {sT0}
          s_addc_u32 s29, s7, 0''')
    if stamps and stset == 'head':
        e('s_memrealtime s[14:15]')
    kn = [0]
    def kissue():
        n = kn[0]
        e.vmem(f'buffer_load_dwordx4 {rng("v", kreg(n), 4)}, {vKA}, {SK}, {sKoff} offen {pol}', f'K{n}')
        e(f's_addk_i32 {sKoff}, 0x1000\ns_and_b32 {sKoff}, {sKoff}, {sMask}')
        kn[0] += 1
    def kspr():
        if kw:
            k = len(e.vm) - (Dk or D)
            if k >= e.done:
                e.wait(e.vm[k])
        kissue()
    for _ in range(k0):
        kissue()
    XL, XU, XG, DQ, DF = 208, 216, 232, 236, 240
    e(f'''s_load_dword {sEp}, s[26:27], {WS_EP}
          s_add_u32 s32, s8, {sT0}
          s_addc_u32 s33, s9, 0
          s_mov_b32 s52, s4
          s_mov_b32 s53, s5
          s_mov_b32 s54, 2048
          s_mov_b32 s55, 0x20000
          v_lshlrev_b32 {t2}, 5, {vL}''')
    e.vmem(f'buffer_load_dwordx4 {rng("v", XL, 4)}, {t2}, {SX}, 0 offen {xpol}', 'xl0')
    e.vmem(f'buffer_load_dwordx4 {rng("v", XL+4, 4)}, {t2}, {SX}, 0 offen offset:16 {xpol}', 'xl1')
    e("; ---- this workgroup's rows of the q projection (64 rows of wq, columns of its head) -> a[192:207]")
    e(f'''s_and_b32 {sS8}, {sJ}, 7
          v_lshrrev_b32 {g}, 4, {vL}
          v_and_b32 {i}, 15, {vL}
          s_lshl_b32 {sT1}, {sS8}, 19
          s_lshl_b32 {sT2}, {sH}, 8
          s_add_u32 {sT1}, {sT1}, {sT2}
          s_add_u32 s36, s10, {sT1}
          s_addc_u32 s37, s11, 0
          s_mov_b32 s38, {63*8192+256}
          s_mov_b32 s39, 0x20000
          v_lshrrev_b32 {t3}, 4, v0
          v_and_b32 {t4}, 12, {t3}
          v_lshl_add_u32 {t3}, {t4}, 2, {g}
          v_lshlrev_b32 {t3}, 13, {t3}
          v_lshl_add_u32 {vWQ}, {i}, 4, {t3}''')
    if 'wq' in off: e(f'v_mov_b32 {vWQ}, {OOB}')
    for t in range(4):
        if t:
            e(f's_mov_b32 {sT2}, {32768*t}')
        e.vmem(f'buffer_load_dwordx4 {rng("a", AWQ+4*t, 4)}, {vWQ}, {SWQ}, {sT2 if t else 0} offen {wpol}', f'wq{t}')
    e("; ---- this workgroup's block of FFN-up (32 rows of w1 / w3, <= 12 sixteen-byte chunks) -> a[208:223]")
    HB = 12 if al4 else 11
    if quads:
        assert sum(quads) == 43 and max(quads) <= 6
        pref = [sum(quads[:k]) for k in range(8)]
        lo = sum(p << (8 * k) for k, p in enumerate(pref[:4])); hi = sum(p << (8 * k) for k, p in enumerate(pref[4:]))
        cnt = sum(q << (4 * k) for k, q in enumerate(quads))
        e(f'''s_mov_b32 {sT1}, {hex(lo)}
              s_mov_b32 {sT2}, {hex(hi)}
              s_cmp_lt_u32 {sXc}, 4
              s_cselect_b32 {sT1}, {sT1}, {sT2}
              s_lshl_b32 {sT2}, {sXc}, 3
              s_lshr_b32 {sT1}, {sT1}, {sT2}
              s_and_b32 {sC0}, {sT1}, 0xff
              s_lshl_b32 {sC0}, {sC0}, 2
              s_lshl_b32 {sT2}, {sXc}, 2
              s_lshr_b32 {sT1}, {hex(cnt)}, {sT2}
              s_and_b32 {sNch}, {sT1}, 15
              s_lshl_b32 {sNch}, {sNch}, 2''')
    elif al4:
        e(f'''s_mul_i32 {sC0}, {sXc}, 43
              s_add_u32 {sNch}, {sC0}, 47
              s_add_u32 {sC0}, {sC0}, 4
              s_lshr_b32 {sC0}, {sC0}, 3
              s_lshr_b32 {sNch}, {sNch}, 3
              s_sub_u32 {sNch}, {sNch}, {sC0}
              s_lshl_b32 {sC0}, {sC0}, 2
              s_lshl_b32 {sNch}, {sNch}, 2''')
        assert [(43*x+47 >> 3) - (43*x+4 >> 3) for x in range(8)].count(6) == 3 and (43*8+4) >> 3 == 43
    else:
        e(f'''s_mul_i32 {sC0}, {sXc}, 43
              s_add_u32 {sC0}, {sC0}, 1
              s_lshr_b32 {sC0}, {sC0}, 1
              s_and_b32 {sT1}, {sXc}, 1
              s_sub_u32 {sNch}, 22, {sT1}''')
    e(f'''s_sub_u32 {sPB}, {sNch}, {HB}
          s_and_b32 {sT2}, {sJ}, 1
          s_cselect_b32 {sPB}, {sPB}, {HB}
          s_mul_i32 {sT2}, {sT2}, {HB}
          s_add_u32 {sT2}, {sT2}, {sC0}
          s_and_b32 {sT1}, {sW}, 1
          s_and_b32 {sT0}, {sJ}, 30
          s_add_u32 {sT1}, {sT1}, {sT0}
          s_lshl_b32 {sT1}, {sT1}, 4
          v_add_u32 {t3}, {sT1}, {g}
          v_mul_u32_u24 {t3}, 2752, {t3}
          v_cmp_gt_u32 vcc, {sPB}, {i}
          v_add_u32 {t4}, {sT2}, {i}
          v_lshl_add_u32 {t3}, {t4}, 4, {t3}
          v_mov_b32 {t5}, {OOB}
          v_cndmask_b32 {vFU}, {t5}, {t3}, vcc
          s_cmp_lt_u32 {sW}, 2
          s_cselect_b32 s44, s16, s18
          s_cselect_b32 s45, s17, s19
          s_mov_b32 s46, {512*2752}
          s_mov_b32 s47, 0x20000''')
    if 'fu' in off: e(f'v_mov_b32 {vFU}, {OOB}')
    for t in range(4):
        if t:
            e(f's_mov_b32 {sT2}, {11008*t}')
        e.vmem(f'buffer_load_dwordx4 {rng("a", AFU+4*t, 4)}, {vFU}, {SFU}, {sT2 if t else 0} offen {wpol}', f'fu{t}')
    e(f'''s_lshl2_add_u32 {sT0}, {sS8}, {sW}
          s_lshl_b32 {sT0}, {sT0}, 4
          v_and_b32 {t5}, 4, {vL}
          v_cmp_eq_u32 vcc, 0, {t5}
          v_mov_b32 {t4}, {sT0}
          v_mov_b32 {t5}, {sT1}
          v_and_b32 {t3}, 3, {vL}
          v_cndmask_b32 {t4}, {t5}, {t4}, vcc
          v_lshl_add_u32 {t3}, {t3}, 2, {g}
          v_bfe_u32 {t5}, {vL}, 3, 1
          v_add_u32 {t3}, {t3}, {t4}
          v_lshl_add_u32 {t3}, {t5}, 9, {t3}
          v_lshlrev_b32 {vXG}, 1, {t3}''')
    e.vmem(f'buffer_load_ushort v{XG}, {vXG}, {SX}, 0 offen {xpol}', 'xg')
    for _ in range(k1):
        kissue()
    e(f'''s_mov_b32 s34, 0x40000
          s_mov_b32 s35, 0x20000
          s_lshl_b32 {sT0}, {sH}, 17
          s_add_u32 s40, s12, {sT0}
          s_addc_u32 s41, s13, 0
          s_mov_b32 s42, 0x20000
          s_mov_b32 s43, 0x20000
          s_mov_b32 s48, s20
          s_mov_b32 s49, s21
          s_mov_b32 s50, {1376*1024}
          s_mov_b32 s51, 0x20000
          s_mov_b32 s56, s26
          s_mov_b32 s57, s27
          s_mov_b32 s58, {0x200000 if dual else WS_END}
          s_mov_b32 s59, 0x20000
          s_mov_b32 s60, s22
          s_mov_b32 s61, s23
          s_mov_b32 s62, 2048
          s_mov_b32 s63, 0x20000''')
    if stamps:
        e('s_mov_b32 s20, s26\ns_mov_b32 s21, s27\ns_mov_b32 s22, 0x40000000\ns_mov_b32 s23, 0x20000')
    if (codepf or tailpf is not None) and not (codepf and cpf0):
        e('s_getpc_b64 s[64:65]\nL_pc:\ns_mov_b32 s66, L_codeend - L_pc\ns_mov_b32 s67, 0x20000')
    if touch:
        e(f'v_mov_b32 {t2}, 0')
        for k, nm in enumerate(touch):
            srd = dict(V=SV, wo=SWO, w2=SW2, ws=SWS, out=SOUT)[nm]
            e.vmem(f'buffer_load_dword {vF}, {t2}, {srd}, 0 offen nt', 'touch' + nm)
    if codepf and not cpf0:
        e(f'''s_lshl2_add_u32 {sT0}, {sJ}, {sW}
              s_lshl_b32 {sT0}, {sT0}, 8
              v_lshl_add_u32 {t2}, {vL}, 2, {sT0}''')
        e.vmem(f'buffer_load_dword {vF}, {t2}, {SCODE}, 0 offen', 'cpf')
    if pre is not None:
        e(f'''s_lshl3_add_u32 {sT0}, {sH}, {sS8}
              s_lshl2_add_u32 {sT0}, {sT0}, {sW}
              s_lshl_b32 {sT0}, {sT0}, 8
              s_add_u32 {sT0}, {sT0}, {WS_Q}
              s_lshl_b32 {sT1}, {sXc}, 5
              s_add_u32 {sT1}, {sT1}, {sJ}
              s_mul_i32 {sT1}, {sT1}, {FU_STRIDE}
              s_lshl_b32 {sT2}, {sW}, 9
              s_add_u32 {sT1}, {sT1}, {sT2}
              s_add_u32 {sT1}, {sT1}, {WS_FU - 256}
              v_mov_b32 {t2}, {sT0}
              v_mov_b32 {t3}, {sT1}
              v_cmp_gt_u32 vcc, 2, {vL}
              v_mov_b32 {t4}, {OOB}
              v_cndmask_b32 {t2}, {t3}, {t2}, vcc
              v_cmp_gt_u32 vcc, 5, {vL}
              v_lshl_add_u32 {t2}, {vL}, 7, {t2}
              v_cndmask_b32 {t2}, {t4}, {t2}, vcc''')
        e.vmem(f'buffer_load_dword a{AH+2}, {t2}, {SWS}, 0 offen {pre}', 'pre')
    e(f'''v_and_b32 {t2}, 1, {vL}
          v_lshlrev_b32 {t2}, 4, {t2}
          v_mov_b32 {t3}, 0xffff
          v_lshlrev_b32 {t2}, {t2}, {t3}
          v_bfe_u32 {t3}, {vL}, 1, 2
          v_cmp_eq_u32 s[4:5], 0, {t3}
          v_cmp_eq_u32 s[6:7], 1, {t3}
          v_cmp_eq_u32 s[8:9], 2, {t3}
          v_cmp_eq_u32 s[10:11], 3, {t3}''')
    for r in range(4):
        e(f'v_cndmask_b32 v{M[r]}, 0, {t2}, s[{4+2*r}:{5+2*r}]')
    e(f'''s_mov_b32 s94, 0xcccccccc
          s_mov_b32 s95, 0xcccccccc
          s_mov_b32 s96, 0xaaaaaaaa
          s_mov_b32 s97, 0xaaaaaaaa
          s_mov_b32 {sSelLo}, 0x05040100
          s_mov_b32 {sSelHi}, 0x07060302
          s_movk_i32 {sM8}, 0xff
          s_movk_i32 {sM12}, 0xfff
          s_movk_i32 {sM3}, 7
          s_getreg_b32 {sXcc}, hwreg(HW_REG_XCC_ID, 0, 4)''')
    if dbgcnt:
        e(f's_mov_b32 {sCnt}, 0')

    def rowred(op, r):
        for c in ('row_ror:8', 'row_ror:4', 'row_ror:2', 'row_ror:1'):
            e(f'{op}_dpp {r}, {r}, {r} {c} row_mask:0xf bank_mask:0xf')
    def swapred(op, r, tmp, n):
        e(f'v_mov_b32 {tmp}, {r}\nv_permlane{n}_swap_b32 {r}, {tmp}\n{op} {r}, {r}, {tmp}')
    def bf16r(dst, src):
        e(f'v_cvt_pk_bf16_f32 {dst}, {src}, {src}\nv_and_b32 {dst}, 0xffff0000, {dst}')
    def pk(op, d, a, b):
        e(f'v_pk_{op}_f32 v[{d}:{d+1}], v[{a}:{a+1}], v[{b}:{b+1}]')

    if stamps and stset == 'head':
        e.wait('K0')
        e('s_waitcnt lgkmcnt(0)\ns_mov_b64 s[4:5], s[14:15]')
        nst[0] = 1
        stamp('head')
    e.wait('xl1')
    stamp('main,head')
    for k in range(8):
        e(f'v_lshlrev_b32 v{XU+2*k}, 16, v{XL+k}\nv_and_b32 v{XU+2*k+1}, 0xffff0000, v{XL+k}')
    for k in range(4):
        pk('add', XL + 2 * k, XU + 4 * k, XU + 4 * k + 2)
    pk('add', XL, XL, XL + 2); pk('add', XL + 4, XL + 4, XL + 6); pk('add', XL, XL, XL + 4)
    e(f'v_add_f32 {t2}, v{XL}, v{XL+1}')
    for _ in range(ksp[0]): kspr()
    rowred('v_add_f32', t2)
    swapred('v_add_f32', t2, t3, 16)
    e(f'v_mul_f32 {t2}, 0x3b000000, {t2}')
    for k in range(0, 16, 2):
        e(f'v_pk_add_f32 v[{XU+k}:{XU+k+1}], v[{XU+k}:{XU+k+1}], v[30:31] op_sel_hi:[1,0] neg_lo:[0,1] neg_hi:[0,1]')
    for _ in range(ksp[1]): kspr()
    pk('mul', XL, XU, XU); pk('mul', XL + 2, XU + 2, XU + 2)
    for k in range(4, 16, 4):
        e(f'v_pk_fma_f32 v[{XL}:{XL+1}], v[{XU+k}:{XU+k+1}], v[{XU+k}:{XU+k+1}], v[{XL}:{XL+1}]')
        e(f'v_pk_fma_f32 v[{XL+2}:{XL+3}], v[{XU+k+2}:{XU+k+3}], v[{XU+k+2}:{XU+k+3}], v[{XL+2}:{XL+3}]')
    pk('add', XL, XL, XL + 2)
    e(f'v_add_f32 {t4}, v{XL}, v{XL+1}')
    for _ in range(ksp[2]): kspr()
    rowred('v_add_f32', t4)
    swapred('v_add_f32', t4, t3, 16)
    e(f'v_mul_f32 {t4}, 0x3b000000, {t4}')
    bf16r(t2, t2)
    bf16r(t4, t4)
    e(f'v_add_f32 {t4}, 0x3727c5ac, {t4}')
    bf16r(t4, t4)
    e(f'v_sqrt_f32 {t4}, {t4}')
    bf16r(t4, t4)
    e(f'''v_mov_b32 {t3}, {t2}
          v_mov_b32 {t5}, {t4}
          v_and_b32 v{XL}, 8, {vL}
          v_permlane32_swap_b32 {t2}, {t3}
          v_permlane32_swap_b32 {t4}, {t5}
          v_cmp_eq_u32 vcc, 0, v{XL}
          v_cndmask_b32 {t2}, {t3}, {t2}, vcc
          v_cndmask_b32 {t4}, {t5}, {t4}, vcc''')
    e.wait('xg')
    XN = f'v{XG}'
    e(f'v_lshlrev_b32 {XN}, 16, {XN}\nv_sub_f32 {XN}, {XN}, {t2}\nv_rcp_f32 {t5}, {t4}')
    bf16r(XN, XN)
    e(f'''v_mul_f32 {t2}, {XN}, {t5}
          v_fma_f32 {t3}, -{t2}, {t4}, {XN}
          v_fmac_f32 {t2}, {t3}, {t5}
          v_cvt_pk_bf16_f32 {XN}, {t2}, {t2}''')
    for _ in range(ksp[3]): kspr()
    for t in range(8):
        a = A[t & 1]
        for r in range(4):
            e(f'v_and_b32_dpp v{a+r}, {XN}, v{M[r]} row_newbcast:{t} row_mask:0xf bank_mask:0x3')
        for r in range(4):
            e(f'v_and_b32_dpp v{a+r}, {XN}, v{M[r]} row_newbcast:{t+8} row_mask:0xf bank_mask:0xc')
        if t < 4:
            e(f'v_mfma_f32_16x16x32_bf16 {rng("v", DQ, 4)}, {rng("v", a, 4)}, {rng("a", AWQ+4*t, 4)}, {rng("v", DQ, 4) if t else 0}')
        else:
            e(f'v_mfma_f32_16x16x32_bf16 {rng("v", DF, 4)}, {rng("v", a, 4)}, {rng("a", AFU+4*(t-4), 4)}, {rng("v", DF, 4) if t > 4 else 0}')
        if t == 3:
            for _ in range(ksp[4]): kspr()
    vLW = vKO
    if rotk:
        vLW = 'v212'
        e(f'v_lshlrev_b32 {vLW}, 4, v0')
    e(f'ds_write_b128 {vLW}, {rng("v", DQ, 4)}')
    vRF, vRQ, vSF, vSQ = 'v208', 'v209', 'v210', 'v211'
    e(f'''s_lshr_b32 {sT0}, {sW}, 1
          s_lshl_b32 {sT0}, {sT0}, 9
          s_and_b32 {sT1}, {sW}, 1
          s_lshl3_add_u32 {sT0}, {sT1}, {sT0}
          v_and_b32 {t3}, 31, {vL}
          v_lshl_add_u32 {vRF}, {t3}, 4, {sT0}
          s_lshl_b32 {sT0}, {sW}, 8
          v_lshl_add_u32 {vRQ}, {i}, 4, {sT0}
          ds_write_b128 {vLW}, {rng("v", DF, 4)} offset:4096
          s_lshl_b32 {sT1}, {sXc}, 5
          s_add_u32 {sT1}, {sT1}, {sJ}
          s_mul_i32 {sT1}, {sT1}, {FU_STRIDE}
          s_lshl1_add_u32 {sT1}, {sT0}, {sT1}
          s_add_u32 {sT1}, {sT1}, {WS_FU}
          v_and_b32 {t3}, 47, {vL}
          v_cmp_gt_u32 vcc, {sPB}, {t3}
          v_lshl_add_u32 {t3}, {i}, 1, {g}
          v_lshl_add_u32 {t3}, {t3}, 4, {sT1}
          v_mov_b32 {t5}, {OOB}
          v_cndmask_b32 {vSF}, {t5}, {t3}, vcc
          s_lshl3_add_u32 {sT1}, {sH}, {sS8}
          s_lshl_b32 {sT1}, {sT1}, 10
          s_add_u32 {sT1}, {sT1}, {WS_Q}
          v_add_u32 {t3}, {sT1}, {vRQ}
          v_cmp_gt_u32 vcc, 16, {vL}
          v_cndmask_b32 {vSQ}, {t5}, {t3}, vcc''')
    if 'pub' in off: e(f'v_mov_b32 {vSF}, {OOB}\nv_mov_b32 {vSQ}, {OOB}')
    stamp('head')
    e('s_waitcnt lgkmcnt(0)\ns_barrier')
    stamp('main,head')
    R0, R1 = 216, 232
    for k in range(4):
        e(f'ds_read_b128 {rng("v", R0+4*k, 4)}, {vRQ} offset:{1024*k}')
    for k in range(4):
        e(f'ds_read_b64 v[{R1+2*k}:{R1+2*k+1}], {vRF} offset:{4096+1024*k}')
    e('; ---- hand-off tags: A = epoch + 1, B = A ^ XCD of the writer; publish the q and FFN-up partials')
    e(f'''s_add_u32 {sEp}, {sEp}, 1
          s_and_b32 {sT1}, {sEp}, {sM12}
          v_mov_b32 {vTA}, {sT1}
          v_xor_b32 {vTB}, {sXcc}, {vTA}
          s_xor_b32 {sXcc}, {sXcc}, {sEp}
          v_accvgpr_write_b32 a{AQA}, {vSQ}
          v_accvgpr_write_b32 a{AFA}, {vSF}
          s_waitcnt lgkmcnt(4)''')
    def tag(r, vts, m):
        for k, vt in enumerate(vts):
            e(f'v_bfi_b32 v{r+k}, {m}, {vt}, v{r+k}')
    pk('add', R0, R0, R0 + 4); pk('add', R0 + 2, R0 + 2, R0 + 6); pk('add', R0 + 8, R0 + 8, R0 + 12); pk('add', R0 + 10, R0 + 10, R0 + 14)
    pk('add', R0, R0, R0 + 8); pk('add', R0 + 2, R0 + 2, R0 + 10)
    tag(R0, [vTA, vTA, vTB, vTB], sM3)
    e.vmem(f'buffer_store_dwordx4 {rng("v", R0, 4)}, {vSQ}, {SWS}, 0 offen', 'pubq')
    e(f'''s_waitcnt lgkmcnt(0)
          v_add_f32 v{R1+8}, v{R1}, v{R1+2}
          v_add_f32 v{R1+9}, v{R1+4}, v{R1+6}
          v_add_f32 v{R1+10}, v{R1+1}, v{R1+3}
          v_add_f32 v{R1+11}, v{R1+5}, v{R1+7}''')
    tag(R1 + 8, [vTA, vTA, vTA, vTB], sM8)
    e.vmem(f'buffer_store_dwordx4 {rng("v", R1+8, 4)}, {vSF}, {SWS}, 0 offen', 'pubf')
    for k in range(4):
        e(f'v_accvgpr_write_b32 a{AQD+k}, v{R0+k}\nv_accvgpr_write_b32 a{AFD+k}, v{R1+8+k}')
    for _ in range(kpost[0]): kspr()

    e(f'''s_lshl2_add_u32 {sPB}, {sH}, {sS}
          s_lshl2_add_u32 {sT0}, {sB}, {sW}
          s_lshl_b32 {sT0}, {sT0}, 9
          s_add_u32 {sT0}, {sT0}, {sPB}
          s_lshl_b32 {sT0}, {sT0}, 7
          v_lshrrev_b32 {t2}, 2, {i}
          v_lshlrev_b32 {t2}, 14, {t2}
          v_and_b32 {t3}, 3, {vL}
          v_lshl_add_u32 {t2}, {t3}, 5, {t2}
          v_lshl_add_u32 {t2}, {g}, 4, {t2}
          v_add_u32 {vY}, {sT0}, {t2}''')
    def swap1317(v):
        e(f'''v_lshrrev_b32 {t4}, 4, {v}
              v_xor_b32 {t4}, {t4}, {v}
              v_and_b32 {t4}, 0x2000, {t4}
              v_lshl_or_b32 {t4}, {t4}, 4, {t4}
              v_xor_b32 {v}, {t4}, {v}''')
        if ypar:
            e(f'v_xor_b32 {v}, 0x2000, {v}')
    if ypar is not None:
        swap1317(vY)
    e(f'''
          s_lshl2_add_u32 {sT1}, {sBH}, {sS}
          s_lshl2_add_u32 {sT1}, {sT1}, {sW}
          s_lshl4_add_u32 {sT1}, {sT1}, {WS_ML}
          v_mov_b32 {t4}, {sT1}
          v_cmp_eq_u32 vcc, 0, {vL}
          v_mul_u32_u24 {t3}, 320, {t3}
          v_cndmask_b32 {vML}, {t5}, {t4}, vcc
          v_lshl_add_u32 {vOR}, {g}, 4, {t3}
          s_mul_i32 {sT0}, {sW}, 320
          s_add_u32 {sT0}, {sT0}, {LDS_O}
          v_and_b32 {t2}, 1, {g}
          v_lshlrev_b32 {t3}, 3, {t2}
          v_lshl_add_u32 {t3}, {i}, 4, {t3}
          v_add_u32 {vOW}, {sT0}, {t3}''')
    if smf:
        e(f'''v_lshrrev_b32 {t3}, 1, {t3}
              v_add_u32 {vOW}, {sT0}, {t3}
              v_bfe_u32 {t3}, {vL}, 2, 1
              v_lshl_add_u32 {vOR}, {t3}, 7, {vOR}''')
    if cw == 4:
        e(f'''s_lshl2_add_u32 {sU}, {sHH}, {sS}
              s_lshr_b32 {sT1}, {sU}, 3
              s_lshl1_add_u32 {sT1}, {sXc}, {sT1}
              s_lshl4_add_u32 {sT1}, {sB}, {sT1}
              s_and_b32 {sT0}, {sU}, 7
              s_lshl_b32 {sT2}, {sT1}, 14
              s_lshl4_add_u32 {sT2}, {sT0}, {sT2}
              v_lshl_add_u32 {vCON}, {vL}, 7, {sT2}
              s_lshl3_add_u32 {sT1}, {sT1}, {sT0}
              s_lshl_b32 {sT1}, {sT1}, 3
              v_lshrrev_b32 {t3}, 1, {g}
              v_lshl_add_u32 {t2}, {t2}, 1, {t3}
              v_lshl_add_u32 {t2}, {t2}, 1, {sT1}
              v_cmp_eq_u32 vcc, 0, {i}
              v_cndmask_b32 {vOUT}, {t5}, {t2}, vcc''')
    else:
        LP = cw // 4
        lg = LP.bit_length() - 1
        e(f'''s_lshl2_add_u32 {sU}, {sHH}, {sS}
              s_lshr_b32 {sT1}, {sU}, 3
              s_lshl1_add_u32 {sT1}, {sXc}, {sT1}
              s_lshl4_add_u32 {sT1}, {sB}, {sT1}
              s_and_b32 {sT0}, {sU}, 7
              s_and_b32 {sCon}, {sU}, {LP-1}
              s_lshl_b32 {sT2}, {sT1}, 14
              s_lshl4_add_u32 {sT2}, {sT0}, {sT2}
              s_lshl_b32 {sS8}, {sW}, 12
              s_add_u32 {sT2}, {sT2}, {sS8}
              v_lshrrev_b32 {t3}, {lg}, {vL}
              v_lshl_add_u32 {t3}, {t3}, 7, {sT2}
              v_and_b32 {t4}, {LP-1}, {vL}
              v_lshl_add_u32 {vCON}, {t4}, 4, {t3}''')
        if ypar is not None:
            swap1317(vCON)
        e(f'''
              s_lshl3_add_u32 {sT1}, {sT1}, {sT0}
              s_lshl_b32 {sT1}, {sT1}, 3
              v_lshrrev_b32 {t3}, 1, {g}
              v_lshl_add_u32 {t2}, {t2}, 1, {t3}
              v_lshl_add_u32 {t2}, {i}, 2, {t2}
              v_lshl_add_u32 {t2}, {t2}, 1, {sT1}
              v_cmp_gt_u32 vcc, {LP}, {i}
              v_cndmask_b32 {vOUT}, {t5}, {t2}, vcc''')
    for _ in range(kpost[1]): kspr()
    e(f'''s_lshl_b32 {sT0}, {sH}, 13
          s_lshl_b32 {sT1}, {sB}, 9
          s_add_u32 {sT0}, {sT0}, {sT1}
          s_add_u32 {sT0}, {sT0}, {WS_Q}
          v_lshlrev_b32 {t2}, 10, {g}
          v_lshl_add_u32 {t2}, {i}, 4, {t2}
          v_add_u32 {vQG}, {sT0}, {t2}
          s_lshl_b32 {sT0}, {sW}, 8
          v_lshl_add_u32 {t2}, {i}, 4, {sT0}
          v_lshl_add_u32 {vWO}, {g}, 13, {t2}
          s_mul_i32 {sU}, {sU}, 12
          s_lshl_b32 {sNch}, {sNch}, 3
          s_lshl3_add_u32 {sT0}, {sC0}, {sU}
          s_lshl_b32 {sT0}, {sT0}, 10
          s_cmp_lt_u32 {sU}, {sNch}
          s_cselect_b32 {sT0}, {sT0}, {OOB}
          s_cselect_b32 {sU}, {sU}, 0
          v_lshl_add_u32 {t2}, {g}, 12, {t2}
          v_add_u32 {t2}, {sT0}, {t2}
          v_cmp_gt_u32 vcc, 3, {g}
          v_cndmask_b32 {vW2}, {t5}, {t2}, vcc''')
    for _ in range(kpost[2]): kspr()
    e(f'''v_and_b32 {t2}, 7, {vL}
          v_cmp_gt_u32 s[24:25], 6, {t2}
          v_lshl_add_u32 {t2}, {t2}, 1, {sU}
          s_movk_i32 {sT1}, {8*HB}
          s_cmp_ge_u32 {sU}, {sT1}
          s_cselect_b32 {sT0}, 0, {sT1}
          v_mov_b32 {t3}, {sT0}
          v_cndmask_b32 {t2}, {t3}, {t2}, s[24:25]
          v_cmp_le_u32 s[24:25], {sT1}, {t2}
          v_cmp_gt_u32 vcc, {sNch}, {t2}
          v_lshrrev_b32 {t4}, 3, {vL}
          v_cndmask_b32 {t3}, 0, 1, s[24:25]
          v_lshl_add_u32 {t4}, {t4}, 1, {t3}
          v_mul_u32_u24 {t4}, {FU_STRIDE}, {t4}
          v_mul_u32_u24 {t3}, {8*HB}, {t3}
          v_sub_u32 {t2}, {t2}, {t3}
          v_bfe_u32 {t3}, {t2}, 1, 1
          v_lshl_add_u32 {t4}, {t3}, 9, {t4}
          v_lshrrev_b32 {t2}, 2, {t2}
          v_lshl_add_u32 {t2}, {t2}, 4, {t4}
          s_mul_i32 {sT0}, {sXc}, {32*FU_STRIDE}
          s_lshl_b32 {sT1}, {sB}, 10
          s_add_u32 {sT0}, {sT0}, {sT1}
          s_add_u32 {sT0}, {sT0}, {WS_FU}
          v_add_u32 {t2}, {sT0}, {t2}
          v_cndmask_b32 {vFG}, {t5}, {t2}, vcc''')
    for nm, r in (('qg', vQG), ('w2', vW2), ('fg', vFG), ('mlpub', vML), ('wo', vWO), ('y', vY), ('con', vCON)):
        if nm in off: e(f'v_mov_b32 {r}, {OOB}')

    slow = []
    def orred(regsl, m, dst, full=()):
        rs = list(regsl)
        if len(rs) == 1:
            e(f'v_and_b32 {t2}, {m}, v{rs[0]}')
        else:
            if len(rs) == 2:
                e(f'v_or_b32 {t2}, v{rs[0]}, v{rs[1]}')
            else:
                e(f'v_or3_b32 {t2}, v{rs[0]}, v{rs[1]}, v{rs[2]}')
                rs = rs[3:]
                while rs:
                    if len(rs) == 1:
                        e(f'v_or_b32 {t2}, {t2}, v{rs[0]}'); rs = []
                    else:
                        e(f'v_or3_b32 {t2}, {t2}, v{rs[0]}, v{rs[1]}'); rs = rs[2:]
            e(f'v_and_b32 {t2}, {m}, {t2}')
        for r in full:
            e(f'v_or_b32 {t2}, {t2}, v{r}')
        e(f'v_cmp_ne_u32 {dst}, 0, {t2}')
    def untag(regsl, vts, m, dst='vcc'):
        for r, vt in zip(regsl, vts):
            e(f'v_xor_b32 v{r}, {vt}, v{r}')
        orred(regsl, m, dst)
    def checked(name, regsl, kinds, ta, tb, m, republish, reissue):
        if 'check' in off:
            return
        def test(sel):
            for r, k in zip(regsl, kinds):
                if k in sel:
                    e(f'v_xor_b32 v{r}, {dict(A=ta, B=tb, F=sEp, G=sXcc)[k]}, v{r}')
            orred([r for r, k in zip(regsl, kinds) if k in sel and k in 'AB'], m, 'vcc',
                  [r for r, k in zip(regsl, kinds) if k in sel and k in 'FG'])
        test('ABFG')
        e(f's_cbranch_vccnz L_slow_{name}\nL_ok_{name}:')
        def emit_slow():
            e(f'L_slow_{name}:')
            republish()
            if slowpen:
                e(f's_mov_b32 {sSpin}, {slowpen}\nL_pen_{name}:\ns_sleep 127\ns_sub_u32 {sSpin}, {sSpin}, 1\ns_cbranch_scc0 L_pen_{name}')
            e(f's_mov_b32 {sSpin}, {spin}')
            e(f'L_miss_{name}:')
            e(f's_mov_b32 {sT1}, 0\ns_sleep 1')
            e(f'L_retry_{name}:')
            if dbgcnt:
                e(f's_add_u32 {sCnt}, {sCnt}, {1 << (8 * ["flag", "q", "fu", "ml"].index(name))}')
            e(f's_sub_u32 {sSpin}, {sSpin}, 1\ns_cbranch_scc1 L_ok_{name}')
            reissue()
            e('s_waitcnt vmcnt(0)')
            test('AF')
            for r, k in zip(regsl, kinds):
                if k == 'B':
                    e(f'v_bfi_b32 v{r}, {m}, 0, v{r}')
            e(f's_cbranch_vccnz L_miss_{name}')
            e(f's_xor_b32 {sT1}, {sT1}, 1\ns_cbranch_scc1 L_retry_{name}\ns_branch L_ok_{name}')
        slow.append(emit_slow)

    state = dict(q=False, kproc=0, soft=False, vproc=0, wop=0, ffn=False, ml=False, budget=catch)
    KT = [26, 27, 24, 25, 20, 21, 22, 23]
    def kpair(n):
        a, b = f'v{KT[0]}', f'v{KT[1]}'
        for k in range(4):
            for r, m in ((a, n), (b, n + 1)):
                e(f'v_dot2_f32_bf16 {r}, v{kreg(m)+k}, v{Q[k]}, {r if k else 0}')
        d1 = f'v{KT[2 + ((n >> 1) & 1)]}'
        e(f'v_add_f32_dpp {d1}, {a}, {a} row_ror:8 row_mask:0xf bank_mask:0x3')
        e(f'v_add_f32_dpp {d1}, {b}, {b} row_ror:8 row_mask:0xf bank_mask:0xc')
        if not (n >> 1) & 1:
            return
        x, y = f'v{KT[2]}', f'v{KT[3]}'
        d2 = f'v{KT[4 + ((n >> 2) & 1)]}'
        e(f'v_add_f32_dpp {d2}, {x}, {x} row_shl:4 row_mask:0xf bank_mask:0x5')
        e(f'v_add_f32_dpp {d2}, {y}, {y} row_shr:4 row_mask:0xf bank_mask:0xa')
        if not (n >> 2) & 1:
            return
        x, y = f'v{KT[4]}', f'v{KT[5]}'
        d3 = f'v{KT[6 + ((n >> 3) & 1)]}'
        e(f'v_add_f32_dpp {x}, {x}, {x} quad_perm:[2,3,0,1] row_mask:0xf bank_mask:0xf')
        e(f'v_add_f32_dpp {y}, {y}, {y} quad_perm:[2,3,0,1] row_mask:0xf bank_mask:0xf')
        e(f'v_cndmask_b32 {d3}, {x}, {y}, {sMC}')
        if not (n >> 3) & 1:
            return
        x, y = f'v{KT[6]}', f'v{KT[7]}'
        s = f'v{S[n >> 4]}'
        e(f'v_add_f32_dpp {x}, {x}, {x} quad_perm:[1,0,3,2] row_mask:0xf bank_mask:0xf')
        e(f'v_add_f32_dpp {y}, {y}, {y} quad_perm:[1,0,3,2] row_mask:0xf bank_mask:0xf')
        e(f'v_cndmask_b32 {s}, {x}, {y}, {sMA}')
        bf16r(s, s)
        e(f'v_mul_f32 {s}, {SCALE}, {s}')
        bf16r(s, s)
    def mlstore(tagger, p):
        e(f'v_bfi_b32 {t2}, {sM12}, {vTA}, {vM}\nv_bfi_b32 {t3}, {sM12}, {vTA}, {vLs}\nv_mov_b32 {t4}, {sEp}\nv_mov_b32 {t5}, {sXcc}')
        tagger(f'buffer_store_dwordx4 v[30:33], {vML}, {SWS}, 0 offen {p}', 'mlpub')
    def softmax():
        stamp()
        e("; ---- softmax over this wave's 256 keys; publish (max, sum); V stream (a0..a63 ring) is consumed from here on")
        e(f'v_max3_f32 {vM}, v{S[0]}, v{S[1]}, v{S[2]}\nv_max_f32 {vM}, {vM}, v{S[3]}')
        rowred('v_max_f32', vM)
        swapred('v_max_f32', vM, t2, 16)
        swapred('v_max_f32', vM, t2, 32)
        for k in range(4):
            e(f'v_sub_f32 v{S[k]}, v{S[k]}, {vM}')
        for k in range(4):
            e(f'v_mul_f32 v{S[k]}, {LOG2E}, v{S[k]}')
        for k in range(4):
            e(f'v_exp_f32 v{S[k]}, v{S[k]}')
        for k in range(4):
            e(f'v_cvt_pk_bf16_f32 v{Q[k]}, v{S[k]}, v{S[k]}')
        e(f'v_add_f32 {vLs}, v{S[0]}, v{S[1]}\nv_add_f32 {t2}, v{S[2]}, v{S[3]}\nv_add_f32 {vLs}, {vLs}, {t2}')
        abuild(0)
        rowred('v_add_f32', vLs)
        swapred('v_add_f32', vLs, t2, 16)
        swapred('v_add_f32', vLs, t2, 32)
        mlstore(e.vmem, '')
        state['soft'] = True
    def abuild(n):
        a = A[n & 1]
        for r in range(4):
            e(f'v_and_b32_dpp v{a+r}, v{Q[n >> 4]}, v{M[r]} row_newbcast:{bitrev4(n & 15)} row_mask:0xf bank_mask:0xf')
    def vstep(n):
        c = rng('v', ACC, 4) if n else '0'
        e(f'v_mfma_f32_16x16x32_bf16 {rng("v", ACC, 4)}, {rng("v", A[n & 1], 4)}, {rng("a", vreg(n), 4)}, {c}')
        if n < 63:
            abuild(n + 1)
    F, DY, STG, G2, W2S, FGR = 128, 96, 64, 48, 224, 240
    stg = lambda k: STG + 4 * (k % 8)
    freg = lambda t, cc: F + 32 * t + 4 * cc
    if smf:
        assert woa and not w2last
        W2S, FGR = 80, 72
        stg = lambda k: STG + 4 * (k % 2)
        freg = lambda t, cc: F + 16 * cc + 4 * t
    def woperm(k):
        t, ee = k >> 3, k & 7
        if woa:
            for kk in (k, k + 1):
                for m in range(4):
                    e(f'v_accvgpr_read_b32 v{stg(kk)+m}, a{AWO+4*kk+m}')
        for m in range(4):
            for hi in range(2):
                e(f'v_perm_b32 v{freg(t, 2*m+hi) + ee//2}, v{stg(k+1)+m}, v{stg(k)+m}, {sSelHi if hi else sSelLo}')
    plain = lambda s, t: e(s)
    AFG, AWO, AW2, AH = 236, 64, 192, 244
    W2L = 80
    assert 4 * vring <= (AWO if woa else 192)
    def fgissue(tagger, p, acc=False):
        for m in range(2):
            if m:
                e(f's_mov_b32 {sT0}, {16*FU_STRIDE*m}')
            tagger(f'buffer_load_dwordx4 {rng("a", AFG+4*m, 4) if acc else rng("v", FGR+4*m, 4)}, {vFG}, {SWS}, {sT0 if m else 0} offen {p}', f'fg{m}')
    def republish(ad, aa):
        e(f'v_accvgpr_read_b32 {t2}, a{aa}\nbuffer_store_dwordx4 {rng("a", ad, 4)}, {t2}, {SWS}, 0 offen sc1')
    def ffn_down():
        if w2a:
            for k in range(16):
                e(f'v_accvgpr_read_b32 v{W2S+k}, a{AW2+k}')
        if n_fg is not None:
            for k in range(8):
                e(f'v_accvgpr_read_b32 v{FGR+k}, a{AFG+k}')
        e('; ---- FFN: h = silu(gate) * up for 12 columns, times the matching rows of w2, into the output accumulators')
        e(f'''v_cmp_gt_u32 vcc, s58, {vFG}
              v_and_b32 {t4}, {sM8}, {vTA}
              v_and_b32 {t5}, {sM8}, {vTB}
              v_cndmask_b32 {t4}, 0, {t4}, vcc
              v_cndmask_b32 {t5}, 0, {t5}, vcc''')
        checked('fu', list(range(FGR, FGR + 8)), 'AAAB' * 2, t4, t5, sM8, lambda: republish(AFD, AFA), lambda: fgissue(plain, 'sc1'))
        for k in (0, 2):
            pk('add', FGR + k, FGR + k, FGR + 4 + k)
        for p in range(0 if w2last else 2):
            for m in range(4):
                for hi in range(2):
                    e(f'v_perm_b32 v{G2 + 2*(2*m+hi) + p}, v{W2S+8*p+4+m}, v{W2S+8*p+m}, {sSelHi if hi else sSelLo}')
        for k in range(4):
            e(f'v_add_f32_dpp v{FGR+k}, v{FGR+k}, v{FGR+k} row_ror:8 row_mask:0xf bank_mask:0xf')
        ga, up = f'v{FGR}', f'v{FGR+1}'
        e(f'''v_permlane32_swap_b32 v{FGR}, v{FGR+2}
              v_permlane32_swap_b32 v{FGR+1}, v{FGR+3}
              v_add_f32 {ga}, v{FGR}, v{FGR+2}
              v_add_f32 {up}, v{FGR+1}, v{FGR+3}''')
        swapred('v_add_f32', ga, t2, 16)
        swapred('v_add_f32', up, t3, 16)
        bf16r(ga, ga)
        bf16r(up, up)
        e(f'''v_mul_f32 {t2}, {LOG2E ^ 0x80000000}, {ga}
              v_exp_f32 {t2}, {t2}
              v_and_b32 {t4}, {7 if smf else 3}, {vL}
              v_add_f32 {t2}, 1.0, {t2}
              v_rcp_f32 {t2}, {t2}
              v_cmp_eq_u32 vcc, 0, {t4}
              v_mul_f32 {ga}, {ga}, {t2}
              v_cndmask_b32 {t4}, 0, -1, vcc''')
        bf16r(ga, ga)
        ha = FGR + 4
        e(f'''v_mul_f32 {ga}, {ga}, {up}
              v_mov_b32 v{ha}, 0
              v_mov_b32 {t2}, {ga}
              v_mov_b32 v{ha+1}, 0
              v_permlane32_swap_b32 {ga}, {t2}
              v_cvt_pk_bf16_f32 {ga}, {ga}, {t2}''')
        for gg in range(3):
            for p in range(2):
                e(f'v_and_b32_dpp v{ha+p}, {ga}, {t4} row_newbcast:{2*gg+p} row_mask:{hex(1 << gg)} bank_mask:0xf')
        if w2last:
            e(f'v_accvgpr_write_b32 a{AH}, v{ha}\nv_accvgpr_write_b32 a{AH+1}, v{ha+1}')
        for cc in range(0 if w2last else 8):
            e(f'v_mfma_f32_16x16x16_bf16 {rng("v", DY+4*cc, 4)}, v[{ha}:{ha+1}], v[{G2+2*cc}:{G2+2*cc+1}], 0')
        state['ffn'] = True
    def mlissue(tagger, p):
        e(f's_lshl_b32 {sT0}, {sBH}, 8\ns_add_u32 {sT0}, {sT0}, {WS_ML}\nv_lshl_add_u32 {vMG}, {i}, 4, {sT0}')
        if 'ml' in off: e(f'v_mov_b32 {vMG}, {OOB}')
        tagger(f'buffer_load_dwordx4 v[{S[0]}:{S[3]}], {vMG}, {SWS}, 0 offen {p}', 'ml')
    def mlcombine():
        e('; ---- combine the 16 (max, sum) pairs of this (batch, head): factor exp(m - M) / L for this wave')
        checked('ml', S, 'AAFG', vTA, vTB, sM12, lambda: mlstore(plain, 'sc1'), lambda: mlissue(plain, 'sc1'))
        mi, li, mx = f'v{S[0]}', f'v{S[1]}', f'v{S[2]}'
        e(f'v_mov_b32 {mx}, {mi}')
        rowred('v_max_f32', mx)
        e(f'''v_sub_f32 {mi}, {mi}, {mx}
              v_sub_f32 {vF}, {vM}, {mx}
              v_mul_f32 {mi}, {LOG2E}, {mi}
              v_mul_f32 {vF}, {LOG2E}, {vF}
              v_exp_f32 {mi}, {mi}
              v_exp_f32 {vF}, {vF}
              v_mul_f32 {li}, {li}, {mi}''')
        rowred('v_add_f32', li)
        e(f'v_rcp_f32 {li}, {li}\nv_mul_f32 {vF}, {vF}, {li}')
        if dual:
            e(f'v_xor_b32 {vY2}, {WS_Y2 | 0x2000}, {vY}\nv_xor_b32 {vC2}, {WS_Y2 | 0x2000}, {vCON}')
        if smf:
            assert state['ffn']
            e(f'v_bfe_u32 {t2}, {vL}, 2, 1\nv_mul_u32_u24 {t2}, 0xaaaa, {t2}\nv_add_u32 {vIdx}, 0x4444, {t2}')
        state['ml'] = True
    complete = lambda tag: tag in e.vm and e.vm.index(tag) < e.done
    def progress():
        if state['q'] and not state['soft']:
            c = 0
            while state['kproc'] < 64 and complete(f'K{state["kproc"]+1}') and c < state['budget']:
                kpair(state['kproc']); state['kproc'] += 2; c += 2
            state['budget'] = catch if c >= 2 or state['budget'] >= 2 * catch else state['budget'] + 1
            if state['kproc'] == 64:
                softmax()
        if state['soft']:
            while state['vproc'] < 64 and complete(f'V{state["vproc"]}'):
                vstep(state['vproc']); state['vproc'] += 1
            while state['wop'] < 32 and complete(f'wo{state["wop"]+1}'):
                if woa and not (state['vproc'] >= 2 + 3 * (state['wop'] // 2) and (smf or state['wop'] < 24 or state['ffn'])):
                    break
                woperm(state['wop']); state['wop'] += 2
            if not state['ffn'] and complete('fg1') and (w2last or complete('w23')):
                ffn_down()
            if not state['ml'] and complete('ml'):
                mlcombine()
    def window():
        d = D
        if Dend and f'V{nend}' in e.vm: d = Dend
        if Dk and 'V0' not in e.vm: d = Dk
        k = len(e.vm) - d
        if k >= e.done:
            e.wait(e.vm[k])
        progress()
    QG = 232
    def qissue(tagger, p):
        for k in range(4):
            if k == 2:
                e(f's_movk_i32 {sT0}, 0x1000')
            tagger(f'buffer_load_dwordx4 {rng("v", QG+4*k, 4)}, {vQG}, {SWS}, {sT0 if k >= 2 else 0} offen offset:{256*(k&1)} {p}', f'qg{k}')
    def qfinish():
        e('; ---- q = sum of the 8 partials, rounded to bf16; from here on K blocks are consumed (dot2 + DPP reduction)')
        e(f'v_and_b32 {t4}, 7, {vTA}\nv_and_b32 {t5}, 7, {vTB}')
        e.wait('qg3')
        checked('q', list(range(QG, QG + 16)), 'AABB' * 4, t4, t5, sM3, lambda: republish(AQD, AQA), lambda: qissue(plain, 'sc1'))
        for k in range(0, 8, 2):
            pk('add', QG + k, QG + k, QG + 8 + k)
        for k in range(4):
            e(f'v_permlane32_swap_b32 v{QG+k}, v{QG+4+k}')
        for k in (0, 2):
            pk('add', QG + k, QG + k, QG + 4 + k)
        e(f'''v_permlane16_swap_b32 v{QG}, v{QG+2}
              v_permlane16_swap_b32 v{QG+1}, v{QG+3}
              v_pk_add_f32 v[{QG}:{QG+1}], v[{QG}:{QG+1}], v[{QG+2}:{QG+3}]
              v_cvt_pk_bf16_f32 v{Q[0]}, v{QG}, v{QG+1}
              v_cvt_pk_bf16_f32 v{Q[1]}, v{QG}, v{QG+1}
              v_permlane16_swap_b32 v{Q[0]}, v{Q[1]}
              v_mov_b32 v{Q[2]}, v{Q[0]}
              v_mov_b32 v{Q[3]}, v{Q[1]}
              v_permlane32_swap_b32 v{Q[0]}, v{Q[2]}
              v_permlane32_swap_b32 v{Q[1]}, v{Q[3]}''')
        state['q'] = True
        stamp()
    wosched = {}
    if woa:
        for k in range(32):
            wosched.setdefault(woa[0] + (k * (woa[1] - woa[0])) // 32, []).append(('wo', k))
    if w2a:
        for k in range(4):
            wosched.setdefault(w2a + 2 * k, []).append(('w2', k))
    def early(stepno):
        for kind, k in wosched.pop(stepno, []):
            window()
            if kind == 'wo':
                e(f's_mov_b32 {sT0}, {(k >> 3)*32768 + ((k >> 2) & 1)*4096}')
                e.vmem(f'buffer_load_dwordx4 {rng("a", AWO+4*k, 4)}, {vWO}, {SWO}, {sT0} offen offset:{1024*(k & 3)} {wpol}', f'wo{k}')
            else:
                e.vmem(f'buffer_load_dwordx4 {rng("a", AW2+4*k, 4)}, {vW2}, {SW2}, 0 offen offset:{1024*k} {wpol}', f'w2{k}')
    e('; ---- K stream (v48..v255 ring); wo rows stream into a[64:191]')
    assert kn[0] <= n_q and all(k >= kn[0] for k in wosched)
    while kn[0] < 64:
        n = kn[0]
        if n == n_q:
            window(); qissue(e.vmem, qpol)
        if mlpre is not None and n == mlpre[0]:
            window(); e.vmem(f'buffer_load_dword a{AH+3}, {vML}, {SWS}, 0 offen {mlpre[1]}', 'mlpre')
        if n == n_fg:
            window(); fgissue(e.vmem, fpol, acc=True)
        if n == n_q + gap:
            assert n <= (QG - KBASE) // 4
            qfinish()
        window()
        if n >= KRING:
            assert state['kproc'] > n - KRING, (n, state)
        kissue()
        early(n)
    extra = {}
    for k in range(4):
        if not w2a and not w2last:
            extra.setdefault(ex0 + k, []).append(('w2', k))
    if n_fg is None:
        extra.setdefault(ex0 + 4, []).append(('fg', 0))
    extra.setdefault(ex0 + 5, []).append(('xres', 0))
    for k in range(0 if woa else 32):
        extra.setdefault(wo_start + (k * (wo_end - wo_start)) // 32, []).append(('wo', k))
    extra.setdefault(n_ml, []).append(('ml', 0))
    if tailpf is not None:
        extra.setdefault(tailpf, []).append(('tpf', 0))
    if opf is not None:
        extra.setdefault(opf, []).append(('opf', 0))
    if ypf is not None:
        extra.setdefault(ypf, []).append(('ypf', 0))
    XR = 39
    nv, m = 0, None
    while nv < 64:
        window()
        assert nv < vring or state['vproc'] > nv - vring, (nv, state)
        e.vmem(f'buffer_load_dwordx4 {rng("a", vreg(nv), 4)}, {vKA}, {SV}, {sVoff} offen {pol}', f'V{nv}')
        if nv < 63:
            e(f's_addk_i32 {sVoff}, 0x1000\ns_and_b32 {sVoff}, {sVoff}, {sMask}')
        early(64 + nv)
        nv += 1
        if state['soft'] and m is None:
            m = 0
        if m is not None:
            for kind, k in extra.pop(m, []):
                window()
                if kind == 'w2':
                    e.vmem(f'buffer_load_dwordx4 {rng("v", W2S+4*k, 4)}, {vW2}, {SW2}, 0 offen offset:{1024*k} {wpol}', f'w2{k}')
                elif kind == 'fg':
                    fgissue(e.vmem, fpol)
                elif kind == 'xres':
                    e.vmem(f'buffer_load_ushort v{XR}, {vOUT}, {SX}, 0 offen {xpol}', 'xres')
                elif kind == 'ml':
                    mlissue(e.vmem, mpol)
                elif kind == 'opf':
                    e.vmem(f'buffer_load_ushort a{AWQ+8}, {vOUT}, {SOUT}, 0 offen', 'opf')
                elif kind == 'ypf':
                    e(f's_cmp_lg_u32 {sCon}, 0\ns_cselect_b32 {sT0}, {OOB}, 0\nv_add_u32 {t3}, {sT0}, {vCON}')
                    for kk in range(cw // 8):
                        e.vmem(f'buffer_load_dwordx4 {rng("a", AWQ+4*kk, 4)}, {t3}, {SWS}, 0 offen offset:{(256 // cw) * 128 * kk} {ypfpol}', f'ypf{kk}')
                elif kind == 'tpf':
                    e(f's_lshl_b32 {sT0}, {sW}, 8\ns_add_u32 {sT0}, {sT0}, L_tail - L_pc\nv_lshl_add_u32 {t3}, {vL}, 2, {sT0}')
                    e.vmem(f'buffer_load_dword v{S[2]}, {t3}, {SCODE}, 0 offen', 'tpf')
                    assert state['ml']
                elif kind == 'wo':
                    assert k < 8 or state['wop'] > k - 8, (k, state)
                    assert k < 24 or state['ffn']
                    e(f's_mov_b32 {sT0}, {(k >> 3)*32768 + ((k >> 2) & 1)*4096}')
                    e.vmem(f'buffer_load_dwordx4 {rng("v", stg(k), 4)}, {vWO}, {SWO}, {sT0} offen offset:{1024*(k & 3)} {wpol}', f'wo{k}')
            m += 1
    assert not extra and not wosched, (extra, wosched)
    if w2last:
        for k in range(4):
            window()
            assert state['wop'] == 32, state
            e.vmem(f'buffer_load_dwordx4 {rng("v", W2L+4*k, 4)}, {vW2}, {SW2}, 0 offen offset:{1024*k} {wpol}', f'w2{k}')
    while state['vproc'] < 64:
        e.wait(f'V{state["vproc"]}')
        if state['vproc'] == 63:
            e('L_tail:')
            stamp('main,tail,head')
        progress()
    assert state['wop'] == 32 and state['ffn'] and state['ml'], state
    e("; ---- tail: scale o, exchange the four waves' o through LDS (one sparse A row pair per wave), multiply by wo, publish")
    assert vF == 'v47'
    e(f'''v_pk_mul_f32 v[{ACC}:{ACC+1}], v[{ACC}:{ACC+1}], v[46:47] op_sel:[0,1] op_sel_hi:[1,1]
          v_pk_mul_f32 v[{ACC+2}:{ACC+3}], v[{ACC+2}:{ACC+3}], v[46:47] op_sel:[0,1] op_sel_hi:[1,1]
          v_cvt_pk_bf16_f32 v{ACC}, v{ACC}, v{ACC+1}
          v_cvt_pk_bf16_f32 v{ACC+1}, v{ACC+2}, v{ACC+3}
          ''' + (f'ds_write2_b32 {vOW}, v{ACC}, v{ACC+1} offset0:0 offset1:32' if smf else f'ds_write_b64 {vOW}, v[{ACC}:{ACC+1}]'))
    stamp('tail')
    e('s_waitcnt lgkmcnt(0)\ns_barrier')
    stamp('tail')
    if stamps and stset == 'tail':
        e('s_waitcnt lgkmcnt(0)')
    AF = STG
    for t in range(2 if smf else 4):
        e(f'ds_read_b128 {rng("v", AF+4*t, 4)}, {vOR} offset:{LDS_O+64*t}')
    Z = A[0]
    def tile_add(cc):
        pk('add', DY + 4 * cc, DY + 4 * cc, DY + 4 * cc + 2)
    def tile_fin(cc):
        d = DY + 4 * cc
        if cc < 4:
            e(f'v_add_f32 v{Z+cc}, v{d}, v{d+1}')
        else:
            e(f'v_add_f32_dpp v{Z+cc-4}, v{d}, v{d+1} quad_perm:[0,1,2,3] row_mask:0x2 bank_mask:0xf')
            if not w2last:
                e(f'v_bfi_b32 v{Z+cc-4}, {sM12}, {vTA}, v{Z+cc-4}')
    if smf:
        order = [0, 4, 1, 5, 2, 6, 3, 7]
        post = []
        for n, cc in enumerate(order):
            d = DY + 4 * cc
            post.append([f'v_pk_add_f32 v[{d}:{d+1}], v[{d}:{d+1}], v[{d+2}:{d+3}]', f'v_add_f32 v{d}, v{d}, v{d+1}'])
            if cc >= 4:
                d0 = DY + 4 * (cc - 4)
                post[-1] += [f'v_permlane16_swap_b32 v{d0}, v{d}', f'v_add_f32 v{Z+cc-4}, v{d0}, v{d}', f'v_bfi_b32 v{Z+cc-4}, {sM12}, {vTA}, v{Z+cc-4}']
        queue = []
        for n, cc in enumerate(order):
            if n >= 3:
                queue += post[n - 3]
            for T in range(2):
                if n == 0:
                    e(f's_waitcnt lgkmcnt({1-T})')
                e(f'v_smfmac_f32_16x16x64_bf16 {rng("v", DY+4*cc, 4)}, {rng("v", AF+4*T, 4)}, {rng("v", freg(2*T, cc), 8)}, {vIdx}')
                for _ in range(2):
                    if queue:
                        e(queue.pop(0))
        for n in (5, 6, 7):
            queue += post[n]
        for ins in queue:
            e(ins)
        e('s_mov_b32 exec_hi, 0')
    for cc in range(0 if smf else 8):
        for t in range(4):
            if cc == 0:
                e(f's_waitcnt lgkmcnt({3-t})')
            e(f'v_mfma_f32_16x16x32_bf16 {rng("v", DY+4*cc, 4)}, {rng("v", AF+4*t, 4)}, {rng("v", freg(t, cc), 4)}, {0 if w2last and t == 0 else rng("v", DY+4*cc, 4)}')
            if cc >= 2 and t == 1:
                tile_add(cc - 2)
            if cc >= 2 and t == 3:
                tile_fin(cc - 2)
    if w2last:
        def fperm(cc):
            for p in range(2):
                e(f'v_perm_b32 v{G2+2*cc+p}, v{W2L+8*p+4+cc//2}, v{W2L+8*p+cc//2}, {sSelHi if cc & 1 else sSelLo}')
        def fadd(cc):
            e(f'v_add_f32_dpp v{Z+(cc&3)}, v{DY+4*cc}, v{Z+(cc&3)} quad_perm:[0,1,2,3] row_mask:{hex(1 << (cc >> 2))} bank_mask:0xf')
            if cc >= 4:
                e(f'v_bfi_b32 v{Z+cc-4}, {sM12}, {vTA}, v{Z+cc-4}')
        tile_add(6)
        e.wait('w23')
        fperm(0)
        for cc in range(8):
            if cc < 7:
                fperm(cc + 1)
            if cc == 1:
                tile_add(7); tile_fin(6)
            if cc == 2:
                tile_fin(7)
            e(f'v_mfma_f32_16x16x16_bf16 {rng("v", DY+4*cc, 4)}, a[{AH}:{AH+1}], v[{G2+2*cc}:{G2+2*cc+1}], 0')
            if cc >= 3:
                fadd(cc - 3)
        e('s_mov_b32 exec_hi, 0')
        for cc in (5, 6, 7):
            fadd(cc)
    elif not smf:
        tile_add(6)
        e('s_mov_b32 exec_hi, 0')
        tile_add(7)
        tile_fin(6)
        tile_fin(7)
    e(f'buffer_store_dwordx4 {rng("v", Z, 4)}, {vY}, {SWS}, 0 offen {ypol}')
    if dual:
        e(f'buffer_store_dwordx4 {rng("v", Z, 4)}, {vY2}, {SWS}, 0 offen {ypol}')
    if wbl2 is not None:
        e(f's_lshl2_add_u32 {sT1}, s2, {sW}\ns_lshr_b32 {sT2}, {sT1}, 5\ns_and_b32 {sT1}, {sT1}, 3\ns_lshl2_add_u32 {sT1}, {sT2}, {sT1}\ns_cmp_lg_u32 {sT1}, {wbl2 * 4 + 1}\ns_cbranch_scc1 L_nowb\nbuffer_wbl2 sc1\nL_nowb:')
    if cw == 4:
        e(f's_cmp_lg_u32 {sW}, {stwave}\ns_cbranch_scc1 L_end')
        stamp('main,tail')
        if stamps and stset == 'tail':
            e('s_waitcnt vmcnt(0)')
            stamp('tail')
        C = STG
        mA, mB = 's[24:25]', 's[26:27]'
        e(f's_mov_b32 {sSpin}, {spin}\ns_movk_i32 {sT0}, 0x2000\ns_mov_b64 {mA}, -1\ns_mov_b64 {mB}, -1')
        if few:
            e(f's_lshr_b32 {sT1}, s2, 3\ns_and_b32 {sT1}, {sT1}, {few}\ns_cbranch_scc1 L_polled')
        e('L_poll:')
        e(f'''s_mov_b64 exec, {mA}
              buffer_load_dwordx4 {rng("v", C, 4)}, {vCON}, {SWS}, 0 offen sc1
              s_mov_b64 exec, {mB}
              buffer_load_dwordx4 {rng("v", C+4, 4)}, {vCON}, {SWS}, {sT0} offen sc1
              s_sub_u32 {sSpin}, {sSpin}, 1
              s_cbranch_scc1 L_polled
              s_mov_b64 exec, {mA}
              s_waitcnt vmcnt(0)''')
        untag(list(range(C, C + 4)), [vTA] * 4, sM12, dst=mA)
        e(f's_mov_b64 exec, {mB}')
        untag(list(range(C + 4, C + 8)), [vTA] * 4, sM12, dst=mB)
        e(f's_or_b64 vcc, {mA}, {mB}')
        if 'con' in off: e('s_branch L_polled')
        if asleep:
            thr, big = asleep
            e(f'''s_cbranch_scc0 L_polled
                  s_bcnt1_i32_b64 {sT1}, {mA}
                  s_bcnt1_i32_b64 {sT2}, {mB}
                  s_add_u32 {sT1}, {sT1}, {sT2}
                  s_cmp_le_u32 {sT1}, {thr}
                  s_cbranch_scc1 L_poll
                  s_sleep {big}
                  s_branch L_poll''')
        elif sleep:
            e(f's_cbranch_scc0 L_polled\ns_sleep {sleep}\ns_branch L_poll')
        else:
            e('s_cbranch_scc1 L_poll')
        e('L_polled:')
        e('s_mov_b64 exec, -1')
        stamp('main,tail')
        pk('add', C, C, C + 4); pk('add', C + 2, C + 2, C + 6)
        e(f'''v_lshlrev_b32 v{XR}, 16, v{XR}
              v_permlane32_swap_b32 v{C}, v{C+1}
              v_permlane32_swap_b32 v{C+2}, v{C+3}
              v_add_f32 v{C}, v{C}, v{C+1}
              v_add_f32 v{C+2}, v{C+2}, v{C+3}
              v_permlane16_swap_b32 v{C}, v{C+2}
              v_add_f32 v{C}, v{C}, v{C+2}''')
        rowred('v_add_f32', f'v{C}')
        e(f'''v_add_f32 v{C}, v{C}, v{XR}
              v_cvt_pk_bf16_f32 v{C}, v{C}, v{C}
              buffer_store_short v{C}, {vOUT}, {SOUT}, 0 offen''')
    else:
        LP = cw // 4
        NL = LP // 2
        step = (64 // LP) * 128
        C = STG
        mk = [f's[{68+2*k}:{69+2*k}]' for k in range(NL)]
        if stamps:
            e(f's_cmp_lg_u32 {sCon}, 0\ns_cselect_b32 {sT1}, {sW}, 0\ns_cmp_lg_u32 {sT1}, 0\ns_cbranch_scc1 L_end')
            stamp('main,tail,poll')
            if stset == 'poll':
                e('s_waitcnt lgkmcnt(0)\ns_mov_b64 s[6:7], s[4:5]\ns_mov_b64 s[8:9], s[4:5]\ns_mov_b64 s[10:11], s[4:5]\ns_mov_b64 s[12:13], s[4:5]')
            e(f's_mov_b32 {sSpin}, {spin}\ns_cmp_lg_u32 {sCon}, 0\ns_cbranch_scc1 L_nocon')
        else:
            e(f's_cmp_lg_u32 {sCon}, 0\ns_cbranch_scc1 L_end')
        e('; ---- 64 workgroups sum 16 output columns over the 128 partials; only missing words are polled again')
        e(f'''s_mov_b32 {sSpin}, {spin}
              s_mov_b32 exec_hi, -1
              s_lshl_b32 {sT1}, {sW}, 8
              v_lshl_add_u32 {t4}, {vL}, 2, {sT1}
              v_lshlrev_b32 {t3}, 2, {vL}
              v_lshlrev_b32 v{XR}, 16, v{XR}''')
        for k in range(NL):
            e(f's_mov_b64 {mk[k]}, -1')
        e('L_poll:')
        if stamps and stset == 'poll':
            e('s_memrealtime s[8:9]')
        for k in range(NL):
            e(f's_mov_b64 exec, {mk[k]}')
            e(f'buffer_load_dwordx4 {rng("v", C+4*k, 4)}, {vCON}, {SWS}, 0 offen offset:{step*k} {ppol}')
        e(f's_sub_u32 {sSpin}, {sSpin}, 1\ns_cbranch_scc1 L_polled')
        for k in range(NL):
            e(f's_mov_b64 exec, {mk[k]}')
            if k == 0:
                e('s_waitcnt vmcnt(0)')
                if stamps and stset == 'poll':
                    e(f's_cmp_lg_u32 {sSpin}, {spin-1}\ns_cbranch_scc1 L_nf\ns_memrealtime s[6:7]\nL_nf:')
                    nst[0] = 3
            untag(list(range(C + 4*k, C + 4*k + 4)), [vTA] * 4, sM12, dst=mk[k])
        if NL == 1:
            e(f's_or_b64 vcc, {mk[0]}, {mk[0]}')
        else:
            e(f's_or_b64 vcc, {mk[0]}, {mk[1]}')
            for k in range(2, NL):
                e(f's_or_b64 vcc, vcc, {mk[k]}')
        if dual:
            thr, big = asleep
            def dcheck(src):
                for k in range(NL):
                    e(f's_mov_b64 exec, {mk[k]}')
                    for r in range(4):
                        e(f'v_xor_b32 v{C+4*k+r}, {vTA}, v{src+4*k+r}')
                    orred(list(range(C + 4*k, C + 4*k + 4)), sM12, mk[k])
                e(f's_or_b64 vcc, {mk[0]}, {mk[-1]}')
                for k in range(1, NL - 1):
                    e(f's_or_b64 vcc, vcc, {mk[k]}')
                e('s_cbranch_scc0 L_polled')
            e('s_cbranch_scc0 L_polled\nL_poll2:')
            e(f's_bcnt1_i32_b64 {sT1}, vcc\ns_cmp_gt_u32 {sT1}, {thr}\ns_cbranch_scc1 L_slp')
            for cp, va in ((0, vC2), (1, vCON)):
                for k in range(NL):
                    e(f's_or_b64 exec, {mk[k]}, 1')
                    e(f'buffer_load_dwordx4 {rng("v", F+4*(NL*cp+k), 4)}, {va}, {SWS}, 0 offen offset:{step*k} {ppol}')
            e(f's_sub_u32 {sSpin}, {sSpin}, 1\ns_cbranch_scc1 L_polled')
            e(f's_waitcnt vmcnt({NL})')
            dcheck(F)
            e('s_waitcnt vmcnt(0)')
            dcheck(F + 4 * NL)
            e(f's_branch L_poll2\nL_slp:\ns_sleep {big}\ns_branch L_poll')
        elif pipe:
            thr, big, P, gapsl = pipe
            e(f'''s_cbranch_scc0 L_polled
                  s_bcnt1_i32_b64 {sT1}, vcc
                  s_cmp_le_u32 {sT1}, {thr}
                  s_cbranch_scc1 L_pp''')
            if big:
                e(f's_sleep {big}')
            e('s_branch L_poll\nL_pp:')
            def pissue(p):
                for k in range(NL):
                    e(f's_or_b64 exec, {mk[k]}, 1')
                    e(f'buffer_load_dwordx4 {rng("v", F+4*(NL*p+k), 4)}, {vCON}, {SWS}, 0 offen offset:{step*k} {ppol}')
            for p in range(P):
                pissue(p)
                if p < P - 1:
                    e(f's_sleep {gapsl + 1}')
            e('L_ppl:')
            for p in range(P):
                e(f's_waitcnt vmcnt({NL*(P-1)})')
                for k in range(NL):
                    e(f's_mov_b64 exec, {mk[k]}')
                    for r in range(4):
                        e(f'v_xor_b32 v{C+4*k+r}, {vTA}, v{F+4*(NL*p+k)+r}')
                    orred(list(range(C + 4*k, C + 4*k + 4)), sM12, mk[k])
                e(f's_or_b64 vcc, {mk[0]}, {mk[-1]}')
                for k in range(1, NL - 1):
                    e(f's_or_b64 vcc, vcc, {mk[k]}')
                e('s_cbranch_scc0 L_polled')
                pissue(p)
                if gapsl:
                    e(f's_sleep {gapsl}')
            e(f's_sub_u32 {sSpin}, {sSpin}, 1\ns_cbranch_scc0 L_ppl')
        elif asleep:
            thr, big = asleep
            e(f'''s_cbranch_scc0 L_polled
                  s_bcnt1_i32_b64 {sT1}, vcc
                  s_cmp_le_u32 {sT1}, {thr}
                  s_cbranch_scc1 L_poll
                  s_sleep {big}
                  s_branch L_poll''')
        elif sleep:
            e(f's_cbranch_scc0 L_polled\ns_sleep {sleep}\ns_branch L_poll')
        else:
            e('s_cbranch_scc1 L_poll')
        e('L_polled:')
        e('s_mov_b64 exec, -1')
        stamp('main,tail,poll')
        if NL == 4:
            pk('add', C, C, C + 4); pk('add', C + 8, C + 8, C + 12); pk('add', C + 2, C + 2, C + 6); pk('add', C + 10, C + 10, C + 14)
            pk('add', C, C, C + 8); pk('add', C + 2, C + 2, C + 10)
        elif NL == 2:
            pk('add', C, C, C + 4); pk('add', C + 2, C + 2, C + 6)
        e(f'''v_permlane32_swap_b32 v{C}, v{C+1}
              v_permlane32_swap_b32 v{C+2}, v{C+3}
              v_add_f32 v{C}, v{C}, v{C+1}
              v_add_f32 v{C+2}, v{C+2}, v{C+3}
              v_permlane16_swap_b32 v{C}, v{C+2}
              v_add_f32 v{C}, v{C}, v{C+2}''')
        for d in (8, 4, 2):
            if LP <= d:
                e(f'v_add_f32_dpp v{C}, v{C}, v{C} row_ror:{d} row_mask:0xf bank_mask:0xf')
        e(f'''ds_write_b32 {t4}, v{C}
              s_waitcnt lgkmcnt(0)
              s_barrier
              s_cmp_lg_u32 {sW}, {stwave}
              s_cbranch_scc1 L_end''')
        stamp('poll')
        e(f'''ds_read2st64_b32 v[{C}:{C+1}], {t3} offset0:0 offset1:1
              ds_read2st64_b32 v[{C+2}:{C+3}], {t3} offset0:2 offset1:3
              s_waitcnt lgkmcnt(0)''')
        pk('add', C, C, C + 2)
        e(f'''v_add_f32 v{C}, v{C}, v{C+1}
              v_add_f32 v{C}, v{C}, v{XR}
              v_cvt_pk_bf16_f32 v{C}, v{C}, v{C}
              buffer_store_short v{C}, {vOUT}, {SOUT}, 0 offen {opol}''')
    e('; ---- workgroup 0 advances the epoch: every workgroup read it before publishing anything this one waited for')
    e(f'''s_cmp_eq_u32 s2, 0
          s_cselect_b32 {sT0}, {WS_EP}, {OOB}
          v_mov_b32 {t2}, {sEp}
          v_mov_b32 {t3}, {sT0}
          s_mov_b64 exec, 1
          buffer_store_dword {t2}, {t3}, {SWS}, 0 offen {epol}''')
    if fixdur:
        e('s_cmp_lg_u32 s2, 0\ns_cbranch_scc1 L_end')
        if amp == -1:
            e(f's_waitcnt vmcnt(0)\ns_memrealtime s[24:25]\ns_waitcnt lgkmcnt(0)\ns_sub_u32 s1, s24, s100\ns_mul_i32 s1, s1, 10\ns_add_u32 s1, s1, {fixdur}')
        elif amp is not None:
            e(f's_waitcnt lgkmcnt(0)\ns_sub_u32 s1, s{stamp_regs[amp]}, s100\ns_mul_i32 s1, s1, 10\ns_add_u32 s1, s1, {fixdur}')
        else:
            e(f's_mov_b32 s1, {fixdur}')
        e('L_hold:\ns_memrealtime s[24:25]\ns_waitcnt lgkmcnt(0)\ns_sub_u32 s24, s24, s100\ns_cmp_lt_u32 s24, s1\ns_cbranch_scc1 L_hold\ns_endpgm')
    if stamps:
        if cw != 4:
            e(f's_branch L_st\nL_nocon:\ns_mov_b64 exec, 1\ns_waitcnt lgkmcnt(0)\ns_mov_b64 s[{stamp_regs[nst[0]-1]}:{stamp_regs[nst[0]-1]+1}], s[{stamp_regs[nst[0]-2]}:{stamp_regs[nst[0]-2]+1}]\nL_st:')
        stamp('tail')
        e('s_waitcnt vmcnt(0)')
        stamp('main,tail,head,poll')
        e(f's_waitcnt lgkmcnt(0)\ns_lshl_b32 s0, {sId}, 7\ns_add_u32 s0, s0, 0x20000000\nv_mov_b32 v0, 0')
        for k, r in enumerate([100] + stamp_regs[:nst[0]]):
            e(f'v_mov_b32 v2, s{r}\nv_mov_b32 v3, s{r+1}\nbuffer_store_dwordx2 v[2:3], v0, s[20:23], s0 offen offset:{8*k}')
        if clk:
            e(f's_memtime s[24:25]\ns_waitcnt lgkmcnt(0)\ns_sub_u32 s24, s24, s98\ns_sub_u32 {sSpin}, 400000, s24')
            e(f'v_mov_b32 v2, 0\nv_mov_b32 v3, {sSpin}\nbuffer_store_dwordx2 v[2:3], v0, s[20:23], s0 offen offset:120')
        if dbgcnt:
            e(f'v_mov_b32 v2, {sCnt}\nv_mov_b32 v3, {sSpin}\nbuffer_store_dwordx2 v[2:3], v0, s[20:23], s0 offen offset:120')
    e('L_end:\ns_endpgm')
    e('; ---- retry paths: publish own words write-through, then poll until the launch tags match twice in a row')
    for f in slow:
        f()
    e('L_codeend:')
    e.raw('.rept 64\n    s_nop 0\n.endr')
    e.raw('.section .rodata,"a"\n.p2align 6')
    e.raw(kernel_desc(K, 512, 102, accum=256))
    return e.text(), LDS, nst[0] + 1, e.nops

if __name__ == '__main__':
    cfgs = {}
    def add(name, **kw):
        cfgs[name] = kw
    exec(open(sys.argv[1]).read())
    BF = os.environ.get('BFLAGS', '-n 15 -c')
    os.makedirs('co', exist_ok=True)
    names = []
    for name, kw in cfgs.items():
        t, lds, ns, nops = gen(**kw)
        build(t, f'co/{name}')
        st = f'-t {ns}' if kw.get('stamps') else ''
        names.append(f'co/{name}.co')
        print(name, 'nops', nops, 'len', len(t))
    open('run.sh', 'w').write(f'#!/bin/bash\ntimeout 300 ./bench {BF} {st} {NAME}_kernel:256:256:{lds} ' + ' '.join(names) + '\n')
```
